```python
import torch

def _softmax(x, axis=-1):
    return torch.softmax(x, dim=axis)

def _gelu(x):
    return torch.nn.functional.gelu(x, approximate='tanh')

def _silu(x):
    return torch.nn.functional.silu(x)

def _sigmoid(x):
    return torch.sigmoid(x)

def _layernorm(x, axis=-1, eps=1e-05):
    m = x.mean(dim=axis, keepdim=True)
    v = x.var(dim=axis, keepdim=True, unbiased=False)
    return (x - m) / torch.sqrt(v + eps)

def _scatter_add(tgt, idx, src, axis=0):
    return tgt.clone().index_add_(axis, idx, src)

def _segment_sum(src, seg, n):
    out = torch.zeros((n,) + src.shape[1:], dtype=src.dtype)
    return out.index_add_(0, seg, src)

def _pad(x, pw):
    flat = tuple((v for pair in reversed(pw) for v in pair))
    return torch.nn.functional.pad(x, flat)
kernel_name = 'sequential_preLN__ssm_conv_s4d__mixer_gmlp__prompt'

def setup_inputs():

    _w = lambda a: (lambda t: t.to(torch.bfloat16) if t.is_floating_point() else t)(torch.as_tensor(a))

    def _A_setup():
        Bsz, L, D, N = (1, 2048, 640, 192)
        return {'u': _w((lambda *s: torch.randn(*s, dtype=torch.bfloat16) * 0.05)(Bsz, L, D)), 'log_A_real': _w((lambda *s: torch.randn(*s, dtype=torch.bfloat16) * 6.4)(D, N) * 0.5), 'A_imag': _w((lambda *s: torch.randn(*s, dtype=torch.bfloat16) * 0.05)(D, N) * 3.14), 'C_real': _w((lambda *s: torch.randn(*s, dtype=torch.bfloat16) * 0.05)(D, N) / N ** 0.5), 'C_imag': _w((lambda *s: torch.randn(*s, dtype=torch.bfloat16) * 0.05)(D, N) / N ** 0.5), 'log_dt': _w((lambda *s: torch.randn(*s, dtype=torch.bfloat16) * 0.05)(D) * 0.5 - 4.0), 'D_skip': _w((lambda *s: torch.randn(*s, dtype=torch.bfloat16) * 0.05)(D))}
    _A_in = _A_setup()

    def _B_setup():
        B, S, D, F = (1, 2048, 640, 1536)
        Fh = F // 2
        return {'x': _w((lambda *s: torch.randn(*s, dtype=torch.bfloat16) * 0.05)(B, S, D)), 'w_in': _w((lambda *s: torch.randn(*s, dtype=torch.bfloat16) * 0.4)(D, 2 * Fh)), 'w_sp': _w(0.01 * (lambda *s: torch.randn(*s, dtype=torch.bfloat16) * 0.4)(S, S)), 'b_sp': _w(1.0 + 0.01 * (lambda *s: torch.randn(*s, dtype=torch.bfloat16) * 0.05)(S)), 'w_out': _w((lambda *s: torch.randn(*s, dtype=torch.bfloat16) * 0.05)(Fh, D))}
    _B_in = _B_setup()
    return {'A_u': _A_in['u'], 'A_log_A_real': _A_in['log_A_real'], 'A_A_imag': _A_in['A_imag'], 'A_C_real': _A_in['C_real'], 'A_C_imag': _A_in['C_imag'], 'A_log_dt': _A_in['log_dt'], 'A_D_skip': _A_in['D_skip'], 'B_x': _B_in['x'], 'B_w_in': _B_in['w_in'], 'B_w_sp': _B_in['w_sp'], 'B_b_sp': _B_in['b_sp'], 'B_w_out': _B_in['w_out']}

def reference(A_u, A_log_A_real, A_A_imag, A_C_real, A_C_imag, A_log_dt, A_D_skip, B_x, B_w_in, B_w_sp, B_b_sp, B_w_out):

    def _A_ref(u, log_A_real, A_imag, C_real, C_imag, log_dt, D_skip):
        L = u.shape[1]
        dt = torch.exp(log_dt)
        A = -torch.exp(log_A_real) + 1j * A_imag
        C = (C_real + 1j * C_imag) * dt[:, None]
        pos = (lambda x, dt: x.to(dt))(torch.arange(L), log_dt.dtype)
        P = torch.exp((A * dt[:, None])[:, :, None] * pos[None, None, :])
        K = 2.0 * torch.einsum('dn,dnl->dl', C, P).real
        L2 = 2 * L
        u_t = (lambda x, *d: x.permute(*d))(u, 0, 2, 1)
        Kf = (lambda x, *a, **k: torch.fft.rfft(x.float(), *a, **k))(K, L2)
        Uf = (lambda x, *a, **k: torch.fft.rfft(x.float(), *a, **k))(u_t, L2)
        y = (lambda x, *a, **k: torch.fft.irfft(x, *a, **k).to(torch.bfloat16))(Uf * Kf[None, :, :], L2)[:, :, :L]
        y = (lambda x, *d: x.permute(*d))(y, 0, 2, 1)
        return y + u * D_skip[None, None, :]

    def _B_ref(x, w_in, w_sp, b_sp, w_out):
        B, S, D = x.shape
        F = w_in.shape[-1]
        Fh = F // 2
        z = _gelu(torch.einsum('bsd,df->bsf', x, w_in))
        z1 = z[..., :Fh].clone()
        z2 = _layernorm(z[..., Fh:], axis=-1)
        g = torch.einsum('ts,bsf->btf', w_sp, z2) + b_sp[None, :, None]
        return torch.einsum('bsf,fd->bsd', z1 * g, w_out)
    x = A_u
    h = x + _A_ref(_layernorm(x, axis=-1), A_log_A_real, A_A_imag, A_C_real, A_C_imag, A_log_dt, A_D_skip)
    h2 = h + _B_ref(_layernorm(h, axis=-1), B_w_in, B_w_sp, B_b_sp, B_w_out)
    return h2
```

```python
import re

TRANS = ('v_exp_f32', 'v_log_f32', 'v_rcp_f32', 'v_rsq_f32', 'v_sqrt_f32', 'v_sin_f32', 'v_cos_f32', 'v_rcp_iflag_f32')

def _regs(tok):
    tok = tok.strip()
    tok = re.sub(r'^-', '', tok)
    m = re.match(r'^abs\((.*)\)$', tok) or re.match(r'^\|(.*)\|$', tok)
    if m: tok = m.group(1)
    m = re.match(r'^([vsa])(\d+)$', tok)
    if m: return {(m.group(1), int(m.group(2)))}
    m = re.match(r'^([vsa])\[(\d+):(\d+)\]$', tok)
    if m: return {(m.group(1), i) for i in range(int(m.group(2)), int(m.group(3))+1)}
    if tok == 'vcc': return {('s', 106), ('s', 107)}
    if tok == 'vcc_lo': return {('s', 106)}
    if tok == 'vcc_hi': return {('s', 107)}
    if tok == 'm0': return {('m0', 0)}
    if tok in ('exec', 'exec_lo', 'exec_hi'): return {('exec', 0)}
    return set()

class Ins:
    def __init__(s, text):
        s.text = text
        t = text.split(';')[0].strip()
        s.label = None; s.op = None
        s.w = set(); s.r = set(); s.cls = 'other'
        s.srcC = set(); s.srcAB = set(); s.passes = 0
        s.ws = 1
        s.flags = set()
        if t.endswith(':'):
            s.label = t[:-1]; s.ws = 0; s.cls = 'label'; return
        if not t or t.startswith('.'):
            s.ws = 0; s.cls = 'dir'; return
        parts = t.split(None, 1)
        op = parts[0]; s.op = op
        rest = parts[1] if len(parts) > 1 else ''
        ops = []; cur = ''; depth = 0
        for ch in rest:
            if ch in '[(': depth += 1
            if ch in '])': depth -= 1
            if ch == ',' and depth == 0: ops.append(cur.strip()); cur = ''
            else: cur += ch
        if cur.strip(): ops.append(cur.strip())
        mods = ''
        if ops:
            last = ops[-1].split(None, 1)
            ops[-1] = last[0]; mods = last[1] if len(last) > 1 else ''
        s.ops = ops; s.mods = mods
        R = [_regs(o) for o in ops]
        def U(l):
            o = set()
            for x in l: o |= x
            return o
        if op == 's_nop':
            s.ws = int(ops[0], 0) + 1; s.cls = 'salu'
        elif op.startswith('v_mfma'):
            s.cls = 'mfma'; s.w = R[0]; s.srcAB = R[1] | R[2]; s.srcC = R[3]; s.r = s.srcAB | s.srcC
            s.passes = 8 if '32x32x16' in op else 4 if '16x16x32' in op else None
            assert s.passes, op
        elif op.startswith('v_'):
            s.cls = 'valu'
            base = re.sub(r'_(e32|e64|dpp|sdwa)$', '', op)
            if base in TRANS: s.flags.add('trans')
            if base.startswith('v_cmpx'): raise Exception('no v_cmpx please')
            if base.startswith('v_cmp'):
                s.w = R[0]; s.r = U(R[1:])
            elif base.startswith('v_readfirstlane') or base.startswith('v_readlane'):
                s.w = R[0]; s.r = U(R[1:]); s.flags.add('readlane')
            elif base.startswith('v_writelane'):
                s.w = R[0]; s.r = U(R); s.flags.add('writelane')
            elif re.match(r'v_(add|sub|subrev)_co_', base):
                s.w = R[0] | R[1]; s.r = U(R[2:])
            elif re.match(r'v_(addc|subb|subbrev)_co_', base):
                s.w = R[0] | R[1]; s.r = U(R[2:])
            elif base.startswith('v_permlane') :
                s.w = R[0] | R[1]; s.r = R[0] | R[1]; s.flags.add('permlane')
            elif base.startswith('v_swap'):
                s.w = R[0] | R[1]; s.r = R[0] | R[1]
            else:
                s.w = R[0]; s.r = U(R[1:])
                if base.startswith(('v_fmac', 'v_dot2c', 'v_pk_fmac', 'v_fmaak', 'v_fmamk')) and base.startswith(('v_fmac', 'v_dot2c', 'v_pk_fmac')): s.r |= R[0]
                if base.startswith('v_cndmask') and len(ops) == 3: s.r |= _regs('vcc')
            if base.startswith('v_dot'): s.flags.add('dot')
            if op.endswith('_dpp') or 'row_' in mods or 'quad_perm' in mods or 'wave_' in mods:
                s.flags.add('dpp'); s.r |= R[0]
            if op.endswith('_sdwa') and 'dst_sel' in mods and 'dst_sel:DWORD' not in mods: s.flags.add('opsel'); s.r |= R[0]
            if ('op_sel:' in mods) and not base.startswith('v_pk_') and not base.startswith('v_dot') and not base.startswith('v_fma_mix_f32'):
                s.flags.add('opsel')
            if base.startswith(('v_fma_mixlo', 'v_fma_mixhi')): s.flags.add('opsel'); s.r |= R[0]
        elif op.startswith('ds_'):
            s.cls = 'ds'
            if op.startswith(('ds_read', 'ds_bpermute', 'ds_permute', 'ds_swizzle')):
                s.w = R[0]; s.r = U(R[1:])
                if 'd16' in op: s.r |= R[0]
            else:
                s.r = U(R)
                if 'rtn' in op: s.w = R[0]; s.r = U(R[1:])
            if 'addtid' in op: s.flags.add('m0use')
        elif op.startswith('buffer_') or op.startswith('global_'):
            s.cls = 'vmem'
            allm = (' ' + mods + ' ')
            if op in ('buffer_wbl2', 'buffer_inv'):
                pass
            elif ' lds ' in allm or '_lds_' in op:
                s.r = U(R); s.flags.add('m0use')
            elif '_load_' in op:
                s.w = R[0]; s.r = U(R[1:])
                if 'd16' in op: s.r |= R[0]
            elif '_store_' in op:
                s.r = U(R)
                data = R[0] if op.startswith('buffer_') else R[1]
                if op.endswith(('x3', 'x4')): s.flags.add('widestore'); s.sdata = data
            elif '_atomic_' in op:
                s.r = U(R)
                if ' sc0 ' in allm: s.w = R[0]
            else: raise Exception(op)
        elif op.startswith('s_'):
            s.cls = 'salu'
            if op.startswith(('s_load', 's_buffer_load', 's_memtime', 's_memrealtime')):
                s.cls = 'smem'; s.w = R[0]; s.r = U(R[1:])
            elif op.startswith(('s_cmp', 's_waitcnt', 's_barrier', 's_branch', 's_cbranch', 's_endpgm', 's_sleep', 's_setprio', 's_bitcmp', 's_setreg')):
                s.r = U(R)
            else:
                s.w = R[0] if R else set(); s.r = U(R[1:])
                if 'saveexec' in op: s.w |= {('exec', 0)}
        else:
            raise Exception('unknown op ' + text)

def _v(x): return {r for r in x if r[0] in 'va'}
def _s(x): return {r for r in x if r[0] == 's'}

def need(p, c):
    n = 0
    if p.cls == 'valu':
        pv = _v(p.w); ps = _s(p.w)
        if c.cls == 'mfma' and pv & c.r: n = max(n, 3 if 'dot' in p.flags else 2)
        if c.cls == 'valu':
            if 'dpp' in c.flags and pv & c.r: n = max(n, 2)
            if 'permlane' in c.flags and pv & c.r: n = max(n, 2)
            if 'readlane' in c.flags and pv & c.r: n = max(n, 1)
            if 'trans' in p.flags and 'trans' not in c.flags and pv & c.r: n = max(n, 1)
            if 'opsel' in p.flags and pv & (c.r | c.w): n = max(n, 1)
            if ps & c.r: n = max(n, 4 if ('readlane' in c.flags or 'writelane' in c.flags) else 2)
            if 'dot' in p.flags and pv & (c.r | c.w):
                same = (c.op == p.op)
                if same and len(c.ops) == 4 and pv & _regs(c.ops[3]) and not pv & (_regs(c.ops[1]) | _regs(c.ops[2])): pass
                elif same and len(c.ops) == 3 and not pv & (_regs(c.ops[1]) | _regs(c.ops[2])): pass
                else: n = max(n, 3)
        if 'trans' in p.flags and c.cls in ('vmem', 'ds') and pv & c.r: n = max(n, 1)
        if 'dot' in p.flags and c.cls in ('vmem', 'ds') and pv & c.r: n = max(n, 3)
        if c.cls == 'vmem' and ps & c.r: n = max(n, 5)
        if c.cls in ('salu', 'smem') and ps & c.r: n = max(n, 1)
    elif p.cls == 'mfma':
        P = p.passes
        if c.cls == 'mfma':
            if p.w & c.srcAB: n = max(n, {4: 8, 8: 12}[P])
            if p.w & c.srcC:
                if not (p.w == c.srcC and c.passes == P): n = max(n, {4: 6, 8: 10}[P])
            elif p.w & c.w: n = max(n, {4: 8, 8: 12}[P])
        elif c.cls in ('valu', 'vmem', 'ds'):
            if p.w & (c.r | c.w): n = max(n, {4: 8, 8: 12}[P])
            if c.cls == 'valu' and (p.srcC & c.w): n = max(n, {4: 3, 8: 7}[P])
            if c.cls != 'valu' and (p.srcC & c.w): n = max(n, {4: 3, 8: 7}[P])
    elif p.cls == 'salu':
        if ('m0', 0) in p.w and 'm0use' in c.flags: n = max(n, 1)
    elif p.cls == 'vmem':
        if 'widestore' in p.flags and p.sdata & c.w: n = max(n, 2 if c.cls in ('valu', 'mfma') else 1)
    if p.cls in ('vmem', 'ds') and c.cls == 'valu' and 'dpp' in c.flags and _v(p.w) & c.r: n = max(n, 0)
    return n

def fix_hazards(lines, verbose=False):
    ins = [Ins(l) for l in lines]
    changed = True; total = 0
    while changed:
        changed = False
        labels = {x.label: i for i, x in enumerate(ins) if x.label}
        jumps = {}
        for i, x in enumerate(ins):
            if x.op and (x.op.startswith('s_cbranch') or x.op == 's_branch'):
                jumps.setdefault(labels[x.ops[0]], []).append(i)
        out = []
        for i, c in enumerate(ins):
            if c.cls in ('label', 'dir'): out.append(c); continue
            worst = 0
            stack = [(i-1, 0)]; seen = set()
            while stack:
                j, d = stack.pop()
                while j >= 0 and d < 13:
                    if (j, d) in seen: break
                    seen.add((j, d))
                    p = ins[j]
                    if p.cls == 'label':
                        for src in jumps.get(j, []): stack.append((src, d))
                        k = j-1
                        while k >= 0 and ins[k].cls in ('dir',): k -= 1
                        if k >= 0 and ins[k].op in ('s_branch', 's_endpgm'): break
                        j -= 1; continue
                    if p.cls != 'dir':
                        nn = need(p, c) - d
                        if nn > worst: worst = nn
                        d += p.ws
                    j -= 1
            if worst > 0:
                out.append(Ins('s_nop %d' % (worst-1))); changed = True; total += worst
                if verbose: print('nop', worst, 'before', c.text)
                out.append(c)
                out.extend(ins[i+1:])
                break
            out.append(c)
        ins = out
    return [x.text for x in ins], total

def fix_hazards_fast(lines):
    ins = [Ins(l) for l in lines]
    out = []
    total = 0
    for c in ins:
        if c.cls not in ('label', 'dir'):
            worst = 0; d = 0; j = len(out)-1
            while j >= 0 and d < 13:
                p = out[j]
                if p.op in ('s_branch', 's_endpgm'): break
                if p.cls not in ('dir', 'label'):
                    nn = need(p, c) - d
                    if nn > worst: worst = nn
                    d += p.ws
                j -= 1
            if worst > 0:
                out.append(Ins('s_nop %d' % (worst-1))); total += worst
        out.append(c)
    l2, t2 = fix_hazards([x.text for x in out])
    return l2, total + t2

class Kern:
    def __init__(s, name, grid, block, lds):
        s.name = name; s.grid = grid; s.block = block; s.lds = lds
        s.L = []; s.nl = 0
        s.vmax = 0; s.amax = -1
    def __call__(s, t):
        for l in t.split('\n'):
            l = l.strip()
            if l: s.L.append(l)
    def lab(s, base):
        s.nl += 1; return 'L%s_%s%d' % (s.name.replace('_kernel', ''), base, s.nl)
    def finish(s):
        lines, nn = fix_hazards_fast(s.L)
        vm = 0; am = -1; sm = 0
        for l in lines:
            x = Ins(l)
            for c, n in (x.w | x.r):
                if c == 'v': vm = max(vm, n)
                if c == 'a': am = max(am, n)
                if c == 's' and n < 106: sm = max(sm, n)
        acc = (vm + 1 + 3)//4*4
        nfv = acc + am + 1 if am >= 0 else vm + 1
        s.info = 'kernel %s: %d lines, %d nop states inserted, vgpr %d agpr %d sgpr %d' % (s.name, len(lines), nn, vm+1, am+1, sm+1)
        body = '.globl %s\n.p2align 8\n.type %s,@function\n%s:\n' % (s.name, s.name, s.name) + '\n'.join(lines) + '\n'
        desc = ('.p2align 6\n.amdhsa_kernel %s\n  .amdhsa_next_free_vgpr %d\n  .amdhsa_next_free_sgpr %d\n  .amdhsa_accum_offset %d\n'
                '  .amdhsa_group_segment_fixed_size 0\n  .amdhsa_kernarg_size 120\n  .amdhsa_user_sgpr_count 2\n'
                '  .amdhsa_user_sgpr_kernarg_segment_ptr 1\n  .amdhsa_system_sgpr_workgroup_id_x 1\n.end_amdhsa_kernel\n') % (s.name, nfv, max(sm+1, 16), acc)
        launch = '; @launch kernel=%s grid=(%d,1,1) block=(%d,1,1) lds=%d' % (s.name, s.grid, s.block, s.lds)
        return launch, body, desc

def write_file(path, kerns, header=''):
    parts = [k.finish() for k in kerns]
    with open(path, 'w') as f:
        f.write(header)
        for p in parts: f.write(p[0] + '\n')
        f.write('.amdgcn_target "amdgcn-amd-amdhsa--gfx950"\n.text\n')
        for p in parts: f.write(p[1])
        f.write('Lcode_end:\n')
        f.write('.section .rodata,"a"\n')
        for p in parts: f.write(p[2])
    for k in kerns: print(k.info)

def v(n, c=1): return 'v%d' % n if c == 1 else 'v[%d:%d]' % (n, n+c-1)
def s(n, c=1): return 's%d' % n if c == 1 else 's[%d:%d]' % (n, n+c-1)
import struct
def f2u(x): return struct.unpack('<I', struct.pack('<f', x))[0]
def fl(x): return '0x%08x' % f2u(x)
```

```python
from asmlib import *
WS_UX  = 0x000000
WS_KP  = 0x500000
WS_HT  = 0x700000
WS_CS  = 0x980000
WS_ST  = 0x990000
WS_Z1  = 0xA00000
WS_Z2  = 0xD00000
WS_P   = 0x1000000
WS_SIZE = 0x1400000
KA = dict(x=0, logA=8, Aim=16, Cr=24, Ci=32, logdt=40, D=48, win=64, wsp=72, bsp=80, wout=88, out=96, dbg=104, ws=112)
LOG2E = 1.4426950408889634
INV2PI = 0.15915494309189535

def srd(k, d, base, nbytes):
    k(f's_mov_b32 s{d}, s{base}\ns_mov_b32 s{d+1}, s{base+1}\ns_mov_b32 s{d+2}, {nbytes:#x}\ns_mov_b32 s{d+3}, 0x20000')

class Cnt:
    def __init__(s, k, name, mx):
        s.k = k; s.name = name; s.mx = mx; s.n = 0; s.done = 0
    def issue(s, text):
        s.k(text); s.n += 1; return s.n
    def wait(s, tok):
        if tok <= s.done: return
        left = s.n - tok
        if left > s.mx: left = s.mx
        s.k(f's_waitcnt {s.name}({left})')
        s.done = s.n - left
    def all(s): s.wait(s.n)

def round_bf16_f32(k, dst, src):
    k(f'v_cvt_pk_bf16_f32 v{dst}, v{src}, v{src}')
    k(f'v_and_b32 v{dst}, 0xffff0000, v{dst}')

def ln_finish(k, mean, var, t):
    k(f'v_cvt_pk_bf16_f32 v{t}, v{mean}, v{var}')
    k(f'v_lshlrev_b32 v{mean}, 16, v{t}')
    k(f'v_and_b32 v{var}, 0xffff0000, v{t}')
    k(f'v_add_f32 v{var}, {fl(1e-5)}, v{var}')
    round_bf16_f32(k, var, var)
    k(f'v_sqrt_f32 v{var}, v{var}')
    round_bf16_f32(k, var, var)
    k(f'v_rcp_f32 v{var}, v{var}')
```

```python
from common import *

def gen_k1():
    k = Kern('k1_kernel', 896, 256, 21504)
    Lk = 'Lk1_kgen'; Lend = 'Lk1_end'
    k(f's_cmp_ge_u32 s2, 896\ns_cbranch_scc1 {Lend}')
    stamp_begin(k)
    k(f's_load_dwordx2 s[6:7], s[0:1], {KA["ws"]}')
    k(f's_cmp_ge_u32 s2, 256\ns_cbranch_scc1 {Lk}')
    k(f's_load_dwordx2 s[4:5], s[0:1], {KA["x"]}')
    k('v_lshrrev_b32 v1, 5, v0')
    k('v_and_b32 v2, 31, v0')
    k('v_lshlrev_b32 v2, 3, v2')
    k('v_mul_u32_u24 v3, 1280, v1')
    k('v_add_u32 v3, v3, v2')
    k('v_mul_u32_u24 v4, 1344, v1')
    k('v_add_u32 v4, v4, v2')
    k('s_mul_i32 s3, s2, 10240')
    k('v_lshrrev_b32 v5, 6, v0')
    k('v_readfirstlane_b32 s16, v5')
    k('s_waitcnt lgkmcnt(0)')
    srd(k, 8, 4, 2048*1280)
    for q in range(5):
        k(f'buffer_load_dwordx2 v[{10+2*q}:{11+2*q}], v3, s[8:11], s3 offen offset:{q*256}')
    srd(k, 12, 6, WS_SIZE)
    Lnc = k.lab('nc')
    k(f's_cmp_lg_u32 s16, 3\ns_cbranch_scc1 {Lnc}')
    k('v_and_b32 v6, 63, v0\nv_lshlrev_b32 v6, 4, v6')
    k('v_mov_b32 v60, -1.0\nv_mov_b32 v61, -1.0\nv_mov_b32 v62, -1.0\nv_mov_b32 v63, -1.0')
    k(f's_lshl_b32 s17, s2, 10\ns_add_u32 s17, s17, {WS_ST:#x}')
    k('buffer_store_dwordx4 v[60:63], v6, s[12:15], s17 offen')
    k(f'{Lnc}:')
    k('v_and_b32 v6, 63, v0')
    k('v_lshrrev_b32 v7, 5, v6')
    k('v_bfe_u32 v8, v6, 4, 1')
    k('v_bfe_u32 v9, v6, 2, 2')
    k('v_and_b32 v50, 3, v6')
    k('v_lshl_add_u32 v51, v7, 3, v9')
    k('v_mul_u32_u24 v51, 1344, v51')
    k('v_lshl_add_u32 v51, v8, 5, v51')
    k('v_lshl_add_u32 v51, v50, 3, v51')
    k('s_mul_i32 s17, s16, 320')
    k('v_add_u32 v51, s17, v51')
    k('v_lshlrev_b32 v52, 9, v8')
    k('v_lshl_add_u32 v52, v9, 7, v52')
    k('v_lshl_add_u32 v52, v7, 6, v52')
    k('v_lshl_add_u32 v52, v50, 4, v52')
    k('s_mul_i32 s18, s2, 20480\ns_mul_i32 s19, s16, 5120\ns_add_u32 s18, s18, s19')
    if WS_UX: k(f's_add_u32 s18, s18, {WS_UX:#x}')
    k('s_add_u32 s19, s18, 4096')
    k('s_waitcnt vmcnt(0)')
    for q in range(5):
        k(f'ds_write_b64 v4, v[{10+2*q}:{11+2*q}] offset:{8*1344+q*256}')
    for i in range(10):
        k(f'v_lshlrev_b32 v{20+2*i}, 16, v{10+i}')
        k(f'v_and_b32 v{21+2*i}, 0xffff0000, v{10+i}')
    k('v_pk_add_f32 v[40:41], v[20:21], v[22:23]')
    k('v_pk_add_f32 v[42:43], v[24:25], v[26:27]')
    for i in range(4, 10):
        t = 40 + 2*(i % 2)
        k(f'v_pk_add_f32 v[{t}:{t+1}], v[{t}:{t+1}], v[{20+2*i}:{21+2*i}]')
    k('v_pk_add_f32 v[40:41], v[40:41], v[42:43]')
    k('v_add_f32 v40, v40, v41')
    def red32(r, t):
        for sh in (8, 4, 2, 1):
            k(f'v_add_f32_dpp v{r}, v{r}, v{r} row_ror:{sh} row_mask:0xf bank_mask:0xf')
        k(f'v_mov_b32 v{t}, v{r}')
        k(f'v_permlane16_swap_b32 v{r}, v{t}')
        k(f'v_add_f32 v{r}, v{r}, v{t}')
    red32(40, 41)
    k(f'v_mul_f32 v40, {fl(1/640)}, v40')
    for i in range(10):
        k(f'v_pk_add_f32 v[46:47], v[{20+2*i}:{21+2*i}], v[40:41] op_sel_hi:[1,0] neg_lo:[0,1] neg_hi:[0,1]')
        if i == 0: k('v_pk_mul_f32 v[42:43], v[46:47], v[46:47]')
        else: k('v_pk_fma_f32 v[42:43], v[46:47], v[46:47], v[42:43]')
    k('v_add_f32 v42, v42, v43')
    red32(42, 43)
    k(f'v_mul_f32 v42, {fl(1/640)}, v42')
    ln_finish(k, 40, 42, 44)
    for i in range(10):
        a = 20+2*i
        k(f'v_pk_add_f32 v[{a}:{a+1}], v[{a}:{a+1}], v[40:41] op_sel_hi:[1,0] neg_lo:[0,1] neg_hi:[0,1]')
        k(f'v_cvt_pk_bf16_f32 v{a+1}, v{a}, v{a+1}')
        k(f'v_lshlrev_b32 v{a}, 16, v{a+1}')
        k(f'v_and_b32 v{a+1}, 0xffff0000, v{a+1}')
        k(f'v_pk_mul_f32 v[{a}:{a+1}], v[{a}:{a+1}], v[42:43] op_sel_hi:[1,0]')
        k(f'v_cvt_pk_bf16_f32 v{10+i}, v{a}, v{a+1}')
        if i % 2 == 1:
            k(f'ds_write_b64 v4, v[{10+i-1}:{10+i}] offset:{(i//2)*256}')
    k('s_waitcnt lgkmcnt(0)\ns_barrier')
    for b in range(5):
        k(f'ds_read_b64_tr_b16 v[{20+4*b}:{21+4*b}], v51 offset:{b*64}')
        k(f'ds_read_b64_tr_b16 v[{22+4*b}:{23+4*b}], v51 offset:{b*64+4*1344}')
    for b in range(5):
        k(f's_waitcnt lgkmcnt({8-2*b})')
        if b < 4: k(f'buffer_store_dwordx4 v[{20+4*b}:{23+4*b}], v52, s[12:15], s18 offen offset:{b*1024}')
        else: k(f'buffer_store_dwordx4 v[{20+4*b}:{23+4*b}], v52, s[12:15], s19 offen')
    stamp_end(k, 0)
    k(f'{Lk}:')
    k('v_lshrrev_b32 v5, 6, v0')
    k('v_readfirstlane_b32 s16, v5')
    k(f's_load_dwordx8 s[20:27], s[0:1], {KA["logA"]}')
    k(f's_load_dwordx2 s[28:29], s[0:1], {KA["logdt"]}')
    k('s_sub_u32 s3, s2, 256')
    k(f's_cmp_eq_u32 s16, 3\ns_cbranch_scc1 {Lend}')
    k('s_mul_i32 s17, s3, 384')
    k('v_lshlrev_b32 v1, 1, v0')
    k('v_add_u32 v1, s17, v1')
    k('s_lshl_b32 s18, s3, 1')
    k('v_mov_b32 v2, s18')
    for r in range(10, 15): k(f'v_mov_b32 v{r}, 0')
    k('s_waitcnt lgkmcnt(0)')
    k('global_load_short_d16_hi v14, v2, s[28:29]')
    for i in range(4):
        k(f'global_load_short_d16_hi v{10+i}, v1, s[{20+2*i}:{21+2*i}]')
    KC = 13824
    regs = [(0, 543, 2, -1, 0, 514), (70, 542, 2, -1, 0, 514), (140, 1268, 16, 4, 516, 1024), (156, 1276, 16, 4, 516, 1024), (172, 2040, 16, 8, 1032, 2048)]
    def params(r): t0, base, sd, dh, lo, hi = r; return [base + 4*sd*t0, sd, dh, lo, hi-lo]
    p0 = params(regs[0])
    for i in range(5): k(f'v_mov_b32 v{20+i}, {p0[i]}')
    prev = p0
    for r in regs[1:]:
        p = params(r)
        k(f'v_cmp_le_u32 vcc, {r[0]}, v0')
        k('s_mov_b64 exec, vcc')
        for i in range(5):
            if p[i] != prev[i]: k(f'v_mov_b32 v{20+i}, {p[i]}')
        prev = p
    k('s_mov_b64 exec, -1')
    k('v_lshlrev_b32 v25, 2, v0')
    k('v_mul_u32_u24 v25, v21, v25')
    k('v_sub_u32 v20, v20, v25')
    k('v_mov_b32 v33, 768')
    IDX = 100
    for dw in range(4):
        if dw: k('v_sub_u32 v20, v20, v21')
        k('v_add_u32 v26, v20, v22')
        k('v_cvt_f32_i32 v27, v20\nv_cvt_f32_i32 v28, v26')
        k(f'v_max_f32 v27, {fl(256.)}, v27\nv_max_f32 v28, {fl(256.)}, v28')
        k('v_cvt_pk_bf16_f32 v27, v27, v28')
        k('v_lshrrev_b32 v28, 16, v27\nv_and_b32 v27, 0xffff, v27')
        for P, B, o in ((20, 27, IDX+2*dw), (26, 28, IDX+2*dw+1)):
            k(f'v_subrev_u32 v{B}, 0x4280, v{B}')
            k(f'v_min_i32 v{B}, v{B}, v{P}')
            k(f'v_sub_u32 v29, v{P}, v23')
            k(f'v_cmp_le_u32 vcc, v29, v24')
            k(f'v_cndmask_b32 v{B}, v33, v{B}, vcc')
            k(f'v_lshlrev_b32 v{o}, 1, v{B}')
    k('v_and_b32 v6, 63, v0')
    k('s_mul_i32 s17, s16, 4608')
    k('v_lshlrev_b32 v3, 2, v6\nv_add_u32 v3, s17, v3')
    k('v_and_b32 v7, 15, v6\nv_lshrrev_b32 v8, 4, v6')
    k('v_mul_u32_u24 v4, 288, v7\nv_lshl_add_u32 v4, v8, 4, v4\nv_add_u32 v4, s17, v4')
    k('v_lshrrev_b32 v9, 1, v8\nv_and_b32 v30, 1, v8')
    k('v_lshlrev_b32 v108, 9, v9\nv_lshl_add_u32 v108, v7, 5, v108\nv_lshl_add_u32 v108, v30, 4, v108\nv_add_u32 v108, s17, v108')
    k('v_lshlrev_b32 v31, 4, v7\nv_lshlrev_b32 v32, 3, v7')
    k('v_cmp_gt_u32 vcc, 2, v8')
    k('v_cndmask_b32 v109, v32, v31, vcc')
    k('v_lshl_add_u32 v109, v8, 8, v109')
    k('v_add_u32 v109, s17, v109')
    k('v_mov_b32 v31, 8\nv_mov_b32 v32, 128')
    k('v_cndmask_b32 v110, v32, v31, vcc')
    k('v_add_u32 v110, v109, v110')
    k('v_lshlrev_b32 v111, 6, v7\nv_lshl_add_u32 v111, v8, 4, v111\nv_add_u32 v111, s17, v111')
    k(f'v_mov_b32 v31, 0\nv_mov_b32 v32, {KC+1536}\nds_write_b32 v32, v31')
    k('s_waitcnt vmcnt(0)')
    k(f'v_mul_f32 v14, {fl(LOG2E)}, v14\nv_mul_f32 v10, {fl(LOG2E)}, v10')
    k('v_exp_f32 v14, v14\nv_exp_f32 v10, v10')
    k('v_cvt_pk_bf16_f32 v10, v10, v14')
    k('v_and_b32 v14, 0xffff0000, v10\nv_lshlrev_b32 v10, 16, v10')
    k('v_mul_f32 v10, v10, v14\nv_mul_f32 v11, v11, v14')
    k(f'v_mul_f32 v10, {fl(-LOG2E)}, v10\nv_mul_f32 v11, {fl(INV2PI)}, v11')
    k('v_add_f32 v14, v14, v14')
    C0 = 40
    k(f'v_mul_f32 v{C0}, v12, v14\nv_mul_f32 v{C0+1}, v13, -v14')
    W, G8, GG = 20, 22, 24
    for dst, sc, neg in ((G8, 8., False), (W, 1., True), (GG, 128., True)):
        if sc != 1.:
            k(f'v_mul_f32 v15, {fl(sc)}, v10\nv_mul_f32 v16, {fl(sc)}, v11')
            k('v_exp_f32 v15, v15\nv_fract_f32 v16, v16')
        else:
            k('v_exp_f32 v15, v10\nv_fract_f32 v16, v11')
        k(f'v_cos_f32 v{dst}, v16\nv_sin_f32 v{dst+1}, v16')
        k(f'v_mul_f32 v{dst}, v{dst}, v15')
        k(f'v_mul_f32 v{dst+1}, v{dst+1}, {"-" if neg else ""}v15')
    tmp = [26, 28, 30]; ti = [0]
    def cmul(d, a, b):
        t = tmp[ti[0] % 3]; ti[0] += 1
        k(f'v_pk_mul_f32 v[{t}:{t+1}], v[{a}:{a+1}], v[{b}:{b+1}] op_sel:[0,0] op_sel_hi:[1,0]')
        k(f'v_pk_fma_f32 v[{d}:{d+1}], v[{a}:{a+1}], v[{b}:{b+1}], v[{t}:{t+1}] op_sel:[1,1,0] op_sel_hi:[0,1,1] neg_lo:[1,0,0]')
    pk = [34, 35, 36, 37]; pi = [0]
    def put(row, z):
        t = pk[pi[0] % 4]; pi[0] += 1
        k(f'v_cvt_pk_bf16_f32 v{t}, v{z}, v{z+1}')
        k(f'ds_write_b32 v3, v{t} offset:{row*288}')
    def frags(base):
        for ks in range(4): k(f'ds_read_b128 v[{base+4*ks}:{base+4*ks+3}], v4 offset:{ks*64}')
    LO, HI = 56, 72
    ACC = 88
    k('v_mov_b32 v34, 0x3f80\nds_write_b32 v3, v34'); pi[0] = 1
    put(1, G8)
    Z = 32 - 14
    cmul(Z, G8, G8); put(2, Z)
    for j in range(3, 16):
        cmul(Z, Z, G8); put(j, Z)
    frags(LO)
    put(0, C0)
    for c in range(1, 8):
        cmul(C0+2*c, C0+2*c-2, W); put(c, C0+2*c)
    for c in range(8):
        cmul(C0+2*c, C0+2*c, GG); put(8+c, C0+2*c)
    frags(HI)
    def mm(t, swap):
        for ks in range(4):
            a, b = HI+4*ks, LO+4*ks
            if swap: a, b = b, a
            c = '0' if ks == 0 else v(ACC+4*t, 4)
            k(f'v_mfma_f32_16x16x32_bf16 {v(ACC+4*t,4)}, {v(a,4)}, {v(b,4)}, {c}')
    for i in (2, 3):
        for c in (0, 2, 4, 6):
            cmul(C0+2*c, C0+2*c, GG); put(4*(i-2)+c//2, C0+2*c)
    k('s_waitcnt lgkmcnt(8)')
    mm(0, False)
    for i in range(4, 8):
        for c in (0, 4):
            cmul(C0+2*c, C0+2*c, GG); put(8+2*(i-4)+c//4, C0+2*c)
    frags(HI)
    for i in range(8, 17):
        cmul(C0, C0, GG); put(i-8, C0)
    k('s_waitcnt lgkmcnt(9)')
    mm(1, False)
    frags(HI)
    k('s_waitcnt lgkmcnt(0)')
    mm(2, True)
    k(f'ds_write_b128 v108, {v(ACC,4)}')
    k(f'ds_write_b64 v109, {v(ACC+4,2)} offset:1024')
    k(f'ds_write_b64 v110, {v(ACC+6,2)} offset:1024')
    k(f'ds_write_b128 v111, {v(ACC+8,4)} offset:2048')
    k('v_lshlrev_b32 v5, 4, v0\nv_lshlrev_b32 v6, 3, v0')
    k('s_waitcnt lgkmcnt(0)\ns_barrier')
    for w in range(3): k(f'ds_read_b128 {v(40+4*w,4)}, v5 offset:{w*4608}')
    k('s_waitcnt lgkmcnt(0)')
    k('v_pk_add_f32 v[40:41], v[40:41], v[44:45]\nv_pk_add_f32 v[42:43], v[42:43], v[46:47]')
    k('v_pk_add_f32 v[40:41], v[40:41], v[48:49]\nv_pk_add_f32 v[42:43], v[42:43], v[50:51]')
    k('v_cvt_pk_bf16_f32 v40, v40, v41\nv_cvt_pk_bf16_f32 v41, v42, v43')
    k(f'ds_write_b64 v6, v[40:41] offset:{KC}')
    k('s_waitcnt lgkmcnt(0)\ns_barrier')
    for dw in range(4):
        k(f'ds_read_u16 v{44+dw}, v{IDX+2*dw} offset:{KC}')
        k(f'ds_read_u16 v{48+dw}, v{IDX+2*dw+1} offset:{KC}')
    k(f's_mul_i32 s17, s3, 3072\ns_add_u32 s17, s17, {WS_KP:#x}')
    k('v_add_u32 v5, s17, v5')
    k('s_waitcnt lgkmcnt(0)')
    for dw in range(4): k(f'v_lshl_or_b32 v{44+dw}, v{48+dw}, 16, v{44+dw}')
    k('global_store_dwordx4 v5, v[44:47], s[6:7]')
    stamp_end(k, 0)
    k(f'{Lend}:')
    k('s_endpgm')
    return k
```

```python
import sys
from common import *
import k1
kerns = [k1.gen_k1()]
for mod in ('k2', 'k3', 'k4', 'k5'):
    try:
        m = __import__(mod)
    except ImportError:
        break
    kerns.append(getattr(m, 'gen_' + mod)())
out = sys.argv[1] if len(sys.argv) > 1 else 'sequential_preLN__ssm_conv_s4d__mixer_gmlp__prompt.s'
write_file(out, kerns, header='; generated by gen/build.py (hand-written generator)\n')
```

```python
from asmlib import *
WS_UX  = 0x000000
WS_KP  = 0x500000
WS_HT  = 0x700000
WS_CS  = 0x980000
WS_ST  = 0x990000
WS_Z1  = 0xA00000
WS_Z2  = 0xD00000
WS_P   = 0x1000000
WS_SIZE = 0x1400000
KA = dict(x=0, logA=8, Aim=16, Cr=24, Ci=32, logdt=40, D=48, win=64, wsp=72, bsp=80, wout=88, out=96, dbg=104, ws=112)
LOG2E = 1.4426950408889634
INV2PI = 0.15915494309189535

def srd(k, d, base, nbytes):
    k(f's_mov_b32 s{d}, s{base}\ns_mov_b32 s{d+1}, s{base+1}\ns_mov_b32 s{d+2}, {nbytes:#x}\ns_mov_b32 s{d+3}, 0x20000')

class Cnt:
    def __init__(s, k, name, mx):
        s.k = k; s.name = name; s.mx = mx; s.n = 0; s.done = 0
    def issue(s, text):
        s.k(text); s.n += 1; return s.n
    def wait(s, tok):
        if tok <= s.done: return
        left = s.n - tok
        if left > s.mx: left = s.mx
        s.k(f's_waitcnt {s.name}({left})')
        s.done = s.n - left
    def all(s): s.wait(s.n)

def round_bf16_f32(k, dst, src):
    k(f'v_cvt_pk_bf16_f32 v{dst}, v{src}, v{src}')
    k(f'v_and_b32 v{dst}, 0xffff0000, v{dst}')

def ln_finish(k, mean, var, t):
    k(f'v_cvt_pk_bf16_f32 v{t}, v{mean}, v{var}')
    k(f'v_lshlrev_b32 v{mean}, 16, v{t}')
    k(f'v_and_b32 v{var}, 0xffff0000, v{t}')
    k(f'v_add_f32 v{var}, {fl(1e-5)}, v{var}')
    round_bf16_f32(k, var, var)
    k(f'v_sqrt_f32 v{var}, v{var}')
    round_bf16_f32(k, var, var)
    k(f'v_rcp_f32 v{var}, v{var}')

import os
STAMP = os.environ.get('STAMP', '')
WS_STAMP = 0x1380000
def stamp_begin(k):
    if STAMP: k('s_memrealtime s[96:97]')
def stamp_end(k, kidx):
    if STAMP:
        k('s_waitcnt vmcnt(0) lgkmcnt(0)')
        k('s_memrealtime s[98:99]')
        k(f's_load_dwordx2 s[94:95], s[0:1], {KA["ws"] if STAMP == "ws" else KA["dbg"]}')
        k('s_waitcnt lgkmcnt(0)')
        k('s_not_b32 s96, s96')
        if STAMP == 'ws':
            k(f's_lshl_b32 s97, s2, 3\ns_add_u32 s97, s97, {WS_STAMP + kidx*8192:#x}')
        else:
            k(f's_sub_u32 s94, s94, {kidx*512}\ns_subb_u32 s95, s95, 0\ns_mov_b32 s97, {kidx*8}')
        k('s_mov_b64 exec, 1')
        k('v_mov_b32 v0, s97\nv_mov_b32 v2, s96\nv_mov_b32 v3, s98')
        k('global_atomic_umax v0, v2, s[94:95]\nglobal_atomic_umax v0, v3, s[94:95] offset:4')
    k('s_endpgm')
```

```python
from asmlib import *
WS_UX  = 0x000000
WS_KP  = 0x500000
WS_HT  = 0x700000
WS_CS  = 0x980000
WS_ST  = 0x990000
WS_Z1  = 0xA00000
WS_Z2  = 0xD00000
WS_P   = 0x1000000
WS_SIZE = 0x1400000
KA = dict(x=0, logA=8, Aim=16, Cr=24, Ci=32, logdt=40, D=48, win=64, wsp=72, bsp=80, wout=88, out=96, dbg=104, ws=112)
LOG2E = 1.4426950408889634
INV2PI = 0.15915494309189535

def srd(k, d, base, nbytes):
    k(f's_mov_b32 s{d}, s{base}\ns_mov_b32 s{d+1}, s{base+1}\ns_mov_b32 s{d+2}, {nbytes:#x}\ns_mov_b32 s{d+3}, 0x20000')

class Cnt:
    def __init__(s, k, name, mx):
        s.k = k; s.name = name; s.mx = mx; s.n = 0; s.done = 0
    def issue(s, text):
        s.k(text); s.n += 1; return s.n
    def wait(s, tok):
        if tok <= s.done: return
        left = s.n - tok
        if left > s.mx: left = s.mx
        s.k(f's_waitcnt {s.name}({left})')
        s.done = s.n - left
    def all(s): s.wait(s.n)

def round_bf16_f32(k, dst, src):
    k(f'v_cvt_pk_bf16_f32 v{dst}, v{src}, v{src}')
    k(f'v_and_b32 v{dst}, 0xffff0000, v{dst}')

def ln_finish(k, mean, var, t):
    k(f'v_cvt_pk_bf16_f32 v{t}, v{mean}, v{var}')
    k(f'v_lshlrev_b32 v{mean}, 16, v{t}')
    k(f'v_and_b32 v{var}, 0xffff0000, v{t}')
    k(f'v_add_f32 v{var}, {fl(1e-5)}, v{var}')
    round_bf16_f32(k, var, var)
    k(f'v_sqrt_f32 v{var}, v{var}')
    round_bf16_f32(k, var, var)
    k(f'v_rcp_f32 v{var}, v{var}')

import os
STAMP = os.environ.get('STAMP', '')
WS_STAMP = 0x1380000
def stamp_begin(k):
    if STAMP: k('s_memrealtime s[96:97]')
def stamp_end(k, kidx):
    if STAMP:
        k('s_waitcnt vmcnt(0) lgkmcnt(0)')
        k('s_memrealtime s[98:99]')
        k(f's_load_dwordx2 s[94:95], s[0:1], {KA["ws"] if STAMP == "ws" else KA["dbg"]}')
        k('s_waitcnt lgkmcnt(0)')
        k('s_not_b32 s96, s96')
        if STAMP == 'ws':
            k(f's_lshl_b32 s97, s2, 3\ns_add_u32 s97, s97, {WS_STAMP + kidx*8192:#x}')
        else:
            nk = int(os.environ.get('NK', '5'))
            L = k.lab('nost')
            k(f's_add_u32 s94, s94, {(nk-1-kidx)*512}\ns_addc_u32 s95, s95, 0\ns_mov_b32 s97, {kidx*8}')
            k(f's_mul_i32 s93, s2, 37\ns_and_b32 s93, s93, 31\ns_cmp_eq_u32 s93, 0\ns_cbranch_scc1 {L}\ns_endpgm\n{L}:')
        k('s_mov_b64 exec, 1')
        k('v_mov_b32 v0, s97\nv_mov_b32 v2, s96\nv_mov_b32 v3, s98')
        k('global_atomic_umax v0, v2, s[94:95]\nglobal_atomic_umax v0, v3, s[94:95] offset:4')
    k('s_endpgm')
```

```python
from asmlib import *
WS_UX  = 0x000000
WS_KP  = 0x500000
WS_HT  = 0x700000
WS_CS  = 0x980000
WS_ST  = 0x990000
WS_Z1  = 0xA00000
WS_Z2  = 0xD00000
WS_P   = 0x1000000
WS_SIZE = 0x1400000
KA = dict(x=0, logA=8, Aim=16, Cr=24, Ci=32, logdt=40, D=48, win=64, wsp=72, bsp=80, wout=88, out=96, dbg=104, ws=112)
LOG2E = 1.4426950408889634
INV2PI = 0.15915494309189535

def srd(k, d, base, nbytes):
    k(f's_mov_b32 s{d}, s{base}\ns_mov_b32 s{d+1}, s{base+1}\ns_mov_b32 s{d+2}, {nbytes:#x}\ns_mov_b32 s{d+3}, 0x20000')

class Cnt:
    def __init__(s, k, name, mx):
        s.k = k; s.name = name; s.mx = mx; s.n = 0; s.done = 0
    def issue(s, text):
        s.k(text); s.n += 1; return s.n
    def wait(s, tok):
        if tok <= s.done: return
        left = s.n - tok
        if left > s.mx: left = s.mx
        s.k(f's_waitcnt {s.name}({left})')
        s.done = s.n - left
    def all(s): s.wait(s.n)

def round_bf16_f32(k, dst, src):
    k(f'v_cvt_pk_bf16_f32 v{dst}, v{src}, v{src}')
    k(f'v_and_b32 v{dst}, 0xffff0000, v{dst}')

def ln_finish(k, mean, var, t):
    k(f'v_cvt_pk_bf16_f32 v{t}, v{mean}, v{var}')
    k(f'v_lshlrev_b32 v{mean}, 16, v{t}')
    k(f'v_and_b32 v{var}, 0xffff0000, v{t}')
    k(f'v_add_f32 v{var}, {fl(1e-5)}, v{var}')
    round_bf16_f32(k, var, var)
    k(f'v_sqrt_f32 v{var}, v{var}')
    round_bf16_f32(k, var, var)
    k(f'v_rcp_f32 v{var}, v{var}')

import os
STAMP = os.environ.get('STAMP', '')
WS_STAMP = 0x1380000
def stamp_begin(k):
    if STAMP: k('s_memrealtime s[96:97]')
WS_MARK = 0x13a0000
def mark(k, i):
    if STAMP == 'ws':
        k(f's_waitcnt lgkmcnt(0)\ns_memrealtime s[{60+2*i}:{61+2*i}]\ns_waitcnt lgkmcnt(0)'); k.nmark = max(getattr(k, 'nmark', 0), i+1)
def stamp_end(k, kidx):
    if STAMP:
        k('s_waitcnt vmcnt(0) lgkmcnt(0)')
        k('s_memrealtime s[98:99]')
        k(f's_load_dwordx2 s[94:95], s[0:1], {KA["ws"] if STAMP == "ws" else KA["dbg"]}')
        k('s_waitcnt lgkmcnt(0)')
        k('s_not_b32 s96, s96')
        if STAMP == 'ws':
            k(f's_lshl_b32 s97, s2, 3\ns_add_u32 s97, s97, {WS_STAMP + kidx*8192:#x}')
        else:
            nk = int(os.environ.get('NK', '5'))
            L = k.lab('nost')
            k(f's_add_u32 s94, s94, {(nk-1-kidx)*512}\ns_addc_u32 s95, s95, 0\ns_mov_b32 s97, {kidx*8}')
            k(f's_mul_i32 s93, s2, 37\ns_and_b32 s93, s93, 31\ns_cmp_eq_u32 s93, 0\ns_cbranch_scc1 {L}\ns_endpgm\n{L}:')
        k('s_mov_b64 exec, 1')
        k('v_mov_b32 v0, s97\nv_mov_b32 v2, s96\nv_mov_b32 v3, s98')
        k('global_atomic_umax v0, v2, s[94:95]\nglobal_atomic_umax v0, v3, s[94:95] offset:4')
        if STAMP == 'ws' and getattr(k, 'nmark', 0):
            k(f's_lshl_b32 s97, s2, 6\ns_add_u32 s97, s97, {WS_MARK + kidx*65536:#x}\nv_mov_b32 v0, s97')
            for i in range(k.nmark):
                k(f'v_mov_b32 v2, s{60+2*i}\nglobal_atomic_umax v0, v2, s[94:95] offset:{4*i}')
            k.nmark = 0
    k('s_endpgm')

class Dma:
    def __init__(s, k, vm):
        s.k = k; s.vm = vm; s.q = []; s.tok = {}; s.bar = -1; s.pend = None
    def add(s, pre, ins, stage, after=-1):
        s.q.append(dict(pre=pre, ins=ins, stage=stage, after=after))
    def ready(s, maxstage=10**9):
        return bool(s.q) and s.q[0]['after'] <= s.bar and s.q[0]['stage'] <= maxstage
    def pre(s, maxstage=10**9):
        if s.pend is None and s.ready(maxstage):
            s.pend = s.q.pop(0)
            for p in s.pend['pre']: s.k(p)
    def fire(s):
        if s.pend is not None:
            s.tok[s.pend['stage']] = s.vm.issue(s.pend['ins']); s.pend = None
    def one(s, maxstage=10**9):
        s.pre(maxstage); s.fire()
    def upto(s, stage):
        s.fire()
        while s.q and any(it['stage'] <= stage for it in s.q):
            assert s.q[0]['after'] <= s.bar, (s.q[0], s.bar)
            s.one()
    def sync(s, stage):
        s.upto(stage)
        s.vm.wait(max(t for st, t in s.tok.items() if st <= stage))
        s.k('s_barrier'); s.bar = stage

def gemm_loop(k, lg, dma, g0, g1, reads, mfmas, stage_of, lead, rate, PD=2, tail_reads=None):
    ftok = {}
    synced = dma.bar
    def need_sync(g):
        st = stage_of(g)
        if st > dma.bar: dma.sync(st)
    for g in range(g0, min(g0+PD, g1)):
        need_sync(g)
        for r in reads(g): ftok[g] = lg.issue(r)
    cnt = 0.0
    for g in range(g0, g1):
        lg.wait(ftok[g])
        n = g + PD
        rr = []
        if n < g1:
            need_sync(n); rr = list(reads(n))
        elif n == g1 and tail_reads: rr = list(tail_reads)
        mm = mfmas(g)
        nm = len(mm); nr = len(rr); done = 0
        for i, m_ in enumerate(mm):
            cnt += 1.0/rate
            if cnt >= 1.0:
                dma.pre(dma.bar + lead)
            k(m_)
            if dma.pend is not None: dma.fire(); cnt -= 1.0
            cnt = min(cnt, 1.0)
            want = -(-(i+1)*nr//nm)
            while done < want:
                ftok[n] = lg.issue(rr[done]); done += 1
```

```python
from common import *

def gen_k1():
    k = Kern('k1_kernel', 896, 256, 21504)
    Lk = 'Lk1_kgen'; Lend = 'Lk1_end'
    k(f's_cmp_ge_u32 s2, 896\ns_cbranch_scc1 {Lend}')
    stamp_begin(k)
    k(f's_load_dwordx2 s[6:7], s[0:1], {KA["ws"]}')
    k(f's_cmp_ge_u32 s2, 256\ns_cbranch_scc1 {Lk}')
    k(f's_load_dwordx2 s[4:5], s[0:1], {KA["x"]}')
    k('v_lshrrev_b32 v1, 5, v0')
    k('v_and_b32 v2, 31, v0')
    k('v_lshlrev_b32 v2, 3, v2')
    k('v_mul_u32_u24 v3, 1280, v1')
    k('v_add_u32 v3, v3, v2')
    k('v_mul_u32_u24 v4, 1344, v1')
    k('v_add_u32 v4, v4, v2')
    k('s_mul_i32 s3, s2, 10240')
    k('v_lshrrev_b32 v5, 6, v0')
    k('v_readfirstlane_b32 s16, v5')
    k('s_waitcnt lgkmcnt(0)')
    mark(k, 0)
    srd(k, 8, 4, 2048*1280)
    for q in range(5):
        k(f'buffer_load_dwordx2 v[{10+2*q}:{11+2*q}], v3, s[8:11], s3 offen offset:{q*256}')
    srd(k, 12, 6, WS_SIZE)
    Lnc = k.lab('nc')
    k(f's_cmp_lg_u32 s16, 3\ns_cbranch_scc1 {Lnc}')
    k('v_and_b32 v6, 63, v0\nv_lshlrev_b32 v6, 4, v6')
    k('v_mov_b32 v60, -1.0\nv_mov_b32 v61, -1.0\nv_mov_b32 v62, -1.0\nv_mov_b32 v63, -1.0')
    k(f's_lshl_b32 s17, s2, 10\ns_add_u32 s17, s17, {WS_ST:#x}')
    k('buffer_store_dwordx4 v[60:63], v6, s[12:15], s17 offen')
    k(f'{Lnc}:')
    k('v_and_b32 v6, 63, v0')
    k('v_lshrrev_b32 v7, 5, v6')
    k('v_bfe_u32 v8, v6, 4, 1')
    k('v_bfe_u32 v9, v6, 2, 2')
    k('v_and_b32 v50, 3, v6')
    k('v_lshl_add_u32 v51, v7, 3, v9')
    k('v_mul_u32_u24 v51, 1344, v51')
    k('v_lshl_add_u32 v51, v8, 5, v51')
    k('v_lshl_add_u32 v51, v50, 3, v51')
    k('s_mul_i32 s17, s16, 320')
    k('v_add_u32 v51, s17, v51')
    k('v_lshlrev_b32 v52, 9, v8')
    k('v_lshl_add_u32 v52, v9, 7, v52')
    k('v_lshl_add_u32 v52, v7, 6, v52')
    k('v_lshl_add_u32 v52, v50, 4, v52')
    k('s_mul_i32 s18, s2, 20480\ns_mul_i32 s19, s16, 5120\ns_add_u32 s18, s18, s19')
    if WS_UX: k(f's_add_u32 s18, s18, {WS_UX:#x}')
    k('s_add_u32 s19, s18, 4096')
    mark(k, 1)
    k('s_waitcnt vmcnt(0)')
    mark(k, 2)
    for q in range(5):
        k(f'ds_write_b64 v4, v[{10+2*q}:{11+2*q}] offset:{8*1344+q*256}')
    for i in range(10):
        k(f'v_lshlrev_b32 v{20+2*i}, 16, v{10+i}')
        k(f'v_and_b32 v{21+2*i}, 0xffff0000, v{10+i}')
    k('v_pk_add_f32 v[40:41], v[20:21], v[22:23]')
    k('v_pk_add_f32 v[42:43], v[24:25], v[26:27]')
    for i in range(4, 10):
        t = 40 + 2*(i % 2)
        k(f'v_pk_add_f32 v[{t}:{t+1}], v[{t}:{t+1}], v[{20+2*i}:{21+2*i}]')
    k('v_pk_add_f32 v[40:41], v[40:41], v[42:43]')
    k('v_add_f32 v40, v40, v41')
    def red32(r, t):
        for sh in (8, 4, 2, 1):
            k(f'v_add_f32_dpp v{r}, v{r}, v{r} row_ror:{sh} row_mask:0xf bank_mask:0xf')
        k(f'v_mov_b32 v{t}, v{r}')
        k(f'v_permlane16_swap_b32 v{r}, v{t}')
        k(f'v_add_f32 v{r}, v{r}, v{t}')
    red32(40, 41)
    k(f'v_mul_f32 v40, {fl(1/640)}, v40')
    for i in range(10):
        k(f'v_pk_add_f32 v[46:47], v[{20+2*i}:{21+2*i}], v[40:41] op_sel_hi:[1,0] neg_lo:[0,1] neg_hi:[0,1]')
        if i == 0: k('v_pk_mul_f32 v[42:43], v[46:47], v[46:47]')
        else: k('v_pk_fma_f32 v[42:43], v[46:47], v[46:47], v[42:43]')
    k('v_add_f32 v42, v42, v43')
    red32(42, 43)
    k(f'v_mul_f32 v42, {fl(1/640)}, v42')
    ln_finish(k, 40, 42, 44)
    for i in range(10):
        a = 20+2*i
        k(f'v_pk_add_f32 v[{a}:{a+1}], v[{a}:{a+1}], v[40:41] op_sel_hi:[1,0] neg_lo:[0,1] neg_hi:[0,1]')
        k(f'v_cvt_pk_bf16_f32 v{a+1}, v{a}, v{a+1}')
        k(f'v_lshlrev_b32 v{a}, 16, v{a+1}')
        k(f'v_and_b32 v{a+1}, 0xffff0000, v{a+1}')
        k(f'v_pk_mul_f32 v[{a}:{a+1}], v[{a}:{a+1}], v[42:43] op_sel_hi:[1,0]')
        k(f'v_cvt_pk_bf16_f32 v{10+i}, v{a}, v{a+1}')
        if i % 2 == 1:
            k(f'ds_write_b64 v4, v[{10+i-1}:{10+i}] offset:{(i//2)*256}')
    mark(k, 3)
    k('s_waitcnt lgkmcnt(0)\ns_barrier')
    for b in range(5):
        k(f'ds_read_b64_tr_b16 v[{20+4*b}:{21+4*b}], v51 offset:{b*64}')
        k(f'ds_read_b64_tr_b16 v[{22+4*b}:{23+4*b}], v51 offset:{b*64+4*1344}')
    for b in range(5):
        k(f's_waitcnt lgkmcnt({8-2*b})')
        if b < 4: k(f'buffer_store_dwordx4 v[{20+4*b}:{23+4*b}], v52, s[12:15], s18 offen offset:{b*1024}')
        else: k(f'buffer_store_dwordx4 v[{20+4*b}:{23+4*b}], v52, s[12:15], s19 offen')
    mark(k, 4)
    stamp_end(k, 0)
    k(f'{Lk}:')
    k('v_lshrrev_b32 v5, 6, v0')
    k('v_readfirstlane_b32 s16, v5')
    k(f's_load_dwordx8 s[20:27], s[0:1], {KA["logA"]}')
    k(f's_load_dwordx2 s[28:29], s[0:1], {KA["logdt"]}')
    k('s_sub_u32 s3, s2, 256')
    k(f's_cmp_eq_u32 s16, 3\ns_cbranch_scc1 {Lend}')
    k('s_mul_i32 s17, s3, 384')
    k('v_lshlrev_b32 v1, 1, v0')
    k('v_add_u32 v1, s17, v1')
    k('s_lshl_b32 s18, s3, 1')
    k('v_mov_b32 v2, s18')
    for r in range(10, 15): k(f'v_mov_b32 v{r}, 0')
    k('s_waitcnt lgkmcnt(0)')
    mark(k, 0)
    k('global_load_short_d16_hi v14, v2, s[28:29]')
    for i in range(4):
        k(f'global_load_short_d16_hi v{10+i}, v1, s[{20+2*i}:{21+2*i}]')
    KC = 13824
    regs = [(0, 543, 2, -1, 0, 514), (70, 542, 2, -1, 0, 514), (140, 1268, 16, 4, 516, 1024), (156, 1276, 16, 4, 516, 1024), (172, 2040, 16, 8, 1032, 2048)]
    def params(r): t0, base, sd, dh, lo, hi = r; return [base + 4*sd*t0, sd, dh, lo, hi-lo]
    p0 = params(regs[0])
    for i in range(5): k(f'v_mov_b32 v{20+i}, {p0[i]}')
    prev = p0
    for r in regs[1:]:
        p = params(r)
        k(f'v_cmp_le_u32 vcc, {r[0]}, v0')
        k('s_mov_b64 exec, vcc')
        for i in range(5):
            if p[i] != prev[i]: k(f'v_mov_b32 v{20+i}, {p[i]}')
        prev = p
    k('s_mov_b64 exec, -1')
    k('v_lshlrev_b32 v25, 2, v0')
    k('v_mul_u32_u24 v25, v21, v25')
    k('v_sub_u32 v20, v20, v25')
    k('v_mov_b32 v33, 768')
    IDX = 100
    for dw in range(4):
        if dw: k('v_sub_u32 v20, v20, v21')
        k('v_add_u32 v26, v20, v22')
        k('v_cvt_f32_i32 v27, v20\nv_cvt_f32_i32 v28, v26')
        k(f'v_max_f32 v27, {fl(256.)}, v27\nv_max_f32 v28, {fl(256.)}, v28')
        k('v_cvt_pk_bf16_f32 v27, v27, v28')
        k('v_lshrrev_b32 v28, 16, v27\nv_and_b32 v27, 0xffff, v27')
        for P, B, o in ((20, 27, IDX+2*dw), (26, 28, IDX+2*dw+1)):
            k(f'v_subrev_u32 v{B}, 0x4280, v{B}')
            k(f'v_min_i32 v{B}, v{B}, v{P}')
            k(f'v_sub_u32 v29, v{P}, v23')
            k(f'v_cmp_le_u32 vcc, v29, v24')
            k(f'v_cndmask_b32 v{B}, v33, v{B}, vcc')
            k(f'v_lshlrev_b32 v{o}, 1, v{B}')
    k('v_and_b32 v6, 63, v0')
    k('s_mul_i32 s17, s16, 4608')
    k('v_lshlrev_b32 v3, 2, v6\nv_add_u32 v3, s17, v3')
    k('v_and_b32 v7, 15, v6\nv_lshrrev_b32 v8, 4, v6')
    k('v_mul_u32_u24 v4, 288, v7\nv_lshl_add_u32 v4, v8, 4, v4\nv_add_u32 v4, s17, v4')
    k('v_lshrrev_b32 v9, 1, v8\nv_and_b32 v30, 1, v8')
    k('v_lshlrev_b32 v108, 9, v9\nv_lshl_add_u32 v108, v7, 5, v108\nv_lshl_add_u32 v108, v30, 4, v108\nv_add_u32 v108, s17, v108')
    k('v_lshlrev_b32 v31, 4, v7\nv_lshlrev_b32 v32, 3, v7')
    k('v_cmp_gt_u32 vcc, 2, v8')
    k('v_cndmask_b32 v109, v32, v31, vcc')
    k('v_lshl_add_u32 v109, v8, 8, v109')
    k('v_add_u32 v109, s17, v109')
    k('v_mov_b32 v31, 8\nv_mov_b32 v32, 128')
    k('v_cndmask_b32 v110, v32, v31, vcc')
    k('v_add_u32 v110, v109, v110')
    k('v_lshlrev_b32 v111, 6, v7\nv_lshl_add_u32 v111, v8, 4, v111\nv_add_u32 v111, s17, v111')
    k(f'v_mov_b32 v31, 0\nv_mov_b32 v32, {KC+1536}\nds_write_b32 v32, v31')
    mark(k, 1)
    k('s_waitcnt vmcnt(0)')
    mark(k, 2)
    k(f'v_mul_f32 v14, {fl(LOG2E)}, v14\nv_mul_f32 v10, {fl(LOG2E)}, v10')
    k('v_exp_f32 v14, v14\nv_exp_f32 v10, v10')
    k('v_cvt_pk_bf16_f32 v10, v10, v14')
    k('v_and_b32 v14, 0xffff0000, v10\nv_lshlrev_b32 v10, 16, v10')
    k('v_mul_f32 v10, v10, v14\nv_mul_f32 v11, v11, v14')
    k(f'v_mul_f32 v10, {fl(-LOG2E)}, v10\nv_mul_f32 v11, {fl(INV2PI)}, v11')
    k('v_add_f32 v14, v14, v14')
    C0 = 40
    k(f'v_mul_f32 v{C0}, v12, v14\nv_mul_f32 v{C0+1}, v13, -v14')
    W, G8, GG = 20, 22, 24
    for dst, sc, neg in ((G8, 8., False), (W, 1., True), (GG, 128., True)):
        if sc != 1.:
            k(f'v_mul_f32 v15, {fl(sc)}, v10\nv_mul_f32 v16, {fl(sc)}, v11')
            k('v_exp_f32 v15, v15\nv_fract_f32 v16, v16')
        else:
            k('v_exp_f32 v15, v10\nv_fract_f32 v16, v11')
        k(f'v_cos_f32 v{dst}, v16\nv_sin_f32 v{dst+1}, v16')
        k(f'v_mul_f32 v{dst}, v{dst}, v15')
        k(f'v_mul_f32 v{dst+1}, v{dst+1}, {"-" if neg else ""}v15')
    tmp = [26, 28, 30]; ti = [0]
    def cmul(d, a, b):
        t = tmp[ti[0] % 3]; ti[0] += 1
        k(f'v_pk_mul_f32 v[{t}:{t+1}], v[{a}:{a+1}], v[{b}:{b+1}] op_sel:[0,0] op_sel_hi:[1,0]')
        k(f'v_pk_fma_f32 v[{d}:{d+1}], v[{a}:{a+1}], v[{b}:{b+1}], v[{t}:{t+1}] op_sel:[1,1,0] op_sel_hi:[0,1,1] neg_lo:[1,0,0]')
    pk = [34, 35, 36, 37]; pi = [0]
    def put(row, z):
        t = pk[pi[0] % 4]; pi[0] += 1
        k(f'v_cvt_pk_bf16_f32 v{t}, v{z}, v{z+1}')
        k(f'ds_write_b32 v3, v{t} offset:{row*288}')
    def frags(base):
        for ks in range(4): k(f'ds_read_b128 v[{base+4*ks}:{base+4*ks+3}], v4 offset:{ks*64}')
    LO, HI = 56, 72
    ACC = 88
    k('v_mov_b32 v34, 0x3f80\nds_write_b32 v3, v34'); pi[0] = 1
    put(1, G8)
    Z = 32 - 14
    cmul(Z, G8, G8); put(2, Z)
    for j in range(3, 16):
        cmul(Z, Z, G8); put(j, Z)
    frags(LO)
    put(0, C0)
    for c in range(1, 8):
        cmul(C0+2*c, C0+2*c-2, W); put(c, C0+2*c)
    for c in range(8):
        cmul(C0+2*c, C0+2*c, GG); put(8+c, C0+2*c)
    frags(HI)
    def mm(t, swap):
        for ks in range(4):
            a, b = HI+4*ks, LO+4*ks
            if swap: a, b = b, a
            c = '0' if ks == 0 else v(ACC+4*t, 4)
            k(f'v_mfma_f32_16x16x32_bf16 {v(ACC+4*t,4)}, {v(a,4)}, {v(b,4)}, {c}')
    for i in (2, 3):
        for c in (0, 2, 4, 6):
            cmul(C0+2*c, C0+2*c, GG); put(4*(i-2)+c//2, C0+2*c)
    k('s_waitcnt lgkmcnt(8)')
    mm(0, False)
    for i in range(4, 8):
        for c in (0, 4):
            cmul(C0+2*c, C0+2*c, GG); put(8+2*(i-4)+c//4, C0+2*c)
    frags(HI)
    for i in range(8, 17):
        cmul(C0, C0, GG); put(i-8, C0)
    k('s_waitcnt lgkmcnt(9)')
    mm(1, False)
    frags(HI)
    k('s_waitcnt lgkmcnt(0)')
    mm(2, True)
    mark(k, 3)
    k(f'ds_write_b128 v108, {v(ACC,4)}')
    k(f'ds_write_b64 v109, {v(ACC+4,2)} offset:1024')
    k(f'ds_write_b64 v110, {v(ACC+6,2)} offset:1024')
    k(f'ds_write_b128 v111, {v(ACC+8,4)} offset:2048')
    k('v_lshlrev_b32 v5, 4, v0\nv_lshlrev_b32 v6, 3, v0')
    k('s_waitcnt lgkmcnt(0)\ns_barrier')
    for w in range(3): k(f'ds_read_b128 {v(40+4*w,4)}, v5 offset:{w*4608}')
    k('s_waitcnt lgkmcnt(0)')
    k('v_pk_add_f32 v[40:41], v[40:41], v[44:45]\nv_pk_add_f32 v[42:43], v[42:43], v[46:47]')
    k('v_pk_add_f32 v[40:41], v[40:41], v[48:49]\nv_pk_add_f32 v[42:43], v[42:43], v[50:51]')
    k('v_cvt_pk_bf16_f32 v40, v40, v41\nv_cvt_pk_bf16_f32 v41, v42, v43')
    k(f'ds_write_b64 v6, v[40:41] offset:{KC}')
    k('s_waitcnt lgkmcnt(0)\ns_barrier')
    for dw in range(4):
        k(f'ds_read_u16 v{44+dw}, v{IDX+2*dw} offset:{KC}')
        k(f'ds_read_u16 v{48+dw}, v{IDX+2*dw+1} offset:{KC}')
    k(f's_mul_i32 s17, s3, 3072\ns_add_u32 s17, s17, {WS_KP:#x}')
    k('v_add_u32 v5, s17, v5')
    k('s_waitcnt lgkmcnt(0)')
    for dw in range(4): k(f'v_lshl_or_b32 v{44+dw}, v{48+dw}, 16, v{44+dw}')
    k('global_store_dwordx4 v5, v[44:47], s[6:7]')
    mark(k, 4)
    stamp_end(k, 0)
    k(f'{Lend}:')
    k('s_endpgm')
    return k
```

```python
from asmlib import *
WS_UX  = 0x000000
WS_KP  = 0x500000
WS_HT  = 0x700000
WS_CS  = 0x980000
WS_ST  = 0x990000
WS_FL  = 0x9B0000
WS_W1  = 0xA00000
WS_WO  = 0xC00000
WS_Z2  = 0xD00000
WS_P   = 0x1000000
WS_SIZE = 0x1400000
KPO = 272
KA = dict(x=0, logA=8, Aim=16, Cr=24, Ci=32, logdt=40, D=48, win=64, wsp=72, bsp=80, wout=88, out=96, dbg=104, ws=112)
LOG2E = 1.4426950408889634
INV2PI = 0.15915494309189535

def srd(k, d, base, nbytes):
    k(f's_mov_b32 s{d}, s{base}\ns_mov_b32 s{d+1}, s{base+1}\ns_mov_b32 s{d+2}, {nbytes:#x}\ns_mov_b32 s{d+3}, 0x20000')

class Cnt:
    def __init__(s, k, name, mx):
        s.k = k; s.name = name; s.mx = mx; s.n = 0; s.done = 0
    def issue(s, text):
        s.k(text); s.n += 1; return s.n
    def wait(s, tok):
        if tok <= s.done: return
        left = s.n - tok
        if left > s.mx: left = s.mx
        s.k(f's_waitcnt {s.name}({left})')
        s.done = s.n - left
    def all(s): s.wait(s.n)

def round_bf16_f32(k, dst, src):
    k(f'v_cvt_pk_bf16_f32 v{dst}, v{src}, v{src}')
    k(f'v_and_b32 v{dst}, 0xffff0000, v{dst}')

def ln_finish(k, mean, var, t):
    k(f'v_cvt_pk_bf16_f32 v{t}, v{mean}, v{var}')
    k(f'v_lshlrev_b32 v{mean}, 16, v{t}')
    k(f'v_and_b32 v{var}, 0xffff0000, v{t}')
    k(f'v_add_f32 v{var}, {fl(1e-5)}, v{var}')
    round_bf16_f32(k, var, var)
    k(f'v_sqrt_f32 v{var}, v{var}')
    round_bf16_f32(k, var, var)
    k(f'v_rcp_f32 v{var}, v{var}')

import os
STAMP = os.environ.get('STAMP', '')
WS_STAMP = 0x1380000
def stamp_begin(k):
    if STAMP: k('s_memrealtime s[96:97]')
WS_MARK = 0x13a0000
def mark(k, i):
    if STAMP == 'ws':
        k(f's_waitcnt lgkmcnt(0)\ns_memrealtime s[{60+2*i}:{61+2*i}]\ns_waitcnt lgkmcnt(0)'); k.nmark = max(getattr(k, 'nmark', 0), i+1)
def stamp_end(k, kidx):
    if STAMP:
        k('s_waitcnt vmcnt(0) lgkmcnt(0)')
        k('s_memrealtime s[98:99]')
        k(f's_load_dwordx2 s[94:95], s[0:1], {KA["ws"] if STAMP == "ws" else KA["dbg"]}')
        k('s_waitcnt lgkmcnt(0)')
        k('s_not_b32 s96, s96')
        if STAMP == 'ws':
            k(f's_lshl_b32 s97, s2, 3\ns_add_u32 s97, s97, {WS_STAMP + kidx*8192:#x}')
        else:
            nk = int(os.environ.get('NK', '5'))
            L = k.lab('nost')
            k(f's_add_u32 s94, s94, {(nk-1-kidx)*512}\ns_addc_u32 s95, s95, 0\ns_mov_b32 s97, {kidx*8}')
            k(f's_mul_i32 s93, s2, 37\ns_and_b32 s93, s93, 31\ns_cmp_eq_u32 s93, 0\ns_cbranch_scc1 {L}\ns_endpgm\n{L}:')
        k('s_mov_b64 exec, 1')
        k('v_mov_b32 v0, s97\nv_mov_b32 v2, s96\nv_mov_b32 v3, s98')
        k('global_atomic_umax v0, v2, s[94:95]\nglobal_atomic_umax v0, v3, s[94:95] offset:4')
        if STAMP == 'ws' and getattr(k, 'nmark', 0):
            k(f's_lshl_b32 s97, s2, 6\ns_add_u32 s97, s97, {WS_MARK + kidx*65536:#x}\nv_mov_b32 v0, s97')
            for i in range(k.nmark):
                k(f'v_mov_b32 v2, s{60+2*i}\nglobal_atomic_umax v0, v2, s[94:95] offset:{4*i}')
            k.nmark = 0
    k('s_endpgm')

class Dma:
    def __init__(s, k, vm):
        s.k = k; s.vm = vm; s.q = []; s.tok = {}; s.bar = -1; s.pend = None
    def add(s, pre, ins, stage, after=-1):
        s.q.append(dict(pre=pre, ins=ins, stage=stage, after=after))
    def ready(s, maxstage=10**9):
        return bool(s.q) and s.q[0]['after'] <= s.bar and s.q[0]['stage'] <= maxstage
    def pre(s, maxstage=10**9):
        if s.pend is None and s.ready(maxstage):
            s.pend = s.q.pop(0)
            for p in s.pend['pre']: s.k(p)
    def fire(s):
        if s.pend is not None:
            s.tok[s.pend['stage']] = s.vm.issue(s.pend['ins']); s.pend = None
    def one(s, maxstage=10**9):
        s.pre(maxstage); s.fire()
    def upto(s, stage):
        s.fire()
        while s.q and any(it['stage'] <= stage for it in s.q):
            assert s.q[0]['after'] <= s.bar, (s.q[0], s.bar)
            s.one()
    def sync(s, stage):
        s.upto(stage)
        s.vm.wait(max(t for st, t in s.tok.items() if st <= stage))
        s.k('s_barrier'); s.bar = stage

def gemm_loop(k, lg, dma, g0, g1, reads, mfmas, stage_of, lead, rate, PD=2, tail_reads=None):
    ftok = {}
    synced = dma.bar
    def need_sync(g):
        st = stage_of(g)
        if st > dma.bar: dma.sync(st)
    for g in range(g0, min(g0+PD, g1)):
        need_sync(g)
        for r in reads(g): ftok[g] = lg.issue(r)
    cnt = 0.0
    for g in range(g0, g1):
        lg.wait(ftok[g])
        n = g + PD
        rr = []
        if n < g1:
            need_sync(n); rr = list(reads(n))
        elif n == g1 and tail_reads: rr = list(tail_reads)
        mm = mfmas(g)
        nm = len(mm); nr = len(rr); done = 0
        for i, m_ in enumerate(mm):
            cnt += 1.0/rate
            if cnt >= 1.0:
                dma.pre(dma.bar + lead)
            k(m_)
            if dma.pend is not None: dma.fire(); cnt -= 1.0
            cnt = min(cnt, 1.0)
            want = -(-(i+1)*nr//nm)
            while done < want:
                ftok[n] = lg.issue(rr[done]); done += 1
```

```python
from common import *

PFW = int(os.environ.get('K1PFW', 2))
ST = os.environ.get('K1ST', 'sc1')
def gen_k1():
    k = Kern('k1_kernel', 1064, 256, 21504)
    Lk = 'Lk1_kgen'; Lend = 'Lk1_end'; Lrt = 'Lk1_rt'
    k(f's_cmp_ge_u32 s2, 1064\ns_cbranch_scc1 {Lend}')
    stamp_begin(k)
    k(f's_load_dwordx2 s[6:7], s[0:1], {KA["ws"]}')
    k(f's_cmp_lt_u32 s2, 640\ns_cbranch_scc1 {Lk}')
    k(f's_cmp_ge_u32 s2, 896\ns_cbranch_scc1 {Lrt}')
    k('s_sub_u32 s44, s2, 640')
    k(f's_load_dwordx2 s[4:5], s[0:1], {KA["x"]}')
    k('v_lshrrev_b32 v1, 5, v0')
    k('v_and_b32 v2, 31, v0')
    k('v_lshlrev_b32 v2, 3, v2')
    k('v_mul_u32_u24 v3, 1280, v1')
    k('v_add_u32 v3, v3, v2')
    k('v_mul_u32_u24 v4, 1344, v1')
    k('v_add_u32 v4, v4, v2')
    k('s_mul_i32 s3, s44, 10240')
    k('v_lshrrev_b32 v5, 6, v0')
    k('v_readfirstlane_b32 s16, v5')
    k('s_waitcnt lgkmcnt(0)')
    mark(k, 0)
    srd(k, 8, 4, 2048*1280)
    for q in range(5):
        k(f'buffer_load_dwordx2 v[{10+2*q}:{11+2*q}], v3, s[8:11], s3 offen offset:{q*256}')
    srd(k, 12, 6, WS_SIZE)
    Lnc = k.lab('nc')
    k(f's_cmp_lg_u32 s16, 3\ns_cbranch_scc1 {Lnc}')
    k('v_and_b32 v6, 63, v0\nv_lshlrev_b32 v6, 4, v6')
    k('v_mov_b32 v60, -1.0\nv_mov_b32 v61, -1.0\nv_mov_b32 v62, -1.0\nv_mov_b32 v63, -1.0')
    k(f's_lshl_b32 s17, s44, 10\ns_add_u32 s17, s17, {WS_ST:#x}')
    k('buffer_store_dwordx4 v[60:63], v6, s[12:15], s17 offen ' + ST)
    k(f'{Lnc}:')
    k('v_and_b32 v6, 63, v0')
    k('v_lshrrev_b32 v7, 5, v6')
    k('v_bfe_u32 v8, v6, 4, 1')
    k('v_bfe_u32 v9, v6, 2, 2')
    k('v_and_b32 v50, 3, v6')
    k('v_lshl_add_u32 v51, v7, 3, v9')
    k('v_mul_u32_u24 v51, 1344, v51')
    k('v_lshl_add_u32 v51, v8, 5, v51')
    k('v_lshl_add_u32 v51, v50, 3, v51')
    k('s_mul_i32 s17, s16, 320')
    k('v_add_u32 v51, s17, v51')
    k('v_lshlrev_b32 v52, 9, v8')
    k('v_lshl_add_u32 v52, v9, 7, v52')
    k('v_lshl_add_u32 v52, v7, 6, v52')
    k('v_lshl_add_u32 v52, v50, 4, v52')
    k('s_mul_i32 s18, s44, 20480\ns_mul_i32 s19, s16, 5120\ns_add_u32 s18, s18, s19')
    if WS_UX: k(f's_add_u32 s18, s18, {WS_UX:#x}')
    k('s_add_u32 s19, s18, 4096')
    mark(k, 1)
    k('s_waitcnt vmcnt(0)')
    mark(k, 2)
    for q in range(5):
        k(f'ds_write_b64 v4, v[{10+2*q}:{11+2*q}] offset:{8*1344+q*256}')
    for i in range(10):
        k(f'v_lshlrev_b32 v{20+2*i}, 16, v{10+i}')
        k(f'v_and_b32 v{21+2*i}, 0xffff0000, v{10+i}')
    k('v_pk_add_f32 v[40:41], v[20:21], v[22:23]')
    k('v_pk_add_f32 v[42:43], v[24:25], v[26:27]')
    for i in range(4, 10):
        t = 40 + 2*(i % 2)
        k(f'v_pk_add_f32 v[{t}:{t+1}], v[{t}:{t+1}], v[{20+2*i}:{21+2*i}]')
    k('v_pk_add_f32 v[40:41], v[40:41], v[42:43]')
    k('v_add_f32 v40, v40, v41')
    def red32(r, t):
        for sh in (8, 4, 2, 1):
            k(f'v_add_f32_dpp v{r}, v{r}, v{r} row_ror:{sh} row_mask:0xf bank_mask:0xf')
        k(f'v_mov_b32 v{t}, v{r}')
        k(f'v_permlane16_swap_b32 v{r}, v{t}')
        k(f'v_add_f32 v{r}, v{r}, v{t}')
    red32(40, 41)
    k(f'v_mul_f32 v40, {fl(1/640)}, v40')
    for i in range(10):
        k(f'v_pk_add_f32 v[46:47], v[{20+2*i}:{21+2*i}], v[40:41] op_sel_hi:[1,0] neg_lo:[0,1] neg_hi:[0,1]')
        if i == 0: k('v_pk_mul_f32 v[42:43], v[46:47], v[46:47]')
        else: k('v_pk_fma_f32 v[42:43], v[46:47], v[46:47], v[42:43]')
    k('v_add_f32 v42, v42, v43')
    red32(42, 43)
    k(f'v_mul_f32 v42, {fl(1/640)}, v42')
    ln_finish(k, 40, 42, 44)
    for i in range(10):
        a = 20+2*i
        k(f'v_pk_add_f32 v[{a}:{a+1}], v[{a}:{a+1}], v[40:41] op_sel_hi:[1,0] neg_lo:[0,1] neg_hi:[0,1]')
        k(f'v_cvt_pk_bf16_f32 v{a+1}, v{a}, v{a+1}')
        k(f'v_lshlrev_b32 v{a}, 16, v{a+1}')
        k(f'v_and_b32 v{a+1}, 0xffff0000, v{a+1}')
        k(f'v_pk_mul_f32 v[{a}:{a+1}], v[{a}:{a+1}], v[42:43] op_sel_hi:[1,0]')
        k(f'v_cvt_pk_bf16_f32 v{10+i}, v{a}, v{a+1}')
        if i % 2 == 1:
            k(f'ds_write_b64 v4, v[{10+i-1}:{10+i}] offset:{(i//2)*256}')
    mark(k, 3)
    k('s_waitcnt lgkmcnt(0)\ns_barrier')
    for b in range(5):
        k(f'ds_read_b64_tr_b16 v[{20+4*b}:{21+4*b}], v51 offset:{b*64}')
        k(f'ds_read_b64_tr_b16 v[{22+4*b}:{23+4*b}], v51 offset:{b*64+4*1344}')
    for b in range(5):
        k(f's_waitcnt lgkmcnt({8-2*b})')
        if b < 4: k(f'buffer_store_dwordx4 v[{20+4*b}:{23+4*b}], v52, s[12:15], s18 offen offset:{b*1024} {ST}')
        else: k(f'buffer_store_dwordx4 v[{20+4*b}:{23+4*b}], v52, s[12:15], s19 offen {ST}')
    mark(k, 4)
    stamp_end(k, 0)
    k(f'{Lrt}:')
    Lo = 'Lk1_rto'
    k('v_lshrrev_b32 v5, 6, v0')
    k('v_readfirstlane_b32 s16, v5')
    k('v_lshrrev_b32 v1, 3, v0\nv_and_b32 v2, 7, v0\nv_lshlrev_b32 v2, 4, v2')
    k('v_and_b32 v6, 63, v0\nv_lshrrev_b32 v7, 2, v6\nv_and_b32 v8, 3, v6\nv_lshlrev_b32 v8, 3, v8\nv_lshlrev_b32 v9, 4, v6')
    k(f's_cmp_ge_u32 s2, 1016\ns_cbranch_scc1 {Lo}')
    def retile(name, RS, nbytes, NP, LS):
        k(f's_load_dwordx2 s[4:5], s[0:1], {KA[name]}')
        if name == 'win':
            k('s_sub_u32 s3, s2, 896\ns_mul_i32 s17, s3, 43\ns_lshr_b32 s17, s17, 8\ns_mul_i32 s18, s17, 6\ns_sub_u32 s18, s3, s18')
            k(f's_lshl_b32 s19, s18, 2\ns_add_u32 s19, s19, s16\ns_mul_i32 s19, s19, 80\ns_add_u32 s19, s19, s17\ns_lshl_b32 s19, s19, 10\ns_add_u32 s19, s19, {WS_W1:#x}')
            step = 20480
        else:
            k('s_sub_u32 s3, s2, 1016\ns_lshr_b32 s17, s3, 1\ns_and_b32 s18, s3, 1')
            k(f's_lshl_b32 s19, s18, 2\ns_add_u32 s19, s19, s16\ns_mul_i32 s19, s19, 24\ns_add_u32 s19, s19, s17\ns_mul_i32 s19, s19, 5120\ns_add_u32 s19, s19, {WS_WO:#x}')
            step = 1024
        k(f's_mul_i32 s20, s17, {32*RS}\ns_mul_i32 s21, s18, {NP*128}\ns_add_u32 s20, s20, s21')
        k(f'v_mul_u32_u24 v3, {RS}, v1\nv_add_u32 v3, v3, v2')
        k(f'v_mul_u32_u24 v4, {LS}, v1\nv_add_u32 v4, v4, v2')
        k(f's_mul_i32 s21, s16, {NP*32}')
        k(f'v_mul_u32_u24 v10, {LS}, v7\nv_add3_u32 v10, v10, v8, s21')
        k('s_waitcnt lgkmcnt(0)')
        srd(k, 8, 4, nbytes); srd(k, 12, 6, WS_SIZE)
        for p in range(NP): k(f'buffer_load_dwordx4 {v(12+4*p,4)}, v3, s[8:11], s20 offen offset:{128*p}')
        for p in range(NP):
            k(f's_waitcnt vmcnt({NP-1-p})')
            k(f'ds_write_b128 v4, {v(12+4*p,4)} offset:{128*p}')
        k('s_waitcnt lgkmcnt(0)\ns_barrier')
        for p in range(NP):
            k(f'ds_read_b64_tr_b16 {v(32+4*p,2)}, v10 offset:{32*p}')
            k(f'ds_read_b64_tr_b16 {v(34+4*p,2)}, v10 offset:{32*p+16*LS}')
        for p in range(NP):
            k(f's_waitcnt lgkmcnt({2*(NP-1-p)})')
            k(f'buffer_store_dwordx4 {v(32+4*p,4)}, v9, s[12:15], s19 offen {ST}')
            if p < NP-1: k(f's_add_u32 s19, s19, {step}')
        stamp_end(k, 0)
    retile('win', 3072, 640*3072, 4, 544)
    k(f'{Lo}:')
    retile('wout', 1280, 768*1280, 5, 672)
    k('Lk1_pf:')
    k(f's_load_dwordx2 s[4:5], s[0:1], {KA["wsp"]}')
    k('v_and_b32 v1, 63, v0\nv_lshlrev_b32 v1, 7, v1')
    k('s_getpc_b64 s[30:31]')
    k('Lk1_pc:')
    k('s_sub_u32 s30, s30, Lk1_pc-k1_kernel\ns_subb_u32 s31, s31, 0')
    k('s_lshr_b32 s17, s3, 3\ns_and_b32 s17, s17, 15\ns_lshl_b32 s17, s17, 13')
    k('v_add_u32 v2, s17, v1\nv_min_u32 v2, Lcode_end-k1_kernel-4, v2')
    k('global_load_dword v3, v2, s[30:31]')
    if PFW:
        k(f's_mul_i32 s17, s3, {8192*PFW}')
        k('s_waitcnt vmcnt(0) lgkmcnt(0)')
        srd(k, 8, 4, 2048*4096)
        for j in range(PFW):
            k(f'buffer_load_dword v{4+j}, v1, s[8:11], s17 offen')
            k('s_add_u32 s17, s17, 8192')
    k('s_endpgm')
    k(f'{Lk}:')
    k('v_lshrrev_b32 v5, 6, v0')
    k('v_readfirstlane_b32 s16, v5')
    k(f's_load_dwordx8 s[20:27], s[0:1], {KA["logA"]}')
    k(f's_load_dwordx2 s[28:29], s[0:1], {KA["logdt"]}')
    k('s_mov_b32 s3, s2')
    k(f's_cmp_eq_u32 s16, 3\ns_cbranch_scc1 Lk1_pf')
    k('s_mul_i32 s17, s3, 384')
    k('v_lshlrev_b32 v1, 1, v0')
    k('v_add_u32 v1, s17, v1')
    k('s_lshl_b32 s18, s3, 1')
    k('v_mov_b32 v2, s18')
    for r in range(10, 15): k(f'v_mov_b32 v{r}, 0')
    k('s_waitcnt lgkmcnt(0)')
    mark(k, 0)
    k('global_load_short_d16_hi v14, v2, s[28:29]')
    for i in range(4):
        k(f'global_load_short_d16_hi v{10+i}, v1, s[{20+2*i}:{21+2*i}]')
    KC = 13824
    regs = [(0, 543, 2, -1, 0, 514), (KPO//4, 542, 2, -1, 0, 514), (140, 1268, 16, 4, 516, 1024), (156, 1276, 16, 4, 516, 1024), (172, 2040, 16, 8, 1032, 2048)]
    def params(r): t0, base, sd, dh, lo, hi = r; return [base + 4*sd*t0, sd, dh, lo, hi-lo]
    p0 = params(regs[0])
    for i in range(5): k(f'v_mov_b32 v{20+i}, {p0[i]}')
    prev = p0
    for r in regs[1:]:
        p = params(r)
        k(f'v_cmp_le_u32 vcc, {r[0]}, v0')
        k('s_mov_b64 exec, vcc')
        for i in range(5):
            if p[i] != prev[i]: k(f'v_mov_b32 v{20+i}, {p[i]}')
        prev = p
    k('s_mov_b64 exec, -1')
    k('v_lshlrev_b32 v25, 2, v0')
    k('v_mul_u32_u24 v25, v21, v25')
    k('v_sub_u32 v20, v20, v25')
    k('v_mov_b32 v33, 768')
    IDX = 100
    for dw in range(4):
        if dw: k('v_sub_u32 v20, v20, v21')
        k('v_add_u32 v26, v20, v22')
        k('v_cvt_f32_i32 v27, v20\nv_cvt_f32_i32 v28, v26')
        k(f'v_max_f32 v27, {fl(256.)}, v27\nv_max_f32 v28, {fl(256.)}, v28')
        k('v_cvt_pk_bf16_f32 v27, v27, v28')
        k('v_lshrrev_b32 v28, 16, v27\nv_and_b32 v27, 0xffff, v27')
        for P, B, o in ((20, 27, IDX+2*dw), (26, 28, IDX+2*dw+1)):
            k(f'v_subrev_u32 v{B}, 0x4280, v{B}')
            k(f'v_min_i32 v{B}, v{B}, v{P}')
            k(f'v_sub_u32 v29, v{P}, v23')
            k(f'v_cmp_le_u32 vcc, v29, v24')
            k(f'v_cndmask_b32 v{B}, v33, v{B}, vcc')
            k(f'v_lshlrev_b32 v{o}, 1, v{B}')
    k('v_and_b32 v6, 63, v0')
    k('s_mul_i32 s17, s16, 4608')
    k('v_lshlrev_b32 v3, 2, v6\nv_add_u32 v3, s17, v3')
    k('v_and_b32 v7, 15, v6\nv_lshrrev_b32 v8, 4, v6')
    k('v_mul_u32_u24 v4, 288, v7\nv_lshl_add_u32 v4, v8, 4, v4\nv_add_u32 v4, s17, v4')
    k('v_lshrrev_b32 v9, 1, v8\nv_and_b32 v30, 1, v8')
    k('v_lshlrev_b32 v108, 9, v9\nv_lshl_add_u32 v108, v7, 5, v108\nv_lshl_add_u32 v108, v30, 4, v108\nv_add_u32 v108, s17, v108')
    k('v_lshlrev_b32 v31, 4, v7\nv_lshlrev_b32 v32, 3, v7')
    k('v_cmp_gt_u32 vcc, 2, v8')
    k('v_cndmask_b32 v109, v32, v31, vcc')
    k('v_lshl_add_u32 v109, v8, 8, v109')
    k('v_add_u32 v109, s17, v109')
    k('v_mov_b32 v31, 8\nv_mov_b32 v32, 128')
    k('v_cndmask_b32 v110, v32, v31, vcc')
    k('v_add_u32 v110, v109, v110')
    k('v_lshlrev_b32 v111, 6, v7\nv_lshl_add_u32 v111, v8, 4, v111\nv_add_u32 v111, s17, v111')
    k(f'v_mov_b32 v31, 0\nv_mov_b32 v32, {KC+1536}\nds_write_b32 v32, v31')
    mark(k, 1)
    k('s_waitcnt vmcnt(0)')
    mark(k, 2)
    k(f'v_mul_f32 v14, {fl(LOG2E)}, v14\nv_mul_f32 v10, {fl(LOG2E)}, v10')
    k('v_exp_f32 v14, v14\nv_exp_f32 v10, v10')
    k('v_cvt_pk_bf16_f32 v10, v10, v14')
    k('v_and_b32 v14, 0xffff0000, v10\nv_lshlrev_b32 v10, 16, v10')
    k('v_mul_f32 v10, v10, v14\nv_mul_f32 v11, v11, v14')
    k(f'v_mul_f32 v10, {fl(-LOG2E)}, v10\nv_mul_f32 v11, {fl(INV2PI)}, v11')
    k('v_add_f32 v14, v14, v14')
    C0 = 40
    k(f'v_mul_f32 v{C0}, v12, v14\nv_mul_f32 v{C0+1}, v13, -v14')
    W, G8, GG = 20, 22, 24
    for dst, sc, neg in ((G8, 8., False), (W, 1., True), (GG, 128., True)):
        if sc != 1.:
            k(f'v_mul_f32 v15, {fl(sc)}, v10\nv_mul_f32 v16, {fl(sc)}, v11')
            k('v_exp_f32 v15, v15\nv_fract_f32 v16, v16')
        else:
            k('v_exp_f32 v15, v10\nv_fract_f32 v16, v11')
        k(f'v_cos_f32 v{dst}, v16\nv_sin_f32 v{dst+1}, v16')
        k(f'v_mul_f32 v{dst}, v{dst}, v15')
        k(f'v_mul_f32 v{dst+1}, v{dst+1}, {"-" if neg else ""}v15')
    tmp = [26, 28, 30]; ti = [0]
    def cmul(d, a, b):
        t = tmp[ti[0] % 3]; ti[0] += 1
        k(f'v_pk_mul_f32 v[{t}:{t+1}], v[{a}:{a+1}], v[{b}:{b+1}] op_sel:[0,0] op_sel_hi:[1,0]')
        k(f'v_pk_fma_f32 v[{d}:{d+1}], v[{a}:{a+1}], v[{b}:{b+1}], v[{t}:{t+1}] op_sel:[1,1,0] op_sel_hi:[0,1,1] neg_lo:[1,0,0]')
    pk = [34, 35, 36, 37]; pi = [0]
    def put(row, z):
        t = pk[pi[0] % 4]; pi[0] += 1
        k(f'v_cvt_pk_bf16_f32 v{t}, v{z}, v{z+1}')
        k(f'ds_write_b32 v3, v{t} offset:{row*288}')
    def frags(base):
        for ks in range(4): k(f'ds_read_b128 v[{base+4*ks}:{base+4*ks+3}], v4 offset:{ks*64}')
    LO, HI = 56, 72
    ACC = 88
    k('v_mov_b32 v34, 0x3f80\nds_write_b32 v3, v34'); pi[0] = 1
    put(1, G8)
    Z = 32 - 14
    cmul(Z, G8, G8); put(2, Z)
    for j in range(3, 16):
        cmul(Z, Z, G8); put(j, Z)
    frags(LO)
    put(0, C0)
    for c in range(1, 8):
        cmul(C0+2*c, C0+2*c-2, W); put(c, C0+2*c)
    for c in range(8):
        cmul(C0+2*c, C0+2*c, GG); put(8+c, C0+2*c)
    frags(HI)
    def mm(t, swap):
        for ks in range(4):
            a, b = HI+4*ks, LO+4*ks
            if swap: a, b = b, a
            c = '0' if ks == 0 else v(ACC+4*t, 4)
            k(f'v_mfma_f32_16x16x32_bf16 {v(ACC+4*t,4)}, {v(a,4)}, {v(b,4)}, {c}')
    for i in (2, 3):
        for c in (0, 2, 4, 6):
            cmul(C0+2*c, C0+2*c, GG); put(4*(i-2)+c//2, C0+2*c)
    k('s_waitcnt lgkmcnt(8)')
    mm(0, False)
    for i in range(4, 8):
        for c in (0, 4):
            cmul(C0+2*c, C0+2*c, GG); put(8+2*(i-4)+c//4, C0+2*c)
    frags(HI)
    for i in range(8, 17):
        cmul(C0, C0, GG); put(i-8, C0)
    k('s_waitcnt lgkmcnt(9)')
    mm(1, False)
    frags(HI)
    k('s_waitcnt lgkmcnt(0)')
    mm(2, True)
    mark(k, 3)
    k(f'ds_write_b128 v108, {v(ACC,4)}')
    k(f'ds_write_b64 v109, {v(ACC+4,2)} offset:1024')
    k(f'ds_write_b64 v110, {v(ACC+6,2)} offset:1024')
    k(f'ds_write_b128 v111, {v(ACC+8,4)} offset:2048')
    k('v_lshlrev_b32 v5, 4, v0\nv_lshlrev_b32 v6, 3, v0')
    k('s_waitcnt lgkmcnt(0)\ns_barrier')
    for w in range(3): k(f'ds_read_b128 {v(40+4*w,4)}, v5 offset:{w*4608}')
    k('s_waitcnt lgkmcnt(0)')
    k('v_pk_add_f32 v[40:41], v[40:41], v[44:45]\nv_pk_add_f32 v[42:43], v[42:43], v[46:47]')
    k('v_pk_add_f32 v[40:41], v[40:41], v[48:49]\nv_pk_add_f32 v[42:43], v[42:43], v[50:51]')
    k('v_cvt_pk_bf16_f32 v40, v40, v41\nv_cvt_pk_bf16_f32 v41, v42, v43')
    k(f'ds_write_b64 v6, v[40:41] offset:{KC}')
    k('s_waitcnt lgkmcnt(0)\ns_barrier')
    for dw in range(4):
        k(f'ds_read_u16 v{44+dw}, v{IDX+2*dw} offset:{KC}')
        k(f'ds_read_u16 v{48+dw}, v{IDX+2*dw+1} offset:{KC}')
    k(f's_mul_i32 s17, s3, 3072\ns_add_u32 s17, s17, {WS_KP:#x}')
    k('v_add_u32 v5, s17, v5')
    k('s_waitcnt lgkmcnt(0)')
    for dw in range(4): k(f'v_lshl_or_b32 v{44+dw}, v{48+dw}, 16, v{44+dw}')
    k(f'global_store_dwordx4 v5, v[44:47], s[6:7] {ST}')
    mark(k, 4)
    stamp_end(k, 0)
    k(f'{Lend}:')
    k('s_endpgm')
    return k
```

```python
from common import *
GC = 0.7978845608028654
K1C = -2*GC*LOG2E
K2C = K1C*0.044715
def a(n, c=1): return 'a%d' % n if c == 1 else 'a[%d:%d]' % (n, n+c-1)
MF = 'v_mfma_f32_16x16x32_bf16'
E = os.environ.get
SPIN = 0x20000

def signal(k, vm, soff_expr):
    k('s_waitcnt vmcnt(0)'); vm.done = vm.n
    k('s_barrier')
    L = k.lab('sig')
    k(f's_cmp_lg_u32 s16, 0\ns_cbranch_scc1 {L}')
    k('v_mov_b32 v2, 0\nv_mov_b32 v3, 1')
    k('s_mov_b64 exec, 1')
    k(f'buffer_store_dword v3, v2, s[8:11], {soff_expr} offen sc1')
    k('s_mov_b64 exec, -1')
    k(f'{L}:')

def poll(k, vm, vaddr, sreg):
    L = k.lab('poll'); Lo = k.lab('pok')
    k('s_mov_b32 s37, 0')
    k(f'{L}:')
    k(f'buffer_load_dword v3, v{vaddr}, s[8:11], {sreg} offen sc1')
    k(f's_add_u32 s37, s37, 1\ns_cmp_gt_u32 s37, {SPIN}')
    k(f's_cbranch_scc1 {Lo}')
    k('s_waitcnt vmcnt(0)')
    k('v_cmp_gt_i32 vcc, 0, v3')
    k(f's_cbranch_vccnz {L}')
    k(f'{Lo}:')
    k('s_waitcnt vmcnt(0)')
    vm.done = vm.n

def w1_items(dma):
    for ks4 in range(5):
        for T in range(3):
            for q in range(4):
                ks = 4*ks4 + q
                dma.add([f's_add_u32 s27, s{22+T}, {ks4*4096}'] if q == 0 else [], f'buffer_load_dwordx4 {a(80*T+4*ks,4)}, v5, s[8:11], s27 offen offset:{q*1024}', 0)

def phaseA(k):
    UXB = 288*128
    vm = Cnt(k, 'vmcnt', 63); lg = Cnt(k, 'lgkmcnt', 15)
    k('s_lshl_b32 s3, s2, 2\ns_add_u32 s3, s3, s16')
    k('v_lshrrev_b32 v3, 3, v1\nv_and_b32 v4, 7, v1\nv_lshrrev_b32 v6, 1, v3\nv_xor_b32 v4, v4, v6')
    k('s_lshl_b32 s44, s20, 2')
    k('v_xor_b32 v4, s44, v4')
    k('v_mul_u32_u24 v3, 20480, v3\nv_lshl_add_u32 v3, v4, 4, v3')
    k(f's_mul_i32 s45, s3, 3072\ns_add_u32 s45, s45, {WS_KP:#x}')
    k(f's_mul_i32 s46, s16, 3072\ns_add_u32 s46, s46, {UXB}')
    k('s_mov_b32 m0, s46')
    k(f's_lshl_b32 s47, s2, 7\ns_mul_i32 s48, s16, {8*20480}\ns_add_u32 s47, s47, s48')
    for j in range(3):
        tK = vm.issue(f'buffer_load_dwordx4 v5, s[8:11], s45 offen offset:{j*1024} lds')
    k('s_lshl_b32 s49, s16, 10\ns_add_u32 s49, s49, 4096')
    for i in range(8):
        k(f's_add_u32 m0, s49, {i*4096}')
        if i: k(f's_add_u32 s47, s47, {32*20480}')
        tU = vm.issue(f'buffer_load_dwordx4 v3, s[8:11], s47 offen lds')
    k('s_lshl_b32 s50, s3, 1\ns_and_b32 s50, s50, -4')
    k('s_load_dword s51, s[4:5], s50')
    dma = Dma(k, vm); w1_items(dma)
    for _ in range(int(E('FA_PRE', 8))): dma.one()
    mark(k, 1)
    k('v_lshlrev_b32 v6, 4, v0')
    for r in range(12, 16): k(f'v_mov_b32 v{r}, 0')
    k('ds_write_b128 v6, v[12:15]')
    ACC = 12; KN = 44; QA = 112; QB = 124; Q8 = 136; KPT = 152; BND = 156; SS = 180; VV = 204
    FB = 216; NB = 6; AF = 240; AG = 244; AEU = 245; AEX = 246; AST = 247; EU = 248; EX = 250; ET = 252
    AK0, AK1, AQ = 2, 3, 4
    def uaddr(dst, gc, use_h):
        k(f'v_lshl_add_u32 v9, v7, 1, {use_h}\nv_add_u32 v9, {gc+32}, v9')
        k('v_bfe_u32 v10, v9, 1, 3\nv_xor_b32 v10, s16, v10\nv_lshlrev_b32 v10, 4, v10')
        k(f'v_lshl_add_u32 v{dst}, v9, 7, v10')
    for j in range(4): uaddr(AF+j, -2-4*(j+4), 'v8')
    uaddr(AG, -3, 'v8')
    k('v_lshrrev_b32 v11, 1, v8')
    uaddr(AEU, 0, 'v11')
    k(f'v_lshlrev_b32 v{AST}, 5, v7\nv_lshl_add_u32 v{AST}, v11, 4, v{AST}')
    k('v_and_b32 v11, 1, v8')
    k(f'v_lshl_add_u32 v{AST}, v11, 9, v{AST}')
    k(f'v_lshl_add_u32 v{AEU}, v11, 3, v{AEU}')
    k(f'v_xor_b32 v{AEX}, 64, v{AEU}')
    k(f's_lshl_b32 s52, s3, 12\ns_add_u32 s52, s52, {WS_HT:#x}')
    k('v_lshlrev_b32 v9, 3, v8\nv_sub_u32 v9, v9, v7\nv_add_u32 v9, 15, v9\nv_lshlrev_b32 v9, 1, v9')
    k(f'v_and_b32 v10, 1, v7\nv_xor_b32 v10, 1, v10\nv_mul_u32_u24 v10, {4*KPO-2}, v10')
    k(f'v_add3_u32 v{AK0}, v9, v10, s46\nv_add_u32 v{AK1}, 1024, v{AK0}')
    k('v_lshlrev_b32 v9, 2, v8\nv_sub_u32 v9, v9, v7\nv_add_u32 v9, 15, v9\nv_lshlrev_b32 v9, 2, v9')
    k(f's_add_u32 s53, s46, 2240')
    k(f'v_add_u32 v{AQ}, s53, v9')
    k('v_lshlrev_b32 v6, 3, v8')
    bands = [(-5, -3, -16), (-10, -6, -16), (-13, -11, -16), (-18, -14, -24), (-11, -5, -16), (-20, -12, -24), (12-16, 13-16, -16)]
    for bi, (lo, hi, e0) in enumerate(bands):
        dst = BND + 4*bi if bi < 6 else KPT
        msk = ((1 << (hi-lo+1)) - 1) << (lo - e0)
        k(f'v_mov_b32 v9, {msk:#x}\nv_lshlrev_b32 v9, v7, v9\nv_lshrrev_b32 v9, v6, v9')
        k('v_and_b32 v10, 0xaa, v9\nv_and_b32 v9, 0x55, v9\nv_lshl_or_b32 v9, v10, 15, v9')
        for q in range(4):
            if q: k(f'v_lshrrev_b32 v10, {2*q}, v9')
            k(f'v_and_b32 v{dst+q}, 0x10001, v{10 if q else 9}')
            if bi < 6: k(f'v_mul_u32_u24 v{dst+q}, 0x3f80, v{dst+q}')
    k('s_waitcnt lgkmcnt(0)')
    k('s_and_b32 s50, s3, 1\ns_xor_b32 s50, s50, 1\ns_lshl_b32 s50, s50, 4\ns_lshl_b32 s51, s51, s50\ns_and_b32 s51, s51, 0xffff0000')
    mark(k, 2)
    vm.wait(tK)
    prog = []
    started = set()
    def Kn(kb): return ('K', 'n', kb)
    kreg = {}
    for kb in range(17): kreg[Kn(kb)] = (KN+4*kb, AK1 if kb == 0 else AK0, 0 if kb == 0 else (16-kb)*16)
    for D in (2, 3, 4): kreg[('K', 'a', D)] = (QA+4*(D-2), AQ, (4-D)*16); kreg[('K', 'b', D)] = (QB+4*(D-2), AQ, 64+(4-D)*16)
    for D in (4, 5, 6, 7): kreg[('K', '8', D)] = (Q8+4*(D-4), AQ, 128+(7-D)*16)
    def acc(t, A, B):
        prog.append(('m', ACC+4*t, A, B, t not in started)); started.add(t)
    for rt in range(8):
        F0 = ('F', rt, 0)
        if rt <= 5:
            for b in (0, 1, 2): prog.append(('m', SS+4*b, F0, BND+4*b, True))
            if rt <= 3: prog.append(('m', SS+16, F0, BND+16, True))
            prog.append(('m', SS+12, ('F', rt, 'G'), BND+12, True))
            if rt <= 3: prog.append(('m', SS+20, ('F', rt, 'G'), BND+20, True))
        acc(rt, Kn(0), F0)
        if rt+1 <= 7: acc(rt+1, Kn(8), F0)
        if rt+2 <= 7: acc(rt+2, Kn(16), F0)
        if rt+4 <= 7: acc(rt+4, KPT, F0)
        if rt <= 5: prog.append(('cvt', rt))
        for j in range(1, 8):
            acc(rt, Kn(j), ('F', rt, j))
            if rt+1 <= 7: acc(rt+1, Kn(j+8), ('F', rt, j))
        prog.append(('epi', rt))
        if rt <= 5:
            prog.append(('needcvt',))
            for D in (2, 3, 4):
                if rt+D <= 7: acc(rt+D, VV, ('K', 'a', D)); acc(rt+D, VV+4, ('K', 'b', D))
            if rt <= 3:
                for D in (4, 5, 6, 7):
                    if rt+D <= 7: acc(rt+D, VV+8, ('K', '8', D))
    order = []; last_use = {}
    for pi_, p in enumerate(prog):
        if p[0] == 'm':
            for o in (p[2], p[3]):
                if isinstance(o, tuple):
                    if o not in last_use: order.append(o)
                    last_use[o] = pi_
    forder = [o for o in order if o[0] == 'F']
    fbuf = {o: FB + 4*(n % NB) for n, o in enumerate(forder)}
    fidx = {o: n for n, o in enumerate(forder)}
    tok = {}
    rq = []
    for o in order:
        if o[0] == 'K':
            r, ar, off = kreg[o]
            rq.append((o, f'ds_read2_b32 {v(r,2)}, v{ar} offset0:{off} offset1:{off+1}', False))
            rq.append((o, f'ds_read2_b32 {v(r+2,2)}, v{ar} offset0:{off+2} offset1:{off+3}', True))
        else:
            _, rt, j = o
            if j == 'G': ar, off = AG, rt*4096
            else: ar, off = AF + (j % 4), rt*4096 + (2048 if j < 4 else 0)
            rq.append((o, f'ds_read_b128 {v(fbuf[o],4)}, v{ar} offset:{off}', True))
    cur = [0]
    def can_read():
        if not rq: return False
        o = rq[0][0]
        if lg.n - lg.done >= 13: return False
        if o[0] == 'F' and fidx[o] >= NB:
            return last_use[forder[fidx[o]-NB]] < cur[0]
        return True
    def do_read():
        o, t, l = rq.pop(0); tk = lg.issue(t)
        if l: tok[o] = tk
    k('v_mov_b32 v9, s53')
    tp = lg.issue(f'ds_read_u16 v10, v9 offset:{256+16*4+2}')
    early = [x for x in rq if x[0][0] == 'K'][:int(E('FA_EK', 24))]
    for x in early:
        rq.remove(x); tk = lg.issue(x[1])
        if x[2]: tok[x[0]] = tk
    lg.wait(tp)
    for q in range(4): k(f'v_mul_u32_u24 v{KPT+q}, v10, v{KPT+q}')
    mark(k, 3)
    vm.wait(tU)
    k('s_barrier')
    mark(k, 4)
    hi = []; lo = []
    def epilogue(t):
        st = {}; A = ACC + 4*t; ops = []
        ops.append(lambda: st.__setitem__('u', lg.issue(f'ds_read_b64 {v(EU,2)}, v{AEU} offset:{t*4096}')))
        ops.append(lambda: st.__setitem__('x', lg.issue(f'ds_read_b64 {v(EX,2)}, v{AEX} offset:{t*4096}')))
        ops += [None]*6
        def Em(txt, w=None):
            def f():
                if w: lg.wait(st[w])
                k(txt)
            ops.append(f)
        Em(f'v_lshlrev_b32 v{ET}, 16, v{EU}', 'x'); Em(f'v_and_b32 v{ET+1}, 0xffff0000, v{EU}')
        Em(f'v_lshlrev_b32 v{ET+2}, 16, v{EU+1}'); Em(f'v_and_b32 v{ET+3}, 0xffff0000, v{EU+1}')
        for r in range(4): Em(f'v_fmac_f32 v{A+r}, s51, v{ET+r}')
        Em(f'v_lshlrev_b32 v{ET}, 16, v{EX}'); Em(f'v_and_b32 v{ET+1}, 0xffff0000, v{EX}')
        Em(f'v_lshlrev_b32 v{ET+2}, 16, v{EX+1}'); Em(f'v_and_b32 v{ET+3}, 0xffff0000, v{EX+1}')
        for r in range(4): Em(f'v_add_f32 v{A+r}, v{A+r}, v{ET+r}')
        P = ACC + 4*(t & ~1) + 2*(t & 1)
        Em(f'v_cvt_pk_bf16_f32 v{P}, v{A}, v{A+1}'); Em(f'v_cvt_pk_bf16_f32 v{P+1}, v{A+2}, v{A+3}')
        if t & 1:
            Q = ACC + 4*(t-1)
            ops.append(None)
            Em(f'v_permlane16_swap_b32 v{Q}, v{Q+2}'); Em(f'v_permlane16_swap_b32 v{Q+1}, v{Q+3}')
            ops.append(lambda: vm.issue(f'buffer_store_dwordx4 {v(Q,4)}, v{AST}, s[8:11], s52 offen offset:{(t-1)*512} sc1'))
        return ops
    while can_read() and lg.n - lg.done < 12: do_read()
    nm = 0; WR = int(E('FA_WR', 4))
    for pi_, p in enumerate(prog):
        cur[0] = pi_
        if p[0] == 'cvt':
            rt = p[1]
            hi.extend([None]*2)
            for q in range(3 if rt <= 3 else 2):
                for r in range(4):
                    hi.append(lambda q=q, r=r: k(f'v_cvt_pk_bf16_f32 v{VV+4*q+r}, v{SS+8*q+r}, v{SS+8*q+4+r}'))
            continue
        if p[0] == 'needcvt':
            while hi:
                f = hi.pop(0)
                if f: f()
            continue
        if p[0] == 'epi':
            lo.extend(epilogue(p[1])); continue
        _, d, A, B, zero = p
        n0 = len(k.L)
        ops = []
        for o in (A, B):
            if isinstance(o, tuple):
                while o not in tok:
                    assert can_read() or True
                    do_read()
                lg.wait(tok[o])
                ops.append(fbuf[o] if o[0] == 'F' else kreg[o][0])
            else: ops.append(o)
        nm += 1
        if nm % WR == 0: dma.pre()
        used = len(k.L) - n0
        k(f'{MF} {v(d,4)}, {v(ops[0],4)}, {v(ops[1],4)}, {"0" if zero else v(d,4)}')
        cur[0] = pi_ + 1
        n1 = len(k.L)
        dma.fire()
        while len(k.L) - n1 + used < 2:
            if can_read(): do_read()
            elif hi:
                f = hi.pop(0)
                if f: f()
                else: used += 1
            elif lo:
                f = lo.pop(0)
                if f: f()
                else: used += 1
            else: break
    for f in lo:
        if f: f()
    while dma.q: dma.one()
    mark(k, 5)
    k(f's_lshl_b32 s44, s2, 7\ns_add_u32 s44, s44, {WS_FL:#x}')
    signal(k, vm, 's44')

def ln_sigma(k, mean, var, t):
    k(f'v_cvt_pk_bf16_f32 v{t}, v{mean}, v{var}')
    k(f'v_lshlrev_b32 v{mean}, 16, v{t}\nv_and_b32 v{var}, 0xffff0000, v{t}')
    k(f'v_add_f32 v{var}, {fl(1e-5)}, v{var}')
    round_bf16_f32(k, var, var)
    k(f'v_sqrt_f32 v{var}, v{var}')
    round_bf16_f32(k, var, var)

STG = 81920; Z1L = 147456; STAT = 159744; PART = STAT + 512
CS = 28; RES = 40; MS = 52; KK = 60; HF = 68; AC = [116, 132, 148]; ONE = 164; T = 168; G = 184; SA = 200

def phaseB_setup(k):
    for r in range(4): k(f'v_mov_b32 v{ONE+r}, 0x3f803f80')
    k('v_lshrrev_b32 v2, 3, v1\nv_and_b32 v3, 7, v1\nv_and_b32 v4, 6, v2\nv_xor_b32 v3, v3, v4')
    k('v_lshlrev_b32 v10, 12, v2\nv_lshl_add_u32 v10, v3, 4, v10')
    for ks in range(20):
        for T_ in range(3):
            k(f'{MF} {v(CS+4*T_,4)}, {a(80*T_+4*ks,4)}, {v(ONE,4)}, {"0" if ks == 0 else v(CS+4*T_,4)}')
    for j in range(4):
        k(f'v_add_u32 v2, {4*j}, v8\nv_xor_b32 v3, v2, v7\nv_lshlrev_b32 v2, 12, v2\nv_lshl_add_u32 v{11+j}, v3, 4, v2')
    k('v_bfe_u32 v2, v1, 2, 2\nv_and_b32 v3, 3, v1\nv_lshl_add_u32 v4, v8, 2, v2')
    k('v_lshrrev_b32 v6, 1, v3\nv_and_b32 v3, 1, v3\nv_and_b32 v9, 6, v4\nv_xor_b32 v6, v6, v9')
    k('v_lshlrev_b32 v6, 4, v6\nv_lshl_add_u32 v6, v4, 7, v6\nv_lshl_add_u32 v6, v3, 3, v6')
    k('s_lshl_b32 s36, s20, 6')
    k('v_xor_b32 v16, s36, v6')
    for sg in range(1, 4): k(f'v_xor_b32 v{16+sg}, {32*sg}, v16')
    for sg in range(4): k(f'v_add_u32 v{20+sg}, 40960, v{16+sg}')
    k('s_lshl_b32 s36, s16, 5\ns_mul_i32 s35, s18, 10240')
    k('v_xor_b32 v24, s36, v6\nv_add_u32 v24, s35, v24')
    k(f's_lshl_b32 s26, s16, 14\ns_add_u32 s26, s26, {STG}')
    k('s_lshl_b32 s36, s19, 12')
    k('v_xor_b32 v2, v8, v7\nv_lshlrev_b32 v2, 4, v2\nv_lshl_add_u32 v2, v7, 8, v2\nv_add_u32 v2, s36, v2')
    for ks in range(4):
        k(f'v_xor_b32 v3, {64*ks}, v2\nv_add_u32 v{SA+2*ks}, s26, v3\nv_xor_b32 v3, {64*ks+4096}, v2\nv_add_u32 v{SA+2*ks+1}, s26, v3')
    k(f's_lshl_b32 s21, s17, 7\ns_lshl_b32 s36, s16, 16\ns_add_u32 s21, s21, s36\ns_add_u32 s21, s21, {WS_HT:#x}')
    k('s_lshl_b32 s25, s16, 11')
    k('s_lshl_b32 s28, s17, 18\ns_lshl_b32 s36, s20, 17\ns_add_u32 s28, s28, s36\ns_lshl_b32 s36, s19, 11\ns_add_u32 s28, s28, s36')

def phaseB(k, hiw):
    vm = Cnt(k, 'vmcnt', 63); lg = Cnt(k, 'lgkmcnt', 15)
    dma = Dma(k, vm)
    for s_ in range(10):
        for j in range(2):
            dma.add([f's_add_u32 m0, s25, {s_*8192 + j*1024}', f's_add_u32 s27, s21, {(s_*64 + j*8)*4096}'], 'buffer_load_dwordx4 v10, s[8:11], s27 offen sc1 lds', s_)
    def stg_items(c):
        for j in range(8):
            dma.add([f's_add_u32 m0, s26, {(c % 2)*8192 + j*1024}', f's_add_u32 s27, s28, {c*256 + (j//4)*65536}'], f'buffer_load_dwordx4 v{11+j%4}, s[12:15], s27 offen lds', 100+c)
    def stg_read(c):
        dma.upto(100+c); vm.wait(dma.tok[100+c])
        for ks in range(4):
            for tau in range(2):
                lg.issue(f'ds_read_b128 {a(32*c+8*ks+4*tau,4)}, v{SA+2*ks+tau} offset:{(c % 2)*8192}')
    dma.upto(9)
    stg_items(0); stg_items(1)
    def reads(g):
        g %= 20
        off = g*4096; ar = 16
        if off >= 40960: off -= 40960; ar = 20
        b = HF + 16*(g % 3); out = []
        for sg in range(4):
            out += [f'ds_read_b64_tr_b16 {v(b+4*sg,2)}, v{ar+sg} offset:{off}', f'ds_read_b64_tr_b16 {v(b+4*sg+2,2)}, v{ar+sg} offset:{off+2048}']
        return out
    def mk(tiles, stats):
        def f(g):
            b = HF + 16*(g % 3); out = []
            for sg in range(4):
                for T_ in tiles:
                    d = AC[T_] + 4*sg
                    out.append(f'{MF} {v(d,4)}, {a(80*T_+4*g,4)}, {v(b+4*sg,4)}, {"0" if g == 0 else v(d,4)}')
                if stats and sg < 2:
                    d = AC[2] + 8*sg
                    out.append(f'{MF} {v(d,4)}, {v(ONE,4)}, {v(b+4*sg,4)}, {"0" if g == 0 else v(d,4)}')
                    out.append(f'{MF} {v(d+4,4)}, {v(b+4*sg,4)}, {v(b+4*sg,4)}, {"0" if g == 0 else v(d+4,4)}')
            return out
        return f
    resr = [f'ds_read_b64_tr_b16 {v(RES+2*j,2)}, v24 offset:{j*2048}' for j in range(5)]
    gemm_loop(k, lg, dma, 0, 20, reads, mk([0] if hiw else [0, 1], hiw), lambda g: g//2, 1000, float(E('FB_RATE', 6)), tail_reads=resr)
    mark(k, 8)
    z2t = [0] if hiw else [0, 1]
    if hiw:
        k('v_and_b32 v2, 3, v1')
        k('v_cmp_eq_u32 vcc, 1, v2\nv_cmp_eq_u32 s[30:31], 2, v2\nv_cmp_eq_u32 s[32:33], 3, v2')
        k(f's_lshl_b32 s36, s20, 8\ns_add_u32 s36, s36, {STAT}')
        k('v_lshlrev_b32 v3, 3, v7\nv_add_u32 v3, s36, v3')
        k(f'v_mov_b32 v4, {fl(1/640)}')
        for sg in range(2):
            S = AC[2] + 8*sg; Gm = S + 4
            k(f'v_cndmask_b32 v{Gm}, v{Gm}, v{Gm+1}, vcc\nv_cndmask_b32 v{Gm}, v{Gm}, v{Gm+2}, s[30:31]\nv_cndmask_b32 v{Gm}, v{Gm}, v{Gm+3}, s[32:33]')
            k(f'v_mul_f32 v{S}, v4, v{S}\nv_mul_f32 v{S+1}, v{S}, v{S}')
            k(f'v_fma_f32 v{S+1}, v{Gm}, v4, -v{S+1}\nv_max_f32 v{S+1}, 0, v{S+1}')
            ln_sigma(k, S, S+1, S+2)
        k('s_mov_b32 exec_lo, 0x00f0000f\ns_mov_b32 exec_hi, 0xf0000f00')
        for sg in range(2): lg.issue(f'ds_write_b64 v3, {v(AC[2]+8*sg,2)} offset:{128*sg}')
        k('s_mov_b64 exec, -1')
    else:
        stg_read(0); stg_read(1)
    k(f's_lshl_b32 s36, s20, 8')
    k(f'v_lshlrev_b32 v3, 3, v7\nv_add_u32 v3, s36, v3\nv_xor_b32 v4, 256, v3\nv_add_u32 v3, {STAT}, v3\nv_add_u32 v4, {STAT}, v4')
    lg.all()
    k('s_barrier')
    for sg in range(4): lg.issue(f'ds_read_b64 {v(MS+2*sg,2)}, v{3 + sg//2} offset:{128*(sg % 2)}')
    tS = lg.n
    if hiw: stg_read(0); stg_read(1)
    lg.wait(tS)
    for sg in range(4):
        k(f'v_rcp_f32 v2, v{MS+2*sg+1}')
        k(f'v_mul_f32 v{KK+2*sg}, {fl(K1C)}, v2\nv_mul_f32 v6, v2, v2\nv_mul_f32 v6, v6, v2\nv_mul_f32 v{KK+2*sg+1}, {fl(K2C)}, v6')
    lg.all()
    stg_items(2); stg_items(3)
    ER = int(E('FB_ER', 2))
    def gelu(T_):
        prs = [(sg, hp) for sg in range(4) for hp in range(2)]
        for q in range(0, 8, 2):
            st = [[], []]
            for u_ in range(2):
                sg, hp = prs[q+u_]
                z = AC[T_] + 4*sg + 2*hp; c = CS + 4*T_ + 2*hp; t = T + 2*u_
                ms = v(MS+2*sg, 2); kk = v(KK+2*sg, 2)
                st[u_] = [
                  f'v_pk_fma_f32 {v(z,2)}, {v(c,2)}, {ms}, {v(z,2)} op_sel_hi:[1,0,1] neg_lo:[0,1,0] neg_hi:[0,1,0]',
                  f'v_pk_mul_f32 {v(t,2)}, {v(z,2)}, {v(z,2)}',
                  f'v_pk_fma_f32 {v(t,2)}, {v(t,2)}, {kk}, {kk} op_sel:[0,1,0] op_sel_hi:[1,1,0]',
                  f'v_pk_mul_f32 {v(t,2)}, {v(t,2)}, {v(z,2)}',
                  f'v_exp_f32 v{t}, v{t}', f'v_exp_f32 v{t+1}, v{t+1}',
                  f'v_pk_fma_f32 {v(t,2)}, {v(t,2)}, {ms}, {ms} op_sel:[0,1,1] op_sel_hi:[1,1,1]',
                  f'v_rcp_f32 v{t}, v{t}', f'v_rcp_f32 v{t+1}, v{t+1}',
                  f'v_pk_mul_f32 {v(z,2)}, {v(z,2)}, {v(t,2)}']
            for n_, (x, y) in enumerate(zip(*st)):
                if n_ % ER == 0: dma.pre()
                k(x); dma.fire(); k(y)
    for T_ in z2t: gelu(T_)
    for sg in range(4):
        s1 = G + 2*sg; s2 = G + 8 + 2*sg; first = True
        for T_ in z2t:
            z = AC[T_] + 4*sg
            if first:
                k(f'v_pk_add_f32 {v(s1,2)}, {v(z,2)}, {v(z+2,2)}\nv_pk_mul_f32 {v(s2,2)}, {v(z,2)}, {v(z,2)}')
            else:
                k(f'v_pk_add_f32 {v(s1,2)}, {v(s1,2)}, {v(z,2)}\nv_pk_add_f32 {v(s1,2)}, {v(s1,2)}, {v(z+2,2)}')
                k(f'v_pk_fma_f32 {v(s2,2)}, {v(z,2)}, {v(z,2)}, {v(s2,2)}')
            k(f'v_pk_fma_f32 {v(s2,2)}, {v(z+2,2)}, {v(z+2,2)}, {v(s2,2)}')
            first = False
    for q in range(8): k(f'v_add_f32 v{G+2*q}, v{G+2*q}, v{G+2*q+1}')
    for b in (G, G+8):
        k(f'v_permlane32_swap_b32 v{b}, v{b+4}\nv_permlane32_swap_b32 v{b+2}, v{b+6}')
    for b in (G, G+8):
        k(f'v_add_f32 v{b}, v{b}, v{b+4}\nv_add_f32 v{b+2}, v{b+2}, v{b+6}')
    for b in (G, G+8): k(f'v_permlane16_swap_b32 v{b}, v{b+2}')
    k(f'v_add_f32 v{T}, v{G}, v{G+2}\nv_add_f32 v{T+1}, v{G+8}, v{G+10}')
    k(f's_lshl_b32 s36, s20, 8\ns_lshl_b32 s35, s16, 9\ns_add_u32 s35, s35, {PART}')
    k('v_lshlrev_b32 v9, 3, v1\nv_xor_b32 v25, s36, v9\nv_add_u32 v2, s35, v25')
    lg.issue(f'ds_write_b64 v2, {v(T,2)}')
    k(f's_lshl_b32 s29, s17, 12\ns_add_u32 s29, s29, {WS_ST:#x}')
    lg.all()
    k('s_barrier')
    if hiw:
        L = k.lab('npub')
        k(f's_cmp_lg_u32 s16, 3\ns_cbranch_scc1 {L}')
        k(f'v_add_u32 v2, {PART}, v9')
        for w in range(4): k(f'ds_read_b64 {v(G+2*w,2)}, v2 offset:{512*w}')
        k('s_lshl_b32 s36, s18, 9\ns_add_u32 s36, s36, s29')
        k('s_waitcnt lgkmcnt(0)')
        k(f'v_pk_add_f32 {v(G,2)}, {v(G,2)}, {v(G+2,2)}\nv_pk_add_f32 {v(G+4,2)}, {v(G+4,2)}, {v(G+6,2)}\nv_pk_add_f32 {v(G,2)}, {v(G,2)}, {v(G+4,2)}')
        k(f'buffer_store_dwordx2 {v(G,2)}, v9, s[8:11], s36 offen sc1')
        k(f'{L}:')
    mark(k, 9)
    def z1pass(T_):
        gemm_loop(k, lg, dma, 0, 20, reads, mk([T_], False), lambda g: -1, 1000, float(E('FB_RATE2', 4)))
    def z1out(T_, jexpr_sreg):
        k(f's_mul_i32 s36, s20, 6144\ns_add_u32 s36, s36, {jexpr_sreg}\ns_mul_i32 s35, s20, 12288\ns_sub_u32 s35, s36, s35')
        k('v_add_u32 v2, s36, v5\nv_add_u32 v3, s35, v5')
        for sg in range(4):
            z = AC[T_] + 4*sg
            k(f'v_cvt_pk_bf16_f32 v{z}, v{z}, v{z+1}\nv_cvt_pk_bf16_f32 v{z+1}, v{z+2}, v{z+3}')
            lg.issue(f'ds_write_b64 v{2 + sg//2}, {v(z,2)} offset:{3072*sg}')
    if not hiw:
        stg_read(2); stg_read(3); lg.all()
        stg_items(4); stg_items(5)
        z1pass(2)
        stg_read(4); stg_read(5)
    else:
        z1pass(1)
        stg_read(2); stg_read(3)
    def statloads():
        for q in range(8):
            vm.issue(f'buffer_load_dwordx2 {v(G+2*q,2)}, v25, s[8:11], s29 offen offset:{q*512} sc1')
        return vm.n
    tS = statloads()
    lg.all()
    if not hiw:
        stg_items(6); stg_items(7)
        gelu(2)
        k(f's_lshl_b32 s34, s20, 3\ns_add_u32 s34, s34, {Z1L}')
        z1out(2, 's34')
    else:
        stg_items(4); stg_items(5)
        gelu(1)
        k(f's_lshl_b32 s34, s20, 10\ns_add_u32 s34, s34, {Z1L+1024}')
        z1out(1, 's34')
    while dma.q: dma.one()
    k('v_and_b32 v2, 3, v7\nv_bfe_u32 v3, v7, 2, 1\nv_lshl_add_u32 v2, v3, 3, v2\nv_bfe_u32 v3, v7, 3, 1\nv_lshl_add_u32 v2, v3, 2, v2')
    k('v_and_b32 v3, 1, v8\nv_lshl_add_u32 v2, v3, 4, v2\nv_lshlrev_b32 v2, 5, v2\nv_lshrrev_b32 v3, 1, v8\nv_lshl_add_u32 v26, v3, 4, v2')
    if hiw: k('s_add_u32 s30, s16, 2')
    else: k('s_lshl_b32 s30, s16, 1')
    k(f's_mul_i32 s31, s18, 6\ns_add_u32 s30, s30, s31\ns_lshl_b32 s30, s30, 16\ns_lshl_b32 s31, s17, 11\ns_add_u32 s30, s30, s31\ns_add_u32 s30, s30, {WS_Z2:#x}')
    k('s_lshl_b32 s31, s20, 10\ns_add_u32 s32, s30, s31\ns_xor_b32 s31, s31, 1024\ns_add_u32 s33, s30, s31')
    mark(k, 10)
    vm.wait(tS)
    Lp = k.lab('spoll'); Lok = k.lab('sok')
    k('s_mov_b32 s37, 0')
    k(f'{Lp}:')
    k(f'v_min_f32 v2, v{G+1}, v{G+3}')
    for q in range(2, 8, 2): k(f'v_min3_f32 v2, v2, v{G+2*q+1}, v{G+2*q+3}')
    k('v_cmp_gt_f32 vcc, 0, v2')
    k(f's_cbranch_vccz {Lok}')
    k(f's_add_u32 s37, s37, 1\ns_cmp_gt_u32 s37, {SPIN}')
    k(f's_cbranch_scc1 {Lok}')
    n0 = vm.n; statloads(); vm.n = n0
    k('s_waitcnt vmcnt(0)')
    k(f's_branch {Lp}')
    k(f'{Lok}:')
    mark(k, 11)
    for st in (8, 4, 2):
        for q in range(0, st, 2): k(f'v_pk_add_f32 {v(G+q,2)}, {v(G+q,2)}, {v(G+q+st,2)}')
    k(f'v_mov_b32 v4, {fl(1/768)}')
    k(f'v_mul_f32 v{G}, v4, v{G}\nv_mul_f32 v{G+2}, v{G}, v{G}\nv_fma_f32 v{G+1}, v{G+1}, v4, -v{G+2}\nv_max_f32 v{G+1}, 0, v{G+1}')
    ln_finish(k, G, G+1, G+2)
    k(f'v_mul_f32 v{G}, v{G}, -v{G+1}')
    N = T + 8
    for e in range(2):
        k(f'v_mov_b32 v{N+e}, v{G+e}\nv_mov_b32 v{N+4+e}, v{G+e}')
    for e in range(2): k(f'v_permlane32_swap_b32 v{N+e}, v{N+4+e}')
    for e in range(2): k(f'v_mov_b32 v{N+2+e}, v{N+e}\nv_mov_b32 v{N+6+e}, v{N+4+e}')
    for e in range(2): k(f'v_permlane16_swap_b32 v{N+e}, v{N+2+e}\nv_permlane16_swap_b32 v{N+4+e}, v{N+6+e}')
    for T_ in z2t:
        for sp in range(2):
            P = AC[T_] + 8*sp
            for u_ in range(2):
                sg = 2*sp + u_; z = AC[T_] + 4*sg; ms = v(N+2*sg, 2)
                for hp in range(2):
                    k(f'v_pk_fma_f32 {v(z+2*hp,2)}, {v(z+2*hp,2)}, {ms}, {ms} op_sel:[0,1,0] op_sel_hi:[1,1,0]')
                k(f'v_cvt_pk_bf16_f32 v{P+2*u_}, v{z}, v{z+1}\nv_cvt_pk_bf16_f32 v{P+2*u_+1}, v{z+2}, v{z+3}')
            k(f'v_permlane16_swap_b32 v{P}, v{P+2}\nv_permlane16_swap_b32 v{P+1}, v{P+3}')
            if T_ == 1: k(f's_add_u32 s{32+sp}, s{32+sp}, 65536')
            vm.issue(f'buffer_store_dwordx4 {v(P,4)}, v26, s[8:11], s{32+sp} offen sc1')
    k(f's_lshl_b32 s30, s18, 5\ns_add_u32 s31, s30, s17\ns_lshl_b32 s31, s31, 7\ns_add_u32 s31, s31, {WS_FL+32768:#x}')
    signal(k, vm, 's31')
    mark(k, 12)
    if not hiw:
        stg_read(6); stg_read(7)
        L = k.lab('np2')
        k(f's_cmp_lg_u32 s16, 0\ns_cbranch_scc1 {L}')
        k(f'v_and_b32 v2, 31, v1\nv_lshlrev_b32 v2, 7, v2\ns_lshl_b32 s30, s30, 7\ns_add_u32 s30, s30, {WS_FL+32768:#x}')
        poll(k, vm, 2, 's30')
        k(f'{L}:')
    else:
        stg_read(4); lg.all()
        stg_items(6)
        z1pass(2)
        stg_read(5); lg.all()
        stg_items(7)
        gelu(2)
        k('s_add_u32 s34, s34, 8')
        z1out(2, 's34')
        stg_read(6); stg_read(7)
    lg.all()

def phaseC(k):
    vm = Cnt(k, 'vmcnt', 63); lg = Cnt(k, 'lgkmcnt', 15)
    dma = Dma(k, vm)
    NS = 5; RED = 122880
    k(f's_mul_i32 s21, s18, 6\ns_mul_i32 s36, s20, 3\ns_add_u32 s21, s21, s36\ns_lshl_b32 s21, s21, 16\ns_lshl_b32 s36, s19, 15\ns_add_u32 s21, s21, s36\ns_add_u32 s21, s21, {WS_Z2:#x}')
    k('s_mul_i32 s25, s16, 6144')
    k(f's_mul_i32 s22, s18, 122880\ns_add_u32 s22, s22, s25\ns_add_u32 s22, s22, {WS_WO:#x}')
    k('s_barrier')
    mark(k, 13)
    for s_ in range(16):
        sl = s_ % NS; af = s_ - NS + 2 if s_ >= NS else -1
        for jf in range(3):
            for hf in range(2):
                pre = [f's_add_u32 s27, s21, {jf*65536 + s_*2048}', f's_add_u32 m0, s25, {sl*24576 + jf*2048}'] if hf == 0 else []
                dma.add(pre, f'buffer_load_dwordx4 v5, s[8:11], s27 offen offset:{hf*1024} sc1 lds', s_, af)
    for s_ in range(11, 16):
        sl = s_ % NS
        for hf in range(2):
            for j in range(3):
                pre = [f's_add_u32 s27, s22, {sl*24576 + hf*3072}', f's_add_u32 m0, s25, {sl*24576 + hf*3072}'] if j == 0 else []
                dma.add(pre, f'buffer_load_dwordx4 v5, s[8:11], s27 offen offset:{j*1024} lds', 50, min(s_+2, 16))
    dma.upto(int(E('FC_PRO', 2)))
    ZA = 16
    k('v_bfe_u32 v2, v1, 2, 2\nv_and_b32 v3, 1, v8\nv_lshl_add_u32 v2, v3, 2, v2\nv_lshrrev_b32 v3, 1, v8\nv_lshl_add_u32 v2, v3, 4, v2')
    k('v_and_b32 v3, 3, v1\nv_lshlrev_b32 v3, 3, v3\nv_lshl_add_u32 v2, v2, 5, v3')
    k('s_mul_i32 s36, s19, 12288')
    k(f'v_add_u32 v{ZA}, s36, v2\nv_add_u32 v{ZA+1}, 49152, v{ZA}\nv_add_u32 v{ZA+2}, 98304, v{ZA}')
    k('s_lshl_b32 s23, s20, 1\ns_add_u32 s23, s23, s19')
    k('s_lshl_b32 s36, s17, 2\ns_add_u32 s24, s36, s23')
    k('s_lshl_b32 s36, s24, 5')
    k('v_lshl_add_u32 v2, v7, 1, s36')
    BS = 20
    tB = vm.issue(f'global_load_ushort v{BS}, v2, s[38:39]')
    FR = 68; ACC = 200
    def reads(g):
        s_, ks = g // 2, g % 2; sl = s_ % NS; b = FR + 24*(g % 3)
        ar = ZA + sl//2; off = (sl % 2)*24576 + ks*1024
        out = []
        for ft in range(6):
            out += [f'ds_read_b64_tr_b16 {v(b+4*ft,2)}, v{ar} offset:{off+ft*2048}', f'ds_read_b64_tr_b16 {v(b+4*ft+2,2)}, v{ar} offset:{off+ft*2048+256}']
        return out
    def mfmas(g):
        b = FR + 24*(g % 3); out = []
        for ft in range(6):
            for tau in range(2):
                d = ACC + 24*tau + 4*ft
                out.append(f'{MF} {v(d,4)}, {v(b+4*ft,4)}, {a(8*g+4*tau,4)}, {"0" if g == 0 else v(d,4)}')
        return out
    ZR = 24
    k(f's_mul_i32 s36, s23, 3072\ns_add_u32 s36, s36, {Z1L}')
    k('v_add_u32 v19, s36, v5')
    tail = [f'ds_read_b128 {v(ZR+4*q,4)}, v19 offset:{1024*q}' for q in range(3)]
    gemm_loop(k, lg, dma, 0, 32, reads, mfmas, lambda g: g//2, 1000, float(E('FC_RATE', 3)), tail_reads=tail)
    mark(k, 14)
    k(f's_add_u32 s36, s25, {RED}\ns_xor_b32 s35, s16, 2\ns_mul_i32 s35, s35, 6144\ns_add_u32 s35, s35, {RED}')
    k('v_add_u32 v2, s36, v5\nv_add_u32 v3, s35, v5')
    for ft in range(6): lg.issue(f'ds_write_b128 v2, {v(ACC+24+4*ft,4)} offset:{1024*ft}')
    lg.all()
    k('s_barrier'); dma.bar = 16
    tk = [lg.issue(f'ds_read_b128 {v(FR+4*ft,4)}, v3 offset:{1024*ft}') for ft in range(6)]
    vm.wait(tB)
    k(f'v_lshlrev_b32 v{BS}, 16, v{BS}')
    k(f's_mul_i32 s30, s24, 24576\ns_mul_i32 s31, s18, 3072\ns_add_u32 s30, s30, s31\ns_add_u32 s30, s30, {WS_P:#x}')
    TT = 36
    for ft in range(6):
        d = ACC + 4*ft; z = ZR + 2*ft; P = ACC + 8*(ft//2) + 2*(ft % 2)
        lg.wait(tk[ft])
        for hp in range(2):
            k(f'v_pk_add_f32 {v(d+2*hp,2)}, {v(d+2*hp,2)}, {v(FR+4*ft+2*hp,2)}')
            k(f'v_lshlrev_b32 v{TT+2*hp}, 16, v{z+hp}\nv_and_b32 v{TT+2*hp+1}, 0xffff0000, v{z+hp}')
            k(f'v_pk_add_f32 {v(d+2*hp,2)}, {v(d+2*hp,2)}, {v(BS,2)} op_sel_hi:[1,0]')
            k(f'v_pk_mul_f32 {v(d+2*hp,2)}, {v(d+2*hp,2)}, {v(TT+2*hp,2)}')
        k(f'v_cvt_pk_bf16_f32 v{P}, v{d}, v{d+1}\nv_cvt_pk_bf16_f32 v{P+1}, v{d+2}, v{d+3}')
        if ft % 2: vm.issue(f'buffer_store_dwordx4 {v(P-2,4)}, v5, s[8:11], s30 offen offset:{(ft//2)*1024} sc1')
    k(f's_lshl_b32 s30, s17, 3\ns_add_u32 s31, s30, s18\ns_lshl_b32 s31, s31, 7\ns_add_u32 s31, s31, {WS_FL+65536:#x}')
    signal(k, vm, 's31')
    mark(k, 15)
    while dma.q: dma.one()
    return vm, lg

def phaseD(k, vm, lg):
    k('s_waitcnt vmcnt(0)\ns_barrier'); vm.done = vm.n
    k('v_add_u32 v6, 61440, v5')
    NPRE = 60
    for q in range(NPRE): lg.issue(f'ds_read_b128 {a(4*q,4)}, v5 offset:{1024*q}')
    k(f'v_and_b32 v2, 7, v1\nv_lshlrev_b32 v2, 7, v2\ns_lshl_b32 s30, s17, 10\ns_add_u32 s30, s30, {WS_FL+65536:#x}')
    k(f's_lshl_b32 s31, s17, 2\ns_add_u32 s31, s31, s16\ns_mul_i32 s32, s31, 24576\ns_add_u32 s32, s32, {WS_P:#x}')
    k('s_mul_i32 s33, s31, 20480\ns_mul_i32 s34, s18, 160\ns_add_u32 s33, s33, s34')
    k('v_mul_u32_u24 v9, 1280, v7\nv_lshl_add_u32 v10, v8, 3, v9')
    k('v_and_b32 v3, 1, v8\nv_lshl_add_u32 v9, v3, 5, v9\nv_lshrrev_b32 v3, 1, v8\nv_lshl_add_u32 v9, v3, 4, v9')
    poll(k, vm, 2, 's30')
    PF = 68; FR = 164; ACC = 224
    pt = []
    for g in range(24):
        if g % 4 == 0 and g: k('s_add_u32 s32, s32, 4096')
        pt.append(vm.issue(f'buffer_load_dwordx4 {v(PF+4*g,4)}, v5, s[8:11], s32 offen offset:{(g % 4)*1024} sc1'))
    lg.all()
    ft = {}
    def rd(g): return [f'ds_read_b128 {v(FR+20*(g % 3)+4*j,4)}, v6 offset:{(5*g+j)*1024-61440}' for j in range(5)]
    for g in range(24):
        vm.wait(pt[g])
        if g >= 12: lg.wait(ft[g])
        rr = rd(g+2) if 12 <= g+2 < 24 else []
        for j in range(5):
            A = a(20*g+4*j, 4) if g < 12 else v(FR+20*(g % 3)+4*j, 4)
            k(f'{MF} {v(ACC+4*j,4)}, {A}, {v(PF+4*g,4)}, {"0" if g == 0 else v(ACC+4*j,4)}')
            if rr: ft[g+2] = lg.issue(rr.pop(0))
    TT = 36
    OST = E('F_OST', 'sc1')
    for j in range(5):
        d = ACC + 4*j; P = ACC + 8*(j//2) + 2*(j % 2)
        for hp in range(2):
            k(f'v_lshlrev_b32 v{TT+2*hp}, 16, v{RES+2*j+hp}\nv_and_b32 v{TT+2*hp+1}, 0xffff0000, v{RES+2*j+hp}')
            k(f'v_pk_add_f32 {v(d+2*hp,2)}, {v(d+2*hp,2)}, {v(TT+2*hp,2)}')
        k(f'v_cvt_pk_bf16_f32 v{P}, v{d}, v{d+1}\nv_cvt_pk_bf16_f32 v{P+1}, v{d+2}, v{d+3}')
        if j % 2:
            k(f'v_permlane16_swap_b32 v{P-2}, v{P}\nv_permlane16_swap_b32 v{P-1}, v{P+1}')
            k(f'buffer_store_dwordx4 {v(P-2,4)}, v9, s[40:43], s33 offen offset:{32*(j-1)} {OST}')
        elif j == 4:
            k(f'buffer_store_dwordx2 {v(P,2)}, v10, s[40:43], s33 offen offset:128 {OST}')

def gen_kf():
    k = Kern('kf_kernel', 256, 256, 163840)
    Lend = 'Lkf_end'
    k(f's_cmp_ge_u32 s2, 256\ns_cbranch_scc1 {Lend}')
    stamp_begin(k)
    k(f's_load_dwordx2 s[6:7], s[0:1], {KA["ws"]}')
    k(f's_load_dwordx2 s[4:5], s[0:1], {KA["D"]}')
    k(f's_load_dwordx4 s[36:39], s[0:1], {KA["wsp"]}')
    k(f's_load_dwordx2 s[34:35], s[0:1], {KA["out"]}')
    k('v_lshrrev_b32 v5, 6, v0')
    k('v_readfirstlane_b32 s16, v5')
    k('v_and_b32 v1, 63, v0\nv_lshlrev_b32 v5, 4, v1\nv_and_b32 v7, 15, v1\nv_lshrrev_b32 v8, 4, v1')
    k('s_bfe_u32 s17, s2, 0x20001\ns_lshl_b32 s17, s17, 3\ns_lshr_b32 s18, s2, 5\ns_add_u32 s17, s17, s18')
    k('s_and_b32 s18, s2, 1\ns_lshl_b32 s18, s18, 2\ns_bfe_u32 s19, s2, 0x20003\ns_add_u32 s18, s18, s19')
    k('s_lshr_b32 s19, s16, 1\ns_and_b32 s20, s16, 1')
    k('s_lshl_b32 s25, s16, 1\ns_add_u32 s26, s16, 2\ns_cmp_lt_u32 s16, 2')
    k('s_cselect_b32 s22, s25, s26\ns_add_u32 s22, s22, 48')
    k('s_add_u32 s26, s25, 49\ns_sub_u32 s27, s25, 2\ns_cmp_lt_u32 s16, 2\ns_cselect_b32 s23, s26, s27')
    k('s_sub_u32 s27, s25, 1\ns_cmp_lt_u32 s16, 2\ns_cselect_b32 s24, s16, s27')
    k('s_mul_i32 s25, s18, 6')
    for r in (22, 23, 24): k(f's_add_u32 s{r}, s{r}, s25\ns_mul_i32 s{r}, s{r}, 20480\ns_add_u32 s{r}, s{r}, {WS_W1:#x}')
    k('s_waitcnt lgkmcnt(0)')
    srd(k, 8, 6, WS_SIZE); srd(k, 12, 36, 2048*4096); srd(k, 40, 34, 2048*1280)
    mark(k, 0)
    k('s_cmp_ge_u32 s2, 160\ns_cbranch_scc1 Lkf_help')
    phaseA(k)
    k('s_branch Lkf_B')
    k('Lkf_help:')
    vm = Cnt(k, 'vmcnt', 63); dma = Dma(k, vm); w1_items(dma)
    PFH = int(E('F_PFH', 0))
    if PFH:
        k('s_sub_u32 s44, s2, 160\ns_lshr_b32 s44, s44, 3\ns_lshl_b32 s44, s44, 2\ns_add_u32 s44, s44, s16')
        k(f's_mul_i32 s44, s44, {8192*PFH}\ns_bfe_u32 s45, s2, 0x20001\ns_lshl_b32 s45, s45, 21\ns_add_u32 s44, s44, s45')
        k('v_lshlrev_b32 v2, 7, v1')
        for j in range(PFH):
            k(f'buffer_load_dword v{10+j}, v2, s[12:15], s44 offen\ns_add_u32 s44, s44, 8192')
    while dma.q: dma.one()
    k('s_waitcnt vmcnt(0)')
    k('Lkf_B:')
    mark(k, 6)
    phaseB_setup(k)
    vm = Cnt(k, 'vmcnt', 63)
    k(f'v_min_u32 v2, 159, v0\nv_lshlrev_b32 v2, 7, v2\ns_mov_b32 s30, {WS_FL:#x}')
    poll(k, vm, 2, 's30')
    k('s_barrier')
    mark(k, 7)
    k('s_cmp_ge_u32 s16, 2\ns_cbranch_scc1 Lkf_Bhi')
    phaseB(k, False)
    k('s_branch Lkf_C')
    k('Lkf_Bhi:')
    phaseB(k, True)
    k('Lkf_C:')
    vm, lg = phaseC(k)
    phaseD(k, vm, lg)
    stamp_end(k, 2)
    k(f'{Lend}:')
    k('s_endpgm')
    return k
```

```python
import sys
from common import *
import k1, kf
kerns = [k1.gen_k1(), kf.gen_kf()]
out = sys.argv[1] if len(sys.argv) > 1 else 'sequential_preLN__ssm_conv_s4d__mixer_gmlp__prompt.s'
write_file(out, kerns, header='; generated by gen/build.py (hand-written generator)\n')
```

```python
import sys
from common import *
import k1, kf
def nop(name):
    k = Kern(name, 256, 64, 0); k('s_endpgm'); return k
order = sys.argv[2]
m = {'1': k1.gen_k1, 'F': kf.gen_kf}
kerns = []; n = 0
for c in order:
    if c == 'n': n += 1; kerns.append(nop('nop%d_kernel' % n))
    else: kerns.append(m[c]())
parts = [k.finish() for k in kerns]
with open(sys.argv[1], 'w') as f:
    for p in parts: f.write(p[0] + '\n')
    f.write('.amdgcn_target "amdgcn-amd-amdhsa--gfx950"\n.text\n')
    for p in sorted(parts, key=lambda p: 'nop' in p[0]): f.write(p[1])
    f.write('Lcode_end:\n.section .rodata,"a"\n')
    for p in parts: f.write(p[2])
```

```python
from asmlib import *
WS_UX  = 0x000000
WS_KP  = 0x500000
WS_HT  = 0x700000
WS_CS  = 0x980000
WS_ST  = 0x990000
WS_FL  = 0x9B0000
WS_W1  = 0xA00000
WS_WO  = 0xC00000
WS_Z2  = 0xD00000
WS_P   = 0x1000000
WS_SIZE = 0x1400000
KPO = 272
KA = dict(x=0, logA=8, Aim=16, Cr=24, Ci=32, logdt=40, D=48, win=64, wsp=72, bsp=80, wout=88, out=96, dbg=104, ws=112)
LOG2E = 1.4426950408889634
INV2PI = 0.15915494309189535

def srd(k, d, base, nbytes):
    k(f's_mov_b32 s{d}, s{base}\ns_mov_b32 s{d+1}, s{base+1}\ns_mov_b32 s{d+2}, {nbytes:#x}\ns_mov_b32 s{d+3}, 0x20000')

class Cnt:
    def __init__(s, k, name, mx):
        s.k = k; s.name = name; s.mx = mx; s.n = 0; s.done = 0
    def issue(s, text):
        s.k(text); s.n += 1; return s.n
    def wait(s, tok):
        if tok <= s.done: return
        left = s.n - tok
        if left > s.mx: left = s.mx
        s.k(f's_waitcnt {s.name}({left})')
        s.done = s.n - left
    def all(s): s.wait(s.n)

def round_bf16_f32(k, dst, src):
    k(f'v_cvt_pk_bf16_f32 v{dst}, v{src}, v{src}')
    k(f'v_and_b32 v{dst}, 0xffff0000, v{dst}')

def ln_finish(k, mean, var, t):
    k(f'v_cvt_pk_bf16_f32 v{t}, v{mean}, v{var}')
    k(f'v_lshlrev_b32 v{mean}, 16, v{t}')
    k(f'v_and_b32 v{var}, 0xffff0000, v{t}')
    k(f'v_add_f32 v{var}, {fl(1e-5)}, v{var}')
    round_bf16_f32(k, var, var)
    k(f'v_sqrt_f32 v{var}, v{var}')
    round_bf16_f32(k, var, var)
    k(f'v_rcp_f32 v{var}, v{var}')

import os
STAMP = os.environ.get('STAMP', '')
WS_STAMP = 0x1380000
def stamp_begin(k):
    if STAMP: k('s_memrealtime s[96:97]')
WS_MARK = 0x13a0000
def mark(k, i):
    if STAMP in ('ws', 'dbg1'):
        k(f's_waitcnt lgkmcnt(0)\ns_memrealtime s[{60+2*i}:{61+2*i}]\ns_waitcnt lgkmcnt(0)'); k.nmark = max(getattr(k, 'nmark', 0), i+1)
def stamp_end(k, kidx):
    if STAMP == 'dbg1':
        if kidx == 2:
            L = k.lab('nost')
            k('s_waitcnt vmcnt(0) lgkmcnt(0)\ns_memrealtime s[60:61]')
            k(f's_load_dwordx2 s[94:95], s[0:1], {KA["dbg"]}')
            k(f's_waitcnt lgkmcnt(0)\ns_cmp_eq_u32 s2, {os.environ.get("DBGWG", 37)}\ns_cbranch_scc1 {L}\ns_endpgm\n{L}:')
            k('s_mov_b64 exec, 1\nv_mov_b32 v0, 0')
            for i in range(16):
                k(f's_sub_u32 s93, s{60+2*i}, s96\nv_mov_b32 v2, s93\nglobal_atomic_umax v0, v2, s[94:95] offset:{4*i}')
    elif STAMP:
        k('s_waitcnt vmcnt(0) lgkmcnt(0)')
        k('s_memrealtime s[98:99]')
        k(f's_load_dwordx2 s[94:95], s[0:1], {KA["ws"] if STAMP == "ws" else KA["dbg"]}')
        k('s_waitcnt lgkmcnt(0)')
        k('s_not_b32 s96, s96')
        if STAMP == 'ws':
            k(f's_lshl_b32 s97, s2, 3\ns_add_u32 s97, s97, {WS_STAMP + kidx*8192:#x}')
        else:
            nk = int(os.environ.get('NK', '5'))
            L = k.lab('nost')
            k(f's_add_u32 s94, s94, {(nk-1-kidx)*512}\ns_addc_u32 s95, s95, 0\ns_mov_b32 s97, {kidx*8}')
            k(f's_mul_i32 s93, s2, 37\ns_and_b32 s93, s93, 31\ns_cmp_eq_u32 s93, 0\ns_cbranch_scc1 {L}\ns_endpgm\n{L}:')
        k('s_mov_b64 exec, 1')
        k('v_mov_b32 v0, s97\nv_mov_b32 v2, s96\nv_mov_b32 v3, s98')
        k('global_atomic_umax v0, v2, s[94:95]\nglobal_atomic_umax v0, v3, s[94:95] offset:4')
        if STAMP == 'ws' and getattr(k, 'nmark', 0):
            k(f's_lshl_b32 s97, s2, 6\ns_add_u32 s97, s97, {WS_MARK + kidx*65536:#x}\nv_mov_b32 v0, s97')
            for i in range(k.nmark):
                k(f'v_mov_b32 v2, s{60+2*i}\nglobal_atomic_umax v0, v2, s[94:95] offset:{4*i}')
            k.nmark = 0
    k('s_endpgm')

class Dma:
    def __init__(s, k, vm):
        s.k = k; s.vm = vm; s.q = []; s.tok = {}; s.bar = -1; s.pend = None
    def add(s, pre, ins, stage, after=-1):
        s.q.append(dict(pre=pre, ins=ins, stage=stage, after=after))
    def ready(s, maxstage=10**9):
        return bool(s.q) and s.q[0]['after'] <= s.bar and s.q[0]['stage'] <= maxstage
    def pre(s, maxstage=10**9):
        if s.pend is None and s.ready(maxstage):
            s.pend = s.q.pop(0)
            for p in s.pend['pre']: s.k(p)
    def fire(s):
        if s.pend is not None:
            s.tok[s.pend['stage']] = s.vm.issue(s.pend['ins']); s.pend = None
    def one(s, maxstage=10**9):
        s.pre(maxstage); s.fire()
    def upto(s, stage):
        s.fire()
        while s.q and any(it['stage'] <= stage for it in s.q):
            assert s.q[0]['after'] <= s.bar, (s.q[0], s.bar)
            s.one()
    def sync(s, stage):
        s.upto(stage)
        s.vm.wait(max(t for st, t in s.tok.items() if st <= stage))
        s.k('s_barrier'); s.bar = stage

def gemm_loop(k, lg, dma, g0, g1, reads, mfmas, stage_of, lead, rate, PD=2, tail_reads=None):
    ftok = {}
    synced = dma.bar
    def need_sync(g):
        st = stage_of(g)
        if st > dma.bar: dma.sync(st)
    for g in range(g0, min(g0+PD, g1)):
        need_sync(g)
        for r in reads(g): ftok[g] = lg.issue(r)
    cnt = 0.0
    for g in range(g0, g1):
        lg.wait(ftok[g])
        n = g + PD
        rr = []
        if n < g1:
            need_sync(n); rr = list(reads(n))
        elif n == g1 and tail_reads: rr = list(tail_reads)
        mm = mfmas(g)
        nm = len(mm); nr = len(rr); done = 0
        for i, m_ in enumerate(mm):
            cnt += 1.0/rate
            if cnt >= 1.0:
                dma.pre(dma.bar + lead)
            k(m_)
            if dma.pend is not None: dma.fire(); cnt -= 1.0
            cnt = min(cnt, 1.0)
            want = -(-(i+1)*nr//nm)
            while done < want:
                ftok[n] = lg.issue(rr[done]); done += 1
```

```python
import re

TRANS = ('v_exp_f32', 'v_log_f32', 'v_rcp_f32', 'v_rsq_f32', 'v_sqrt_f32', 'v_sin_f32', 'v_cos_f32', 'v_rcp_iflag_f32')

def _regs(tok):
    tok = tok.strip()
    tok = re.sub(r'^-', '', tok)
    m = re.match(r'^abs\((.*)\)$', tok) or re.match(r'^\|(.*)\|$', tok)
    if m: tok = m.group(1)
    m = re.match(r'^([vsa])(\d+)$', tok)
    if m: return {(m.group(1), int(m.group(2)))}
    m = re.match(r'^([vsa])\[(\d+):(\d+)\]$', tok)
    if m: return {(m.group(1), i) for i in range(int(m.group(2)), int(m.group(3))+1)}
    if tok == 'vcc': return {('s', 106), ('s', 107)}
    if tok == 'vcc_lo': return {('s', 106)}
    if tok == 'vcc_hi': return {('s', 107)}
    if tok == 'm0': return {('m0', 0)}
    if tok in ('exec', 'exec_lo', 'exec_hi'): return {('exec', 0)}
    return set()

class Ins:
    def __init__(s, text):
        s.text = text
        t = text.split(';')[0].strip()
        s.label = None; s.op = None
        s.w = set(); s.r = set(); s.cls = 'other'
        s.srcC = set(); s.srcAB = set(); s.passes = 0
        s.ws = 1
        s.flags = set()
        if t.endswith(':'):
            s.label = t[:-1]; s.ws = 0; s.cls = 'label'; return
        if not t or t.startswith('.'):
            s.ws = 0; s.cls = 'dir'; return
        parts = t.split(None, 1)
        op = parts[0]; s.op = op
        rest = parts[1] if len(parts) > 1 else ''
        ops = []; cur = ''; depth = 0
        for ch in rest:
            if ch in '[(': depth += 1
            if ch in '])': depth -= 1
            if ch == ',' and depth == 0: ops.append(cur.strip()); cur = ''
            else: cur += ch
        if cur.strip(): ops.append(cur.strip())
        mods = ''
        if ops:
            last = ops[-1].split(None, 1)
            ops[-1] = last[0]; mods = last[1] if len(last) > 1 else ''
        s.ops = ops; s.mods = mods
        R = [_regs(o) for o in ops]
        def U(l):
            o = set()
            for x in l: o |= x
            return o
        if op == 's_nop':
            s.ws = int(ops[0], 0) + 1; s.cls = 'salu'
        elif op.startswith('v_mfma'):
            s.cls = 'mfma'; s.w = R[0]; s.srcAB = R[1] | R[2]; s.srcC = R[3]; s.r = s.srcAB | s.srcC
            s.passes = 8 if '32x32x16' in op else 4 if '16x16x32' in op else None
            assert s.passes, op
        elif op.startswith('v_'):
            s.cls = 'valu'
            base = re.sub(r'_(e32|e64|dpp|sdwa)$', '', op)
            if base in TRANS: s.flags.add('trans')
            if base.startswith('v_cmpx'): raise Exception('no v_cmpx please')
            if base.startswith('v_cmp'):
                s.w = R[0]; s.r = U(R[1:])
            elif base.startswith('v_readfirstlane') or base.startswith('v_readlane'):
                s.w = R[0]; s.r = U(R[1:]); s.flags.add('readlane')
            elif base.startswith('v_writelane'):
                s.w = R[0]; s.r = U(R); s.flags.add('writelane')
            elif re.match(r'v_(add|sub|subrev)_co_', base):
                s.w = R[0] | R[1]; s.r = U(R[2:])
            elif re.match(r'v_(addc|subb|subbrev)_co_', base):
                s.w = R[0] | R[1]; s.r = U(R[2:])
            elif base.startswith('v_permlane') :
                s.w = R[0] | R[1]; s.r = R[0] | R[1]; s.flags.add('permlane')
            elif base.startswith('v_swap'):
                s.w = R[0] | R[1]; s.r = R[0] | R[1]
            else:
                s.w = R[0]; s.r = U(R[1:])
                if base.startswith(('v_fmac', 'v_dot2c', 'v_pk_fmac', 'v_fmaak', 'v_fmamk')) and base.startswith(('v_fmac', 'v_dot2c', 'v_pk_fmac')): s.r |= R[0]
                if base.startswith('v_cndmask') and len(ops) == 3: s.r |= _regs('vcc')
            if base.startswith('v_dot'): s.flags.add('dot')
            if op.endswith('_dpp') or 'row_' in mods or 'quad_perm' in mods or 'wave_' in mods:
                s.flags.add('dpp'); s.r |= R[0]
            if op.endswith('_sdwa') and 'dst_sel' in mods and 'dst_sel:DWORD' not in mods: s.flags.add('opsel'); s.r |= R[0]
            if ('op_sel:' in mods) and not base.startswith('v_pk_') and not base.startswith('v_dot') and not base.startswith('v_fma_mix_f32'):
                s.flags.add('opsel')
            if base.startswith(('v_fma_mixlo', 'v_fma_mixhi')): s.flags.add('opsel'); s.r |= R[0]
        elif op.startswith('ds_'):
            s.cls = 'ds'
            if op.startswith(('ds_read', 'ds_bpermute', 'ds_permute', 'ds_swizzle')):
                s.w = R[0]; s.r = U(R[1:])
                if 'd16' in op: s.r |= R[0]
            else:
                s.r = U(R)
                if 'rtn' in op: s.w = R[0]; s.r = U(R[1:])
            if 'addtid' in op: s.flags.add('m0use')
        elif op.startswith('buffer_') or op.startswith('global_'):
            s.cls = 'vmem'
            allm = (' ' + mods + ' ')
            if op in ('buffer_wbl2', 'buffer_inv'):
                pass
            elif ' lds ' in allm or '_lds_' in op:
                s.r = U(R); s.flags.add('m0use')
            elif '_load_' in op:
                s.w = R[0]; s.r = U(R[1:])
                if 'd16' in op: s.r |= R[0]
            elif '_store_' in op:
                s.r = U(R)
                data = R[0] if op.startswith('buffer_') else R[1]
                if op.endswith(('x3', 'x4')): s.flags.add('widestore'); s.sdata = data
            elif '_atomic_' in op:
                s.r = U(R)
                if ' sc0 ' in allm: s.w = R[0]
            else: raise Exception(op)
        elif op.startswith('s_'):
            s.cls = 'salu'
            if op.startswith(('s_load', 's_buffer_load', 's_memtime', 's_memrealtime')):
                s.cls = 'smem'; s.w = R[0]; s.r = U(R[1:])
            elif op.startswith(('s_cmp', 's_waitcnt', 's_barrier', 's_branch', 's_cbranch', 's_endpgm', 's_sleep', 's_setprio', 's_bitcmp', 's_setreg')):
                s.r = U(R)
            else:
                s.w = R[0] if R else set(); s.r = U(R[1:])
                if 'saveexec' in op: s.w |= {('exec', 0)}
        else:
            raise Exception('unknown op ' + text)

def _v(x): return {r for r in x if r[0] in 'va'}
def _s(x): return {r for r in x if r[0] == 's'}

def need(p, c):
    n = 0
    if p.cls == 'valu':
        pv = _v(p.w); ps = _s(p.w)
        if c.cls == 'mfma' and pv & c.r: n = max(n, 3 if 'dot' in p.flags else 2)
        if c.cls == 'valu':
            if 'dpp' in c.flags and pv & c.r: n = max(n, 2)
            if 'permlane' in c.flags and pv & c.r: n = max(n, 2)
            if 'readlane' in c.flags and pv & c.r: n = max(n, 1)
            if 'trans' in p.flags and 'trans' not in c.flags and pv & c.r: n = max(n, 1)
            if 'opsel' in p.flags and pv & (c.r | c.w): n = max(n, 1)
            if ps & c.r: n = max(n, 4 if ('readlane' in c.flags or 'writelane' in c.flags) else 2)
            if 'dot' in p.flags and pv & (c.r | c.w):
                same = (c.op == p.op)
                if same and len(c.ops) == 4 and pv & _regs(c.ops[3]) and not pv & (_regs(c.ops[1]) | _regs(c.ops[2])): pass
                elif same and len(c.ops) == 3 and not pv & (_regs(c.ops[1]) | _regs(c.ops[2])): pass
                else: n = max(n, 3)
        if 'trans' in p.flags and c.cls in ('vmem', 'ds') and pv & c.r: n = max(n, 1)
        if 'dot' in p.flags and c.cls in ('vmem', 'ds') and pv & c.r: n = max(n, 3)
        if c.cls == 'vmem' and ps & c.r: n = max(n, 5)
        if c.cls in ('salu', 'smem') and ps & c.r: n = max(n, 1)
    elif p.cls == 'mfma':
        P = p.passes
        if c.cls == 'mfma':
            if p.w & c.srcAB: n = max(n, {4: 8, 8: 12}[P])
            if p.w & c.srcC:
                if not (p.w == c.srcC and c.passes == P): n = max(n, {4: 6, 8: 10}[P])
            elif p.w & c.w: n = max(n, {4: 8, 8: 12}[P])
        elif c.cls in ('valu', 'vmem', 'ds'):
            if p.w & (c.r | c.w): n = max(n, {4: 8, 8: 12}[P])
            if c.cls == 'valu' and (p.srcC & c.w): n = max(n, {4: 3, 8: 7}[P])
            if c.cls != 'valu' and (p.srcC & c.w): n = max(n, {4: 3, 8: 7}[P])
    elif p.cls == 'salu':
        if ('m0', 0) in p.w and 'm0use' in c.flags: n = max(n, 1)
    elif p.cls == 'vmem':
        if 'widestore' in p.flags and p.sdata & c.w: n = max(n, 2 if c.cls in ('valu', 'mfma') else 1)
    if p.cls in ('vmem', 'ds') and c.cls == 'valu' and 'dpp' in c.flags and _v(p.w) & c.r: n = max(n, 0)
    return n

def fix_hazards(lines, verbose=False):
    ins = [Ins(l) for l in lines]
    changed = True; total = 0
    while changed:
        changed = False
        labels = {x.label: i for i, x in enumerate(ins) if x.label}
        jumps = {}
        for i, x in enumerate(ins):
            if x.op and (x.op.startswith('s_cbranch') or x.op == 's_branch'):
                jumps.setdefault(labels[x.ops[0]], []).append(i)
        out = []
        for i, c in enumerate(ins):
            if c.cls in ('label', 'dir'): out.append(c); continue
            worst = 0
            stack = [(i-1, 0)]; seen = set()
            while stack:
                j, d = stack.pop()
                while j >= 0 and d < 13:
                    if (j, d) in seen: break
                    seen.add((j, d))
                    p = ins[j]
                    if p.cls == 'label':
                        for src in jumps.get(j, []): stack.append((src, d))
                        k = j-1
                        while k >= 0 and ins[k].cls in ('dir',): k -= 1
                        if k >= 0 and ins[k].op in ('s_branch', 's_endpgm'): break
                        j -= 1; continue
                    if p.cls != 'dir':
                        nn = need(p, c) - d
                        if nn > worst: worst = nn
                        d += p.ws
                    j -= 1
            if worst > 0:
                out.append(Ins('s_nop %d' % (worst-1))); changed = True; total += worst
                if verbose: print('nop', worst, 'before', c.text)
                out.append(c)
                out.extend(ins[i+1:])
                break
            out.append(c)
        ins = out
    return [x.text for x in ins], total

def fix_hazards_fast(lines):
    ins = [Ins(l) for l in lines]
    out = []
    total = 0
    for c in ins:
        if c.cls not in ('label', 'dir'):
            worst = 0; d = 0; j = len(out)-1
            while j >= 0 and d < 13:
                p = out[j]
                if p.op in ('s_branch', 's_endpgm'): break
                if p.cls not in ('dir', 'label'):
                    nn = need(p, c) - d
                    if nn > worst: worst = nn
                    d += p.ws
                j -= 1
            if worst > 0:
                out.append(Ins('s_nop %d' % (worst-1))); total += worst
        out.append(c)
    l2, t2 = fix_hazards([x.text for x in out])
    return l2, total + t2

import subprocess, os, tempfile
def ins_sizes(name, lines):
    d = tempfile.mkdtemp()
    open(d + '/t.s', 'w').write('.amdgcn_target "amdgcn-amd-amdhsa--gfx950"\n.text\n%s:\n' % name + '\n'.join(lines) + '\nLcode_end:\n')
    r = subprocess.run(['clang', '-x', 'assembler', '-target', 'amdgcn-amd-amdhsa', '-mcpu=gfx950', '-c', d + '/t.s', '-o', d + '/t.o'], capture_output=True, text=True)
    assert r.returncode == 0, r.stderr[:3000]
    out = subprocess.run(['llvm-objdump', '-d', '--mcpu=gfx950', d + '/t.o'], capture_output=True, text=True).stdout
    sz = []
    for l in out.split('\n'):
        m = re.search(r'//\s+[0-9A-F]+:\s+((?:[0-9A-F]{8}\s*)+)', l)
        if m: sz.append(4*len(m.group(1).split()))
    return sz

NOWIDE = ('v_readfirstlane', 'v_permlane', 'v_swap', 'v_accvgpr', 'v_nop')
def align_pass(name, lines, minrun=3):
    sz = ins_sizes(name, lines)
    idx = [i for i, l in enumerate(lines) if not (l.endswith(':') or l.startswith('.'))]
    assert len(idx) == len(sz), (len(idx), len(sz))
    size = dict(zip(idx, sz))
    out = []; off = 0; nw = nn = 0
    cand = None
    n = len(lines)
    for i, l in enumerate(lines):
        if i not in size: out.append(l); continue
        if size[i] == 8 and off % 8 == 4:
            run = 0; j = i
            while j < n and (j not in size or size[j] == 8):
                if j in size: run += 1
                j += 1
            if cand is not None and run >= 2:
                op, rest = out[cand].split(None, 1)
                out[cand] = op + '_e64 ' + rest; off += 4; nw += 1; cand = None
            elif run >= minrun:
                out.append('s_nop 0'); off += 4; nn += 1
        if size[i] == 8:
            if off % 8 == 0: cand = None
        elif l.startswith('v_') and not l.startswith(NOWIDE) and not l.split()[0].endswith(('_e64', '_dpp', '_sdwa', '_e32')):
            cand = len(out)
        out.append(l); off += size[i]
    return out, nw, nn, off

class Kern:
    def __init__(s, name, grid, block, lds):
        s.name = name; s.grid = grid; s.block = block; s.lds = lds
        s.L = []; s.nl = 0
        s.vmax = 0; s.amax = -1
    def __call__(s, t):
        for l in t.split('\n'):
            l = l.strip()
            if l: s.L.append(l)
    def lab(s, base):
        s.nl += 1; return 'L%s_%s%d' % (getattr(s, 'short', s.name.replace('_kernel', '')), base, s.nl)
    def finish(s):
        lines, nn = fix_hazards_fast(s.L)
        if os.environ.get('ALIGN', '1') != '0':
            lines, nw, na, nbytes = align_pass(s.name, lines, int(os.environ.get('ALIGN_MIN', 5)))
            print('align: widened %d, nops %d, bytes %d' % (nw, na, nbytes))
        vm = 0; am = -1; sm = 0
        for l in lines:
            x = Ins(l)
            for c, n in (x.w | x.r):
                if c == 'v': vm = max(vm, n)
                if c == 'a': am = max(am, n)
                if c == 's' and n < 106: sm = max(sm, n)
        acc = (vm + 1 + 3)//4*4
        nfv = acc + am + 1 if am >= 0 else vm + 1
        s.info = 'kernel %s: %d lines, %d nop states inserted, vgpr %d agpr %d sgpr %d' % (s.name, len(lines), nn, vm+1, am+1, sm+1)
        body = '.globl %s\n.p2align 8\n.type %s,@function\n%s:\n' % (s.name, s.name, s.name) + '\n'.join(lines) + '\n'
        desc = ('.p2align 6\n.amdhsa_kernel %s\n  .amdhsa_next_free_vgpr %d\n  .amdhsa_next_free_sgpr %d\n  .amdhsa_accum_offset %d\n'
                '  .amdhsa_group_segment_fixed_size 0\n  .amdhsa_kernarg_size 120\n  .amdhsa_user_sgpr_count 2\n'
                '  .amdhsa_user_sgpr_kernarg_segment_ptr 1\n  .amdhsa_system_sgpr_workgroup_id_x 1\n.end_amdhsa_kernel\n') % (s.name, nfv, max(sm+1, 16), acc)
        launch = '; @launch kernel=%s grid=(%d,1,1) block=(%d,1,1) lds=%d' % (s.name, s.grid, s.block, s.lds)
        return launch, body, desc

def write_file(path, kerns, header='', single=False):
    parts = [k.finish() for k in kerns]
    with open(path, 'w') as f:
        f.write(header)
        for p in parts: f.write((re.sub(r'kernel=\S+ ', '', p[0]) if single else p[0]) + '\n')
        f.write('.amdgcn_target "amdgcn-amd-amdhsa--gfx950"\n.text\n')
        for p in parts: f.write(p[1])
        f.write('Lcode_end:\n')
        f.write('.section .rodata,"a"\n')
        for p in parts: f.write(p[2])
    for k in kerns: print(k.info)

def v(n, c=1): return 'v%d' % n if c == 1 else 'v[%d:%d]' % (n, n+c-1)
def s(n, c=1): return 's%d' % n if c == 1 else 's[%d:%d]' % (n, n+c-1)
import struct
def f2u(x): return struct.unpack('<I', struct.pack('<f', x))[0]
def fl(x): return '0x%08x' % f2u(x)
```

```python
from asmlib import *
WS_UX  = 0x000000
WS_KP  = 0x500000
WS_HT  = 0x700000
WS_CS  = 0x980000
WS_ST  = 0x990000
WS_FL  = 0x9B0000
WS_W1  = 0xA00000
WS_WO  = 0xC00000
WS_Z2  = 0xD00000
WS_P   = 0x1000000
WS_SIZE = 0x1400000
KPO = 272
KA = dict(x=0, logA=8, Aim=16, Cr=24, Ci=32, logdt=40, D=48, win=64, wsp=72, bsp=80, wout=88, out=96, dbg=104, ws=112)
LOG2E = 1.4426950408889634
INV2PI = 0.15915494309189535

def srd(k, d, base, nbytes):
    k(f's_mov_b32 s{d}, s{base}\ns_mov_b32 s{d+1}, s{base+1}\ns_mov_b32 s{d+2}, {nbytes:#x}\ns_mov_b32 s{d+3}, 0x20000')

class Cnt:
    def __init__(s, k, name, mx):
        s.k = k; s.name = name; s.mx = mx; s.n = 0; s.done = 0
    def issue(s, text):
        s.k(text); s.n += 1; return s.n
    def wait(s, tok):
        if tok <= s.done: return
        left = s.n - tok
        if left > s.mx: left = s.mx
        s.k(f's_waitcnt {s.name}({left})')
        s.done = s.n - left
    def all(s): s.wait(s.n)

def round_bf16_f32(k, dst, src):
    k(f'v_cvt_pk_bf16_f32 v{dst}, v{src}, v{src}')
    k(f'v_and_b32 v{dst}, 0xffff0000, v{dst}')

def ln_finish(k, mean, var, t):
    k(f'v_cvt_pk_bf16_f32 v{t}, v{mean}, v{var}')
    k(f'v_lshlrev_b32 v{mean}, 16, v{t}')
    k(f'v_and_b32 v{var}, 0xffff0000, v{t}')
    k(f'v_add_f32 v{var}, {fl(1e-5)}, v{var}')
    round_bf16_f32(k, var, var)
    k(f'v_sqrt_f32 v{var}, v{var}')
    round_bf16_f32(k, var, var)
    k(f'v_rcp_f32 v{var}, v{var}')

import os
STAMP = os.environ.get('STAMP', '')
WS_STAMP = 0x1380000
def stamp_begin(k):
    if STAMP: k('s_memrealtime s[96:97]')
WS_MARK = 0x13a0000
def mark(k, i, grp=''):
    if STAMP in ('ws', 'dbg1') and (grp == os.environ.get('MGRP', '') or k.name.startswith('k1')):
        k(f's_waitcnt lgkmcnt(0)\n{"s_memtime" if os.environ.get("MCLK") else "s_memrealtime"} s[{60+2*i}:{61+2*i}]\ns_waitcnt lgkmcnt(0)'); k.nmark = max(getattr(k, 'nmark', 0), i+1)
def stamp_end(k, kidx):
    if STAMP == 'dbg1':
        if kidx == 2:
            L = k.lab('nost')
            k('s_waitcnt vmcnt(0) lgkmcnt(0)\ns_memrealtime s[60:61]')
            k(f's_load_dwordx2 s[94:95], s[0:1], {KA["dbg"]}')
            k(f's_waitcnt lgkmcnt(0)\ns_cmp_eq_u32 s2, {os.environ.get("DBGWG", 37)}\ns_cbranch_scc1 {L}\ns_endpgm\n{L}:')
            k('s_mov_b64 exec, 1\nv_mov_b32 v0, 0')
            for i in range(16):
                k(f's_sub_u32 s93, s{60+2*i}, s96\nv_mov_b32 v2, s93\nglobal_atomic_umax v0, v2, s[94:95] offset:{4*i}')
    elif STAMP:
        k('s_waitcnt vmcnt(0) lgkmcnt(0)')
        k('s_memrealtime s[98:99]')
        k(f's_load_dwordx2 s[94:95], s[0:1], {KA["ws"] if STAMP == "ws" else KA["dbg"]}')
        k('s_waitcnt lgkmcnt(0)')
        k('s_not_b32 s96, s96')
        if STAMP == 'ws':
            k(f's_lshl_b32 s97, s2, 3\ns_add_u32 s97, s97, {WS_STAMP + kidx*8192:#x}')
        else:
            nk = int(os.environ.get('NK', '5'))
            L = k.lab('nost')
            k(f's_add_u32 s94, s94, {(nk-1-kidx)*512}\ns_addc_u32 s95, s95, 0\ns_mov_b32 s97, {kidx*8}')
            k(f's_mul_i32 s93, s2, 37\ns_and_b32 s93, s93, 31\ns_cmp_eq_u32 s93, 0\ns_cbranch_scc1 {L}\ns_endpgm\n{L}:')
        k('s_mov_b64 exec, 1')
        k('v_mov_b32 v0, s97\nv_mov_b32 v2, s96\nv_mov_b32 v3, s98')
        k('global_atomic_umax v0, v2, s[94:95]\nglobal_atomic_umax v0, v3, s[94:95] offset:4')
        if STAMP == 'ws' and getattr(k, 'nmark', 0):
            k(f's_lshl_b32 s97, s2, 6\ns_add_u32 s97, s97, {WS_MARK + kidx*65536:#x}\nv_mov_b32 v0, s97')
            for i in range(k.nmark):
                k(f'v_mov_b32 v2, s{60+2*i}\nglobal_atomic_umax v0, v2, s[94:95] offset:{4*i}')
            k.nmark = 0
    k('s_endpgm')

class Dma:
    def __init__(s, k, vm):
        s.k = k; s.vm = vm; s.q = []; s.tok = {}; s.bar = -1; s.pend = None
    def add(s, pre, ins, stage, after=-1):
        s.q.append(dict(pre=pre, ins=ins, stage=stage, after=after))
    def ready(s, maxstage=10**9):
        return bool(s.q) and s.q[0]['after'] <= s.bar and s.q[0]['stage'] <= maxstage
    def pre(s, maxstage=10**9):
        if s.pend is None and s.ready(maxstage):
            s.pend = s.q.pop(0)
            for p in s.pend['pre']: s.k(p)
    def fire(s):
        if s.pend is not None:
            s.tok[s.pend['stage']] = s.vm.issue(s.pend['ins']); s.pend = None
    def one(s, maxstage=10**9):
        s.pre(maxstage); s.fire()
    def upto(s, stage):
        s.fire()
        while s.q and any(it['stage'] <= stage for it in s.q):
            assert s.q[0]['after'] <= s.bar, (s.q[0], s.bar)
            s.one()
    def sync(s, stage):
        s.upto(stage)
        s.vm.wait(max(t for st, t in s.tok.items() if st <= stage))
        s.k('s_barrier'); s.bar = stage

def gemm_loop(k, lg, dma, g0, g1, reads, mfmas, stage_of, lead, rate, PD=2, tail_reads=None, hooks={}):
    ftok = {}
    synced = dma.bar
    def need_sync(g):
        st = stage_of(g)
        if st > dma.bar: dma.sync(st)
    for g in range(g0, min(g0+PD, g1)):
        need_sync(g)
        for r in reads(g): ftok[g] = lg.issue(r)
    cnt = 0.0
    for g in range(g0, g1):
        if g in hooks: hooks[g]()
        lg.wait(ftok[g])
        n = g + PD
        rr = []
        if n < g1:
            need_sync(n); rr = list(reads(n))
        elif n == g1 and tail_reads: rr = list(tail_reads)
        mm = mfmas(g)
        nm = len(mm); nr = len(rr); done = 0
        for i, m_ in enumerate(mm):
            cnt += 1.0/rate
            if cnt >= 1.0:
                dma.pre(dma.bar + lead)
            k(m_)
            if dma.pend is not None: dma.fire(); cnt -= 1.0
            cnt = min(cnt, 1.0)
            want = -(-(i+1)*nr//nm)
            while done < want:
                ftok[n] = lg.issue(rr[done]); done += 1
```

```python
from common import *
GC = 0.7978845608028654
K1C = -2*GC*LOG2E
K2C = K1C*0.044715
def a(n, c=1): return 'a%d' % n if c == 1 else 'a[%d:%d]' % (n, n+c-1)
MF = 'v_mfma_f32_16x16x32_bf16'
E = os.environ.get
SPIN = 0x20000
F1, F2, F3, F0, F0B = [WS_FL + 0x8000*i for i in range(5)]
NAME = 'sequential_preLN__ssm_conv_s4d__mixer_gmlp__prompt_kernel'

def signal(k, vm, soff_expr, tok=None):
    vm.wait(vm.n if tok is None else tok)
    k('s_barrier')
    L = k.lab('sig')
    k(f's_cmp_lg_u32 s16, 0\ns_cbranch_scc1 {L}')
    k('v_mov_b32 v2, 0\nv_mov_b32 v3, s6')
    k('s_mov_b64 exec, 1')
    k(f'buffer_store_dword v3, v2, s[8:11], {soff_expr} offen sc1')
    k('s_mov_b64 exec, -1')
    k(f'{L}:')

def poll(k, vm, vaddrs, sreg, data=(3, 4)):
    if isinstance(vaddrs, int): vaddrs = [vaddrs]
    L = k.lab('poll'); Lo = k.lab('pok')
    k('s_mov_b32 s37, 0')
    k(f'{L}:')
    for q, va in enumerate(vaddrs): k(f'buffer_load_dword v{data[q]}, v{va}, s[8:11], {sreg} offen sc1')
    k(f's_add_u32 s37, s37, 1\ns_cmp_gt_u32 s37, {SPIN}')
    k(f's_cbranch_scc1 {Lo}')
    k('s_waitcnt vmcnt(0)')
    for q in range(len(vaddrs)):
        k(f'v_cmp_ne_u32 vcc, s6, v{data[q]}')
        k(f's_cbranch_vccnz {L}')
    k(f'{Lo}:')
    k('s_waitcnt vmcnt(0)')
    vm.done = vm.n

def w1_items(dma, tiles, stage=0):
    for T in tiles:
        for ks4 in range(5):
            for q in range(4):
                ks = 4*ks4 + q
                dma.add([f's_add_u32 s27, s{22+T}, {ks4*4096}'] if q == 0 else [], f'buffer_load_dwordx4 {a(80*T+4*ks,4)}, v5, s[8:11], s27 offen offset:{q*1024} sc1', stage)

KGS = 288*128; UXB = KGS + 4*4608
BND = 156; KPT = 152
AF = 240; AG = 244; AEU = 245; AEX = 246; AST = 247
AK0, AK1, AQ, AUX, AP0, PD0, AB0 = 180, 181, 182, 183, 184, 185, 188
PR = 56; IDX = 132; KW = 140; KR = 144; KCW = 145

def conv_bands(k):
    k('v_lshlrev_b32 v6, 3, v8')
    bands = [(-5, -3, -16), (-10, -6, -16), (-13, -11, -16), (-18, -14, -24), (-11, -5, -16), (-20, -12, -24), (12-16, 13-16, -16)]
    for bi, (lo, hi, e0) in enumerate(bands):
        dst = BND + 4*bi if bi < 6 else KPT
        msk = ((1 << (hi-lo+1)) - 1) << (lo - e0)
        k(f'v_mov_b32 v9, {msk:#x}\nv_lshlrev_b32 v9, v7, v9\nv_lshrrev_b32 v9, v6, v9')
        k('v_and_b32 v10, 0xaa, v9\nv_and_b32 v9, 0x55, v9\nv_lshl_or_b32 v9, v10, 15, v9')
        for q in range(4):
            if q: k(f'v_lshrrev_b32 v10, {2*q}, v9')
            k(f'v_and_b32 v{dst+q}, 0x10001, v{10 if q else 9}')
            if bi < 6: k(f'v_mul_u32_u24 v{dst+q}, 0x3f80, v{dst+q}')

def f0b_addr(k):
    k(f'v_lshlrev_b32 v{AB0}, 7, v1\nv_and_b32 v2, 31, v1\nv_lshlrev_b32 v2, 7, v2\nv_add_u32 v{AB0+1}, 8192, v2')

def conv_late(k):
    def uaddr(dst, gc, use_h):
        k(f'v_lshl_add_u32 v9, v7, 1, {use_h}\nv_add_u32 v9, {gc+32}, v9')
        k('v_bfe_u32 v10, v9, 1, 3\nv_xor_b32 v10, s16, v10\nv_lshlrev_b32 v10, 4, v10')
        k(f'v_lshl_add_u32 v{dst}, v9, 7, v10')
    for j in range(4): uaddr(AF+j, -2-4*(j+4), 'v8')
    uaddr(AG, -3, 'v8')
    k('v_lshrrev_b32 v11, 1, v8')
    uaddr(AEU, 0, 'v11')
    k(f'v_lshlrev_b32 v{AST}, 5, v7\nv_lshl_add_u32 v{AST}, v11, 4, v{AST}')
    k('v_and_b32 v11, 1, v8')
    k(f'v_lshl_add_u32 v{AST}, v11, 9, v{AST}\nv_lshl_add_u32 v{AEU}, v11, 3, v{AEU}\nv_xor_b32 v{AEX}, 64, v{AEU}')
    k(f's_lshl_b32 s52, s3, 12\ns_add_u32 s52, s52, {WS_HT:#x}')
    k('v_lshlrev_b32 v9, 3, v8\nv_sub_u32 v9, v9, v7\nv_add_u32 v9, 15, v9\nv_lshlrev_b32 v9, 1, v9')
    k(f'v_and_b32 v10, 1, v7\nv_xor_b32 v10, 1, v10\nv_mul_u32_u24 v10, {4*KPO-2}, v10')
    k(f'v_add3_u32 v{AK0}, v9, v10, s46\nv_add_u32 v{AK1}, 1024, v{AK0}')
    k('v_lshlrev_b32 v9, 2, v8\nv_sub_u32 v9, v9, v7\nv_add_u32 v9, 15, v9\nv_lshlrev_b32 v9, 2, v9')
    k(f's_add_u32 s53, s46, 2240\nv_add_u32 v{AQ}, s53, v9')
def conv_early(k):
    k('v_lshrrev_b32 v3, 3, v1\nv_and_b32 v4, 7, v1')
    k(f'v_lshl_add_u32 v2, v3, 5, v4\nv_lshlrev_b32 v{AP0}, 7, v2')
    k('v_lshrrev_b32 v6, 1, v3\nv_xor_b32 v4, v4, v6\ns_lshl_b32 s44, s20, 2\nv_xor_b32 v4, s44, v4')
    k(f'v_mul_u32_u24 v3, 20480, v3\nv_lshl_add_u32 v{AUX}, v4, 4, v3')
    f0b_addr(k)
    k(f's_mul_i32 s46, s16, 3072\ns_add_u32 s46, s46, {UXB}')
    k(f's_lshl_b32 s47, s2, 7\ns_mul_i32 s48, s16, {8*20480}\ns_add_u32 s47, s47, s48')
    k('s_lshl_b32 s49, s16, 10\ns_add_u32 s49, s49, 4096')
    k(f's_lshl_b32 s48, s16, 10\ns_add_u32 s48, s48, {F0:#x}')
    k('v_lshlrev_b32 v6, 4, v0')
    for r in range(72, 76): k(f'v_mov_b32 v{r}, 0')
    k('ds_write_b128 v6, v[72:75]')
    k('v_add_u32 v2, s46, v5')
    for q in range(3): k(f'ds_write_b128 v2, v[72:75] offset:{1024*q}')
    k(f's_mul_i32 s55, s16, 4608\ns_add_u32 s55, s55, {KGS}')
    k(f'v_mul_u32_u24 v2, 288, v7\nv_lshl_add_u32 v2, v8, 4, v2\nv_add_u32 v{KR}, s55, v2')
    k('v_lshrrev_b32 v9, 1, v8\nv_and_b32 v10, 1, v8\nv_lshlrev_b32 v3, 4, v7')
    k('v_lshl_add_u32 v2, v9, 8, v3\nv_lshl_add_u32 v2, v10, 3, v2')
    k(f's_add_u32 s44, s46, 1080\nv_sub_u32 v{KCW}, s44, v2')
    k(f'v_lshl_add_u32 v2, v10, 8, v3\ns_add_u32 s44, s46, {2*(536-258)-4}\nv_sub_u32 v{KCW+1}, s44, v2')
    k('v_lshrrev_b32 v2, 1, v7\nv_lshl_add_u32 v2, v10, 4, v2\nv_lshlrev_b32 v2, 2, v2\nv_and_b32 v3, 1, v7\nv_lshlrev_b32 v3, 8, v3\nv_sub_u32 v2, v3, v2')
    k(f's_add_u32 s44, s46, {2240+4*39}\nv_add_u32 v{KCW+2}, s44, v2')
    k(f'v_and_b32 v2, 7, v7\nv_lshlrev_b32 v2, 5, v2\nv_lshl_add_u32 v2, v8, 3, v2\ns_add_u32 s44, s46, {2752+4*62}\nv_sub_u32 v{KCW+3}, s44, v2')
    k(f'v_mov_b32 v{KCW+4}, s46')

LNB = UXB + 12288
class Rec:
    def __init__(s): s.L = []
    def __call__(s, t): s.L += [x for x in t.split('\n') if x]
def zipk(k, recs):
    for xs in zip(*[r.L for r in recs]):
        for x in xs: k(x)

def ln1_addr(k):
    k('v_lshrrev_b32 v2, 5, v1\nv_bfe_u32 v3, v1, 4, 1\nv_bfe_u32 v4, v1, 2, 2\nv_and_b32 v6, 3, v1')
    k('v_lshl_add_u32 v52, v2, 3, v4\nv_mul_u32_u24 v52, 1344, v52\nv_lshl_add_u32 v52, v3, 5, v52\nv_lshl_add_u32 v52, v6, 3, v52')
    k(f's_mul_i32 s17, s16, 320\ns_add_u32 s17, s17, {LNB}\nv_add_u32 v52, s17, v52')
    k('v_lshlrev_b32 v53, 9, v3\nv_lshl_add_u32 v53, v4, 7, v53\nv_lshl_add_u32 v53, v2, 6, v53\nv_lshl_add_u32 v53, v6, 4, v53')
    k('s_mul_i32 s17, s16, 5120\nv_add_u32 v53, s17, v53\nv_add_u32 v55, 4096, v53')

def ln1(k):
    X = 12; Fv = 22; S = 42
    for q in range(5): k(f'ds_write_b64 v51, {v(X+2*q,2)} offset:{8*1344+q*256}')
    for i in range(10): k(f'v_lshlrev_b32 v{Fv+2*i}, 16, v{X+i}\nv_and_b32 v{Fv+1+2*i}, 0xffff0000, v{X+i}')
    k(f'v_pk_add_f32 {v(S,2)}, {v(Fv,2)}, {v(Fv+2,2)}\nv_pk_mul_f32 {v(S+2,2)}, {v(Fv,2)}, {v(Fv,2)}')
    for i in range(1, 10):
        if i > 1: k(f'v_pk_add_f32 {v(S,2)}, {v(S,2)}, {v(Fv+2*i,2)}')
        k(f'v_pk_fma_f32 {v(S+2,2)}, {v(Fv+2*i,2)}, {v(Fv+2*i,2)}, {v(S+2,2)}')
    k(f'v_add_f32 v{S}, v{S}, v{S+1}\nv_add_f32 v{S+2}, v{S+2}, v{S+3}')
    k(f'v_mov_b32 v47, {fl(1/640)}')
    for sh in (8, 4, 2, 1):
        for q in (S, S+2): k(f'v_add_f32_dpp v{q}, v{q}, v{q} row_ror:{sh} row_mask:0xf bank_mask:0xf')
    k(f'v_mov_b32 v{S+1}, v{S}\nv_mov_b32 v{S+3}, v{S+2}\nv_permlane16_swap_b32 v{S}, v{S+1}\nv_permlane16_swap_b32 v{S+2}, v{S+3}')
    k(f'v_add_f32 v{S}, v{S}, v{S+1}\nv_add_f32 v{S+2}, v{S+2}, v{S+3}')
    k(f'v_mul_f32 v{S}, v47, v{S}\nv_mul_f32 v{S+1}, v{S}, v{S}\nv_fma_f32 v{S+2}, v{S+2}, v47, -v{S+1}\nv_max_f32 v{S+2}, 0, v{S+2}')
    r = Rec(); ln_finish(r, S, S+2, S+4)
    fin = r.L[2:]
    for x in r.L[:2]: k(x)
    for i in range(10):
        q = Fv+2*i
        k(f'v_pk_add_f32 {v(q,2)}, {v(q,2)}, {v(S,2)} op_sel_hi:[1,0] neg_lo:[0,1] neg_hi:[0,1]')
        if fin: k(fin.pop(0))
        k(f'v_cvt_pk_bf16_f32 v{q+1}, v{q}, v{q+1}\nv_lshlrev_b32 v{q}, 16, v{q+1}\nv_and_b32 v{q+1}, 0xffff0000, v{q+1}')
    assert not fin
    k('v_mov_b32 v2, 0\nglobal_load_dword v54, v2, s[32:33] sc1')
    for i in range(10):
        q = Fv+2*i
        k(f'v_pk_mul_f32 {v(q,2)}, {v(q,2)}, {v(S+2,2)} op_sel_hi:[1,0]')
        k(f'v_cvt_pk_bf16_f32 v{X+i}, v{q}, v{q+1}')
    for q in range(5): k(f'ds_write_b64 v51, {v(X+2*q,2)} offset:{q*256}')
    k('s_mul_i32 s30, s2, 20480')
    k('s_waitcnt lgkmcnt(0)\ns_barrier')
    mark(k, 0, 'H')
    O = 24
    for b in range(5):
        k(f'ds_read_b64_tr_b16 {v(O+4*b,2)}, v52 offset:{b*64}\nds_read_b64_tr_b16 {v(O+2+4*b,2)}, v52 offset:{b*64+4*1344}')
    for b in range(5):
        k(f's_waitcnt lgkmcnt({8-2*b})')
        k(f'buffer_store_dwordx4 {v(O+4*b,4)}, ' + (f'v53, s[8:11], s30 offen offset:{b*1024} sc1' if b < 4 else 'v55, s[8:11], s30 offen sc1'))
    k(f's_lshl_b32 s30, s2, 7\ns_add_u32 s30, s30, {F0:#x}')
    mark(k, 1, 'H')

def get_nonce(k):
    L = k.lab('nn'); Lo = k.lab('nok')
    k('s_mov_b32 s37, 0')
    k(f'{L}:')
    k('v_readfirstlane_b32 s6, v54')
    k(f's_add_u32 s37, s37, 1\ns_cmp_gt_u32 s37, {SPIN}\ns_cbranch_scc1 {Lo}')
    k(f's_cmp_lg_u32 s6, 0\ns_cbranch_scc1 {Lo}')
    k('v_mov_b32 v2, 0')
    k('global_load_dword v54, v2, s[32:33] sc1')
    k('s_waitcnt vmcnt(0)')
    k(f's_branch {L}')
    k(f'{Lo}:')

def ux_issue(k):
    for i in range(8):
        k(f's_add_u32 m0, s49, {i*4096}\ns_add_u32 s27, s47, {i*32*20480}')
        k(f'buffer_load_dwordx4 v{AUX}, s[8:11], s27 offen sc1 lds')
    k('s_mov_b32 s45, 1')
    mark(k, 8, 'K')

def kgen(k, sigfn):
    lg = Cnt(k, 'lgkmcnt', 15)
    DT = 68
    W, G8, GG, Z, C0, LO, HI, ACC, PK, H2 = 20, 22, 24, 32, 70, 88, 104, 120, 36, 192
    def check(pd=PD0):
        if E('KG_NOCHK'): return
        Ls = k.lab('uxs'); Lr = k.lab('uxr')
        k(f's_cmp_lg_u32 s45, 0\ns_cbranch_scc1 {Ls}')
        k('s_waitcnt vmcnt(0)')
        k(f'v_cmp_ne_u32 vcc, s6, v{pd}')
        k(f's_cbranch_vccnz {Lr}')
        ux_issue(k)
        k('s_mov_b32 m0, s55')
        k(f's_branch {Ls}')
        k(f'{Lr}:')
        k(f'buffer_load_dword v{pd}, v{AP0}, s[8:11], s48 offen sc1')
        k(f'{Ls}:')
    k(f'v_mov_b32 v{PD0}, 0\ns_mov_b32 s45, 0\ns_mov_b32 m0, s55')
    k(f'v_mul_f32 v{DT}, {fl(LOG2E)}, v{DT}\nv_exp_f32 v{DT}, v{DT}')
    round_bf16_f32(k, DT, DT)
    k(f'v_add_f32 v{DT+1}, v{DT}, v{DT}')
    mark(k, 0, 'K'); mark(k, 0, 'J')
    def setup(it):
        r = Rec(); P = PR + 4*it
        r(f'v_mul_f32 v12, {fl(LOG2E)}, v{P}\nv_mul_f32 v13, v{P+1}, v{DT}\nv_exp_f32 v12, v12')
        r(f'v_mul_f32 v13, {fl(INV2PI)}, v13\nv_mul_f32 v{C0}, v{P+2}, v{DT+1}\nv_mul_f32 v{C0+1}, v{P+3}, -v{DT+1}')
        round_bf16_f32(r, 12, 12)
        r(f'v_mul_f32 v12, v12, v{DT}\nv_mul_f32 v15, {fl(8.)}, v13\nv_mul_f32 v17, {fl(128.)}, v13\nv_mul_f32 v12, {fl(-LOG2E)}, v12')
        r('v_fract_f32 v15, v15\nv_fract_f32 v13, v13\nv_fract_f32 v17, v17')
        r(f'v_mul_f32 v14, {fl(8.)}, v12\nv_mul_f32 v16, {fl(128.)}, v12')
        for dst, m_ in ((G8, 14), (W, 12), (GG, 16)):
            r(f'v_exp_f32 v{m_}, v{m_}\nv_cos_f32 v{dst}, v{m_+1}\nv_sin_f32 v{dst+1}, v{m_+1}')
        return r.L
    tmp = [26, 28, 30]; ti = [0]
    def cmul(d, a_, b):
        t = tmp[ti[0] % 3]; ti[0] += 1
        k(f'v_pk_mul_f32 {v(t,2)}, {v(a_,2)}, {v(b,2)} op_sel:[0,0] op_sel_hi:[1,0]')
        k(f'v_pk_fma_f32 {v(d,2)}, {v(a_,2)}, {v(b,2)}, {v(t,2)} op_sel:[1,1,0] op_sel_hi:[0,1,1] neg_lo:[1,0,0]')
    WB = int(E('KG_WB', 8))
    wr = [0]
    def wflush(n):
        while wr[0] < n:
            lg.issue(f'ds_write_addtid_b32 v{PK+wr[0]} offset:{wr[0]*288}'); wr[0] += 1
    def put(row, z):
        if z is None: k(f'v_mov_b32 v{PK+row}, 0x3f80')
        else: k(f'v_cvt_pk_bf16_f32 v{PK+row}, v{z}, v{z+1}')
        if (row+1) % WB == 0: wflush(row+1)
    def flush(n, base):
        wflush(n); wr[0] = 0
        for ks in range(4): tk = lg.issue(f'ds_read_b128 {v(base+4*ks,4)}, v{KR} offset:{ks*64}')
        return tk
    def mm(it, t, H, swap):
        out = []
        for ks in range(4):
            A, B = H+4*ks, LO+4*ks
            if swap: A, B = B, A
            out.append(f'{MF} {v(ACC+4*t,4)}, {v(A,4)}, {v(B,4)}, {"0" if it == 0 and ks == 0 else v(ACC+4*t,4)}')
        return out
    plan = dict(x.split(':') for x in E('KG_PLAN', '03:s,13:p,23:c').split(','))
    outl = []
    def pt(q):
        for it in range(3):
            act = plan.get(f'{it}{q}')
            if act:
                Lx = k.lab('kx'); Lb = k.lab('kb')
                k(f's_cmp_eq_u32 s44, {it}\ns_cbranch_scc1 {Lx}')
                k(f'{Lb}:')
                outl.append((Lx, Lb, act))
    for r in range(12): k(f'v_mov_b32 v{ACC+r}, 0')
    k('s_mov_b32 s44, 0')
    for x in setup(0): k(x)
    Lp = k.lab('kg')
    k(f'{Lp}:')
    for dst, m_, neg in ((G8, 14, False), (W, 12, True), (GG, 16, True)):
        k(f'v_pk_mul_f32 {v(dst,2)}, {v(dst,2)}, {v(m_,2)} op_sel_hi:[1,0]' + (' neg_hi:[0,1]' if neg else ''))
    put(0, None); put(1, G8)
    cmul(Z, G8, G8); put(2, Z)
    for j in range(3, 16): cmul(Z, Z, G8); put(j, Z)
    flush(16, LO)
    pt(0)
    put(0, C0)
    for c in range(1, 8): cmul(C0+2*c, C0+2*c-2, W); put(c, C0+2*c)
    cmul(C0+16, C0+14, W)
    for c in range(8): cmul(C0+2*c, C0+2*c, GG); put(8+c, C0+2*c)
    flush(16, HI)
    pt(1)
    cmul(C0+16, C0+16, GG); cmul(C0, C0, GG)
    for i in (2, 3):
        for c in (2, 4, 6, 8): cmul(C0+2*c, C0+2*c, GG); put(4*(i-2)+c//2-1, C0+2*c)
    for i in range(4, 8):
        for c in (4, 8): cmul(C0+2*c, C0+2*c, GG); put(8+2*(i-4)+c//4-1, C0+2*c)
    t1 = flush(16, H2)
    pt(2)
    k(f'v_cvt_pk_bf16_f32 v{PK+8}, v{C0}, v{C0+1}')
    for i in range(8, 16): cmul(C0+16, C0+16, GG); put(i-8, C0+16)
    t2 = flush(9, H2+16)
    pt(3)
    fillr = setup(1)
    fillr[6:6] = [f'v_mov_b32 v{PR+4+q}, v{PR+8+q}' for q in range(4)]
    k('s_add_u32 s44, s44, 1\ns_cmp_lt_u32 s44, 3')
    lg.wait(t1)
    for n, m_ in enumerate(mm(1, 0, HI, False) + mm(1, 1, H2, False) + mm(1, 2, H2+16, True)):
        if n == 8: lg.wait(t2)
        k(m_)
        for _ in range(2):
            if fillr: k(fillr.pop(0))
    for x in fillr: k(x)
    k(f's_cbranch_scc1 {Lp}')
    Lj = k.lab('kj')
    k(f's_branch {Lj}')
    for Lx, Lb, act in outl:
        k(f'{Lx}:')
        if act == 's': mark(k, 10, 'K'); sigfn(); mark(k, 11, 'K')
        if act == 'm': mark(k, 12, 'K')
        if act == 'n': mark(k, 13, 'K')
        if act == 'p': k(f'buffer_load_dword v{PD0}, v{AP0}, s[8:11], s48 offen sc1')
        if act == 'c': check()
        k(f's_branch {Lb}')
    k(f'{Lj}:')
    mark(k, 1, 'K'); mark(k, 13, 'J')
    A0, A1, A2 = ACC, ACC+4, ACC+8
    O = 4*KPO
    cv = [(A0+3, A0+2), (A0+1, A0), (A0+2, A0+1),
          (A1+3, A1+3), (A1+3, A1+2), (A1+1, A1+1), (A1+1, A1), (A1+2, A1+1),
          (A1, A1+1), (A1+2, A1+3),
          (A2+2, A2+3), (A2, A2+1), (A2, A2)]
    for q, (x, y) in enumerate(cv): k(f'v_cvt_pk_bf16_f32 v{12+q}, v{x}, v{y}')
    k(f'ds_write_b64 v{KCW}, v[12:13]')
    k(f'ds_write_b16 v{KCW}, v12 offset:{O-2}\nds_write_b32 v{KCW}, v14 offset:{O}\nds_write_b16_d16_hi v{KCW}, v13 offset:{O+4}')
    k(f'v_add_u32 v25, {O}, v{KCW+1}')
    k('s_mov_b32 exec_hi, 0')
    k(f'ds_write_b16 v{KCW+1}, v15 offset:2')
    k(f'ds_write2_b32 v{KCW+1}, v15, v16 offset0:1 offset1:2\nds_write2_b32 v{KCW+1}, v17, v18 offset0:3 offset1:4')
    k('ds_write2_b32 v25, v15, v15 offset0:0 offset1:1\nds_write2_b32 v25, v19, v17 offset0:2 offset1:3\nds_write_b16_d16_hi v25, v18 offset:16')
    k('s_mov_b32 exec_lo, 0x100')
    k(f'ds_write_b32 v{KCW+4}, v24 offset:572\nds_write_b16 v{KCW+4}, v24 offset:{O+570}\nds_write_b16 v{KCW+4}, v24 offset:{O+572}')
    k('s_mov_b32 exec_lo, 0\ns_mov_b32 exec_hi, -1')
    k(f'ds_write2_b32 v{KCW+2}, v20, v21 offset0:8 offset1:0')
    k('s_mov_b32 exec_lo, 0x00ff00ff\ns_mov_b32 exec_hi, 0x00ff00ff')
    k(f'ds_write_b64 v{KCW+3}, v[22:23]')
    k('s_mov_b64 exec, -1')
    mark(k, 4, 'K')
    check()
    mark(k, 5, 'K')

def phaseA(k):
    vm = Cnt(k, 'vmcnt', 63); lg = Cnt(k, 'lgkmcnt', 15)
    dma = Dma(k, vm); w1_items(dma, [0, 1])
    ACC = 12; KN = 44; QA = 112; QB = 124; Q8 = 136; SS = 180; VV = 204
    FB = 216; NB = 6; EU = 248; EX = 250; ET = 252
    prog = []
    started = set()
    def Kn(kb): return ('K', 'n', kb)
    kreg = {}
    for kb in range(17): kreg[Kn(kb)] = (KN+4*kb, AK1 if kb == 0 else AK0, 0 if kb == 0 else (16-kb)*16)
    for D in (2, 3, 4): kreg[('K', 'a', D)] = (QA+4*(D-2), AQ, (4-D)*16); kreg[('K', 'b', D)] = (QB+4*(D-2), AQ, 64+(4-D)*16)
    for D in (4, 5, 6, 7): kreg[('K', '8', D)] = (Q8+4*(D-4), AQ, 128+(7-D)*16)
    def acc(t, A, B):
        prog.append(('m', ACC+4*t, A, B, t not in started)); started.add(t)
    for rt in range(8):
        F0 = ('F', rt, 0)
        if rt <= 5:
            for b in (0, 1, 2): prog.append(('m', SS+4*b, F0, BND+4*b, True))
            if rt <= 3: prog.append(('m', SS+16, F0, BND+16, True))
            prog.append(('m', SS+12, ('F', rt, 'G'), BND+12, True))
            if rt <= 3: prog.append(('m', SS+20, ('F', rt, 'G'), BND+20, True))
        acc(rt, Kn(0), F0)
        if rt+1 <= 7: acc(rt+1, Kn(8), F0)
        if rt+2 <= 7: acc(rt+2, Kn(16), F0)
        if rt+4 <= 7: acc(rt+4, KPT, F0)
        if rt <= 5: prog.append(('cvt', rt))
        for j in range(1, 8):
            acc(rt, Kn(j), ('F', rt, j))
            if rt+1 <= 7: acc(rt+1, Kn(j+8), ('F', rt, j))
        prog.append(('epi', rt))
        if rt <= 5:
            prog.append(('needcvt',))
            for D in (2, 3, 4):
                if rt+D <= 7: acc(rt+D, VV, ('K', 'a', D)); acc(rt+D, VV+4, ('K', 'b', D))
            if rt <= 3:
                for D in (4, 5, 6, 7):
                    if rt+D <= 7: acc(rt+D, VV+8, ('K', '8', D))
    order = []; last_use = {}
    for pi_, p in enumerate(prog):
        if p[0] == 'm':
            for o in (p[2], p[3]):
                if isinstance(o, tuple):
                    if o not in last_use: order.append(o)
                    last_use[o] = pi_
    forder = [o for o in order if o[0] == 'F']
    fbuf = {o: FB + 4*(n % NB) for n, o in enumerate(forder)}
    fidx = {o: n for n, o in enumerate(forder)}
    tok = {}
    rq = []
    for o in order:
        if o[0] == 'K':
            r, ar, off = kreg[o]
            rq.append((o, f'ds_read2_b32 {v(r,2)}, v{ar} offset0:{off} offset1:{off+1}', False))
            rq.append((o, f'ds_read2_b32 {v(r+2,2)}, v{ar} offset0:{off+2} offset1:{off+3}', True))
        else:
            _, rt, j = o
            if j == 'G': ar, off = AG, rt*4096
            else: ar, off = AF + (j % 4), rt*4096 + (2048 if j < 4 else 0)
            rq.append((o, f'ds_read_b128 {v(fbuf[o],4)}, v{ar} offset:{off}', True))
    cur = [0]
    def can_read():
        if not rq: return False
        o = rq[0][0]
        if lg.n - lg.done >= 13: return False
        if o[0] == 'F' and fidx[o] >= NB:
            return last_use[forder[fidx[o]-NB]] < cur[0]
        return True
    def do_read():
        o, t, l = rq.pop(0); tk = lg.issue(t)
        if l: tok[o] = tk
    k('v_mov_b32 v9, s53')
    tp = lg.issue(f'ds_read_u16 v11, v9 offset:{256+16*4+2}')
    early = [x for x in rq if x[0][0] == 'K']
    r = Rec(); conv_bands(r); bl = r.L
    for n, x in enumerate(early):
        rq.remove(x); tk = lg.issue(x[1])
        if x[2]: tok[x[0]] = tk
        if n % 6 == 5:
            for _ in range(14):
                if bl: k(bl.pop(0))
    for x in bl: k(x)
    lg.wait(tp)
    for q in range(4): k(f'v_mul_u32_u24 v{KPT+q}, v11, v{KPT+q}')
    mark(k, 3); mark(k, 6, 'K')
    Ls = k.lab('uxd')
    k(f's_cmp_lg_u32 s45, 0\ns_cbranch_scc1 {Ls}')
    poll(k, vm, AP0, 's48')
    ux_issue(k)
    k(f'{Ls}:')
    k(f's_mov_b32 s44, {F0B:#x}')
    k(f'v_mov_b32 v6, v{AB0}\nv_mov_b32 v11, v{AB0+1}')
    k('buffer_load_dword v3, v6, s[8:11], s44 offen sc1\nbuffer_load_dword v4, v11, s[8:11], s44 offen sc1')
    k('s_waitcnt vmcnt(2)')
    lg.all()
    k('s_barrier')
    mark(k, 4); mark(k, 7, 'K')
    def f0b_check():
        Lo = k.lab('f0b'); Lq = k.lab('f0q')
        k('s_waitcnt vmcnt(0)')
        k(f'v_cmp_ne_u32 vcc, s6, v3\ns_cbranch_vccnz {Lq}\nv_cmp_ne_u32 vcc, s6, v4\ns_cbranch_vccz {Lo}')
        k(f'{Lq}:')
        poll(k, vm, [6, 11], 's44')
        k(f'{Lo}:')
        mark(k, 9, 'K')
    hi = []; lo = []
    def epilogue(t):
        st = {}; A = ACC + 4*t; ops = []
        ops.append(lambda: st.__setitem__('u', lg.issue(f'ds_read_b64 {v(EU,2)}, v{AEU} offset:{t*4096}')))
        ops.append(lambda: st.__setitem__('x', lg.issue(f'ds_read_b64 {v(EX,2)}, v{AEX} offset:{t*4096}')))
        ops += [None]*6
        def Em(txt, w=None):
            def f():
                if w: lg.wait(st[w])
                k(txt)
            ops.append(f)
        Em(f'v_lshlrev_b32 v{ET}, 16, v{EU}', 'x'); Em(f'v_and_b32 v{ET+1}, 0xffff0000, v{EU}')
        Em(f'v_lshlrev_b32 v{ET+2}, 16, v{EU+1}'); Em(f'v_and_b32 v{ET+3}, 0xffff0000, v{EU+1}')
        for r in range(4): Em(f'v_fmac_f32 v{A+r}, s51, v{ET+r}')
        Em(f'v_lshlrev_b32 v{ET}, 16, v{EX}'); Em(f'v_and_b32 v{ET+1}, 0xffff0000, v{EX}')
        Em(f'v_lshlrev_b32 v{ET+2}, 16, v{EX+1}'); Em(f'v_and_b32 v{ET+3}, 0xffff0000, v{EX+1}')
        for r in range(4): Em(f'v_add_f32 v{A+r}, v{A+r}, v{ET+r}')
        P = ACC + 4*(t & ~1) + 2*(t & 1)
        Em(f'v_cvt_pk_bf16_f32 v{P}, v{A}, v{A+1}'); Em(f'v_cvt_pk_bf16_f32 v{P+1}, v{A+2}, v{A+3}')
        if t & 1:
            Q = ACC + 4*(t-1)
            ops.append(None)
            Em(f'v_permlane16_swap_b32 v{Q}, v{Q+2}'); Em(f'v_permlane16_swap_b32 v{Q+1}, v{Q+3}')
            ops.append(lambda: vm.issue(f'buffer_store_dwordx4 {v(Q,4)}, v{AST}, s[8:11], s52 offen offset:{(t-1)*512} sc1'))
        return ops
    while can_read() and lg.n - lg.done < 12: do_read()
    nm = 0; WR = int(E('FA_WR', 4)); WLAST = int(E('FA_WLAST', 185)); WFIRST = int(E('FA_WFIRST', 24))
    for pi_, p in enumerate(prog):
        cur[0] = pi_
        if p[0] == 'cvt':
            rt = p[1]
            hi.extend([None]*2)
            for q in range(3 if rt <= 3 else 2):
                for r in range(4):
                    hi.append(lambda q=q, r=r: k(f'v_cvt_pk_bf16_f32 v{VV+4*q+r}, v{SS+8*q+r}, v{SS+8*q+4+r}'))
            continue
        if p[0] == 'needcvt':
            while hi:
                f = hi.pop(0)
                if f: f()
            continue
        if p[0] == 'epi':
            lo.extend(epilogue(p[1])); continue
        _, d, A, B, zero = p
        n0 = len(k.L)
        ops = []
        for o in (A, B):
            if isinstance(o, tuple):
                while o not in tok:
                    assert can_read() or True
                    do_read()
                lg.wait(tok[o])
                ops.append(fbuf[o] if o[0] == 'F' else kreg[o][0])
            else: ops.append(o)
        nm += 1
        if nm == WFIRST: f0b_check()
        if nm % WR == 0 and WFIRST <= nm <= WLAST: dma.pre()
        used = len(k.L) - n0
        k(f'{MF} {v(d,4)}, {v(ops[0],4)}, {v(ops[1],4)}, {"0" if zero else v(d,4)}')
        cur[0] = pi_ + 1
        n1 = len(k.L)
        dma.fire()
        while len(k.L) - n1 + used < 2:
            if can_read(): do_read()
            elif hi:
                f = hi.pop(0)
                if f: f()
                else: used += 1
            elif lo:
                f = lo.pop(0)
                if f: f()
                else: used += 1
            else: break
    for f in lo:
        if f: f()
    mark(k, 5)
    k(f's_lshl_b32 s44, s2, 7\ns_add_u32 s44, s44, {F1:#x}')
    signal(k, vm, 's44')
    while dma.q: dma.one()

def ln_sigma(k, mean, var, t):
    k(f'v_cvt_pk_bf16_f32 v{t}, v{mean}, v{var}')
    k(f'v_lshlrev_b32 v{mean}, 16, v{t}\nv_and_b32 v{var}, 0xffff0000, v{t}')
    k(f'v_add_f32 v{var}, {fl(1e-5)}, v{var}')
    round_bf16_f32(k, var, var)
    k(f'v_sqrt_f32 v{var}, v{var}')
    round_bf16_f32(k, var, var)

STG = 81920; Z1L = 147456; STAT = 159744; PART = STAT + 1024
CS = 28; RES = 40; MS = 52; HF = 68; AC = [116, 132, 148]; ONE = 164; SA = 168; G = 176; T = HF; WV = 192
def wreg(c, o): return v(WV+32*c+o, 4) if c < 2 else a(32*(c-2)+o, 4)

def phaseB_setup(k):
    for r in range(4): k(f'v_mov_b32 v{ONE+r}, 0x3f803f80')
    k('v_lshrrev_b32 v2, 3, v1\nv_and_b32 v3, 7, v1\nv_and_b32 v4, 6, v2\nv_xor_b32 v3, v3, v4')
    k('v_lshlrev_b32 v10, 12, v2\nv_lshl_add_u32 v10, v3, 4, v10')
    for j in range(4):
        k(f'v_add_u32 v2, {4*j}, v8\nv_xor_b32 v3, v2, v7\nv_lshlrev_b32 v2, 12, v2\nv_lshl_add_u32 v{11+j}, v3, 4, v2')
    k('v_bfe_u32 v2, v1, 2, 2\nv_and_b32 v3, 3, v1\nv_lshl_add_u32 v4, v8, 2, v2')
    k('v_lshrrev_b32 v6, 1, v3\nv_and_b32 v3, 1, v3\nv_and_b32 v9, 6, v4\nv_xor_b32 v6, v6, v9')
    k('v_lshlrev_b32 v6, 4, v6\nv_lshl_add_u32 v6, v4, 7, v6\nv_lshl_add_u32 v6, v3, 3, v6')
    k('s_lshl_b32 s36, s20, 6')
    k('v_xor_b32 v16, s36, v6')
    for sg in range(1, 4): k(f'v_xor_b32 v{16+sg}, {32*sg}, v16')
    for sg in range(4): k(f'v_add_u32 v{20+sg}, 40960, v{16+sg}')
    k('s_lshl_b32 s36, s16, 5\ns_mul_i32 s35, s18, 10240')
    k('v_xor_b32 v24, s36, v6\nv_add_u32 v24, s35, v24')
    k(f's_lshl_b32 s26, s16, 14\ns_add_u32 s26, s26, {STG}')
    k('s_lshl_b32 s36, s19, 12')
    k('v_xor_b32 v2, v8, v7\nv_lshlrev_b32 v2, 4, v2\nv_lshl_add_u32 v2, v7, 8, v2\nv_add_u32 v2, s36, v2')
    for ks in range(4):
        k(f'v_xor_b32 v3, {64*ks}, v2\nv_add_u32 v{SA+2*ks}, s26, v3\nv_xor_b32 v3, {64*ks+4096}, v2\nv_add_u32 v{SA+2*ks+1}, s26, v3')
    k(f's_lshl_b32 s21, s17, 7\ns_lshl_b32 s36, s16, 16\ns_add_u32 s21, s21, s36\ns_add_u32 s21, s21, {WS_HT:#x}')
    k('s_lshl_b32 s25, s16, 11')
    k('s_lshl_b32 s28, s17, 18\ns_lshl_b32 s36, s20, 17\ns_add_u32 s28, s28, s36\ns_lshl_b32 s36, s19, 11\ns_add_u32 s28, s28, s36')

def stg_items(dma, c):
    for j in range(8):
        pre = [f's_add_u32 m0, s26, {(c % 2)*8192 + j*1024}']
        if j == 0: pre += [f's_add_u32 s55, s54, {c}', 's_and_b32 s55, s55, 7', 's_lshl_b32 s55, s55, 8', 's_add_u32 s55, s55, s28']
        if j == 4: pre += ['s_add_u32 s55, s55, 65536']
        dma.add(pre, f'buffer_load_dwordx4 v{11+j%4}, s[12:15], s55 offen lds', 100+c)
def stg_read(dma, lg, c, wait=True):
    if wait: dma.upto(100+c); dma.vm.wait(dma.tok[100+c])
    for ks in range(4):
        for tau in range(2):
            lg.issue(f'ds_read_b128 {wreg(c, 8*ks+4*tau)}, v{SA+2*ks+tau} offset:{(c % 2)*8192}')

def phaseB(k, hiw):
    vm = Cnt(k, 'vmcnt', 63); lg = Cnt(k, 'lgkmcnt', 15)
    dma = Dma(k, vm)
    grp = [int(x) for x in E('FB_GRP', '0,1,1,2,2,2,3,3,3,3').split(',')]
    for s_ in range(10):
        for j in range(2):
            dma.add([f's_add_u32 m0, s25, {s_*8192 + j*1024}', f's_add_u32 s27, s21, {(s_*64 + j*8)*4096}'], 'buffer_load_dwordx4 v10, s[8:11], s27 offen sc1 lds', grp[s_])
    mark(k, 0, 'B')
    dma.upto(9)
    mark(k, 1, 'B')
    stg_read(dma, lg, 0, False); stg_read(dma, lg, 1, False)
    for T_ in range(3):
        for p in range(3):
            for hp in range(2):
                k(f'v_pk_add_f32 {v(CS+4*T_+2*hp,2)}, {v(CS+4*T_+2*hp,2)}, {v(AC[0]+12*T_+4*p+2*hp,2)}')
    lg.all()
    w1_items(dma, [2], 99)
    stg_items(dma, 2); stg_items(dma, 3)
    def reads(g):
        off = g*4096; ar = 16
        if off >= 40960: off -= 40960; ar = 20
        b = HF + 16*(g % 3); out = []
        for sg in range(4):
            out += [f'ds_read_b64_tr_b16 {v(b+4*sg,2)}, v{ar+sg} offset:{off}', f'ds_read_b64_tr_b16 {v(b+4*sg+2,2)}, v{ar+sg} offset:{off+2048}']
        return out
    def mk(tiles, stats):
        def f(g):
            b = HF + 16*(g % 3); out = []
            for sg in range(4):
                if stats and sg < 2:
                    d = AC[2] + 8*sg
                    out.append(f'{MF} {v(d,4)}, {v(ONE,4)}, {v(b+4*sg,4)}, {"0" if g == 0 else v(d,4)}')
                    out.append(f'{MF} {v(d+4,4)}, {v(b+4*sg,4)}, {v(b+4*sg,4)}, {"0" if g == 0 else v(d+4,4)}')
            for sg in range(4):
                for T_ in tiles:
                    d = AC[T_] + 4*sg
                    out.append(f'{MF} {v(d,4)}, {a(80*T_+4*g,4)}, {v(b+4*sg,4)}, {"0" if g == 0 else v(d,4)}')
            return out
        return f
    mark(k, 2, 'B')
    dma.sync(0)
    mark(k, 3, 'B')
    resr = [f'ds_read_b64_tr_b16 {v(RES+2*j,2)}, v24 offset:{j*2048}' for j in range(5)]
    gemm_loop(k, lg, dma, 0, 20, reads, mk([0] if hiw else [0, 1], hiw), lambda g: grp[g//2], 1000, float(E('FB_RATE', 5)), tail_reads=resr)
    mark(k, 8); mark(k, 4, 'B')
    z2t = [0] if hiw else [0, 1]
    k(f's_lshl_b32 s36, s20, 9')
    k(f'v_lshlrev_b32 v3, 4, v7\nv_add_u32 v3, s36, v3\nv_xor_b32 v4, 512, v3\nv_add_u32 v3, {STAT}, v3\nv_add_u32 v4, {STAT}, v4')
    if hiw:
        k('v_and_b32 v2, 3, v1')
        k('v_cmp_eq_u32 vcc, 1, v2\nv_cmp_eq_u32 s[30:31], 2, v2\nv_cmp_eq_u32 s[32:33], 3, v2')
        k(f'v_mov_b32 v6, {fl(1/640)}')
        A_, B_ = [], []
        rec = []
        for sg in range(2):
            r = Rec(); S = AC[2] + 8*sg; Gm = S + 4
            r(f'v_cndmask_b32 v{Gm}, v{Gm}, v{Gm+1}, vcc\nv_cndmask_b32 v{Gm}, v{Gm}, v{Gm+2}, s[30:31]\nv_cndmask_b32 v{Gm}, v{Gm}, v{Gm+3}, s[32:33]')
            r(f'v_mul_f32 v{S}, v6, v{S}\nv_mul_f32 v{S+1}, v{S}, v{S}')
            r(f'v_fma_f32 v{S+1}, v{Gm}, v6, -v{S+1}\nv_max_f32 v{S+1}, 0, v{S+1}')
            ln_sigma(r, S, S+1, S+2)
            r(f'v_rcp_f32 v{Gm}, v{S+1}')
            r(f'v_mul_f32 v{S+2}, {fl(K1C)}, v{Gm}\nv_mul_f32 v{S+3}, v{Gm}, v{Gm}\nv_mul_f32 v{S+3}, v{S+3}, v{Gm}\nv_mul_f32 v{S+3}, {fl(K2C)}, v{S+3}')
            rec.append(r.L)
        for x, y in zip(*rec): k(x); k(y)
        k('s_mov_b32 exec_lo, 0x00f0000f\ns_mov_b32 exec_hi, 0xf0000f00')
        for sg in range(2): lg.issue(f'ds_write_b128 v3, {v(AC[2]+8*sg,4)} offset:{256*sg}')
        k('s_mov_b64 exec, -1')
    else:
        for _ in range(int(E('FB_X01', 4))): dma.one()
    lg.all()
    k('s_barrier')
    tks = [lg.issue(f'ds_read_b128 {v(MS+4*sg,4)}, v{3 + sg//2} offset:{256*(sg % 2)}') for sg in range(4)]
    mark(k, 5, 'B')
    def gelu(T_, ER=0, tks=None):
        prs = [(sg, hp) for sg in range(4) for hp in range(2)]
        for q in range(0, 8, 2):
            st = [[], []]
            if tks: lg.wait(tks[q//2])
            for u_ in range(2):
                sg, hp = prs[q+u_]
                z = AC[T_] + 4*sg + 2*hp; c = CS + 4*T_ + 2*hp; t = T + 2*u_
                ms = v(MS+4*sg, 2); kk = v(MS+4*sg+2, 2)
                st[u_] = [
                  f'v_pk_fma_f32 {v(z,2)}, {v(c,2)}, {ms}, {v(z,2)} op_sel_hi:[1,0,1] neg_lo:[0,1,0] neg_hi:[0,1,0]',
                  f'v_pk_mul_f32 {v(t,2)}, {v(z,2)}, {v(z,2)}',
                  f'v_pk_fma_f32 {v(t,2)}, {v(t,2)}, {kk}, {kk} op_sel:[0,1,0] op_sel_hi:[1,1,0]',
                  f'v_pk_mul_f32 {v(t,2)}, {v(t,2)}, {v(z,2)}',
                  f'v_exp_f32 v{t}, v{t}', f'v_exp_f32 v{t+1}, v{t+1}',
                  f'v_pk_fma_f32 {v(t,2)}, {v(t,2)}, {ms}, {ms} op_sel:[0,1,1] op_sel_hi:[1,1,1]',
                  f'v_rcp_f32 v{t}, v{t}', f'v_rcp_f32 v{t+1}, v{t+1}',
                  f'v_pk_mul_f32 {v(z,2)}, {v(z,2)}, {v(t,2)}']
            for n_, (x, y) in enumerate(zip(*st)):
                if ER and n_ % ER == 0: dma.pre()
                k(x); dma.fire(); k(y)
    for T_ in z2t: gelu(T_, 2 if hiw else int(E('FB_ER', 10)), tks)
    mark(k, 6, 'B')
    for sg in range(4):
        s1 = G + 2*sg; s2 = G + 8 + 2*sg; first = True
        for T_ in z2t:
            z = AC[T_] + 4*sg
            if first:
                k(f'v_pk_add_f32 {v(s1,2)}, {v(z,2)}, {v(z+2,2)}\nv_pk_mul_f32 {v(s2,2)}, {v(z,2)}, {v(z,2)}')
            else:
                k(f'v_pk_add_f32 {v(s1,2)}, {v(s1,2)}, {v(z,2)}\nv_pk_add_f32 {v(s1,2)}, {v(s1,2)}, {v(z+2,2)}')
                k(f'v_pk_fma_f32 {v(s2,2)}, {v(z,2)}, {v(z,2)}, {v(s2,2)}')
            k(f'v_pk_fma_f32 {v(s2,2)}, {v(z+2,2)}, {v(z+2,2)}, {v(s2,2)}')
            first = False
    for q in range(8): k(f'v_add_f32 v{G+2*q}, v{G+2*q}, v{G+2*q+1}')
    for b in (G, G+8): k(f'v_permlane32_swap_b32 v{b}, v{b+4}\nv_permlane32_swap_b32 v{b+2}, v{b+6}')
    for b in (G, G+8): k(f'v_add_f32 v{b}, v{b}, v{b+4}\nv_add_f32 v{b+2}, v{b+2}, v{b+6}')
    for b in (G, G+8): k(f'v_permlane16_swap_b32 v{b}, v{b+2}')
    k(f'v_add_f32 v{T}, v{G}, v{G+2}\nv_add_f32 v{T+1}, v{G+8}, v{G+10}')
    lg.issue(f'ds_write_b64 v27, {v(T,2)}')
    if hiw:
        stg_read(dma, lg, 2); stg_read(dma, lg, 3)
    lg.all()
    k('s_barrier')
    if hiw:
        L = k.lab('npub')
        k(f's_cmp_lg_u32 s16, 3\ns_cbranch_scc1 {L}')
        k(f'v_lshlrev_b32 v9, 3, v1\nv_add_u32 v2, {PART}, v9')
        for w in range(4): k(f'ds_read_b64 {v(G+2*w,2)}, v2 offset:{512*w}')
        k('s_lshl_b32 s36, s18, 9\ns_add_u32 s36, s36, s29')
        k('s_waitcnt lgkmcnt(0)')
        k(f'v_pk_add_f32 {v(G,2)}, {v(G,2)}, {v(G+2,2)}\nv_pk_add_f32 {v(G+4,2)}, {v(G+4,2)}, {v(G+6,2)}\nv_pk_add_f32 {v(G,2)}, {v(G,2)}, {v(G+4,2)}')
        k(f'buffer_store_dwordx2 {v(G,2)}, v9, s[8:11], s36 offen sc1')
        k(f'{L}:')
    else:
        stg_read(dma, lg, 2); stg_read(dma, lg, 3); lg.all()
    mark(k, 9); mark(k, 7, 'B')
    stg_items(dma, 4); stg_items(dma, 5)
    tk = {}
    def statloads():
        while dma.q: dma.one()
        for q in range(8):
            vm.issue(f'buffer_load_dwordx2 {v(G+2*q,2)}, v25, s[8:11], s29 offen offset:{q*512} sc1')
        tk['s'] = vm.n
    def z1out(T_, jexpr_sreg):
        k(f's_mul_i32 s36, s20, 6144\ns_add_u32 s36, s36, {jexpr_sreg}\ns_mul_i32 s35, s20, 12288\ns_sub_u32 s35, s36, s35')
        k('v_add_u32 v2, s36, v5\nv_add_u32 v3, s35, v5')
        for sg in range(4):
            z = AC[T_] + 4*sg
            k(f'v_cvt_pk_bf16_f32 v{z}, v{z}, v{z+1}\nv_cvt_pk_bf16_f32 v{z+1}, v{z+2}, v{z+3}')
            lg.issue(f'ds_write_b64 v{2 + sg//2}, {v(z,2)} offset:{3072*sg}')
    def normalize():
        if hiw: k('s_add_u32 s30, s16, 2')
        else: k('s_lshl_b32 s30, s16, 1')
        k(f's_mul_i32 s31, s18, 6\ns_add_u32 s30, s30, s31\ns_lshl_b32 s30, s30, 16\ns_lshl_b32 s31, s17, 11\ns_add_u32 s30, s30, s31\ns_add_u32 s30, s30, {WS_Z2:#x}')
        k('s_lshl_b32 s31, s20, 10\ns_add_u32 s32, s30, s31\ns_xor_b32 s31, s31, 1024\ns_add_u32 s33, s30, s31')
        mark(k, 10); mark(k, 9 if hiw else 8, 'B')
        vm.wait(tk['s'])
        Lp = k.lab('spoll'); Lok = k.lab('sok')
        k('s_mov_b32 s37, 0')
        k(f'{Lp}:')
        k(f'v_min_f32 v2, v{G+1}, v{G+3}')
        for q in range(2, 8, 2): k(f'v_min3_f32 v2, v2, v{G+2*q+1}, v{G+2*q+3}')
        k('v_cmp_gt_f32 vcc, 0, v2')
        k(f's_cbranch_vccz {Lok}')
        k(f's_add_u32 s37, s37, 1\ns_cmp_gt_u32 s37, {SPIN}')
        k(f's_cbranch_scc1 {Lok}')
        n0 = vm.n; statloads(); vm.n = n0
        k('s_waitcnt vmcnt(0)')
        k(f's_branch {Lp}')
        k(f'{Lok}:')
        mark(k, 11); mark(k, 11 if hiw else 10, 'B')
        for st in (8, 4, 2):
            for q in range(0, st, 2): k(f'v_pk_add_f32 {v(G+q,2)}, {v(G+q,2)}, {v(G+q+st,2)}')
        k(f'v_mov_b32 v4, {fl(1/768)}')
        k(f'v_mul_f32 v{G}, v4, v{G}\nv_mul_f32 v{G+2}, v{G}, v{G}\nv_fma_f32 v{G+1}, v{G+1}, v4, -v{G+2}\nv_max_f32 v{G+1}, 0, v{G+1}')
        ln_finish(k, G, G+1, G+2)
        k(f'v_mul_f32 v{G}, v{G}, -v{G+1}')
        N = G + 8
        for e in range(2): k(f'v_mov_b32 v{N+e}, v{G+e}\nv_mov_b32 v{N+4+e}, v{G+e}')
        for e in range(2): k(f'v_permlane32_swap_b32 v{N+e}, v{N+4+e}')
        for e in range(2): k(f'v_mov_b32 v{N+2+e}, v{N+e}\nv_mov_b32 v{N+6+e}, v{N+4+e}')
        for e in range(2): k(f'v_permlane16_swap_b32 v{N+e}, v{N+2+e}\nv_permlane16_swap_b32 v{N+4+e}, v{N+6+e}')
        for T_ in z2t:
            for sp in range(2):
                P = AC[T_] + 8*sp
                for u_ in range(2):
                    sg = 2*sp + u_; z = AC[T_] + 4*sg; ms = v(N+2*sg, 2)
                    for hp in range(2):
                        k(f'v_pk_fma_f32 {v(z+2*hp,2)}, {v(z+2*hp,2)}, {ms}, {ms} op_sel:[0,1,0] op_sel_hi:[1,1,0]')
                    k(f'v_cvt_pk_bf16_f32 v{P+2*u_}, v{z}, v{z+1}\nv_cvt_pk_bf16_f32 v{P+2*u_+1}, v{z+2}, v{z+3}')
                k(f'v_permlane16_swap_b32 v{P}, v{P+2}\nv_permlane16_swap_b32 v{P+1}, v{P+3}')
                if T_ == 1: k(f's_add_u32 s{32+sp}, s{32+sp}, 65536')
                vm.issue(f'buffer_store_dwordx4 {v(P,4)}, v26, s[8:11], s{32+sp} offen sc1')
        k(f's_lshl_b32 s30, s18, 5\ns_add_u32 s31, s30, s17\ns_lshl_b32 s31, s31, 7\ns_add_u32 s31, s31, {F2:#x}')
        mark(k, 13 if hiw else 12, 'B')
    def sig():
        signal(k, vm, 's31')
        mark(k, 12); mark(k, 14, 'B')
    R2 = float(E('FB_RATE2', 2))
    if not hiw:
        gemm_loop(k, lg, dma, 0, 20, reads, mk([2], False), lambda g: -1, 1000, R2, hooks={int(E('FB_H01', 12)): statloads})
        normalize()
        stg_read(dma, lg, 4); stg_read(dma, lg, 5)
        gelu(2)
        sig()
        lg.all()
        stg_items(dma, 6); stg_items(dma, 7)
        while dma.q: dma.one()
        k(f's_lshl_b32 s34, s20, 3\ns_add_u32 s34, s34, {Z1L}')
        z1out(2, 's34')
        L = k.lab('np2')
        k(f's_cmp_lg_u32 s16, 0\ns_cbranch_scc1 {L}')
        k(f'v_and_b32 v2, 31, v1\nv_lshlrev_b32 v2, 7, v2\ns_lshl_b32 s30, s30, 7\ns_add_u32 s30, s30, {F2:#x}')
        poll(k, Cnt(k, 'vmcnt', 63), 2, 's30')
        k(f'{L}:')
    else:
        h = [int(x) for x in E('FB_H23', '7,12,16').split(',')]
        gemm_loop(k, lg, dma, 0, 20, reads, mk([1, 2], False), lambda g: -1, 1000, 2*R2, hooks={h[0]: statloads, h[1]: normalize, h[2]: sig})
        stg_read(dma, lg, 4); stg_read(dma, lg, 5); lg.all()
        stg_items(dma, 6); stg_items(dma, 7)
        gelu(1, 2)
        while dma.q: dma.one()
        k(f's_lshl_b32 s34, s20, 10\ns_add_u32 s34, s34, {Z1L+1024}')
        z1out(1, 's34')
        gelu(2)
        k('s_add_u32 s34, s34, 8')
        z1out(2, 's34')
        mark(k, 15, 'B')
    lg.all()

def phaseC(k):
    vm = Cnt(k, 'vmcnt', 63); lg = Cnt(k, 'lgkmcnt', 15)
    dma = Dma(k, vm)
    NS = 5; RED = 122880
    k(f's_mul_i32 s21, s18, 6\ns_mul_i32 s36, s20, 3\ns_add_u32 s21, s21, s36\ns_lshl_b32 s21, s21, 16\ns_lshl_b32 s36, s19, 15\ns_add_u32 s21, s21, s36\ns_add_u32 s21, s21, {WS_Z2:#x}')
    k('s_mul_i32 s25, s16, 6144\ns_lshl_b32 s56, s54, 12')
    k(f's_mul_i32 s22, s18, 122880\ns_add_u32 s22, s22, s25\ns_add_u32 s22, s22, {WS_WO:#x}')
    k('s_barrier')
    mark(k, 13); mark(k, 0, 'C')
    for s_ in range(16):
        sl = s_ % NS; af = s_ - NS + 2 if s_ >= NS else (0 if s_ >= 3 else -1)
        for jf in range(3):
            for hf in range(2):
                pre = []
                if hf == 0:
                    if jf == 0: pre = [f's_add_u32 s27, s56, {s_*2048}', 's_and_b32 s27, s27, 0x7fff', 's_add_u32 s27, s27, s21']
                    else: pre = ['s_add_u32 s27, s27, 65536']
                    pre += [f's_add_u32 m0, s25, {sl*24576 + jf*2048}']
                dma.add(pre, f'buffer_load_dwordx4 v5, s[8:11], s27 offen offset:{hf*1024} sc1 lds', s_, af)
    for s_ in range(11, 16):
        sl = s_ % NS
        for hf in range(2):
            for j in range(3):
                pre = [f's_add_u32 s27, s22, {((sl-1) % 5)*24576 + hf*3072}', f's_add_u32 m0, s25, {sl*24576 + hf*3072}'] if j == 0 else []
                dma.add(pre, f'buffer_load_dwordx4 v5, s[8:11], s27 offen offset:{j*1024} sc1 lds', 50, min(s_+2, 16))
    dma.upto(2)
    k(f's_waitcnt vmcnt({vm.n})')
    stg_read(dma, lg, 6, False); stg_read(dma, lg, 7, False)
    ZA = 16
    k('v_bfe_u32 v2, v1, 2, 2\nv_and_b32 v3, 1, v8\nv_lshl_add_u32 v2, v3, 2, v2\nv_lshrrev_b32 v3, 1, v8\nv_lshl_add_u32 v2, v3, 4, v2')
    k('v_and_b32 v3, 3, v1\nv_lshlrev_b32 v3, 3, v3\nv_lshl_add_u32 v2, v2, 5, v3')
    k('s_mul_i32 s36, s19, 12288')
    k(f'v_add_u32 v{ZA}, s36, v2\nv_add_u32 v{ZA+1}, 49152, v{ZA}\nv_add_u32 v{ZA+2}, 98304, v{ZA}')
    k('s_lshl_b32 s23, s20, 1\ns_add_u32 s23, s23, s19')
    k('s_lshl_b32 s36, s17, 2\ns_add_u32 s24, s36, s23')
    k('s_lshl_b32 s36, s24, 5')
    k('v_lshl_add_u32 v2, v7, 1, s36')
    BS = 20
    tB = vm.issue(f'global_load_ushort v{BS}, v2, s[38:39]')
    FR = 68; ACC = 140
    lg.all()
    mark(k, 1, 'C')
    dma.sync(0)
    mark(k, 2, 'C')
    def reads(g):
        s_, ks = g // 2, g % 2; sl = s_ % NS; b = FR + 24*(g % 3)
        ar = ZA + sl//2; off = (sl % 2)*24576 + ks*1024
        out = []
        for ft in range(6):
            out += [f'ds_read_b64_tr_b16 {v(b+4*ft,2)}, v{ar} offset:{off+ft*2048}', f'ds_read_b64_tr_b16 {v(b+4*ft+2,2)}, v{ar} offset:{off+ft*2048+256}']
        return out
    def mfmas(g):
        b = FR + 24*(g % 3); out = []
        for ft in range(6):
            for tau in range(2):
                d = ACC + 24*tau + 4*ft
                out.append(f'{MF} {v(d,4)}, {v(b+4*ft,4)}, {wreg(g//4, 8*(g % 4)+4*tau)}, {"0" if g == 0 else v(d,4)}')
        return out
    ZR = 24
    k(f's_mul_i32 s36, s23, 3072\ns_add_u32 s36, s36, {Z1L}')
    k('v_add_u32 v19, s36, v5')
    tail = [f'ds_read_b128 {v(ZR+4*q,4)}, v19 offset:{1024*q}' for q in range(3)]
    gemm_loop(k, lg, dma, 0, 32, reads, mfmas, lambda g: g//2, 1000, float(E('FC_RATE', 3)), tail_reads=tail, hooks={4*i: (lambda i=i: mark(k, 2+i, 'C')) for i in range(1, 8)})
    mark(k, 10, 'C')
    while dma.ready(): dma.one()
    mark(k, 14); mark(k, 11, 'C')
    k(f's_add_u32 s36, s25, {RED}\ns_xor_b32 s35, s16, 2\ns_mul_i32 s35, s35, 6144\ns_add_u32 s35, s35, {RED}')
    k('v_add_u32 v2, s36, v5\nv_add_u32 v3, s35, v5')
    for ft in range(6): lg.issue(f'ds_write_b128 v2, {v(ACC+24+4*ft,4)} offset:{1024*ft}')
    lg.all()
    k('s_barrier'); dma.bar = 16
    mark(k, 12, 'C')
    tk = [lg.issue(f'ds_read_b128 {v(FR+4*ft,4)}, v3 offset:{1024*ft}') for ft in range(6)]
    vm.wait(tB)
    k(f'v_lshlrev_b32 v{BS}, 16, v{BS}')
    k(f's_mul_i32 s30, s24, 24576\ns_mul_i32 s31, s18, 3072\ns_add_u32 s30, s30, s31\ns_add_u32 s30, s30, {WS_P:#x}')
    TT = 36
    for ft in range(6):
        d = ACC + 4*ft; z = ZR + 2*ft; P = ACC + 8*(ft//2) + 2*(ft % 2)
        lg.wait(tk[ft])
        for hp in range(2):
            k(f'v_pk_add_f32 {v(d+2*hp,2)}, {v(d+2*hp,2)}, {v(FR+4*ft+2*hp,2)}')
            k(f'v_lshlrev_b32 v{TT+2*hp}, 16, v{z+hp}\nv_and_b32 v{TT+2*hp+1}, 0xffff0000, v{z+hp}')
            k(f'v_pk_add_f32 {v(d+2*hp,2)}, {v(d+2*hp,2)}, {v(BS,2)} op_sel_hi:[1,0]')
            k(f'v_pk_mul_f32 {v(d+2*hp,2)}, {v(d+2*hp,2)}, {v(TT+2*hp,2)}')
        k(f'v_cvt_pk_bf16_f32 v{P}, v{d}, v{d+1}\nv_cvt_pk_bf16_f32 v{P+1}, v{d+2}, v{d+3}')
        if ft % 2: vm.issue(f'buffer_store_dwordx4 {v(P-2,4)}, v5, s[8:11], s30 offen offset:{(ft//2)*1024} sc1')
    k(f's_lshl_b32 s30, s17, 3\ns_add_u32 s31, s30, s18\ns_lshl_b32 s31, s31, 7\ns_add_u32 s31, s31, {F3:#x}')
    mark(k, 13, 'C')
    signal(k, vm, 's31')
    mark(k, 15); mark(k, 14, 'C')
    while dma.q: dma.one()
    return vm, lg

def phaseD(k, vm, lg):
    k('v_add_u32 v6, 61440, v5')
    def waddr(q):
        o = (q*1024 + 24576) % 122880
        return f'v5 offset:{o}' if o < 61440 else f'v6 offset:{o-61440}'
    for q in range(60): lg.issue(f'ds_read_b128 {a(4*q,4)}, {waddr(q)}')
    k(f'v_and_b32 v2, 7, v1\nv_lshlrev_b32 v2, 7, v2\ns_lshl_b32 s30, s17, 10\ns_add_u32 s30, s30, {F3:#x}')
    k(f's_lshl_b32 s31, s17, 2\ns_add_u32 s31, s31, s16\ns_mul_i32 s32, s31, 24576\ns_add_u32 s32, s32, {WS_P:#x}')
    k('s_mul_i32 s33, s31, 20480\ns_mul_i32 s34, s18, 160\ns_add_u32 s33, s33, s34')
    k('v_mul_u32_u24 v9, 1280, v7\nv_lshl_add_u32 v10, v8, 3, v9')
    k('v_and_b32 v3, 1, v8\nv_lshl_add_u32 v9, v3, 5, v9\nv_lshrrev_b32 v3, 1, v8\nv_lshl_add_u32 v9, v3, 4, v9')
    poll(k, vm, 2, 's30')
    mark(k, 0, 'D')
    PF = 68; FR = 164; ACC = 224
    pt = []
    for g in range(24):
        if g % 4 == 0 and g: k('s_add_u32 s32, s32, 4096')
        pt.append(vm.issue(f'buffer_load_dwordx4 {v(PF+4*g,4)}, v5, s[8:11], s32 offen offset:{(g % 4)*1024} sc1'))
    lg.all()
    k('s_barrier')
    ft = {}
    def rd(g): return [f'ds_read_b128 {v(FR+20*(g % 3)+4*j,4)}, {waddr(5*g+j)}' for j in range(5)]
    for g in range(24):
        vm.wait(pt[g])
        if g >= 12: lg.wait(ft[g])
        rr = rd(g+2) if 12 <= g+2 < 24 else []
        for j in range(5):
            A = a(20*g+4*j, 4) if g < 12 else v(FR+20*(g % 3)+4*j, 4)
            k(f'{MF} {v(ACC+4*j,4)}, {A}, {v(PF+4*g,4)}, {"0" if g == 0 else v(ACC+4*j,4)}')
            if rr: ft[g+2] = lg.issue(rr.pop(0))
    TT = 36
    mark(k, 1, 'D')
    OST = E('F_OST', '')
    for j in range(5):
        d = ACC + 4*j; P = ACC + 8*(j//2) + 2*(j % 2)
        for hp in range(2):
            k(f'v_lshlrev_b32 v{TT+2*hp}, 16, v{RES+2*j+hp}\nv_and_b32 v{TT+2*hp+1}, 0xffff0000, v{RES+2*j+hp}')
            k(f'v_pk_add_f32 {v(d+2*hp,2)}, {v(d+2*hp,2)}, {v(TT+2*hp,2)}')
        k(f'v_cvt_pk_bf16_f32 v{P}, v{d}, v{d+1}\nv_cvt_pk_bf16_f32 v{P+1}, v{d+2}, v{d+3}')
        if j % 2:
            k(f'v_permlane16_swap_b32 v{P-2}, v{P}\nv_permlane16_swap_b32 v{P-1}, v{P+1}')
            k(f'buffer_store_dwordx4 {v(P-2,4)}, v9, s[40:43], s33 offen offset:{32*(j-1)} {OST}')
        elif j == 4:
            k(f'buffer_store_dwordx2 {v(P,2)}, v10, s[40:43], s33 offen offset:128 {OST}')

def helper0(k):
    vm = Cnt(k, 'vmcnt', 63); lg = Cnt(k, 'lgkmcnt', 15)
    k('v_lshrrev_b32 v2, 2, v1\nv_and_b32 v3, 3, v1\nv_mul_u32_u24 v2, 160, v2\nv_lshl_add_u32 v2, v3, 3, v2\ns_lshl_b32 s27, s16, 5\nv_add_u32 v2, s27, v2')
    for r in range(4): k(f'v_mov_b32 v{48+r}, 0x3f803f80')
    tk = []
    for p in range(8):
        lg.issue(f'ds_read_b64_tr_b16 {v(12+4*p,2)}, v2 offset:{p*5120}')
        tk.append(lg.issue(f'ds_read_b64_tr_b16 {v(14+4*p,2)}, v2 offset:{p*5120+2560}'))
    k('s_and_b32 s45, s44, 3\ns_and_b32 s46, s44, -4\ns_add_u32 s46, s46, s16')
    k(f's_mul_i32 s47, s46, 20\ns_mul_i32 s48, s45, 5\ns_add_u32 s47, s47, s48\ns_lshl_b32 s47, s47, 10\ns_add_u32 s47, s47, {WS_W1:#x}\ns_add_u32 s48, s47, 4096')
    for p in range(5):
        lg.wait(tk[p])
        k(f'{MF} v[44:47], {v(12+4*p,4)}, v[48:51], {"0" if p == 0 else "v[44:47]"}')
        vm.issue(f'buffer_store_dwordx4 {v(12+4*p,4)}, v5, s[8:11], ' + (f's47 offen offset:{p*1024} sc1' if p < 4 else 's48 offen sc1'))
    L = k.lab('nwo')
    k(f's_cmp_ge_u32 s44, 80\ns_cbranch_scc1 {L}')
    k('s_lshr_b32 s47, s44, 3\ns_lshl_b32 s47, s47, 2\ns_add_u32 s47, s47, s16\ns_mul_i32 s48, s47, 52\ns_lshr_b32 s48, s48, 8\ns_mul_i32 s49, s48, 5\ns_sub_u32 s49, s47, s49')
    k(f's_and_b32 s47, s44, 7\ns_mul_i32 s47, s47, 15\ns_mul_i32 s48, s48, 120\ns_add_u32 s47, s47, s48\ns_add_u32 s47, s47, s49\ns_lshl_b32 s47, s47, 10\ns_add_u32 s47, s47, {WS_WO:#x}')
    k('s_waitcnt lgkmcnt(0)')
    for p in range(3):
        k(f'buffer_store_dwordx4 {v(32+4*p,4)}, v5, s[8:11], s47 offen sc1')
        if p < 2: k('s_add_u32 s47, s47, 5120')
    k(f'{L}:')
    k(f's_mul_i32 s47, s45, 6144\ns_lshl_b32 s48, s46, 6\ns_add_u32 s47, s47, s48\ns_add_u32 s47, s47, {WS_CS:#x}')
    k('v_lshlrev_b32 v2, 4, v8')
    k('s_mov_b32 exec_lo, 0x00010001\ns_mov_b32 exec_hi, 0x00010001')
    vm.issue('buffer_store_dwordx4 v[44:47], v2, s[8:11], s47 offen sc1')
    k('s_mov_b64 exec, -1')
    k(f's_lshl_b32 s47, s44, 7\ns_add_u32 s47, s47, {F0B:#x}')
    k('s_waitcnt lgkmcnt(0)')
    mark(k, 12, 'H')
    signal(k, vm, 's47')

def gen_ks():
    k = Kern(NAME, 256, 256, 163840)
    k.short = 'ks'
    Lend = 'Lks_end'
    k(f's_cmp_ge_u32 s2, 256\ns_cbranch_scc1 {Lend}')
    stamp_begin(k)
    k('s_load_dwordx16 s[44:59], s[0:1], 0')
    k('s_load_dwordx2 s[6:7], s[0:1], 112')
    k('s_load_dwordx4 s[28:31], s[0:1], 96')
    k('s_load_dwordx8 s[20:27], s[0:1], 64')
    k('s_memrealtime s[4:5]')
    k('s_getpc_b64 s[18:19]')
    k('Lks_pc:')
    k(f's_sub_u32 s18, s18, Lks_pc-{NAME}\ns_subb_u32 s19, s19, 0')
    k('s_lshr_b32 s17, s2, 3\ns_lshl_b32 s17, s17, 11')
    k(f'v_lshrrev_b32 v2, 4, v0\nv_lshlrev_b32 v2, 7, v2\nv_add_u32 v2, s17, v2\nv_min_u32 v2, Lcode_end-{NAME}-4, v2')
    k('global_load_dword v239, v2, s[18:19]')
    k('v_lshrrev_b32 v5, 6, v0')
    k('v_readfirstlane_b32 s16, v5')
    k('v_and_b32 v1, 63, v0\nv_lshlrev_b32 v5, 4, v1\nv_and_b32 v7, 15, v1\nv_lshrrev_b32 v8, 4, v1')
    k('v_lshrrev_b32 v2, 5, v0\nv_and_b32 v3, 31, v0\nv_lshlrev_b32 v3, 3, v3')
    k('v_mul_u32_u24 v50, 1280, v2\ns_mul_i32 s3, s2, 10240\nv_add3_u32 v50, v50, v3, s3')
    k(f'v_mul_u32_u24 v51, 1344, v2\nv_add_u32 v51, v51, v3\nv_add_u32 v51, {LNB}, v51')
    ln1_addr(k)
    k('s_lshl_b32 s3, s2, 2\ns_add_u32 s3, s3, s16')
    k('s_mul_i32 s17, s3, 384\nv_lshl_add_u32 v2, v1, 1, s17\ns_lshl_b32 s17, s3, 1\nv_mov_b32 v3, s17')
    for r in list(range(PR, PR+13)) + [AUX, AP0, AST, 190, 191]: k(f'v_mov_b32 v{r}, 0')
    k('s_lshl_b32 s34, s3, 1\ns_and_b32 s34, s34, -4')
    k('s_waitcnt lgkmcnt(0)')
    L = k.lab('nnw')
    k(f's_cmp_lg_u32 s3, 0\ns_cbranch_scc1 {L}')
    k('s_or_b32 s4, s4, 1\nv_mov_b32 v4, 0\nv_mov_b32 v6, s4\ns_mov_b64 exec, 1')
    k('global_store_dword v4, v6, s[30:31] sc1')
    k('s_mov_b64 exec, -1')
    k(f'{L}:')
    for q in range(5): k(f'global_load_dwordx2 {v(12+2*q,2)}, v50, s[44:45] offset:{q*256}')
    mark(k, 0)
    k('s_cmp_ge_u32 s2, 160\ns_cbranch_scc1 Lks_h0')
    def common_setup():
        srd(k, 8, 6, WS_SIZE); srd(k, 12, 22, 2048*4096); srd(k, 40, 28, 2048*1280)
        k('s_mov_b64 s[32:33], s[30:31]')
        k('s_mov_b64 s[38:39], s[24:25]')
        k('s_bfe_u32 s17, s2, 0x20001\ns_lshl_b32 s17, s17, 3\ns_lshr_b32 s18, s2, 5\ns_add_u32 s17, s17, s18')
        k('s_and_b32 s18, s2, 1\ns_lshl_b32 s18, s18, 2\ns_bfe_u32 s19, s2, 0x20003\ns_add_u32 s18, s18, s19')
        k('s_lshr_b32 s19, s16, 1\ns_and_b32 s20, s16, 1')
        k('s_lshl_b32 s25, s16, 1\ns_add_u32 s26, s16, 2\ns_cmp_lt_u32 s16, 2')
        k('s_cselect_b32 s22, s25, s26\ns_add_u32 s22, s22, 48')
        k('s_add_u32 s26, s25, 49\ns_sub_u32 s27, s25, 2\ns_cmp_lt_u32 s16, 2\ns_cselect_b32 s23, s26, s27')
        k('s_sub_u32 s27, s25, 1\ns_cmp_lt_u32 s16, 2\ns_cselect_b32 s24, s16, s27')
        k('s_mul_i32 s25, s18, 6')
        for r in (22, 23, 24): k(f's_add_u32 s{r}, s{r}, s25\ns_lshl_b32 s{r+35}, s{r}, 6\ns_add_u32 s{r+35}, s{r+35}, {WS_CS:#x}\ns_mul_i32 s{r}, s{r}, 20480\ns_add_u32 s{r}, s{r}, {WS_W1:#x}')
        k(f's_lshr_b32 s54, s2, 5\ns_mul_i32 s54, s54, {int(E("F_ROT", 0))}\ns_and_b32 s54, s54, 7')
        k(f's_lshl_b32 s29, s17, 12\ns_add_u32 s29, s29, {WS_ST:#x}')
        k('s_lshl_b32 s27, s18, 9\ns_add_u32 s27, s27, s29\ns_lshl_b32 s26, s16, 7\ns_add_u32 s27, s27, s26')
        k('v_lshlrev_b32 v2, 3, v7\nv_mov_b32 v10, -1.0\nv_mov_b32 v11, -1.0')
        k('buffer_store_dwordx2 v[10:11], v2, s[8:11], s27 offen sc1')
    k('global_load_short_d16_hi v68, v3, s[54:55]')
    for g in range(3):
        for i in range(4): k(f'global_load_short_d16_hi v{PR+4*g+i}, v2, s[{46+2*i}:{47+2*i}] offset:{128*g}')
    k('s_load_dword s35, s[56:57], s34')
    PFS = int(E('C_PFS', 0))
    common_setup()
    conv_early(k)
    conv_late(k)
    k('s_waitcnt vmcnt(14)')
    k('s_branch Lks_ln')
    k('Lks_h0:')
    k('s_mov_b64 s[46:47], s[20:21]\ns_mov_b64 s[48:49], s[26:27]\ns_sub_u32 s44, s2, 160')
    common_setup()
    f0b_addr(k)
    k('v_lshrrev_b32 v2, 3, v0\nv_and_b32 v3, 7, v0\nv_lshlrev_b32 v3, 4, v3')
    k(f's_and_b32 s45, s44, 3\ns_mul_i32 s45, s45, {160*3072}\ns_lshr_b32 s27, s44, 2\ns_lshl_b32 s27, s27, 7\ns_add_u32 s45, s45, s27')
    k('v_mul_u32_u24 v4, 3072, v2\nv_add3_u32 v190, v4, v3, s45')
    k(f's_min_u32 s27, s44, 79\ns_and_b32 s45, s27, 7\ns_mul_i32 s45, s45, {96*1280}\ns_lshr_b32 s27, s27, 3\ns_lshl_b32 s27, s27, 7\ns_add_u32 s45, s45, s27')
    k('v_mul_u32_u24 v4, 1280, v2\nv_add3_u32 v191, v4, v3, s45')
    k('v_mul_u32_u24 v56, 160, v2\nv_add_u32 v56, v56, v3')
    k('s_waitcnt vmcnt(1)')
    k('Lks_ln:')
    mark(k, 1)
    ln1(k)
    k('s_cmp_ge_u32 s2, 160\ns_cbranch_scc1 Lks_h1')
    k('s_and_b32 s50, s3, 1\ns_xor_b32 s50, s50, 1\ns_lshl_b32 s50, s50, 4\ns_lshl_b32 s51, s35, s50\ns_and_b32 s51, s51, 0xffff0000')
    k('s_waitcnt vmcnt(7)')
    def sig0():
        k('s_waitcnt vmcnt(0)')
        get_nonce(k)
        signal(k, Cnt(k, 'vmcnt', 63), 's30')
        mark(k, 2)
        if PFS:
            k(f'v_lshlrev_b32 v2, 7, v1\ns_mul_i32 s27, s3, {8192*PFS}')
            for j in range(PFS): k(f'buffer_load_dword v{186+j}, v2, s[12:15], s27 offen\ns_add_u32 s27, s27, 8192')
    kgen(k, sig0)
    phaseA(k)
    k('s_branch Lks_B')
    k('Lks_h1:')
    k('s_waitcnt vmcnt(5)')
    get_nonce(k)
    vm = Cnt(k, 'vmcnt', 63)
    for p in range(5):
        vm.issue(f'global_load_dwordx4 {v(144+4*p,4)}, v190, s[46:47]')
        if p < 4: k(f'v_add_u32 v190, {32*3072}, v190')
    for p in range(3):
        vm.issue(f'global_load_dwordx4 {v(164+4*p,4)}, v191, s[48:49]')
        if p < 2: k(f'v_add_u32 v191, {32*1280}, v191')
    mark(k, 7, 'H')
    k('s_waitcnt vmcnt(8)')
    mark(k, 8, 'H')
    signal(k, vm, 's30', 0)
    mark(k, 2); mark(k, 9, 'H')
    k('s_waitcnt vmcnt(0)')
    mark(k, 10, 'H')
    for p in range(8): k(f'ds_write_b128 v56, {v(144+4*p,4)} offset:{p*5120}')
    k('s_waitcnt lgkmcnt(0)\ns_barrier')
    k('s_sub_u32 s44, s2, 160')
    mark(k, 11, 'H')
    helper0(k)
    mark(k, 13, 'H')
    mark(k, 3)
    PFH = int(E('F_PFH', 0))
    if PFH:
        k('s_lshr_b32 s45, s44, 3\ns_lshl_b32 s45, s45, 2\ns_add_u32 s45, s45, s16')
        k(f's_mul_i32 s45, s45, {8192*PFH}\ns_bfe_u32 s46, s2, 0x20001\ns_lshl_b32 s46, s46, 21\ns_add_u32 s45, s45, s46')
        k('v_lshlrev_b32 v2, 7, v1')
        for j in range(PFH):
            k(f'buffer_load_dword v{100+j}, v2, s[12:15], s45 offen\ns_add_u32 s45, s45, 8192')
    vm = Cnt(k, 'vmcnt', 63); dma = Dma(k, vm); w1_items(dma, [0, 1])
    k(f's_mov_b32 s44, {F0B:#x}')
    poll(k, vm, [AB0, AB0+1], 's44')
    mark(k, 4)
    while dma.q: dma.one()
    k('s_waitcnt vmcnt(30)')
    k('Lks_B:')
    mark(k, 6)
    phaseB_setup(k)
    k(f's_lshl_b32 s36, s20, 8\ns_lshl_b32 s35, s16, 9\ns_add_u32 s35, s35, {PART}')
    k('v_lshlrev_b32 v9, 3, v1\nv_xor_b32 v25, s36, v9\nv_add_u32 v27, s35, v25')
    k('v_and_b32 v2, 3, v7\nv_bfe_u32 v3, v7, 2, 1\nv_lshl_add_u32 v2, v3, 3, v2\nv_bfe_u32 v3, v7, 3, 1\nv_lshl_add_u32 v2, v3, 2, v2')
    k('v_and_b32 v3, 1, v8\nv_lshl_add_u32 v2, v3, 4, v2\nv_lshlrev_b32 v2, 5, v2\nv_lshrrev_b32 v3, 1, v8\nv_lshl_add_u32 v26, v3, 4, v2')
    vm = Cnt(k, 'vmcnt', 63); dma = Dma(k, vm)
    k('v_lshlrev_b32 v2, 4, v8')
    for p in range(1, 4): k(f'v_add_u32 v{HF+p}, {6144*p}, v2')
    for T_ in range(3):
        vm.issue(f'buffer_load_dwordx4 {v(CS+4*T_,4)}, v2, s[8:11], s{57+T_} offen sc1')
        for p in range(3): vm.issue(f'buffer_load_dwordx4 {v(AC[0]+12*T_+4*p,4)}, v{HF+1+p}, s[8:11], s{57+T_} offen sc1')
    stg_items(dma, 0); stg_items(dma, 1)
    while dma.q: dma.one()
    k('v_min_u32 v2, 39, v1\nv_lshrrev_b32 v3, 2, v2\nv_and_b32 v2, 3, v2\nv_lshl_add_u32 v2, v3, 4, v2\nv_lshlrev_b32 v2, 7, v2')
    k(f's_lshl_b32 s30, s16, 9\ns_add_u32 s30, s30, {F1:#x}')
    poll(k, vm, 2, 's30')
    mark(k, 7)
    k('s_cmp_ge_u32 s16, 2\ns_cbranch_scc1 Lks_Bhi')
    phaseB(k, False)
    k('s_branch Lks_C')
    k('Lks_Bhi:')
    phaseB(k, True)
    k('Lks_C:')
    vm, lg = phaseC(k)
    phaseD(k, vm, lg)
    stamp_end(k, 2)
    k(f'{Lend}:')
    k('s_endpgm')
    return k
```

```python
import sys
from common import *
import importlib
ks = importlib.import_module(os.environ.get('KMOD', 'kz'))
kerns = [ks.gen_ks()]
out = sys.argv[1] if len(sys.argv) > 1 else 'sequential_preLN__ssm_conv_s4d__mixer_gmlp__prompt.s'
write_file(out, kerns, header='; generated by gen/build.py (hand-written generator)\n', single=bool(os.environ.get('SINGLE')) or len(sys.argv) < 2)
```

```python
from asmlib import *
WS_UX  = 0x000000
WS_KP  = 0x500000
WS_HT  = 0x700000
WS_CS  = 0x980000
WS_ST  = 0x990000
WS_FL  = 0x9B0000
WS_W1  = 0xA00000
WS_WO  = 0xC00000
WS_Z2  = 0xD00000
WS_P   = 0x1000000
WS_SIZE = 0x1400000
KPO = 272
KA = dict(x=0, logA=8, Aim=16, Cr=24, Ci=32, logdt=40, D=48, win=64, wsp=72, bsp=80, wout=88, out=96, dbg=104, ws=112)
LOG2E = 1.4426950408889634
INV2PI = 0.15915494309189535

def srd(k, d, base, nbytes):
    k(f's_mov_b32 s{d}, s{base}\ns_mov_b32 s{d+1}, s{base+1}\ns_mov_b32 s{d+2}, {nbytes:#x}\ns_mov_b32 s{d+3}, 0x20000')

class Cnt:
    def __init__(s, k, name, mx):
        s.k = k; s.name = name; s.mx = mx; s.n = 0; s.done = 0
    def issue(s, text):
        s.k(text); s.n += 1; return s.n
    def wait(s, tok):
        if tok <= s.done: return
        left = s.n - tok
        if left > s.mx: left = s.mx
        s.k(f's_waitcnt {s.name}({left})')
        s.done = s.n - left
    def all(s): s.wait(s.n)

def round_bf16_f32(k, dst, src):
    k(f'v_cvt_pk_bf16_f32 v{dst}, v{src}, v{src}')
    k(f'v_and_b32 v{dst}, 0xffff0000, v{dst}')

def ln_finish(k, mean, var, t):
    k(f'v_cvt_pk_bf16_f32 v{t}, v{mean}, v{var}')
    k(f'v_lshlrev_b32 v{mean}, 16, v{t}')
    k(f'v_and_b32 v{var}, 0xffff0000, v{t}')
    k(f'v_add_f32 v{var}, {fl(1e-5)}, v{var}')
    round_bf16_f32(k, var, var)
    k(f'v_sqrt_f32 v{var}, v{var}')
    round_bf16_f32(k, var, var)
    k(f'v_rcp_f32 v{var}, v{var}')

import os
STAMP = os.environ.get('STAMP', '')
WS_STAMP = 0x1380000
DELAY = os.environ.get('DELAY', '')
def delay_at(k, i):
    if DELAY and int(DELAY.split(':')[0]) == i:
        L = k.lab('dly')
        k(f'{L}:\ns_memrealtime s[94:95]\ns_waitcnt lgkmcnt(0)\ns_sub_u32 s94, s94, s96\ns_cmp_lt_u32 s94, {int(DELAY.split(":")[1])}\ns_cbranch_scc1 {L}')
def stamp_begin(k):
    if STAMP or DELAY: k('s_memrealtime s[96:97]')
WS_MARK = 0x13a0000
def mark(k, i, grp=''):
    if grp == '': delay_at(k, i)
    if STAMP in ('ws', 'dbg1') and (grp == os.environ.get('MGRP', '') or k.name.startswith('k1')):
        k(f's_waitcnt lgkmcnt(0)\n{"s_memtime" if os.environ.get("MCLK") else "s_memrealtime"} s[{60+2*i}:{61+2*i}]\ns_waitcnt lgkmcnt(0)'); k.nmark = max(getattr(k, 'nmark', 0), i+1)
def stamp_end(k, kidx):
    delay_at(k, 99)
    if STAMP == 'dbg1':
        if kidx == 2:
            L = k.lab('nost')
            k('s_waitcnt vmcnt(0) lgkmcnt(0)\ns_memrealtime s[60:61]')
            k(f's_load_dwordx2 s[94:95], s[0:1], {KA["dbg"]}')
            k(f's_waitcnt lgkmcnt(0)\ns_cmp_eq_u32 s2, {os.environ.get("DBGWG", 37)}\ns_cbranch_scc1 {L}\ns_endpgm\n{L}:')
            k('s_mov_b64 exec, 1\nv_mov_b32 v0, 0')
            for i in range(16):
                k(f's_sub_u32 s93, s{60+2*i}, s96\nv_mov_b32 v2, s93\nglobal_atomic_umax v0, v2, s[94:95] offset:{4*i}')
    elif STAMP:
        k('s_waitcnt vmcnt(0) lgkmcnt(0)')
        k('s_memrealtime s[98:99]')
        k(f's_load_dwordx2 s[94:95], s[0:1], {KA["ws"] if STAMP == "ws" else KA["dbg"]}')
        k('s_waitcnt lgkmcnt(0)')
        k('s_not_b32 s96, s96')
        if STAMP == 'ws':
            k(f's_lshl_b32 s97, s2, 3\ns_add_u32 s97, s97, {WS_STAMP + kidx*8192:#x}')
        else:
            nk = int(os.environ.get('NK', '5'))
            L = k.lab('nost')
            k(f's_add_u32 s94, s94, {(nk-1-kidx)*512}\ns_addc_u32 s95, s95, 0\ns_mov_b32 s97, {kidx*8}')
            k(f's_mul_i32 s93, s2, 37\ns_and_b32 s93, s93, 31\ns_cmp_eq_u32 s93, 0\ns_cbranch_scc1 {L}\ns_endpgm\n{L}:')
        k('s_mov_b64 exec, 1')
        k('v_mov_b32 v0, s97\nv_mov_b32 v2, s96\nv_mov_b32 v3, s98')
        k('global_atomic_umax v0, v2, s[94:95]\nglobal_atomic_umax v0, v3, s[94:95] offset:4')
        if STAMP == 'ws' and getattr(k, 'nmark', 0):
            k(f's_lshl_b32 s97, s2, 6\ns_add_u32 s97, s97, {WS_MARK + kidx*65536:#x}\nv_mov_b32 v0, s97')
            for i in range(k.nmark):
                k(f'v_mov_b32 v2, s{60+2*i}\nglobal_atomic_umax v0, v2, s[94:95] offset:{4*i}')
            k.nmark = 0
    k('s_endpgm')

class Dma:
    def __init__(s, k, vm):
        s.k = k; s.vm = vm; s.q = []; s.tok = {}; s.bar = -1; s.pend = None
    def add(s, pre, ins, stage, after=-1):
        s.q.append(dict(pre=pre, ins=ins, stage=stage, after=after))
    def ready(s, maxstage=10**9):
        return bool(s.q) and s.q[0]['after'] <= s.bar and s.q[0]['stage'] <= maxstage
    def pre(s, maxstage=10**9):
        if s.pend is None and s.ready(maxstage):
            s.pend = s.q.pop(0)
            for p in s.pend['pre']: s.k(p)
    def fire(s):
        if s.pend is not None:
            s.tok[s.pend['stage']] = s.vm.issue(s.pend['ins']); s.pend = None
    def one(s, maxstage=10**9):
        s.pre(maxstage); s.fire()
    def upto(s, stage):
        s.fire()
        while s.q and any(it['stage'] <= stage for it in s.q):
            assert s.q[0]['after'] <= s.bar, (s.q[0], s.bar)
            s.one()
    def sync(s, stage):
        s.upto(stage)
        s.vm.wait(max(t for st, t in s.tok.items() if st <= stage))
        s.k('s_barrier'); s.bar = stage

def gemm_loop(k, lg, dma, g0, g1, reads, mfmas, stage_of, lead, rate, PD=2, tail_reads=None, hooks={}):
    ftok = {}
    synced = dma.bar
    def need_sync(g):
        st = stage_of(g)
        if st > dma.bar: dma.sync(st)
    for g in range(g0, min(g0+PD, g1)):
        need_sync(g)
        for r in reads(g): ftok[g] = lg.issue(r)
    cnt = 0.0
    for g in range(g0, g1):
        if g in hooks: hooks[g]()
        lg.wait(ftok[g])
        n = g + PD
        rr = []
        if n < g1:
            need_sync(n); rr = list(reads(n))
        elif n == g1 and tail_reads: rr = list(tail_reads)
        mm = mfmas(g)
        nm = len(mm); nr = len(rr); done = 0
        for i, m_ in enumerate(mm):
            cnt += 1.0/rate
            if cnt >= 1.0:
                dma.pre(dma.bar + lead)
            k(m_)
            if dma.pend is not None: dma.fire(); cnt -= 1.0
            cnt = min(cnt, 1.0)
            want = -(-(i+1)*nr//nm)
            while done < want:
                ftok[n] = lg.issue(rr[done]); done += 1
```

```python
from common import *
GC = 0.7978845608028654
K1C = -2*GC*LOG2E
K2C = K1C*0.044715
def a(n, c=1): return 'a%d' % n if c == 1 else 'a[%d:%d]' % (n, n+c-1)
MF = 'v_mfma_f32_16x16x32_bf16'
E = os.environ.get
SPIN = 0x20000
F1, F2, F3, F0, F0B = [WS_FL + 0x8000*i for i in range(5)]
NAME = 'sequential_preLN__ssm_conv_s4d__mixer_gmlp__prompt_kernel'

def signal(k, vm, soff_expr, tok=None):
    vm.wait(vm.n if tok is None else tok)
    k('s_barrier')
    L = k.lab('sig')
    k(f's_cmp_lg_u32 s16, 0\ns_cbranch_scc1 {L}')
    k('v_mov_b32 v2, 0\nv_mov_b32 v3, s6')
    k('s_mov_b64 exec, 1')
    k(f'buffer_store_dword v3, v2, s[8:11], {soff_expr} offen sc1')
    k('s_mov_b64 exec, -1')
    k(f'{L}:')

def poll(k, vm, vaddrs, sreg, data=(3, 4)):
    if isinstance(vaddrs, int): vaddrs = [vaddrs]
    L = k.lab('poll'); Lo = k.lab('pok')
    k('s_mov_b32 s37, 0')
    k(f'{L}:')
    for q, va in enumerate(vaddrs): k(f'buffer_load_dword v{data[q]}, v{va}, s[8:11], {sreg} offen sc1')
    k(f's_add_u32 s37, s37, 1\ns_cmp_gt_u32 s37, {SPIN}')
    k(f's_cbranch_scc1 {Lo}')
    k('s_waitcnt vmcnt(0)')
    for q in range(len(vaddrs)):
        k(f'v_cmp_ne_u32 vcc, s6, v{data[q]}')
        k(f's_cbranch_vccnz {L}')
    k(f'{Lo}:')
    k('s_waitcnt vmcnt(0)')
    vm.done = vm.n

def w1_items(dma, tiles, stage=0):
    for T in tiles:
        for ks4 in range(5):
            for q in range(4):
                ks = 4*ks4 + q
                dma.add([f's_add_u32 s27, s{22+T}, {ks4*4096}'] if q == 0 else [], f'buffer_load_dwordx4 {a(80*T+4*ks,4)}, v5, s[8:11], s27 offen offset:{q*1024} sc1', stage)

KGS = 288*128; UXB = KGS + 4*4608
BND = 156; KPT = 152
AF = 240; AG = 244; AEU = 245; AEX = 246; AST = 247
AK0, AK1, AQ, AUX, AP0, PD0, AB0 = 180, 181, 182, 183, 184, 185, 188
PR = 56; IDX = 132; KW = 140; KR = 144; KCW = 145

def conv_bands(k):
    k('v_lshlrev_b32 v6, 3, v8')
    bands = [(-5, -3, -16), (-10, -6, -16), (-13, -11, -16), (-18, -14, -24), (-11, -5, -16), (-20, -12, -24), (12-16, 13-16, -16)]
    for bi, (lo, hi, e0) in enumerate(bands):
        dst = BND + 4*bi if bi < 6 else KPT
        msk = ((1 << (hi-lo+1)) - 1) << (lo - e0)
        k(f'v_mov_b32 v9, {msk:#x}\nv_lshlrev_b32 v9, v7, v9\nv_lshrrev_b32 v9, v6, v9')
        k('v_and_b32 v10, 0xaa, v9\nv_and_b32 v9, 0x55, v9\nv_lshl_or_b32 v9, v10, 15, v9')
        for q in range(4):
            if q: k(f'v_lshrrev_b32 v10, {2*q}, v9')
            k(f'v_and_b32 v{dst+q}, 0x10001, v{10 if q else 9}')
            if bi < 6: k(f'v_mul_u32_u24 v{dst+q}, 0x3f80, v{dst+q}')

def f0b_addr(k):
    k(f'v_lshlrev_b32 v{AB0}, 7, v1\nv_and_b32 v2, 31, v1\nv_lshlrev_b32 v2, 7, v2\nv_add_u32 v{AB0+1}, 8192, v2')

def conv_late(k):
    def uaddr(dst, gc, use_h):
        k(f'v_lshl_add_u32 v9, v7, 1, {use_h}\nv_add_u32 v9, {gc+32}, v9')
        k('v_bfe_u32 v10, v9, 1, 3\nv_xor_b32 v10, s16, v10\nv_lshlrev_b32 v10, 4, v10')
        k(f'v_lshl_add_u32 v{dst}, v9, 7, v10')
    for j in range(4): uaddr(AF+j, -2-4*(j+4), 'v8')
    uaddr(AG, -3, 'v8')
    k('v_lshrrev_b32 v11, 1, v8')
    uaddr(AEU, 0, 'v11')
    k(f'v_lshlrev_b32 v{AST}, 5, v7\nv_lshl_add_u32 v{AST}, v11, 4, v{AST}')
    k('v_and_b32 v11, 1, v8')
    k(f'v_lshl_add_u32 v{AST}, v11, 9, v{AST}\nv_lshl_add_u32 v{AEU}, v11, 3, v{AEU}\nv_xor_b32 v{AEX}, 64, v{AEU}')
    k(f's_lshl_b32 s52, s3, 12\ns_add_u32 s52, s52, {WS_HT:#x}')
    k('v_lshlrev_b32 v9, 3, v8\nv_sub_u32 v9, v9, v7\nv_add_u32 v9, 15, v9\nv_lshlrev_b32 v9, 1, v9')
    k(f'v_and_b32 v10, 1, v7\nv_xor_b32 v10, 1, v10\nv_mul_u32_u24 v10, {4*KPO-2}, v10')
    k(f'v_add3_u32 v{AK0}, v9, v10, s46\nv_add_u32 v{AK1}, 1024, v{AK0}')
    k('v_lshlrev_b32 v9, 2, v8\nv_sub_u32 v9, v9, v7\nv_add_u32 v9, 15, v9\nv_lshlrev_b32 v9, 2, v9')
    k(f's_add_u32 s53, s46, 2240\nv_add_u32 v{AQ}, s53, v9')
def conv_early(k):
    k('v_lshrrev_b32 v3, 3, v1\nv_and_b32 v4, 7, v1')
    k(f'v_lshl_add_u32 v2, v3, 5, v4\nv_lshlrev_b32 v{AP0}, 7, v2')
    k('v_lshrrev_b32 v6, 1, v3\nv_xor_b32 v4, v4, v6\ns_lshl_b32 s44, s20, 2\nv_xor_b32 v4, s44, v4')
    k(f'v_mul_u32_u24 v3, 20480, v3\nv_lshl_add_u32 v{AUX}, v4, 4, v3')
    f0b_addr(k)
    k(f's_mul_i32 s46, s16, 3072\ns_add_u32 s46, s46, {UXB}')
    k(f's_lshl_b32 s47, s2, 7\ns_mul_i32 s48, s16, {8*20480}\ns_add_u32 s47, s47, s48')
    k('s_lshl_b32 s49, s16, 10\ns_add_u32 s49, s49, 4096')
    k(f's_lshl_b32 s48, s16, 10\ns_add_u32 s48, s48, {F0:#x}')
    k('v_lshlrev_b32 v6, 4, v0')
    for r in range(72, 76): k(f'v_mov_b32 v{r}, 0')
    k('ds_write_b128 v6, v[72:75]')
    k('v_add_u32 v2, s46, v5')
    for q in range(3): k(f'ds_write_b128 v2, v[72:75] offset:{1024*q}')
    k(f's_mul_i32 s55, s16, 4608\ns_add_u32 s55, s55, {KGS}')
    k(f'v_mul_u32_u24 v2, 288, v7\nv_lshl_add_u32 v2, v8, 4, v2\nv_add_u32 v{KR}, s55, v2')
    k('v_lshrrev_b32 v9, 1, v8\nv_and_b32 v10, 1, v8\nv_lshlrev_b32 v3, 4, v7')
    k('v_lshl_add_u32 v2, v9, 8, v3\nv_lshl_add_u32 v2, v10, 3, v2')
    k(f's_add_u32 s44, s46, 1080\nv_sub_u32 v{KCW}, s44, v2')
    k(f'v_lshl_add_u32 v2, v10, 8, v3\ns_add_u32 s44, s46, {2*(536-258)-4}\nv_sub_u32 v{KCW+1}, s44, v2')
    k('v_lshrrev_b32 v2, 1, v7\nv_lshl_add_u32 v2, v10, 4, v2\nv_lshlrev_b32 v2, 2, v2\nv_and_b32 v3, 1, v7\nv_lshlrev_b32 v3, 8, v3\nv_sub_u32 v2, v3, v2')
    k(f's_add_u32 s44, s46, {2240+4*39}\nv_add_u32 v{KCW+2}, s44, v2')
    k(f'v_and_b32 v2, 7, v7\nv_lshlrev_b32 v2, 5, v2\nv_lshl_add_u32 v2, v8, 3, v2\ns_add_u32 s44, s46, {2752+4*62}\nv_sub_u32 v{KCW+3}, s44, v2')
    k(f'v_mov_b32 v{KCW+4}, s46')

LNB = UXB + 12288
class Rec:
    def __init__(s): s.L = []
    def __call__(s, t): s.L += [x for x in t.split('\n') if x]
def zipk(k, recs):
    for xs in zip(*[r.L for r in recs]):
        for x in xs: k(x)

def ln1_addr(k):
    k('v_lshrrev_b32 v2, 5, v1\nv_bfe_u32 v3, v1, 4, 1\nv_bfe_u32 v4, v1, 2, 2\nv_and_b32 v6, 3, v1')
    k('v_lshl_add_u32 v52, v2, 3, v4\nv_mul_u32_u24 v52, 1344, v52\nv_lshl_add_u32 v52, v3, 5, v52\nv_lshl_add_u32 v52, v6, 3, v52')
    k(f's_mul_i32 s17, s16, 320\ns_add_u32 s17, s17, {LNB}\nv_add_u32 v52, s17, v52')
    k('v_lshlrev_b32 v53, 9, v3\nv_lshl_add_u32 v53, v4, 7, v53\nv_lshl_add_u32 v53, v2, 6, v53\nv_lshl_add_u32 v53, v6, 4, v53')
    k('s_mul_i32 s17, s16, 5120\nv_add_u32 v53, s17, v53\nv_add_u32 v55, 4096, v53')

def ln1(k):
    X = 12; Fv = 22; S = 42
    for q in range(5): k(f'ds_write_b64 v51, {v(X+2*q,2)} offset:{8*1344+q*256}')
    for i in range(10): k(f'v_lshlrev_b32 v{Fv+2*i}, 16, v{X+i}\nv_and_b32 v{Fv+1+2*i}, 0xffff0000, v{X+i}')
    k(f'v_pk_add_f32 {v(S,2)}, {v(Fv,2)}, {v(Fv+2,2)}\nv_pk_mul_f32 {v(S+2,2)}, {v(Fv,2)}, {v(Fv,2)}')
    for i in range(1, 10):
        if i > 1: k(f'v_pk_add_f32 {v(S,2)}, {v(S,2)}, {v(Fv+2*i,2)}')
        k(f'v_pk_fma_f32 {v(S+2,2)}, {v(Fv+2*i,2)}, {v(Fv+2*i,2)}, {v(S+2,2)}')
    k(f'v_add_f32 v{S}, v{S}, v{S+1}\nv_add_f32 v{S+2}, v{S+2}, v{S+3}')
    k(f'v_mov_b32 v47, {fl(1/640)}')
    for sh in (8, 4, 2, 1):
        for q in (S, S+2): k(f'v_add_f32_dpp v{q}, v{q}, v{q} row_ror:{sh} row_mask:0xf bank_mask:0xf')
    k(f'v_mov_b32 v{S+1}, v{S}\nv_mov_b32 v{S+3}, v{S+2}\nv_permlane16_swap_b32 v{S}, v{S+1}\nv_permlane16_swap_b32 v{S+2}, v{S+3}')
    k(f'v_add_f32 v{S}, v{S}, v{S+1}\nv_add_f32 v{S+2}, v{S+2}, v{S+3}')
    k(f'v_mul_f32 v{S}, v47, v{S}\nv_mul_f32 v{S+1}, v{S}, v{S}\nv_fma_f32 v{S+2}, v{S+2}, v47, -v{S+1}\nv_max_f32 v{S+2}, 0, v{S+2}')
    r = Rec(); ln_finish(r, S, S+2, S+4)
    fin = r.L[2:]
    for x in r.L[:2]: k(x)
    for i in range(10):
        q = Fv+2*i
        k(f'v_pk_add_f32 {v(q,2)}, {v(q,2)}, {v(S,2)} op_sel_hi:[1,0] neg_lo:[0,1] neg_hi:[0,1]')
        if fin: k(fin.pop(0))
        k(f'v_cvt_pk_bf16_f32 v{q+1}, v{q}, v{q+1}\nv_lshlrev_b32 v{q}, 16, v{q+1}\nv_and_b32 v{q+1}, 0xffff0000, v{q+1}')
    assert not fin
    k('v_mov_b32 v2, 0\nglobal_load_dword v54, v2, s[32:33] sc1')
    for i in range(10):
        q = Fv+2*i
        k(f'v_pk_mul_f32 {v(q,2)}, {v(q,2)}, {v(S+2,2)} op_sel_hi:[1,0]')
        k(f'v_cvt_pk_bf16_f32 v{X+i}, v{q}, v{q+1}')
    for q in range(5): k(f'ds_write_b64 v51, {v(X+2*q,2)} offset:{q*256}')
    k('s_mul_i32 s30, s2, 20480')
    k('s_waitcnt lgkmcnt(0)\ns_barrier')
    mark(k, 0, 'H')
    O = 24
    for b in range(5):
        k(f'ds_read_b64_tr_b16 {v(O+4*b,2)}, v52 offset:{b*64}\nds_read_b64_tr_b16 {v(O+2+4*b,2)}, v52 offset:{b*64+4*1344}')
    for b in range(5):
        k(f's_waitcnt lgkmcnt({8-2*b})')
        k(f'buffer_store_dwordx4 {v(O+4*b,4)}, ' + (f'v53, s[8:11], s30 offen offset:{b*1024} sc1' if b < 4 else 'v55, s[8:11], s30 offen sc1'))
    k(f's_lshl_b32 s30, s2, 7\ns_add_u32 s30, s30, {F0:#x}')
    mark(k, 1, 'H')

def get_nonce(k):
    L = k.lab('nn'); Lo = k.lab('nok')
    k('s_mov_b32 s37, 0')
    k(f'{L}:')
    k('v_readfirstlane_b32 s6, v54')
    k(f's_add_u32 s37, s37, 1\ns_cmp_gt_u32 s37, {SPIN}\ns_cbranch_scc1 {Lo}')
    k(f's_cmp_lg_u32 s6, 0\ns_cbranch_scc1 {Lo}')
    k('v_mov_b32 v2, 0')
    k('global_load_dword v54, v2, s[32:33] sc1')
    k('s_waitcnt vmcnt(0)')
    k(f's_branch {L}')
    k(f'{Lo}:')

def ux_issue(k):
    for i in range(8):
        k(f's_add_u32 m0, s49, {i*4096}\ns_add_u32 s27, s47, {i*32*20480}')
        k(f'buffer_load_dwordx4 v{AUX}, s[8:11], s27 offen sc1 lds')
    k('s_mov_b32 s45, 1')
    mark(k, 8, 'K')

def kgen(k, sigfn):
    lg = Cnt(k, 'lgkmcnt', 15)
    DT = 68
    W, G8, GG, Z, C0, LO, HI, ACC, PK, H2 = 20, 22, 24, 32, 70, 88, 104, 120, 36, 192
    def check(pd=PD0):
        if E('KG_NOCHK'): return
        Ls = k.lab('uxs'); Lr = k.lab('uxr')
        k(f's_cmp_lg_u32 s45, 0\ns_cbranch_scc1 {Ls}')
        k('s_waitcnt vmcnt(0)')
        k(f'v_cmp_ne_u32 vcc, s6, v{pd}')
        k(f's_cbranch_vccnz {Lr}')
        ux_issue(k)
        k('s_mov_b32 m0, s55')
        k(f's_branch {Ls}')
        k(f'{Lr}:')
        k(f'buffer_load_dword v{pd}, v{AP0}, s[8:11], s48 offen sc1')
        k(f'{Ls}:')
    k(f'v_mov_b32 v{PD0}, 0\ns_mov_b32 s45, 0\ns_mov_b32 m0, s55')
    k(f'v_mul_f32 v{DT}, {fl(LOG2E)}, v{DT}\nv_exp_f32 v{DT}, v{DT}')
    round_bf16_f32(k, DT, DT)
    k(f'v_add_f32 v{DT+1}, v{DT}, v{DT}')
    mark(k, 0, 'K'); mark(k, 0, 'J')
    def setup(it):
        r = Rec(); P = PR + 4*it
        r(f'v_mul_f32 v12, {fl(LOG2E)}, v{P}\nv_mul_f32 v13, v{P+1}, v{DT}\nv_exp_f32 v12, v12')
        r(f'v_mul_f32 v13, {fl(INV2PI)}, v13\nv_mul_f32 v{C0}, v{P+2}, v{DT+1}\nv_mul_f32 v{C0+1}, v{P+3}, -v{DT+1}')
        round_bf16_f32(r, 12, 12)
        r(f'v_mul_f32 v12, v12, v{DT}\nv_mul_f32 v15, {fl(8.)}, v13\nv_mul_f32 v17, {fl(128.)}, v13\nv_mul_f32 v12, {fl(-LOG2E)}, v12')
        r('v_fract_f32 v15, v15\nv_fract_f32 v13, v13\nv_fract_f32 v17, v17')
        r(f'v_mul_f32 v14, {fl(8.)}, v12\nv_mul_f32 v16, {fl(128.)}, v12')
        for dst, m_ in ((G8, 14), (W, 12), (GG, 16)):
            r(f'v_exp_f32 v{m_}, v{m_}\nv_cos_f32 v{dst}, v{m_+1}\nv_sin_f32 v{dst+1}, v{m_+1}')
        return r.L
    tmp = [26, 28, 30]; ti = [0]
    def cmul(d, a_, b):
        t = tmp[ti[0] % 3]; ti[0] += 1
        k(f'v_pk_mul_f32 {v(t,2)}, {v(a_,2)}, {v(b,2)} op_sel:[0,0] op_sel_hi:[1,0]')
        k(f'v_pk_fma_f32 {v(d,2)}, {v(a_,2)}, {v(b,2)}, {v(t,2)} op_sel:[1,1,0] op_sel_hi:[0,1,1] neg_lo:[1,0,0]')
    WB = int(E('KG_WB', 8))
    wr = [0]
    def wflush(n):
        while wr[0] < n:
            lg.issue(f'ds_write_addtid_b32 v{PK+wr[0]} offset:{wr[0]*288}'); wr[0] += 1
    def put(row, z):
        if z is None: k(f'v_mov_b32 v{PK+row}, 0x3f80')
        else: k(f'v_cvt_pk_bf16_f32 v{PK+row}, v{z}, v{z+1}')
        if (row+1) % WB == 0: wflush(row+1)
    def flush(n, base):
        wflush(n); wr[0] = 0
        for ks in range(4): tk = lg.issue(f'ds_read_b128 {v(base+4*ks,4)}, v{KR} offset:{ks*64}')
        return tk
    def mm(it, t, H, swap):
        out = []
        for ks in range(4):
            A, B = H+4*ks, LO+4*ks
            if swap: A, B = B, A
            out.append(f'{MF} {v(ACC+4*t,4)}, {v(A,4)}, {v(B,4)}, {"0" if it == 0 and ks == 0 else v(ACC+4*t,4)}')
        return out
    plan = dict(x.split(':') for x in E('KG_PLAN', '03:s,13:p,23:c').split(','))
    outl = []
    def pt(q):
        for it in range(3):
            act = plan.get(f'{it}{q}')
            if act:
                Lx = k.lab('kx'); Lb = k.lab('kb')
                k(f's_cmp_eq_u32 s44, {it}\ns_cbranch_scc1 {Lx}')
                k(f'{Lb}:')
                outl.append((Lx, Lb, act))
    for r in range(12): k(f'v_mov_b32 v{ACC+r}, 0')
    k('s_mov_b32 s44, 0')
    for x in setup(0): k(x)
    Lp = k.lab('kg')
    k(f'{Lp}:')
    for dst, m_, neg in ((G8, 14, False), (W, 12, True), (GG, 16, True)):
        k(f'v_pk_mul_f32 {v(dst,2)}, {v(dst,2)}, {v(m_,2)} op_sel_hi:[1,0]' + (' neg_hi:[0,1]' if neg else ''))
    put(0, None); put(1, G8)
    cmul(Z, G8, G8); put(2, Z)
    for j in range(3, 16): cmul(Z, Z, G8); put(j, Z)
    flush(16, LO)
    pt(0)
    put(0, C0)
    for c in range(1, 8): cmul(C0+2*c, C0+2*c-2, W); put(c, C0+2*c)
    cmul(C0+16, C0+14, W)
    for c in range(8): cmul(C0+2*c, C0+2*c, GG); put(8+c, C0+2*c)
    flush(16, HI)
    pt(1)
    cmul(C0+16, C0+16, GG); cmul(C0, C0, GG)
    for i in (2, 3):
        for c in (2, 4, 6, 8): cmul(C0+2*c, C0+2*c, GG); put(4*(i-2)+c//2-1, C0+2*c)
    for i in range(4, 8):
        for c in (4, 8): cmul(C0+2*c, C0+2*c, GG); put(8+2*(i-4)+c//4-1, C0+2*c)
    t1 = flush(16, H2)
    pt(2)
    k(f'v_cvt_pk_bf16_f32 v{PK+8}, v{C0}, v{C0+1}')
    for i in range(8, 16): cmul(C0+16, C0+16, GG); put(i-8, C0+16)
    t2 = flush(9, H2+16)
    pt(3)
    fillr = setup(1)
    fillr[6:6] = [f'v_mov_b32 v{PR+4+q}, v{PR+8+q}' for q in range(4)]
    k('s_add_u32 s44, s44, 1\ns_cmp_lt_u32 s44, 3')
    lg.wait(t1)
    for n, m_ in enumerate(mm(1, 0, HI, False) + mm(1, 1, H2, False) + mm(1, 2, H2+16, True)):
        if n == 8: lg.wait(t2)
        k(m_)
        for _ in range(2):
            if fillr: k(fillr.pop(0))
    for x in fillr: k(x)
    k(f's_cbranch_scc1 {Lp}')
    Lj = k.lab('kj')
    k(f's_branch {Lj}')
    for Lx, Lb, act in outl:
        k(f'{Lx}:')
        if act == 's': mark(k, 10, 'K'); sigfn(); mark(k, 11, 'K')
        if act == 'm': mark(k, 12, 'K')
        if act == 'n': mark(k, 13, 'K')
        if act == 'p': mark(k, 2, 'K'); k(f'buffer_load_dword v{PD0}, v{AP0}, s[8:11], s48 offen sc1'); mark(k, 3, 'K')
        if act == 'c': mark(k, 12, 'K'); k('s_waitcnt vmcnt(0)'); mark(k, 13, 'K'); check(); mark(k, 14, 'K')
        k(f's_branch {Lb}')
    k(f'{Lj}:')
    mark(k, 1, 'K'); mark(k, 13, 'J')
    A0, A1, A2 = ACC, ACC+4, ACC+8
    O = 4*KPO
    cv = [(A0+3, A0+2), (A0+1, A0), (A0+2, A0+1),
          (A1+3, A1+3), (A1+3, A1+2), (A1+1, A1+1), (A1+1, A1), (A1+2, A1+1),
          (A1, A1+1), (A1+2, A1+3),
          (A2+2, A2+3), (A2, A2+1), (A2, A2)]
    for q, (x, y) in enumerate(cv): k(f'v_cvt_pk_bf16_f32 v{12+q}, v{x}, v{y}')
    k(f'ds_write_b64 v{KCW}, v[12:13]')
    k(f'ds_write_b16 v{KCW}, v12 offset:{O-2}\nds_write_b32 v{KCW}, v14 offset:{O}\nds_write_b16_d16_hi v{KCW}, v13 offset:{O+4}')
    k(f'v_add_u32 v25, {O}, v{KCW+1}')
    k('s_mov_b32 exec_hi, 0')
    k(f'ds_write_b16 v{KCW+1}, v15 offset:2')
    k(f'ds_write2_b32 v{KCW+1}, v15, v16 offset0:1 offset1:2\nds_write2_b32 v{KCW+1}, v17, v18 offset0:3 offset1:4')
    k('ds_write2_b32 v25, v15, v15 offset0:0 offset1:1\nds_write2_b32 v25, v19, v17 offset0:2 offset1:3\nds_write_b16_d16_hi v25, v18 offset:16')
    k('s_mov_b32 exec_lo, 0x100')
    k(f'ds_write_b32 v{KCW+4}, v24 offset:572\nds_write_b16 v{KCW+4}, v24 offset:{O+570}\nds_write_b16 v{KCW+4}, v24 offset:{O+572}')
    k('s_mov_b32 exec_lo, 0\ns_mov_b32 exec_hi, -1')
    k(f'ds_write2_b32 v{KCW+2}, v20, v21 offset0:8 offset1:0')
    k('s_mov_b32 exec_lo, 0x00ff00ff\ns_mov_b32 exec_hi, 0x00ff00ff')
    k(f'ds_write_b64 v{KCW+3}, v[22:23]')
    k('s_mov_b64 exec, -1')
    mark(k, 4, 'K')
    check()
    mark(k, 5, 'K')

def phaseA(k):
    vm = Cnt(k, 'vmcnt', 63); lg = Cnt(k, 'lgkmcnt', 15)
    dma = Dma(k, vm); w1_items(dma, [0, 1])
    ACC = 12; KN = 44; QA = 112; QB = 124; Q8 = 136; SS = 180; VV = 204
    FB = 216; NB = 6; EU = 248; EX = 250; ET = 252
    prog = []
    started = set()
    def Kn(kb): return ('K', 'n', kb)
    kreg = {}
    for kb in range(17): kreg[Kn(kb)] = (KN+4*kb, AK1 if kb == 0 else AK0, 0 if kb == 0 else (16-kb)*16)
    for D in (2, 3, 4): kreg[('K', 'a', D)] = (QA+4*(D-2), AQ, (4-D)*16); kreg[('K', 'b', D)] = (QB+4*(D-2), AQ, 64+(4-D)*16)
    for D in (4, 5, 6, 7): kreg[('K', '8', D)] = (Q8+4*(D-4), AQ, 128+(7-D)*16)
    def acc(t, A, B):
        prog.append(('m', ACC+4*t, A, B, t not in started)); started.add(t)
    for rt in range(8):
        F0 = ('F', rt, 0)
        if rt <= 5:
            for b in (0, 1, 2): prog.append(('m', SS+4*b, F0, BND+4*b, True))
            if rt <= 3: prog.append(('m', SS+16, F0, BND+16, True))
            prog.append(('m', SS+12, ('F', rt, 'G'), BND+12, True))
            if rt <= 3: prog.append(('m', SS+20, ('F', rt, 'G'), BND+20, True))
        acc(rt, Kn(0), F0)
        if rt+1 <= 7: acc(rt+1, Kn(8), F0)
        if rt+2 <= 7: acc(rt+2, Kn(16), F0)
        if rt+4 <= 7: acc(rt+4, KPT, F0)
        if rt <= 5: prog.append(('cvt', rt))
        for j in range(1, 8):
            acc(rt, Kn(j), ('F', rt, j))
            if rt+1 <= 7: acc(rt+1, Kn(j+8), ('F', rt, j))
        prog.append(('epi', rt))
        if rt <= 5:
            prog.append(('needcvt',))
            for D in (2, 3, 4):
                if rt+D <= 7: acc(rt+D, VV, ('K', 'a', D)); acc(rt+D, VV+4, ('K', 'b', D))
            if rt <= 3:
                for D in (4, 5, 6, 7):
                    if rt+D <= 7: acc(rt+D, VV+8, ('K', '8', D))
    order = []; last_use = {}
    for pi_, p in enumerate(prog):
        if p[0] == 'm':
            for o in (p[2], p[3]):
                if isinstance(o, tuple):
                    if o not in last_use: order.append(o)
                    last_use[o] = pi_
    forder = [o for o in order if o[0] == 'F']
    fbuf = {o: FB + 4*(n % NB) for n, o in enumerate(forder)}
    fidx = {o: n for n, o in enumerate(forder)}
    tok = {}
    rq = []
    for o in order:
        if o[0] == 'K':
            r, ar, off = kreg[o]
            rq.append((o, f'ds_read2_b32 {v(r,2)}, v{ar} offset0:{off} offset1:{off+1}', False))
            rq.append((o, f'ds_read2_b32 {v(r+2,2)}, v{ar} offset0:{off+2} offset1:{off+3}', True))
        else:
            _, rt, j = o
            if j == 'G': ar, off = AG, rt*4096
            else: ar, off = AF + (j % 4), rt*4096 + (2048 if j < 4 else 0)
            rq.append((o, f'ds_read_b128 {v(fbuf[o],4)}, v{ar} offset:{off}', True))
    cur = [0]
    def can_read():
        if not rq: return False
        o = rq[0][0]
        if lg.n - lg.done >= 13: return False
        if o[0] == 'F' and fidx[o] >= NB:
            return last_use[forder[fidx[o]-NB]] < cur[0]
        return True
    def do_read():
        o, t, l = rq.pop(0); tk = lg.issue(t)
        if l: tok[o] = tk
    k('v_mov_b32 v9, s53')
    tp = lg.issue(f'ds_read_u16 v11, v9 offset:{256+16*4+2}')
    early = [x for x in rq if x[0][0] == 'K']
    r = Rec(); conv_bands(r); bl = r.L
    for n, x in enumerate(early):
        rq.remove(x); tk = lg.issue(x[1])
        if x[2]: tok[x[0]] = tk
        if n % 6 == 5:
            for _ in range(14):
                if bl: k(bl.pop(0))
    for x in bl: k(x)
    lg.wait(tp)
    for q in range(4): k(f'v_mul_u32_u24 v{KPT+q}, v11, v{KPT+q}')
    mark(k, 3); mark(k, 6, 'K')
    Ls = k.lab('uxd')
    k(f's_cmp_lg_u32 s45, 0\ns_cbranch_scc1 {Ls}')
    poll(k, vm, AP0, 's48')
    ux_issue(k)
    k(f'{Ls}:')
    k(f's_mov_b32 s44, {F0B:#x}')
    k(f'v_mov_b32 v6, v{AB0}\nv_mov_b32 v11, v{AB0+1}')
    k('buffer_load_dword v3, v6, s[8:11], s44 offen sc1\nbuffer_load_dword v4, v11, s[8:11], s44 offen sc1')
    k('s_waitcnt vmcnt(2)')
    lg.all()
    k('s_barrier')
    mark(k, 4); mark(k, 7, 'K')
    def f0b_check():
        Lo = k.lab('f0b'); Lq = k.lab('f0q')
        k('s_waitcnt vmcnt(0)')
        k(f'v_cmp_ne_u32 vcc, s6, v3\ns_cbranch_vccnz {Lq}\nv_cmp_ne_u32 vcc, s6, v4\ns_cbranch_vccz {Lo}')
        k(f'{Lq}:')
        poll(k, vm, [6, 11], 's44')
        k(f'{Lo}:')
        mark(k, 9, 'K')
        CT = int(E('C_TOUCH', 0))
        if CT:
            k(f's_add_u32 s45, s3, {CT}\ns_min_u32 s45, s45, 1023')
            k('s_lshr_b32 s46, s45, 8\ns_lshl_b32 s46, s46, 9\ns_and_b32 s45, s45, 255\ns_lshl_b32 s45, s45, 15\ns_add_u32 s45, s45, s46')
            k('v_lshrrev_b32 v2, 2, v1\nv_lshlrev_b32 v2, 11, v2\nv_and_b32 v3, 3, v1\nv_lshl_add_u32 v2, v3, 7, v2')
            vm.issue('buffer_load_dword v4, v2, s[12:15], s45 offen')
    hi = []; lo = []
    def epilogue(t):
        st = {}; A = ACC + 4*t; ops = []
        ops.append(lambda: st.__setitem__('u', lg.issue(f'ds_read_b64 {v(EU,2)}, v{AEU} offset:{t*4096}')))
        ops.append(lambda: st.__setitem__('x', lg.issue(f'ds_read_b64 {v(EX,2)}, v{AEX} offset:{t*4096}')))
        ops += [None]*6
        def Em(txt, w=None):
            def f():
                if w: lg.wait(st[w])
                k(txt)
            ops.append(f)
        Em(f'v_lshlrev_b32 v{ET}, 16, v{EU}', 'x'); Em(f'v_and_b32 v{ET+1}, 0xffff0000, v{EU}')
        Em(f'v_lshlrev_b32 v{ET+2}, 16, v{EU+1}'); Em(f'v_and_b32 v{ET+3}, 0xffff0000, v{EU+1}')
        for r in range(4): Em(f'v_fmac_f32 v{A+r}, s51, v{ET+r}')
        Em(f'v_lshlrev_b32 v{ET}, 16, v{EX}'); Em(f'v_and_b32 v{ET+1}, 0xffff0000, v{EX}')
        Em(f'v_lshlrev_b32 v{ET+2}, 16, v{EX+1}'); Em(f'v_and_b32 v{ET+3}, 0xffff0000, v{EX+1}')
        for r in range(4): Em(f'v_add_f32 v{A+r}, v{A+r}, v{ET+r}')
        P = ACC + 4*(t & ~1) + 2*(t & 1)
        Em(f'v_cvt_pk_bf16_f32 v{P}, v{A}, v{A+1}'); Em(f'v_cvt_pk_bf16_f32 v{P+1}, v{A+2}, v{A+3}')
        if t & 1:
            Q = ACC + 4*(t-1)
            ops.append(None)
            Em(f'v_permlane16_swap_b32 v{Q}, v{Q+2}'); Em(f'v_permlane16_swap_b32 v{Q+1}, v{Q+3}')
            ops.append(lambda: vm.issue(f'buffer_store_dwordx4 {v(Q,4)}, v{AST}, s[8:11], s52 offen offset:{(t-1)*512} sc1'))
        return ops
    while can_read() and lg.n - lg.done < 12: do_read()
    nm = 0; WR = int(E('FA_WR', 4)); WLAST = int(E('FA_WLAST', 185)); WFIRST = int(E('FA_WFIRST', 24))
    for pi_, p in enumerate(prog):
        cur[0] = pi_
        if p[0] == 'cvt':
            rt = p[1]
            hi.extend([None]*2)
            for q in range(3 if rt <= 3 else 2):
                for r in range(4):
                    hi.append(lambda q=q, r=r: k(f'v_cvt_pk_bf16_f32 v{VV+4*q+r}, v{SS+8*q+r}, v{SS+8*q+4+r}'))
            continue
        if p[0] == 'needcvt':
            while hi:
                f = hi.pop(0)
                if f: f()
            continue
        if p[0] == 'epi':
            lo.extend(epilogue(p[1])); continue
        _, d, A, B, zero = p
        n0 = len(k.L)
        ops = []
        for o in (A, B):
            if isinstance(o, tuple):
                while o not in tok:
                    assert can_read() or True
                    do_read()
                lg.wait(tok[o])
                ops.append(fbuf[o] if o[0] == 'F' else kreg[o][0])
            else: ops.append(o)
        nm += 1
        if nm == WFIRST: f0b_check()
        if nm % WR == 0 and WFIRST <= nm <= WLAST: dma.pre()
        used = len(k.L) - n0
        k(f'{MF} {v(d,4)}, {v(ops[0],4)}, {v(ops[1],4)}, {"0" if zero else v(d,4)}')
        cur[0] = pi_ + 1
        n1 = len(k.L)
        dma.fire()
        while len(k.L) - n1 + used < 2:
            if can_read(): do_read()
            elif hi:
                f = hi.pop(0)
                if f: f()
                else: used += 1
            elif lo:
                f = lo.pop(0)
                if f: f()
                else: used += 1
            else: break
    for f in lo:
        if f: f()
    mark(k, 5)
    k(f's_lshl_b32 s44, s2, 7\ns_add_u32 s44, s44, {F1:#x}')
    signal(k, vm, 's44')
    while dma.q: dma.one()

def ln_sigma(k, mean, var, t):
    k(f'v_cvt_pk_bf16_f32 v{t}, v{mean}, v{var}')
    k(f'v_lshlrev_b32 v{mean}, 16, v{t}\nv_and_b32 v{var}, 0xffff0000, v{t}')
    k(f'v_add_f32 v{var}, {fl(1e-5)}, v{var}')
    round_bf16_f32(k, var, var)
    k(f'v_sqrt_f32 v{var}, v{var}')
    round_bf16_f32(k, var, var)

STG = 81920; Z1L = 147456; STAT = 159744; PART = STAT + 1024
CS = 28; RES = 40; MS = 52; HF = 68; AC = [116, 132, 148]; ONE = 164; SA = 168; G = 176; T = HF; WV = 192
def wreg(c, o): return v(WV+32*c+o, 4) if c < 2 else a(32*(c-2)+o, 4)

def phaseB_setup(k):
    for r in range(4): k(f'v_mov_b32 v{ONE+r}, 0x3f803f80')
    k('v_lshrrev_b32 v2, 3, v1\nv_and_b32 v3, 7, v1\nv_and_b32 v4, 6, v2\nv_xor_b32 v3, v3, v4')
    k('v_lshlrev_b32 v10, 12, v2\nv_lshl_add_u32 v10, v3, 4, v10')
    for j in range(4):
        k(f'v_add_u32 v2, {4*j}, v8\nv_xor_b32 v3, v2, v7\nv_lshlrev_b32 v2, 12, v2\nv_lshl_add_u32 v{11+j}, v3, 4, v2')
    k('v_bfe_u32 v2, v1, 2, 2\nv_and_b32 v3, 3, v1\nv_lshl_add_u32 v4, v8, 2, v2')
    k('v_lshrrev_b32 v6, 1, v3\nv_and_b32 v3, 1, v3\nv_and_b32 v9, 6, v4\nv_xor_b32 v6, v6, v9')
    k('v_lshlrev_b32 v6, 4, v6\nv_lshl_add_u32 v6, v4, 7, v6\nv_lshl_add_u32 v6, v3, 3, v6')
    k('s_lshl_b32 s36, s20, 6')
    k('v_xor_b32 v16, s36, v6')
    for sg in range(1, 4): k(f'v_xor_b32 v{16+sg}, {32*sg}, v16')
    for sg in range(4): k(f'v_add_u32 v{20+sg}, 40960, v{16+sg}')
    k('s_lshl_b32 s36, s16, 5\ns_mul_i32 s35, s18, 10240')
    k('v_xor_b32 v24, s36, v6\nv_add_u32 v24, s35, v24')
    k(f's_lshl_b32 s26, s16, 14\ns_add_u32 s26, s26, {STG}')
    k('s_lshl_b32 s36, s19, 12')
    k('v_xor_b32 v2, v8, v7\nv_lshlrev_b32 v2, 4, v2\nv_lshl_add_u32 v2, v7, 8, v2\nv_add_u32 v2, s36, v2')
    for ks in range(4):
        k(f'v_xor_b32 v3, {64*ks}, v2\nv_add_u32 v{SA+2*ks}, s26, v3\nv_xor_b32 v3, {64*ks+4096}, v2\nv_add_u32 v{SA+2*ks+1}, s26, v3')
    k(f's_lshl_b32 s21, s17, 7\ns_lshl_b32 s36, s16, 16\ns_add_u32 s21, s21, s36\ns_add_u32 s21, s21, {WS_HT:#x}')
    k('s_lshl_b32 s25, s16, 11')
    k('s_lshl_b32 s28, s17, 18\ns_lshl_b32 s36, s20, 17\ns_add_u32 s28, s28, s36\ns_lshl_b32 s36, s19, 11\ns_add_u32 s28, s28, s36')

def stg_items(dma, c):
    for j in range(8):
        pre = [f's_add_u32 m0, s26, {(c % 2)*8192 + j*1024}']
        if j == 0: pre += [f's_add_u32 s55, s54, {c}', 's_and_b32 s55, s55, 7', 's_lshl_b32 s55, s55, 8', 's_add_u32 s55, s55, s28']
        if j == 4: pre += ['s_add_u32 s55, s55, 65536']
        dma.add(pre, f'buffer_load_dwordx4 v{11+j%4}, s[12:15], s55 offen lds', 100+c)
def stg_read(dma, lg, c, wait=True):
    if wait: dma.upto(100+c); dma.vm.wait(dma.tok[100+c])
    for ks in range(4):
        for tau in range(2):
            lg.issue(f'ds_read_b128 {wreg(c, 8*ks+4*tau)}, v{SA+2*ks+tau} offset:{(c % 2)*8192}')

def phaseB(k, hiw):
    vm = Cnt(k, 'vmcnt', 63); lg = Cnt(k, 'lgkmcnt', 15)
    dma = Dma(k, vm)
    grp = [int(x) for x in E('FB_GRP', '0,1,1,2,2,2,3,3,3,3').split(',')]
    for s_ in range(10):
        for j in range(2):
            dma.add([f's_add_u32 m0, s25, {s_*8192 + j*1024}', f's_add_u32 s27, s21, {(s_*64 + j*8)*4096}'], 'buffer_load_dwordx4 v10, s[8:11], s27 offen sc1 lds', grp[s_])
    mark(k, 0, 'B')
    dma.upto(9)
    mark(k, 1, 'B')
    stg_read(dma, lg, 0, False); stg_read(dma, lg, 1, False)
    for T_ in range(3):
        for p in range(3):
            for hp in range(2):
                k(f'v_pk_add_f32 {v(CS+4*T_+2*hp,2)}, {v(CS+4*T_+2*hp,2)}, {v(AC[0]+12*T_+4*p+2*hp,2)}')
    lg.all()
    w1_items(dma, [2], 99)
    BLATE = E('FB_BLATE', '1') == '1'
    if not BLATE: stg_items(dma, 2); stg_items(dma, 3)
    def reads(g):
        off = g*4096; ar = 16
        if off >= 40960: off -= 40960; ar = 20
        b = HF + 16*(g % 3); out = []
        for sg in range(4):
            out += [f'ds_read_b64_tr_b16 {v(b+4*sg,2)}, v{ar+sg} offset:{off}', f'ds_read_b64_tr_b16 {v(b+4*sg+2,2)}, v{ar+sg} offset:{off+2048}']
        return out
    def mk(tiles, stats):
        def f(g):
            b = HF + 16*(g % 3); out = []
            for sg in range(4):
                if stats and sg < 2:
                    d = AC[2] + 8*sg
                    out.append(f'{MF} {v(d,4)}, {v(ONE,4)}, {v(b+4*sg,4)}, {"0" if g == 0 else v(d,4)}')
                    out.append(f'{MF} {v(d+4,4)}, {v(b+4*sg,4)}, {v(b+4*sg,4)}, {"0" if g == 0 else v(d+4,4)}')
            for sg in range(4):
                for T_ in tiles:
                    d = AC[T_] + 4*sg
                    out.append(f'{MF} {v(d,4)}, {a(80*T_+4*g,4)}, {v(b+4*sg,4)}, {"0" if g == 0 else v(d,4)}')
            return out
        return f
    mark(k, 2, 'B')
    dma.sync(0)
    mark(k, 3, 'B')
    resr = [f'ds_read_b64_tr_b16 {v(RES+2*j,2)}, v24 offset:{j*2048}' for j in range(5)]
    gemm_loop(k, lg, dma, 0, 20, reads, mk([0] if hiw else [0, 1], hiw), lambda g: grp[g//2], 1000, float(E('FB_RATE', 7)), tail_reads=resr)
    mark(k, 8); mark(k, 4, 'B')
    if BLATE: stg_items(dma, 2); stg_items(dma, 3)
    z2t = [0] if hiw else [0, 1]
    k(f's_lshl_b32 s36, s20, 9')
    k(f'v_lshlrev_b32 v3, 4, v7\nv_add_u32 v3, s36, v3\nv_xor_b32 v4, 512, v3\nv_add_u32 v3, {STAT}, v3\nv_add_u32 v4, {STAT}, v4')
    if hiw:
        k('v_and_b32 v2, 3, v1')
        k('v_cmp_eq_u32 vcc, 1, v2\nv_cmp_eq_u32 s[30:31], 2, v2\nv_cmp_eq_u32 s[32:33], 3, v2')
        k(f'v_mov_b32 v6, {fl(1/640)}')
        A_, B_ = [], []
        rec = []
        for sg in range(2):
            r = Rec(); S = AC[2] + 8*sg; Gm = S + 4
            r(f'v_cndmask_b32 v{Gm}, v{Gm}, v{Gm+1}, vcc\nv_cndmask_b32 v{Gm}, v{Gm}, v{Gm+2}, s[30:31]\nv_cndmask_b32 v{Gm}, v{Gm}, v{Gm+3}, s[32:33]')
            r(f'v_mul_f32 v{S}, v6, v{S}\nv_mul_f32 v{S+1}, v{S}, v{S}')
            r(f'v_fma_f32 v{S+1}, v{Gm}, v6, -v{S+1}\nv_max_f32 v{S+1}, 0, v{S+1}')
            ln_sigma(r, S, S+1, S+2)
            r(f'v_rcp_f32 v{Gm}, v{S+1}')
            r(f'v_mul_f32 v{S+2}, {fl(K1C)}, v{Gm}\nv_mul_f32 v{S+3}, v{Gm}, v{Gm}\nv_mul_f32 v{S+3}, v{S+3}, v{Gm}\nv_mul_f32 v{S+3}, {fl(K2C)}, v{S+3}')
            rec.append(r.L)
        for x, y in zip(*rec): k(x); k(y)
        k('s_mov_b32 exec_lo, 0x00f0000f\ns_mov_b32 exec_hi, 0xf0000f00')
        for sg in range(2): lg.issue(f'ds_write_b128 v3, {v(AC[2]+8*sg,4)} offset:{256*sg}')
        k('s_mov_b64 exec, -1')
    else:
        for _ in range(int(E('FB_X01', 8))): dma.one()
    lg.all()
    k('s_barrier')
    tks = [lg.issue(f'ds_read_b128 {v(MS+4*sg,4)}, v{3 + sg//2} offset:{256*(sg % 2)}') for sg in range(4)]
    mark(k, 5, 'B')
    def gelu(T_, ER=0, tks=None):
        prs = [(sg, hp) for sg in range(4) for hp in range(2)]
        for q in range(0, 8, 2):
            st = [[], []]
            if tks: lg.wait(tks[q//2])
            for u_ in range(2):
                sg, hp = prs[q+u_]
                z = AC[T_] + 4*sg + 2*hp; c = CS + 4*T_ + 2*hp; t = T + 2*u_
                ms = v(MS+4*sg, 2); kk = v(MS+4*sg+2, 2)
                st[u_] = [
                  f'v_pk_fma_f32 {v(z,2)}, {v(c,2)}, {ms}, {v(z,2)} op_sel_hi:[1,0,1] neg_lo:[0,1,0] neg_hi:[0,1,0]',
                  f'v_pk_mul_f32 {v(t,2)}, {v(z,2)}, {v(z,2)}',
                  f'v_pk_fma_f32 {v(t,2)}, {v(t,2)}, {kk}, {kk} op_sel:[0,1,0] op_sel_hi:[1,1,0]',
                  f'v_pk_mul_f32 {v(t,2)}, {v(t,2)}, {v(z,2)}',
                  f'v_exp_f32 v{t}, v{t}', f'v_exp_f32 v{t+1}, v{t+1}',
                  f'v_pk_fma_f32 {v(t,2)}, {v(t,2)}, {ms}, {ms} op_sel:[0,1,1] op_sel_hi:[1,1,1]',
                  f'v_rcp_f32 v{t}, v{t}', f'v_rcp_f32 v{t+1}, v{t+1}',
                  f'v_pk_mul_f32 {v(z,2)}, {v(z,2)}, {v(t,2)}']
            for n_, (x, y) in enumerate(zip(*st)):
                if ER and n_ % ER == 0: dma.pre()
                k(x); dma.fire(); k(y)
    for T_ in z2t: gelu(T_, 2 if hiw else int(E('FB_ER', 10)), tks)
    mark(k, 6, 'B')
    for sg in range(4):
        s1 = G + 2*sg; s2 = G + 8 + 2*sg; first = True
        for T_ in z2t:
            z = AC[T_] + 4*sg
            if first:
                k(f'v_pk_add_f32 {v(s1,2)}, {v(z,2)}, {v(z+2,2)}\nv_pk_mul_f32 {v(s2,2)}, {v(z,2)}, {v(z,2)}')
            else:
                k(f'v_pk_add_f32 {v(s1,2)}, {v(s1,2)}, {v(z,2)}\nv_pk_add_f32 {v(s1,2)}, {v(s1,2)}, {v(z+2,2)}')
                k(f'v_pk_fma_f32 {v(s2,2)}, {v(z,2)}, {v(z,2)}, {v(s2,2)}')
            k(f'v_pk_fma_f32 {v(s2,2)}, {v(z+2,2)}, {v(z+2,2)}, {v(s2,2)}')
            first = False
    for q in range(8): k(f'v_add_f32 v{G+2*q}, v{G+2*q}, v{G+2*q+1}')
    for b in (G, G+8): k(f'v_permlane32_swap_b32 v{b}, v{b+4}\nv_permlane32_swap_b32 v{b+2}, v{b+6}')
    for b in (G, G+8): k(f'v_add_f32 v{b}, v{b}, v{b+4}\nv_add_f32 v{b+2}, v{b+2}, v{b+6}')
    for b in (G, G+8): k(f'v_permlane16_swap_b32 v{b}, v{b+2}')
    k(f'v_add_f32 v{T}, v{G}, v{G+2}\nv_add_f32 v{T+1}, v{G+8}, v{G+10}')
    lg.issue(f'ds_write_b64 v27, {v(T,2)}')
    if hiw:
        stg_read(dma, lg, 2); stg_read(dma, lg, 3)
    lg.all()
    k('s_barrier')
    if hiw:
        L = k.lab('npub')
        k(f's_cmp_lg_u32 s16, 3\ns_cbranch_scc1 {L}')
        k(f'v_lshlrev_b32 v9, 3, v1\nv_add_u32 v2, {PART}, v9')
        for w in range(4): k(f'ds_read_b64 {v(G+2*w,2)}, v2 offset:{512*w}')
        k('s_lshl_b32 s36, s18, 9\ns_add_u32 s36, s36, s29')
        k('s_waitcnt lgkmcnt(0)')
        k(f'v_pk_add_f32 {v(G,2)}, {v(G,2)}, {v(G+2,2)}\nv_pk_add_f32 {v(G+4,2)}, {v(G+4,2)}, {v(G+6,2)}\nv_pk_add_f32 {v(G,2)}, {v(G,2)}, {v(G+4,2)}')
        k(f'buffer_store_dwordx2 {v(G,2)}, v9, s[8:11], s36 offen sc1')
        k(f'{L}:')
    else:
        stg_read(dma, lg, 2); stg_read(dma, lg, 3); lg.all()
    mark(k, 9); mark(k, 7, 'B')
    stg_items(dma, 4); stg_items(dma, 5)
    tk = {}
    def statloads():
        while dma.q: dma.one()
        for q in range(8):
            vm.issue(f'buffer_load_dwordx2 {v(G+2*q,2)}, v25, s[8:11], s29 offen offset:{q*512} sc1')
        tk['s'] = vm.n
    def z1out(T_, jexpr_sreg):
        k(f's_mul_i32 s36, s20, 6144\ns_add_u32 s36, s36, {jexpr_sreg}\ns_mul_i32 s35, s20, 12288\ns_sub_u32 s35, s36, s35')
        k('v_add_u32 v2, s36, v5\nv_add_u32 v3, s35, v5')
        for sg in range(4):
            z = AC[T_] + 4*sg
            k(f'v_cvt_pk_bf16_f32 v{z}, v{z}, v{z+1}\nv_cvt_pk_bf16_f32 v{z+1}, v{z+2}, v{z+3}')
            lg.issue(f'ds_write_b64 v{2 + sg//2}, {v(z,2)} offset:{3072*sg}')
    def normalize():
        if hiw: k('s_add_u32 s30, s16, 2')
        else: k('s_lshl_b32 s30, s16, 1')
        k(f's_mul_i32 s31, s18, 6\ns_add_u32 s30, s30, s31\ns_lshl_b32 s30, s30, 16\ns_lshl_b32 s31, s17, 11\ns_add_u32 s30, s30, s31\ns_add_u32 s30, s30, {WS_Z2:#x}')
        k('s_lshl_b32 s31, s20, 10\ns_add_u32 s32, s30, s31\ns_xor_b32 s31, s31, 1024\ns_add_u32 s33, s30, s31')
        mark(k, 10); mark(k, 9 if hiw else 8, 'B')
        vm.wait(tk['s'])
        Lp = k.lab('spoll'); Lok = k.lab('sok')
        k('s_mov_b32 s37, 0')
        k(f'{Lp}:')
        k(f'v_min_f32 v2, v{G+1}, v{G+3}')
        for q in range(2, 8, 2): k(f'v_min3_f32 v2, v2, v{G+2*q+1}, v{G+2*q+3}')
        k('v_cmp_gt_f32 vcc, 0, v2')
        k(f's_cbranch_vccz {Lok}')
        k(f's_add_u32 s37, s37, 1\ns_cmp_gt_u32 s37, {SPIN}')
        k(f's_cbranch_scc1 {Lok}')
        n0 = vm.n; statloads(); vm.n = n0
        k('s_waitcnt vmcnt(0)')
        k(f's_branch {Lp}')
        k(f'{Lok}:')
        mark(k, 11); mark(k, 11 if hiw else 10, 'B')
        for st in (8, 4, 2):
            for q in range(0, st, 2): k(f'v_pk_add_f32 {v(G+q,2)}, {v(G+q,2)}, {v(G+q+st,2)}')
        k(f'v_mov_b32 v4, {fl(1/768)}')
        k(f'v_mul_f32 v{G}, v4, v{G}\nv_mul_f32 v{G+2}, v{G}, v{G}\nv_fma_f32 v{G+1}, v{G+1}, v4, -v{G+2}\nv_max_f32 v{G+1}, 0, v{G+1}')
        ln_finish(k, G, G+1, G+2)
        k(f'v_mul_f32 v{G}, v{G}, -v{G+1}')
        N = G + 8
        for e in range(2): k(f'v_mov_b32 v{N+e}, v{G+e}\nv_mov_b32 v{N+4+e}, v{G+e}')
        for e in range(2): k(f'v_permlane32_swap_b32 v{N+e}, v{N+4+e}')
        for e in range(2): k(f'v_mov_b32 v{N+2+e}, v{N+e}\nv_mov_b32 v{N+6+e}, v{N+4+e}')
        for e in range(2): k(f'v_permlane16_swap_b32 v{N+e}, v{N+2+e}\nv_permlane16_swap_b32 v{N+4+e}, v{N+6+e}')
        for T_ in z2t:
            for sp in range(2):
                P = AC[T_] + 8*sp
                for u_ in range(2):
                    sg = 2*sp + u_; z = AC[T_] + 4*sg; ms = v(N+2*sg, 2)
                    for hp in range(2):
                        k(f'v_pk_fma_f32 {v(z+2*hp,2)}, {v(z+2*hp,2)}, {ms}, {ms} op_sel:[0,1,0] op_sel_hi:[1,1,0]')
                    k(f'v_cvt_pk_bf16_f32 v{P+2*u_}, v{z}, v{z+1}\nv_cvt_pk_bf16_f32 v{P+2*u_+1}, v{z+2}, v{z+3}')
                k(f'v_permlane16_swap_b32 v{P}, v{P+2}\nv_permlane16_swap_b32 v{P+1}, v{P+3}')
                if T_ == 1: k(f's_add_u32 s{32+sp}, s{32+sp}, 65536')
                vm.issue(f'buffer_store_dwordx4 {v(P,4)}, v26, s[8:11], s{32+sp} offen sc1')
        k(f's_lshl_b32 s30, s18, 5\ns_add_u32 s31, s30, s17\ns_lshl_b32 s31, s31, 7\ns_add_u32 s31, s31, {F2:#x}')
        mark(k, 13 if hiw else 12, 'B')
    def sig():
        signal(k, vm, 's31')
        mark(k, 12); mark(k, 14, 'B')
    R2 = float(E('FB_RATE2', 2))
    if not hiw:
        gemm_loop(k, lg, dma, 0, 20, reads, mk([2], False), lambda g: -1, 1000, R2, hooks={int(E('FB_H01', 12)): statloads})
        normalize()
        stg_read(dma, lg, 4); stg_read(dma, lg, 5)
        gelu(2)
        sig()
        lg.all()
        stg_items(dma, 6); stg_items(dma, 7)
        while dma.q: dma.one()
        k(f's_lshl_b32 s34, s20, 3\ns_add_u32 s34, s34, {Z1L}')
        z1out(2, 's34')
        L = k.lab('np2')
        k(f's_cmp_lg_u32 s16, 0\ns_cbranch_scc1 {L}')
        k(f'v_and_b32 v2, 31, v1\nv_lshlrev_b32 v2, 7, v2\ns_lshl_b32 s30, s30, 7\ns_add_u32 s30, s30, {F2:#x}')
        poll(k, Cnt(k, 'vmcnt', 63), 2, 's30')
        k(f'{L}:')
    else:
        h = [int(x) for x in E('FB_H23', '7,12,16').split(',')]
        gemm_loop(k, lg, dma, 0, 20, reads, mk([1, 2], False), lambda g: -1, 1000, 2*R2, hooks={h[0]: statloads, h[1]: normalize, h[2]: sig})
        stg_read(dma, lg, 4); stg_read(dma, lg, 5); lg.all()
        stg_items(dma, 6); stg_items(dma, 7)
        gelu(1, 2)
        while dma.q: dma.one()
        k(f's_lshl_b32 s34, s20, 10\ns_add_u32 s34, s34, {Z1L+1024}')
        z1out(1, 's34')
        gelu(2)
        k('s_add_u32 s34, s34, 8')
        z1out(2, 's34')
        mark(k, 15, 'B')
    lg.all()

def phaseC(k):
    vm = Cnt(k, 'vmcnt', 63); lg = Cnt(k, 'lgkmcnt', 15)
    dma = Dma(k, vm)
    NS = 5; RED = 122880
    k(f's_mul_i32 s21, s18, 6\ns_mul_i32 s36, s20, 3\ns_add_u32 s21, s21, s36\ns_lshl_b32 s21, s21, 16\ns_lshl_b32 s36, s19, 15\ns_add_u32 s21, s21, s36\ns_add_u32 s21, s21, {WS_Z2:#x}')
    k('s_mul_i32 s25, s16, 6144\ns_lshl_b32 s56, s54, 12')
    k(f's_mul_i32 s22, s18, 122880\ns_add_u32 s22, s22, s25\ns_add_u32 s22, s22, {WS_WO:#x}')
    k('s_barrier')
    mark(k, 13); mark(k, 0, 'C')
    for s_ in range(16):
        sl = s_ % NS; af = s_ - NS + 2 if s_ >= NS else (0 if s_ >= 3 else -1)
        for jf in range(3):
            for hf in range(2):
                pre = []
                if hf == 0:
                    if jf == 0: pre = [f's_add_u32 s27, s56, {s_*2048}', 's_and_b32 s27, s27, 0x7fff', 's_add_u32 s27, s27, s21']
                    else: pre = ['s_add_u32 s27, s27, 65536']
                    pre += [f's_add_u32 m0, s25, {sl*24576 + jf*2048}']
                dma.add(pre, f'buffer_load_dwordx4 v5, s[8:11], s27 offen offset:{hf*1024} sc1 lds', s_, af)
    for s_ in range(11, 16):
        sl = s_ % NS
        for hf in range(2):
            for j in range(3):
                pre = [f's_add_u32 s27, s22, {((sl-1) % 5)*24576 + hf*3072}', f's_add_u32 m0, s25, {sl*24576 + hf*3072}'] if j == 0 else []
                dma.add(pre, f'buffer_load_dwordx4 v5, s[8:11], s27 offen offset:{j*1024} sc1 lds', 50, min(s_+2, 16))
    dma.upto(2)
    k(f's_waitcnt vmcnt({vm.n})')
    stg_read(dma, lg, 6, False); stg_read(dma, lg, 7, False)
    ZA = 16
    k('v_bfe_u32 v2, v1, 2, 2\nv_and_b32 v3, 1, v8\nv_lshl_add_u32 v2, v3, 2, v2\nv_lshrrev_b32 v3, 1, v8\nv_lshl_add_u32 v2, v3, 4, v2')
    k('v_and_b32 v3, 3, v1\nv_lshlrev_b32 v3, 3, v3\nv_lshl_add_u32 v2, v2, 5, v3')
    k('s_mul_i32 s36, s19, 12288')
    k(f'v_add_u32 v{ZA}, s36, v2\nv_add_u32 v{ZA+1}, 49152, v{ZA}\nv_add_u32 v{ZA+2}, 98304, v{ZA}')
    k('s_lshl_b32 s23, s20, 1\ns_add_u32 s23, s23, s19')
    k('s_lshl_b32 s36, s17, 2\ns_add_u32 s24, s36, s23')
    k('s_lshl_b32 s36, s24, 5')
    k('v_lshl_add_u32 v2, v7, 1, s36')
    BS = 20
    tB = vm.issue(f'global_load_ushort v{BS}, v2, s[38:39]')
    FR = 68; ACC = 140
    lg.all()
    mark(k, 1, 'C')
    dma.sync(0)
    mark(k, 2, 'C')
    def reads(g):
        s_, ks = g // 2, g % 2; sl = s_ % NS; b = FR + 24*(g % 3)
        ar = ZA + sl//2; off = (sl % 2)*24576 + ks*1024
        out = []
        for ft in range(6):
            out += [f'ds_read_b64_tr_b16 {v(b+4*ft,2)}, v{ar} offset:{off+ft*2048}', f'ds_read_b64_tr_b16 {v(b+4*ft+2,2)}, v{ar} offset:{off+ft*2048+256}']
        return out
    def mfmas(g):
        b = FR + 24*(g % 3); out = []
        for ft in range(6):
            for tau in range(2):
                d = ACC + 24*tau + 4*ft
                out.append(f'{MF} {v(d,4)}, {v(b+4*ft,4)}, {wreg(g//4, 8*(g % 4)+4*tau)}, {"0" if g == 0 else v(d,4)}')
        return out
    ZR = 24
    k(f's_mul_i32 s36, s23, 3072\ns_add_u32 s36, s36, {Z1L}')
    k('v_add_u32 v19, s36, v5')
    tail = [f'ds_read_b128 {v(ZR+4*q,4)}, v19 offset:{1024*q}' for q in range(3)]
    gemm_loop(k, lg, dma, 0, 32, reads, mfmas, lambda g: g//2, 1000, float(E('FC_RATE', 3)), tail_reads=tail, hooks={4*i: (lambda i=i: mark(k, 2+i, 'C')) for i in range(1, 8)})
    mark(k, 10, 'C')
    while dma.ready(): dma.one()
    mark(k, 14); mark(k, 11, 'C')
    k(f's_add_u32 s36, s25, {RED}\ns_xor_b32 s35, s16, 2\ns_mul_i32 s35, s35, 6144\ns_add_u32 s35, s35, {RED}')
    k('v_add_u32 v2, s36, v5\nv_add_u32 v3, s35, v5')
    for ft in range(6): lg.issue(f'ds_write_b128 v2, {v(ACC+24+4*ft,4)} offset:{1024*ft}')
    lg.all()
    k('s_barrier'); dma.bar = 16
    mark(k, 12, 'C')
    tk = [lg.issue(f'ds_read_b128 {v(FR+4*ft,4)}, v3 offset:{1024*ft}') for ft in range(6)]
    vm.wait(tB)
    k(f'v_lshlrev_b32 v{BS}, 16, v{BS}')
    k(f's_mul_i32 s30, s24, 24576\ns_mul_i32 s31, s18, 3072\ns_add_u32 s30, s30, s31\ns_add_u32 s30, s30, {WS_P:#x}')
    TT = 36
    for ft in range(6):
        d = ACC + 4*ft; z = ZR + 2*ft; P = ACC + 8*(ft//2) + 2*(ft % 2)
        lg.wait(tk[ft])
        for hp in range(2):
            k(f'v_pk_add_f32 {v(d+2*hp,2)}, {v(d+2*hp,2)}, {v(FR+4*ft+2*hp,2)}')
            k(f'v_lshlrev_b32 v{TT+2*hp}, 16, v{z+hp}\nv_and_b32 v{TT+2*hp+1}, 0xffff0000, v{z+hp}')
            k(f'v_pk_add_f32 {v(d+2*hp,2)}, {v(d+2*hp,2)}, {v(BS,2)} op_sel_hi:[1,0]')
            k(f'v_pk_mul_f32 {v(d+2*hp,2)}, {v(d+2*hp,2)}, {v(TT+2*hp,2)}')
        k(f'v_cvt_pk_bf16_f32 v{P}, v{d}, v{d+1}\nv_cvt_pk_bf16_f32 v{P+1}, v{d+2}, v{d+3}')
        if ft % 2: vm.issue(f'buffer_store_dwordx4 {v(P-2,4)}, v5, s[8:11], s30 offen offset:{(ft//2)*1024} sc1')
    k(f's_lshl_b32 s30, s17, 3\ns_add_u32 s31, s30, s18\ns_lshl_b32 s31, s31, 7\ns_add_u32 s31, s31, {F3:#x}')
    mark(k, 13, 'C')
    signal(k, vm, 's31')
    mark(k, 15); mark(k, 14, 'C')
    while dma.q: dma.one()
    return vm, lg

def phaseD(k, vm, lg):
    k('v_add_u32 v6, 61440, v5')
    def waddr(q):
        o = (q*1024 + 24576) % 122880
        return f'v5 offset:{o}' if o < 61440 else f'v6 offset:{o-61440}'
    for q in range(60): lg.issue(f'ds_read_b128 {a(4*q,4)}, {waddr(q)}')
    k(f'v_and_b32 v2, 7, v1\nv_lshlrev_b32 v2, 7, v2\ns_lshl_b32 s30, s17, 10\ns_add_u32 s30, s30, {F3:#x}')
    k(f's_lshl_b32 s31, s17, 2\ns_add_u32 s31, s31, s16\ns_mul_i32 s32, s31, 24576\ns_add_u32 s32, s32, {WS_P:#x}')
    k('s_mul_i32 s33, s31, 20480\ns_mul_i32 s34, s18, 160\ns_add_u32 s33, s33, s34')
    k('v_mul_u32_u24 v9, 1280, v7\nv_lshl_add_u32 v10, v8, 3, v9')
    k('v_and_b32 v3, 1, v8\nv_lshl_add_u32 v9, v3, 5, v9\nv_lshrrev_b32 v3, 1, v8\nv_lshl_add_u32 v9, v3, 4, v9')
    poll(k, vm, 2, 's30')
    mark(k, 0, 'D')
    PF = 68; FR = 164; ACC = 224
    pt = []
    for g in range(24):
        if g % 4 == 0 and g: k('s_add_u32 s32, s32, 4096')
        pt.append(vm.issue(f'buffer_load_dwordx4 {v(PF+4*g,4)}, v5, s[8:11], s32 offen offset:{(g % 4)*1024} sc1'))
    lg.all()
    k('s_barrier')
    ft = {}
    def rd(g): return [f'ds_read_b128 {v(FR+20*(g % 3)+4*j,4)}, {waddr(5*g+j)}' for j in range(5)]
    for g in range(24):
        vm.wait(pt[g])
        if g >= 12: lg.wait(ft[g])
        rr = rd(g+2) if 12 <= g+2 < 24 else []
        for j in range(5):
            A = a(20*g+4*j, 4) if g < 12 else v(FR+20*(g % 3)+4*j, 4)
            k(f'{MF} {v(ACC+4*j,4)}, {A}, {v(PF+4*g,4)}, {"0" if g == 0 else v(ACC+4*j,4)}')
            if rr: ft[g+2] = lg.issue(rr.pop(0))
    TT = 36
    mark(k, 1, 'D')
    OST = E('F_OST', '')
    for j in range(5):
        d = ACC + 4*j; P = ACC + 8*(j//2) + 2*(j % 2)
        for hp in range(2):
            k(f'v_lshlrev_b32 v{TT+2*hp}, 16, v{RES+2*j+hp}\nv_and_b32 v{TT+2*hp+1}, 0xffff0000, v{RES+2*j+hp}')
            k(f'v_pk_add_f32 {v(d+2*hp,2)}, {v(d+2*hp,2)}, {v(TT+2*hp,2)}')
        k(f'v_cvt_pk_bf16_f32 v{P}, v{d}, v{d+1}\nv_cvt_pk_bf16_f32 v{P+1}, v{d+2}, v{d+3}')
        if j % 2:
            k(f'v_permlane16_swap_b32 v{P-2}, v{P}\nv_permlane16_swap_b32 v{P-1}, v{P+1}')
            k(f'buffer_store_dwordx4 {v(P-2,4)}, v9, s[40:43], s33 offen offset:{32*(j-1)} {OST}')
        elif j == 4:
            k(f'buffer_store_dwordx2 {v(P,2)}, v10, s[40:43], s33 offen offset:128 {OST}')

def helper0(k, vm):
    lg = Cnt(k, 'lgkmcnt', 15)
    k('v_lshrrev_b32 v2, 2, v1\nv_and_b32 v3, 3, v1\nv_mul_u32_u24 v2, 160, v2\nv_lshl_add_u32 v2, v3, 3, v2\ns_lshl_b32 s27, s16, 5\nv_add_u32 v57, s27, v2')
    tk = []
    for p in range(5):
        lg.issue(f'ds_read_b64_tr_b16 {v(12+4*p,2)}, v57 offset:{p*5120}')
        tk.append(lg.issue(f'ds_read_b64_tr_b16 {v(14+4*p,2)}, v57 offset:{p*5120+2560}'))
    for r in range(4): k(f'v_mov_b32 v{48+r}, 0x3f803f80')
    k('s_and_b32 s45, s44, 3\ns_and_b32 s46, s44, -4\ns_add_u32 s46, s46, s16')
    k(f's_mul_i32 s47, s46, 20\ns_mul_i32 s50, s45, 5\ns_add_u32 s47, s47, s50\ns_lshl_b32 s47, s47, 10\ns_add_u32 s47, s47, {WS_W1:#x}\ns_add_u32 s50, s47, 4096')
    for p in range(5):
        lg.wait(tk[p])
        k(f'{MF} v[44:47], {v(12+4*p,4)}, v[48:51], {"0" if p == 0 else "v[44:47]"}')
        vm.issue(f'buffer_store_dwordx4 {v(12+4*p,4)}, v5, s[8:11], ' + (f's47 offen offset:{p*1024} sc1' if p < 4 else 's50 offen sc1'))
    k(f's_mul_i32 s47, s45, 6144\ns_lshl_b32 s50, s46, 6\ns_add_u32 s47, s47, s50\ns_add_u32 s47, s47, {WS_CS:#x}')
    k('v_lshlrev_b32 v2, 4, v8')
    k('s_mov_b32 exec_lo, 0x00010001\ns_mov_b32 exec_hi, 0x00010001')
    tS = vm.issue('buffer_store_dwordx4 v[44:47], v2, s[8:11], s47 offen sc1')
    k('s_mov_b64 exec, -1')
    for p in range(3):
        vm.issue(f'global_load_dwordx4 {v(164+4*p,4)}, v191, s[48:49]')
        if p < 2: k(f'v_add_u32 v191, {32*1280}, v191')
    k(f's_lshl_b32 s47, s44, 7\ns_add_u32 s47, s47, {F0B:#x}')
    mark(k, 12, 'H')
    signal(k, vm, 's47', tS)

def helper1(k):
    for p in range(3): k(f'ds_write_b128 v56, {v(164+4*p,4)} offset:{p*5120}')
    k('s_lshr_b32 s47, s44, 3\ns_lshl_b32 s47, s47, 2\ns_add_u32 s47, s47, s16\ns_mul_i32 s48, s47, 52\ns_lshr_b32 s48, s48, 8\ns_mul_i32 s49, s48, 5\ns_sub_u32 s49, s47, s49')
    k(f's_and_b32 s47, s44, 7\ns_mul_i32 s47, s47, 15\ns_mul_i32 s48, s48, 120\ns_add_u32 s47, s47, s48\ns_add_u32 s47, s47, s49\ns_lshl_b32 s47, s47, 10\ns_add_u32 s47, s47, {WS_WO:#x}')
    k('s_waitcnt lgkmcnt(0)\ns_barrier')
    for p in range(3):
        k(f'ds_read_b64_tr_b16 {v(12+4*p,2)}, v57 offset:{p*5120}\nds_read_b64_tr_b16 {v(14+4*p,2)}, v57 offset:{p*5120+2560}')
    k('s_waitcnt lgkmcnt(0)\ns_barrier')
    L = k.lab('nwo')
    k(f's_cmp_ge_u32 s44, 80\ns_cbranch_scc1 {L}')
    for p in range(3):
        k(f'buffer_store_dwordx4 {v(12+4*p,4)}, v5, s[8:11], s47 offen sc1')
        if p < 2: k('s_add_u32 s47, s47, 5120')
    k(f'{L}:')

def gen_ks():
    k = Kern(NAME, 256, 256, 163840)
    k.short = 'ks'
    Lend = 'Lks_end'
    k(f's_cmp_ge_u32 s2, 256\ns_cbranch_scc1 {Lend}')
    stamp_begin(k)
    k('s_load_dwordx16 s[44:59], s[0:1], 0')
    k('s_load_dwordx2 s[6:7], s[0:1], 112')
    k('s_load_dwordx4 s[28:31], s[0:1], 96')
    k('s_load_dwordx8 s[20:27], s[0:1], 64')
    k('s_memrealtime s[4:5]')
    k('s_getpc_b64 s[18:19]')
    k('Lks_pc:')
    k(f's_sub_u32 s18, s18, Lks_pc-{NAME}\ns_subb_u32 s19, s19, 0')
    k('s_lshr_b32 s17, s2, 3\ns_lshl_b32 s17, s17, 11')
    k(f'v_lshrrev_b32 v2, 4, v0\nv_lshlrev_b32 v2, 7, v2\nv_add_u32 v2, s17, v2\nv_min_u32 v2, Lcode_end-{NAME}-4, v2')
    k('global_load_dword v239, v2, s[18:19]')
    k('v_lshrrev_b32 v5, 6, v0')
    k('v_readfirstlane_b32 s16, v5')
    k('v_and_b32 v1, 63, v0\nv_lshlrev_b32 v5, 4, v1\nv_and_b32 v7, 15, v1\nv_lshrrev_b32 v8, 4, v1')
    k('v_lshrrev_b32 v2, 5, v0\nv_and_b32 v3, 31, v0\nv_lshlrev_b32 v3, 3, v3')
    k('v_mul_u32_u24 v50, 1280, v2\ns_mul_i32 s3, s2, 10240\nv_add3_u32 v50, v50, v3, s3')
    k(f'v_mul_u32_u24 v51, 1344, v2\nv_add_u32 v51, v51, v3\nv_add_u32 v51, {LNB}, v51')
    ln1_addr(k)
    k('s_lshl_b32 s3, s2, 2\ns_add_u32 s3, s3, s16')
    k('s_mul_i32 s17, s3, 384\nv_lshl_add_u32 v2, v1, 1, s17\ns_lshl_b32 s17, s3, 1\nv_mov_b32 v3, s17')
    for r in list(range(PR, PR+13)) + [AUX, AP0, AST, 190, 191]: k(f'v_mov_b32 v{r}, 0')
    k('s_lshl_b32 s34, s3, 1\ns_and_b32 s34, s34, -4')
    k('s_waitcnt lgkmcnt(0)')
    L = k.lab('nnw')
    k(f's_cmp_lg_u32 s3, 0\ns_cbranch_scc1 {L}')
    k('s_or_b32 s4, s4, 1\nv_mov_b32 v4, 0\nv_mov_b32 v6, s4\ns_mov_b64 exec, 1')
    k('global_store_dword v4, v6, s[30:31] sc1')
    k('s_mov_b64 exec, -1')
    k(f'{L}:')
    for q in range(5): k(f'global_load_dwordx2 {v(12+2*q,2)}, v50, s[44:45] offset:{q*256}')
    mark(k, 0)
    k('s_cmp_ge_u32 s2, 160\ns_cbranch_scc1 Lks_h0')
    def common_setup():
        srd(k, 8, 6, WS_SIZE); srd(k, 12, 22, 2048*4096); srd(k, 40, 28, 2048*1280)
        k('s_mov_b64 s[32:33], s[30:31]')
        k('s_mov_b64 s[38:39], s[24:25]')
        k('s_bfe_u32 s17, s2, 0x20001\ns_lshl_b32 s17, s17, 3\ns_lshr_b32 s18, s2, 5\ns_add_u32 s17, s17, s18')
        k('s_and_b32 s18, s2, 1\ns_lshl_b32 s18, s18, 2\ns_bfe_u32 s19, s2, 0x20003\ns_add_u32 s18, s18, s19')
        k('s_lshr_b32 s19, s16, 1\ns_and_b32 s20, s16, 1')
        k('s_lshl_b32 s25, s16, 1\ns_add_u32 s26, s16, 2\ns_cmp_lt_u32 s16, 2')
        k('s_cselect_b32 s22, s25, s26\ns_add_u32 s22, s22, 48')
        k('s_add_u32 s26, s25, 49\ns_sub_u32 s27, s25, 2\ns_cmp_lt_u32 s16, 2\ns_cselect_b32 s23, s26, s27')
        k('s_sub_u32 s27, s25, 1\ns_cmp_lt_u32 s16, 2\ns_cselect_b32 s24, s16, s27')
        k('s_mul_i32 s25, s18, 6')
        for r in (22, 23, 24): k(f's_add_u32 s{r}, s{r}, s25\ns_lshl_b32 s{r+35}, s{r}, 6\ns_add_u32 s{r+35}, s{r+35}, {WS_CS:#x}\ns_mul_i32 s{r}, s{r}, 20480\ns_add_u32 s{r}, s{r}, {WS_W1:#x}')
        k(f's_lshr_b32 s54, s2, 5\ns_mul_i32 s54, s54, {int(E("F_ROT", 0))}\ns_and_b32 s54, s54, 7')
        k(f's_lshl_b32 s29, s17, 12\ns_add_u32 s29, s29, {WS_ST:#x}')
        k('s_lshl_b32 s27, s18, 9\ns_add_u32 s27, s27, s29\ns_lshl_b32 s26, s16, 7\ns_add_u32 s27, s27, s26')
        k('v_lshlrev_b32 v2, 3, v7\nv_mov_b32 v10, -1.0\nv_mov_b32 v11, -1.0')
        k('buffer_store_dwordx2 v[10:11], v2, s[8:11], s27 offen sc1')
    k('global_load_short_d16_hi v68, v3, s[54:55]')
    for g in range(3):
        for i in range(4): k(f'global_load_short_d16_hi v{PR+4*g+i}, v2, s[{46+2*i}:{47+2*i}] offset:{128*g}')
    k('s_load_dword s35, s[56:57], s34')
    PFS = int(E('C_PFS', 0))
    k('s_mov_b64 s[4:5], s[20:21]\ns_mov_b64 s[36:37], s[26:27]')
    PFW = int(E('C_PFW', 0))
    def pfw_addr():
        k('v_min_u32 v2, 23, v1\nv_lshlrev_b32 v2, 7, v2\ns_mul_i32 s27, s3, 3072\nv_add_u32 v2, s27, v2')
        k('v_min_u32 v3, 11, v1\nv_lshlrev_b32 v3, 7, v3\ns_mul_i32 s27, s3, 1536\nv_add_u32 v3, s27, v3')
    if PFW == 2:
        pfw_addr(); k('global_load_dword v190, v2, s[4:5]\nglobal_load_dword v191, v3, s[36:37]')
    common_setup()
    conv_early(k)
    conv_late(k)
    if PFW == 1: pfw_addr()
    k(f's_waitcnt vmcnt({14 + 2*(PFW == 2)})')
    if PFW == 1: k('global_load_dword v190, v2, s[4:5]\nglobal_load_dword v191, v3, s[36:37]')
    k('s_branch Lks_ln')
    k('Lks_h0:')
    k('s_mov_b64 s[46:47], s[20:21]\ns_mov_b64 s[48:49], s[26:27]\ns_sub_u32 s44, s2, 160')
    common_setup()
    f0b_addr(k)
    k('v_lshrrev_b32 v2, 3, v0\nv_and_b32 v3, 7, v0\nv_lshlrev_b32 v3, 4, v3')
    k(f's_and_b32 s45, s44, 3\ns_mul_i32 s45, s45, {160*3072}\ns_lshr_b32 s27, s44, 2\ns_lshl_b32 s27, s27, 7\ns_add_u32 s45, s45, s27')
    k('v_mul_u32_u24 v4, 3072, v2\nv_add3_u32 v190, v4, v3, s45')
    k(f's_min_u32 s27, s44, 79\ns_and_b32 s45, s27, 7\ns_mul_i32 s45, s45, {96*1280}\ns_lshr_b32 s27, s27, 3\ns_lshl_b32 s27, s27, 7\ns_add_u32 s45, s45, s27')
    k('v_mul_u32_u24 v4, 1280, v2\nv_add3_u32 v191, v4, v3, s45')
    k('v_mul_u32_u24 v56, 160, v2\nv_add_u32 v56, v56, v3')
    k('s_waitcnt vmcnt(1)')
    k('Lks_ln:')
    mark(k, 1)
    ln1(k)
    k('s_cmp_ge_u32 s2, 160\ns_cbranch_scc1 Lks_h1')
    k('s_and_b32 s50, s3, 1\ns_xor_b32 s50, s50, 1\ns_lshl_b32 s50, s50, 4\ns_lshl_b32 s51, s35, s50\ns_and_b32 s51, s51, 0xffff0000')
    k(f's_waitcnt vmcnt({7 + 2*bool(PFW)})')
    def sig0():
        k('s_waitcnt vmcnt(0)')
        get_nonce(k)
        signal(k, Cnt(k, 'vmcnt', 63), 's30')
        mark(k, 2)
        if PFS:
            k(f'v_lshlrev_b32 v2, 7, v1\ns_mul_i32 s27, s3, {8192*PFS}')
            for j in range(PFS): k(f'buffer_load_dword v{186+j}, v2, s[12:15], s27 offen\ns_add_u32 s27, s27, 8192')
    kgen(k, sig0)
    phaseA(k)
    k('s_branch Lks_B')
    k('Lks_h1:')
    k('s_waitcnt vmcnt(5)')
    get_nonce(k)
    vm = Cnt(k, 'vmcnt', 63)
    for p in range(5):
        vm.issue(f'global_load_dwordx4 {v(144+4*p,4)}, v190, s[46:47]')
        if p < 4: k(f'v_add_u32 v190, {32*3072}, v190')
    mark(k, 7, 'H')
    k('s_waitcnt vmcnt(5)')
    mark(k, 8, 'H')
    signal(k, vm, 's30', 0)
    mark(k, 2); mark(k, 9, 'H')
    k('s_waitcnt vmcnt(0)')
    mark(k, 10, 'H')
    for p in range(5): k(f'ds_write_b128 v56, {v(144+4*p,4)} offset:{p*5120}')
    k('s_waitcnt lgkmcnt(0)\ns_barrier')
    k('s_sub_u32 s44, s2, 160')
    mark(k, 11, 'H')
    helper0(k, Cnt(k, 'vmcnt', 63))
    mark(k, 13, 'H')
    mark(k, 3)
    PFH = E('F_PFH', '3,0')
    def touch(js):
        for j in js:
            k(f's_lshl_b32 s45, s44, 2\ns_add_u32 s45, s45, s16\ns_add_u32 s45, s45, {384*j}\ns_min_u32 s45, s45, 1023')
            if LIN: k('s_lshl_b32 s45, s45, 13')
            else: k('s_lshr_b32 s46, s45, 8\ns_lshl_b32 s46, s46, 9\ns_and_b32 s45, s45, 255\ns_lshl_b32 s45, s45, 15\ns_add_u32 s45, s45, s46')
            k(f'buffer_load_dword v{100+j}, v99, s[12:15], s45 offen {E("F_PFF", "")}')
    n1, n2 = [int(x) for x in PFH.split(',')]
    LIN = int(E('F_LIN', 1))
    if LIN: k('v_lshlrev_b32 v99, 7, v1')
    else: k('v_lshrrev_b32 v2, 2, v1\nv_lshlrev_b32 v2, 11, v2\nv_and_b32 v3, 3, v1\nv_lshl_add_u32 v99, v3, 7, v2')
    touch(range(n1))
    vm = Cnt(k, 'vmcnt', 63); dma = Dma(k, vm); w1_items(dma, [0, 1])
    k(f's_mov_b32 s47, {F0B:#x}')
    poll(k, vm, [AB0, AB0+1], 's47')
    mark(k, 4)
    helper1(k)
    while dma.q: dma.one()
    touch(range(n1, n1+n2))
    k('s_waitcnt vmcnt(30)')
    k('Lks_B:')
    mark(k, 6)
    phaseB_setup(k)
    k(f's_lshl_b32 s36, s20, 8\ns_lshl_b32 s35, s16, 9\ns_add_u32 s35, s35, {PART}')
    k('v_lshlrev_b32 v9, 3, v1\nv_xor_b32 v25, s36, v9\nv_add_u32 v27, s35, v25')
    k('v_and_b32 v2, 3, v7\nv_bfe_u32 v3, v7, 2, 1\nv_lshl_add_u32 v2, v3, 3, v2\nv_bfe_u32 v3, v7, 3, 1\nv_lshl_add_u32 v2, v3, 2, v2')
    k('v_and_b32 v3, 1, v8\nv_lshl_add_u32 v2, v3, 4, v2\nv_lshlrev_b32 v2, 5, v2\nv_lshrrev_b32 v3, 1, v8\nv_lshl_add_u32 v26, v3, 4, v2')
    vm = Cnt(k, 'vmcnt', 63); dma = Dma(k, vm)
    k('v_lshlrev_b32 v2, 4, v8')
    for p in range(1, 4): k(f'v_add_u32 v{HF+p}, {6144*p}, v2')
    for T_ in range(3):
        vm.issue(f'buffer_load_dwordx4 {v(CS+4*T_,4)}, v2, s[8:11], s{57+T_} offen sc1')
        for p in range(3): vm.issue(f'buffer_load_dwordx4 {v(AC[0]+12*T_+4*p,4)}, v{HF+1+p}, s[8:11], s{57+T_} offen sc1')
    stg_items(dma, 0); stg_items(dma, 1)
    while dma.q: dma.one()
    k('v_min_u32 v2, 39, v1\nv_lshrrev_b32 v3, 2, v2\nv_and_b32 v2, 3, v2\nv_lshl_add_u32 v2, v3, 4, v2\nv_lshlrev_b32 v2, 7, v2')
    k(f's_lshl_b32 s30, s16, 9\ns_add_u32 s30, s30, {F1:#x}')
    poll(k, vm, 2, 's30')
    mark(k, 7)
    k('s_cmp_ge_u32 s16, 2\ns_cbranch_scc1 Lks_Bhi')
    phaseB(k, False)
    k('s_branch Lks_C')
    k('Lks_Bhi:')
    phaseB(k, True)
    k('Lks_C:')
    vm, lg = phaseC(k)
    phaseD(k, vm, lg)
    stamp_end(k, 2)
    k(f'{Lend}:')
    k('s_endpgm')
    return k
```

```python
import re

TRANS = ('v_exp_f32', 'v_log_f32', 'v_rcp_f32', 'v_rsq_f32', 'v_sqrt_f32', 'v_sin_f32', 'v_cos_f32', 'v_rcp_iflag_f32')

def _regs(tok):
    tok = tok.strip()
    tok = re.sub(r'^-', '', tok)
    m = re.match(r'^abs\((.*)\)$', tok) or re.match(r'^\|(.*)\|$', tok)
    if m: tok = m.group(1)
    m = re.match(r'^([vsa])(\d+)$', tok)
    if m: return {(m.group(1), int(m.group(2)))}
    m = re.match(r'^([vsa])\[(\d+):(\d+)\]$', tok)
    if m: return {(m.group(1), i) for i in range(int(m.group(2)), int(m.group(3))+1)}
    if tok == 'vcc': return {('s', 106), ('s', 107)}
    if tok == 'vcc_lo': return {('s', 106)}
    if tok == 'vcc_hi': return {('s', 107)}
    if tok == 'm0': return {('m0', 0)}
    if tok in ('exec', 'exec_lo', 'exec_hi'): return {('exec', 0)}
    return set()

class Ins:
    def __init__(s, text):
        s.text = text
        t = text.split(';')[0].strip()
        s.label = None; s.op = None
        s.w = set(); s.r = set(); s.cls = 'other'
        s.srcC = set(); s.srcAB = set(); s.passes = 0
        s.ws = 1
        s.flags = set()
        if t.endswith(':'):
            s.label = t[:-1]; s.ws = 0; s.cls = 'label'; return
        if not t or t.startswith('.'):
            s.ws = 0; s.cls = 'dir'; return
        parts = t.split(None, 1)
        op = parts[0]; s.op = op
        rest = parts[1] if len(parts) > 1 else ''
        ops = []; cur = ''; depth = 0
        for ch in rest:
            if ch in '[(': depth += 1
            if ch in '])': depth -= 1
            if ch == ',' and depth == 0: ops.append(cur.strip()); cur = ''
            else: cur += ch
        if cur.strip(): ops.append(cur.strip())
        mods = ''
        if ops:
            last = ops[-1].split(None, 1)
            ops[-1] = last[0]; mods = last[1] if len(last) > 1 else ''
        s.ops = ops; s.mods = mods
        R = [_regs(o) for o in ops]
        def U(l):
            o = set()
            for x in l: o |= x
            return o
        if op == 's_nop':
            s.ws = int(ops[0], 0) + 1; s.cls = 'salu'
        elif op.startswith('v_mfma'):
            s.cls = 'mfma'; s.w = R[0]; s.srcAB = R[1] | R[2]; s.srcC = R[3]; s.r = s.srcAB | s.srcC
            s.passes = 8 if '32x32x16' in op else 4 if '16x16x32' in op else None
            assert s.passes, op
        elif op.startswith('v_'):
            s.cls = 'valu'
            base = re.sub(r'_(e32|e64|dpp|sdwa)$', '', op)
            if base in TRANS: s.flags.add('trans')
            if base.startswith('v_cmpx'): raise Exception('no v_cmpx please')
            if base.startswith('v_cmp'):
                s.w = R[0]; s.r = U(R[1:])
            elif base.startswith('v_readfirstlane') or base.startswith('v_readlane'):
                s.w = R[0]; s.r = U(R[1:]); s.flags.add('readlane')
            elif base.startswith('v_writelane'):
                s.w = R[0]; s.r = U(R); s.flags.add('writelane')
            elif re.match(r'v_(add|sub|subrev)_co_', base):
                s.w = R[0] | R[1]; s.r = U(R[2:])
            elif re.match(r'v_(addc|subb|subbrev)_co_', base):
                s.w = R[0] | R[1]; s.r = U(R[2:])
            elif base.startswith('v_permlane') :
                s.w = R[0] | R[1]; s.r = R[0] | R[1]; s.flags.add('permlane')
            elif base.startswith('v_swap'):
                s.w = R[0] | R[1]; s.r = R[0] | R[1]
            else:
                s.w = R[0]; s.r = U(R[1:])
                if base.startswith(('v_fmac', 'v_dot2c', 'v_pk_fmac', 'v_fmaak', 'v_fmamk')) and base.startswith(('v_fmac', 'v_dot2c', 'v_pk_fmac')): s.r |= R[0]
                if base.startswith('v_cndmask') and len(ops) == 3: s.r |= _regs('vcc')
            if base.startswith('v_dot'): s.flags.add('dot')
            if op.endswith('_dpp') or 'row_' in mods or 'quad_perm' in mods or 'wave_' in mods:
                s.flags.add('dpp'); s.r |= R[0]
            if op.endswith('_sdwa') and 'dst_sel' in mods and 'dst_sel:DWORD' not in mods: s.flags.add('opsel'); s.r |= R[0]
            if ('op_sel:' in mods) and not base.startswith('v_pk_') and not base.startswith('v_dot') and not base.startswith('v_fma_mix_f32'):
                s.flags.add('opsel')
            if base.startswith(('v_fma_mixlo', 'v_fma_mixhi')): s.flags.add('opsel'); s.r |= R[0]
        elif op.startswith('ds_'):
            s.cls = 'ds'
            if op.startswith(('ds_read', 'ds_bpermute', 'ds_permute', 'ds_swizzle')):
                s.w = R[0]; s.r = U(R[1:])
                if 'd16' in op: s.r |= R[0]
            else:
                s.r = U(R)
                if 'rtn' in op: s.w = R[0]; s.r = U(R[1:])
            if 'addtid' in op: s.flags.add('m0use')
        elif op.startswith('buffer_') or op.startswith('global_'):
            s.cls = 'vmem'
            allm = (' ' + mods + ' ')
            if op in ('buffer_wbl2', 'buffer_inv'):
                pass
            elif ' lds ' in allm or '_lds_' in op:
                s.r = U(R); s.flags.add('m0use')
            elif '_load_' in op:
                s.w = R[0]; s.r = U(R[1:])
                if 'd16' in op: s.r |= R[0]
            elif '_store_' in op:
                s.r = U(R)
                data = R[0] if op.startswith('buffer_') else R[1]
                if op.endswith(('x3', 'x4')): s.flags.add('widestore'); s.sdata = data
            elif '_atomic_' in op:
                s.r = U(R)
                if ' sc0 ' in allm: s.w = R[0]
            else: raise Exception(op)
        elif op.startswith('s_'):
            s.cls = 'salu'
            if op.startswith(('s_load', 's_buffer_load', 's_memtime', 's_memrealtime')):
                s.cls = 'smem'; s.w = R[0]; s.r = U(R[1:])
            elif op.startswith(('s_cmp', 's_waitcnt', 's_barrier', 's_branch', 's_cbranch', 's_endpgm', 's_sleep', 's_setprio', 's_bitcmp', 's_setreg')):
                s.r = U(R)
            else:
                s.w = R[0] if R else set(); s.r = U(R[1:])
                if 'saveexec' in op: s.w |= {('exec', 0)}
        else:
            raise Exception('unknown op ' + text)

def _v(x): return {r for r in x if r[0] in 'va'}
def _s(x): return {r for r in x if r[0] == 's'}

def need(p, c):
    n = 0
    if p.cls == 'valu':
        pv = _v(p.w); ps = _s(p.w)
        if c.cls == 'mfma' and pv & c.r: n = max(n, 3 if 'dot' in p.flags else 2)
        if c.cls == 'valu':
            if 'dpp' in c.flags and pv & c.r: n = max(n, 2)
            if 'permlane' in c.flags and pv & c.r: n = max(n, 2)
            if 'readlane' in c.flags and pv & c.r: n = max(n, 1)
            if 'trans' in p.flags and 'trans' not in c.flags and pv & c.r: n = max(n, 1)
            if 'opsel' in p.flags and pv & (c.r | c.w): n = max(n, 1)
            if ps & c.r: n = max(n, 4 if ('readlane' in c.flags or 'writelane' in c.flags) else 2)
            if 'dot' in p.flags and pv & (c.r | c.w):
                same = (c.op == p.op)
                if same and len(c.ops) == 4 and pv & _regs(c.ops[3]) and not pv & (_regs(c.ops[1]) | _regs(c.ops[2])): pass
                elif same and len(c.ops) == 3 and not pv & (_regs(c.ops[1]) | _regs(c.ops[2])): pass
                else: n = max(n, 3)
        if 'trans' in p.flags and c.cls in ('vmem', 'ds') and pv & c.r: n = max(n, 1)
        if 'dot' in p.flags and c.cls in ('vmem', 'ds') and pv & c.r: n = max(n, 3)
        if c.cls == 'vmem' and ps & c.r: n = max(n, 5)
        if c.cls in ('salu', 'smem') and ps & c.r: n = max(n, 1)
    elif p.cls == 'mfma':
        P = p.passes
        if c.cls == 'mfma':
            if p.w & c.srcAB: n = max(n, {4: 8, 8: 12}[P])
            if p.w & c.srcC:
                if not (p.w == c.srcC and c.passes == P): n = max(n, {4: 6, 8: 10}[P])
            elif p.w & c.w: n = max(n, {4: 8, 8: 12}[P])
        elif c.cls in ('valu', 'vmem', 'ds'):
            if p.w & (c.r | c.w): n = max(n, {4: 8, 8: 12}[P])
            if c.cls == 'valu' and (p.srcC & c.w): n = max(n, {4: 3, 8: 7}[P])
            if c.cls != 'valu' and (p.srcC & c.w): n = max(n, {4: 3, 8: 7}[P])
    elif p.cls == 'salu':
        if ('m0', 0) in p.w and 'm0use' in c.flags: n = max(n, 1)
    elif p.cls == 'vmem':
        if 'widestore' in p.flags and p.sdata & c.w: n = max(n, 2 if c.cls in ('valu', 'mfma') else 1)
    if p.cls in ('vmem', 'ds') and c.cls == 'valu' and 'dpp' in c.flags and _v(p.w) & c.r: n = max(n, 0)
    return n

def fix_hazards(lines, verbose=False):
    ins = [Ins(l) for l in lines]
    changed = True; total = 0
    while changed:
        changed = False
        labels = {x.label: i for i, x in enumerate(ins) if x.label}
        jumps = {}
        for i, x in enumerate(ins):
            if x.op and (x.op.startswith('s_cbranch') or x.op == 's_branch'):
                jumps.setdefault(labels[x.ops[0]], []).append(i)
        out = []
        for i, c in enumerate(ins):
            if c.cls in ('label', 'dir'): out.append(c); continue
            worst = 0
            stack = [(i-1, 0)]; seen = set()
            while stack:
                j, d = stack.pop()
                while j >= 0 and d < 13:
                    if (j, d) in seen: break
                    seen.add((j, d))
                    p = ins[j]
                    if p.cls == 'label':
                        for src in jumps.get(j, []): stack.append((src, d))
                        k = j-1
                        while k >= 0 and ins[k].cls in ('dir',): k -= 1
                        if k >= 0 and ins[k].op in ('s_branch', 's_endpgm'): break
                        j -= 1; continue
                    if p.cls != 'dir':
                        nn = need(p, c) - d
                        if nn > worst: worst = nn
                        d += p.ws
                    j -= 1
            if worst > 0:
                out.append(Ins('s_nop %d' % (worst-1))); changed = True; total += worst
                if verbose: print('nop', worst, 'before', c.text)
                out.append(c)
                out.extend(ins[i+1:])
                break
            out.append(c)
        ins = out
    return [x.text for x in ins], total

def fix_hazards_fast(lines):
    ins = [Ins(l) for l in lines]
    out = []
    total = 0
    for c in ins:
        if c.cls not in ('label', 'dir'):
            worst = 0; d = 0; j = len(out)-1
            while j >= 0 and d < 13:
                p = out[j]
                if p.op in ('s_branch', 's_endpgm'): break
                if p.cls not in ('dir', 'label'):
                    nn = need(p, c) - d
                    if nn > worst: worst = nn
                    d += p.ws
                j -= 1
            if worst > 0:
                out.append(Ins('s_nop %d' % (worst-1))); total += worst
        out.append(c)
    l2, t2 = fix_hazards([x.text for x in out])
    return l2, total + t2

import subprocess, os, tempfile
def ins_sizes(name, lines):
    d = tempfile.mkdtemp()
    open(d + '/t.s', 'w').write('.amdgcn_target "amdgcn-amd-amdhsa--gfx950"\n.text\n%s:\n' % name + '\n'.join(lines) + '\nLcode_end:\n')
    r = subprocess.run(['clang', '-x', 'assembler', '-target', 'amdgcn-amd-amdhsa', '-mcpu=gfx950', '-c', d + '/t.s', '-o', d + '/t.o'], capture_output=True, text=True)
    assert r.returncode == 0, r.stderr[:3000]
    out = subprocess.run(['llvm-objdump', '-d', '--mcpu=gfx950', d + '/t.o'], capture_output=True, text=True).stdout
    sz = []
    for l in out.split('\n'):
        m = re.search(r'//\s+[0-9A-F]+:\s+((?:[0-9A-F]{8}\s*)+)', l)
        if m: sz.append(4*len(m.group(1).split()))
    return sz

NOWIDE = ('v_readfirstlane', 'v_permlane', 'v_swap', 'v_accvgpr', 'v_nop')
def align_pass(name, lines, minrun=3):
    sz = ins_sizes(name, lines)
    idx = [i for i, l in enumerate(lines) if not (l.endswith(':') or l.startswith('.'))]
    assert len(idx) == len(sz), (len(idx), len(sz))
    size = dict(zip(idx, sz))
    out = []; off = 0; nw = nn = 0
    cand = None
    n = len(lines)
    for i, l in enumerate(lines):
        if i not in size: out.append(l); continue
        if size[i] == 8 and off % 8 == 4:
            run = 0; j = i; nmf = 0
            while j < n and (j not in size or size[j] == 8):
                if j in size: run += 1; nmf += lines[j].startswith('v_mfma')
                j += 1
            if nmf*4 >= run and cand is None: run = 0
            if cand is not None and run >= 2:
                op, rest = out[cand].split(None, 1)
                out[cand] = op + '_e64 ' + rest; off += 4; nw += 1; cand = None
            elif run >= minrun:
                out.append('s_nop 0'); off += 4; nn += 1
        if size[i] == 8:
            if off % 8 == 0: cand = None
        elif l.startswith('v_') and not l.startswith(NOWIDE) and not l.split()[0].endswith(('_e64', '_dpp', '_sdwa', '_e32')):
            cand = len(out)
        out.append(l); off += size[i]
    return out, nw, nn, off

class Kern:
    def __init__(s, name, grid, block, lds):
        s.name = name; s.grid = grid; s.block = block; s.lds = lds
        s.L = []; s.nl = 0
        s.vmax = 0; s.amax = -1
    def __call__(s, t):
        for l in t.split('\n'):
            l = l.strip()
            if l: s.L.append(l)
    def lab(s, base):
        s.nl += 1; return 'L%s_%s%d' % (getattr(s, 'short', s.name.replace('_kernel', '')), base, s.nl)
    def finish(s):
        lines, nn = fix_hazards_fast(s.L)
        if os.environ.get('ALIGN', '1') != '0':
            lines, nw, na, nbytes = align_pass(s.name, lines, int(os.environ.get('ALIGN_MIN', 5)))
            print('align: widened %d, nops %d, bytes %d' % (nw, na, nbytes))
        vm = 0; am = -1; sm = 0
        for l in lines:
            x = Ins(l)
            for c, n in (x.w | x.r):
                if c == 'v': vm = max(vm, n)
                if c == 'a': am = max(am, n)
                if c == 's' and n < 106: sm = max(sm, n)
        acc = (vm + 1 + 3)//4*4
        nfv = acc + am + 1 if am >= 0 else vm + 1
        s.info = 'kernel %s: %d lines, %d nop states inserted, vgpr %d agpr %d sgpr %d' % (s.name, len(lines), nn, vm+1, am+1, sm+1)
        body = '.globl %s\n.p2align 8\n.type %s,@function\n%s:\n' % (s.name, s.name, s.name) + '\n'.join(lines) + '\n'
        desc = ('.p2align 6\n.amdhsa_kernel %s\n  .amdhsa_next_free_vgpr %d\n  .amdhsa_next_free_sgpr %d\n  .amdhsa_accum_offset %d\n'
                '  .amdhsa_group_segment_fixed_size 0\n  .amdhsa_kernarg_size 120\n  .amdhsa_user_sgpr_count 2\n'
                '  .amdhsa_user_sgpr_kernarg_segment_ptr 1\n  .amdhsa_system_sgpr_workgroup_id_x 1\n.end_amdhsa_kernel\n') % (s.name, nfv, max(sm+1, 16), acc)
        launch = '; @launch kernel=%s grid=(%d,1,1) block=(%d,1,1) lds=%d' % (s.name, s.grid, s.block, s.lds)
        return launch, body, desc

def write_file(path, kerns, header='', single=False):
    parts = [k.finish() for k in kerns]
    with open(path, 'w') as f:
        f.write(header)
        for p in parts: f.write((re.sub(r'kernel=\S+ ', '', p[0]) if single else p[0]) + '\n')
        f.write('.amdgcn_target "amdgcn-amd-amdhsa--gfx950"\n.text\n')
        for p in parts: f.write(p[1])
        f.write('Lcode_end:\n')
        f.write('.section .rodata,"a"\n')
        for p in parts: f.write(p[2])
    for k in kerns: print(k.info)

def v(n, c=1): return 'v%d' % n if c == 1 else 'v[%d:%d]' % (n, n+c-1)
def s(n, c=1): return 's%d' % n if c == 1 else 's[%d:%d]' % (n, n+c-1)
import struct
def f2u(x): return struct.unpack('<I', struct.pack('<f', x))[0]
def fl(x): return '0x%08x' % f2u(x)
```

```python
from asmlib import *
WS_UX  = 0x000000
WS_KP  = 0x500000
WS_HT  = 0x700000
WS_CS  = 0x980000
WS_ST  = 0x990000
WS_FL  = 0x9B0000
WS_W1  = 0xA00000
WS_WO  = 0xC00000
WS_Z2  = 0xD00000
WS_P   = 0x1000000
WS_SIZE = 0x1400000
KPO = 272
KA = dict(x=0, logA=8, Aim=16, Cr=24, Ci=32, logdt=40, D=48, win=64, wsp=72, bsp=80, wout=88, out=96, dbg=104, ws=112)
LOG2E = 1.4426950408889634
INV2PI = 0.15915494309189535

def srd(k, d, base, nbytes):
    k(f's_mov_b32 s{d}, s{base}\ns_mov_b32 s{d+1}, s{base+1}\ns_mov_b32 s{d+2}, {nbytes:#x}\ns_mov_b32 s{d+3}, 0x20000')

class Cnt:
    def __init__(s, k, name, mx):
        s.k = k; s.name = name; s.mx = mx; s.n = 0; s.done = 0
    def issue(s, text):
        s.k(text); s.n += 1; return s.n
    def wait(s, tok):
        if tok <= s.done: return
        left = s.n - tok
        if left > s.mx: left = s.mx
        s.k(f's_waitcnt {s.name}({left})')
        s.done = s.n - left
    def all(s): s.wait(s.n)

def round_bf16_f32(k, dst, src):
    k(f'v_cvt_pk_bf16_f32 v{dst}, v{src}, v{src}')
    k(f'v_and_b32 v{dst}, 0xffff0000, v{dst}')

def ln_finish(k, mean, var, t):
    k(f'v_cvt_pk_bf16_f32 v{t}, v{mean}, v{var}')
    k(f'v_lshlrev_b32 v{mean}, 16, v{t}')
    k(f'v_and_b32 v{var}, 0xffff0000, v{t}')
    k(f'v_add_f32 v{var}, {fl(1e-5)}, v{var}')
    round_bf16_f32(k, var, var)
    k(f'v_sqrt_f32 v{var}, v{var}')
    round_bf16_f32(k, var, var)
    k(f'v_rcp_f32 v{var}, v{var}')

import os
STAMP = os.environ.get('STAMP', '')
WS_STAMP = 0x1380000
DELAY = os.environ.get('DELAY', '')
def delay_at(k, i):
    if DELAY and int(DELAY.split(':')[0]) == i:
        L = k.lab('dly')
        k(f'{L}:\ns_memrealtime s[94:95]\ns_waitcnt lgkmcnt(0)\ns_sub_u32 s94, s94, s96\ns_cmp_lt_u32 s94, {int(DELAY.split(":")[1])}\ns_cbranch_scc1 {L}')
def stamp_begin(k):
    if STAMP or DELAY: k('s_memrealtime s[96:97]')
WS_MARK = 0x13a0000
def mark(k, i, grp=''):
    if grp == '': delay_at(k, i)
    if STAMP in ('ws', 'dbg1') and (grp == os.environ.get('MGRP', '') or k.name.startswith('k1')):
        k(f's_waitcnt lgkmcnt(0)\n{"s_memtime" if os.environ.get("MCLK") else "s_memrealtime"} s[{60+2*i}:{61+2*i}]\ns_waitcnt lgkmcnt(0)'); k.nmark = max(getattr(k, 'nmark', 0), i+1)
def stamp_end(k, kidx):
    delay_at(k, 99)
    if STAMP == 'dbg1':
        if kidx == 2:
            L = k.lab('nost')
            k('s_waitcnt vmcnt(0) lgkmcnt(0)\ns_memrealtime s[60:61]')
            k(f's_load_dwordx2 s[94:95], s[0:1], {KA["dbg"]}')
            k(f's_waitcnt lgkmcnt(0)\ns_cmp_eq_u32 s2, {os.environ.get("DBGWG", 37)}\ns_cbranch_scc1 {L}\ns_endpgm\n{L}:')
            k('s_mov_b64 exec, 1\nv_mov_b32 v0, 0')
            for i in range(16):
                k(f's_sub_u32 s93, s{60+2*i}, s96\nv_mov_b32 v2, s93\nglobal_atomic_umax v0, v2, s[94:95] offset:{4*i}')
    elif STAMP:
        k('s_waitcnt vmcnt(0) lgkmcnt(0)')
        k('s_memrealtime s[98:99]')
        k(f's_load_dwordx2 s[94:95], s[0:1], {KA["ws"] if STAMP == "ws" else KA["dbg"]}')
        k('s_waitcnt lgkmcnt(0)')
        k('s_not_b32 s96, s96')
        if STAMP == 'ws':
            k(f's_lshl_b32 s97, s2, 3\ns_add_u32 s97, s97, {WS_STAMP + kidx*8192:#x}')
        else:
            nk = int(os.environ.get('NK', '5'))
            L = k.lab('nost')
            k(f's_add_u32 s94, s94, {(nk-1-kidx)*512}\ns_addc_u32 s95, s95, 0\ns_mov_b32 s97, {kidx*8}')
            k(f's_mul_i32 s93, s2, 37\ns_and_b32 s93, s93, 31\ns_cmp_eq_u32 s93, 0\ns_cbranch_scc1 {L}\ns_endpgm\n{L}:')
        k('s_mov_b64 exec, 1')
        k('v_mov_b32 v0, s97\nv_mov_b32 v2, s96\nv_mov_b32 v3, s98')
        k('global_atomic_umax v0, v2, s[94:95]\nglobal_atomic_umax v0, v3, s[94:95] offset:4')
        if STAMP == 'ws' and getattr(k, 'nmark', 0):
            k(f's_lshl_b32 s97, s2, 6\ns_add_u32 s97, s97, {WS_MARK + kidx*65536:#x}\nv_mov_b32 v0, s97')
            for i in range(k.nmark):
                k(f'v_mov_b32 v2, s{60+2*i}\nglobal_atomic_umax v0, v2, s[94:95] offset:{4*i}')
            k.nmark = 0
    k('s_endpgm')

class Dma:
    def __init__(s, k, vm):
        s.k = k; s.vm = vm; s.q = []; s.tok = {}; s.bar = -1; s.pend = None
    def add(s, pre, ins, stage, after=-1):
        s.q.append(dict(pre=pre, ins=ins, stage=stage, after=after))
    def ready(s, maxstage=10**9):
        return bool(s.q) and s.q[0]['after'] <= s.bar and s.q[0]['stage'] <= maxstage
    def pre(s, maxstage=10**9):
        if s.pend is None and s.ready(maxstage):
            s.pend = s.q.pop(0)
            for p in s.pend['pre']: s.k(p)
    def fire(s):
        if s.pend is not None:
            s.tok[s.pend['stage']] = s.vm.issue(s.pend['ins']) if not getattr(s, 'nodma', 0) else s.vm.n
            s.pend = None
    def one(s, maxstage=10**9):
        s.pre(maxstage); s.fire()
    def upto(s, stage):
        s.fire()
        while s.q and any(it['stage'] <= stage for it in s.q):
            assert s.q[0]['after'] <= s.bar, (s.q[0], s.bar)
            s.one()
    def sync(s, stage):
        s.upto(stage)
        if not getattr(s, 'novm', 0): s.vm.wait(max(t for st, t in s.tok.items() if st <= stage))
        if not getattr(s, 'nobar', 0): s.k('s_barrier')
        s.bar = stage

def gemm_loop(k, lg, dma, g0, g1, reads, mfmas, stage_of, lead, rate, PD=2, tail_reads=None, hooks={}):
    ftok = {}
    synced = dma.bar
    def need_sync(g):
        st = stage_of(g)
        if st > dma.bar: dma.sync(st)
    for g in range(g0, min(g0+PD, g1)):
        need_sync(g)
        for r in reads(g): ftok[g] = lg.issue(r)
    cnt = 0.0
    for g in range(g0, g1):
        if g in hooks: hooks[g]()
        lg.wait(ftok[g])
        n = g + PD
        rr = []
        if n < g1:
            need_sync(n); rr = list(reads(n))
        elif n == g1 and tail_reads: rr = list(tail_reads)
        mm = mfmas(g)
        nm = len(mm); nr = len(rr); done = 0
        for i, m_ in enumerate(mm):
            cnt += 1.0/(rate(g) if callable(rate) else rate)
            if cnt >= 1.0:
                dma.pre(dma.bar + lead)
            k(m_)
            if dma.pend is not None: dma.fire(); cnt -= 1.0
            cnt = min(cnt, 1.0)
            want = -(-(i+1)*nr//nm)
            while done < want:
                ftok[n] = lg.issue(rr[done]); done += 1
```

```python
from common import *
GC = 0.7978845608028654
K1C = -2*GC*LOG2E
K2C = K1C*0.044715
def a(n, c=1): return 'a%d' % n if c == 1 else 'a[%d:%d]' % (n, n+c-1)
MF = 'v_mfma_f32_16x16x32_bf16'
E = os.environ.get
SPIN = 0x20000
F1, F2, F3, F0, F0B = [WS_FL + 0x8000*i for i in range(5)]
NAME = 'sequential_preLN__ssm_conv_s4d__mixer_gmlp__prompt_kernel'

def signal(k, vm, soff_expr, tok=None):
    vm.wait(vm.n if tok is None else tok)
    k('s_barrier')
    L = k.lab('sig')
    k(f's_cmp_lg_u32 s16, 0\ns_cbranch_scc1 {L}')
    k('v_mov_b32 v2, 0\nv_mov_b32 v3, s6')
    k('s_mov_b64 exec, 1')
    k(f'buffer_store_dword v3, v2, s[8:11], {soff_expr} offen sc1')
    k('s_mov_b64 exec, -1')
    k(f'{L}:')

def poll(k, vm, vaddrs, sreg, data=(3, 4)):
    if isinstance(vaddrs, int): vaddrs = [vaddrs]
    L = k.lab('poll'); Lo = k.lab('pok')
    k('s_mov_b32 s37, 0')
    k(f'{L}:')
    for q, va in enumerate(vaddrs): k(f'buffer_load_dword v{data[q]}, v{va}, s[8:11], {sreg} offen sc1')
    k(f's_add_u32 s37, s37, 1\ns_cmp_gt_u32 s37, {SPIN}')
    k(f's_cbranch_scc1 {Lo}')
    k('s_waitcnt vmcnt(0)')
    for q in range(len(vaddrs)):
        k(f'v_cmp_ne_u32 vcc, s6, v{data[q]}')
        k(f's_cbranch_vccnz {L}')
    k(f'{Lo}:')
    k('s_waitcnt vmcnt(0)')
    vm.done = vm.n

def w1_items(dma, tiles, stage=0):
    for T in tiles:
        for ks4 in range(5):
            for q in range(4):
                ks = 4*ks4 + q
                dma.add([f's_add_u32 s27, s{22+T}, {ks4*4096}'] if q == 0 else [], f'buffer_load_dwordx4 {a(80*T+4*ks,4)}, v5, s[8:11], s27 offen offset:{q*1024} sc1', stage)

KGS = 288*128; UXB = KGS + 4*4608
BND = 156; KPT = 152
AF = 244; AG = 248; AXD = 249; AST = 250; XD = 240
AK0, AK1, AQ, AUX, AP0, PD0, AB0 = 251, 252, 253, 183, 184, 185, 254
PR = 56; IDX = 132; KW = 140; KR = 144; KCW = 145

def conv_bands(k):
    k('v_lshlrev_b32 v6, 3, v8')
    bands = [(-5, -3, -16), (-10, -6, -16), (-13, -11, -16), (-18, -14, -24), (-11, -5, -16), (-20, -12, -24), (12-16, 13-16, -16)]
    for bi, (lo, hi, e0) in enumerate(bands + [(0, 0, 0)]):
        dst = BND + 4*bi if bi < 6 else KPT if bi == 6 else XD
        msk = ((1 << (hi-lo+1)) - 1) << (lo - e0)
        if bi == 7: msk = 0x10001
        k(f'v_mov_b32 v9, {msk:#x}\nv_lshlrev_b32 v9, v7, v9\nv_lshrrev_b32 v9, v6, v9')
        k('v_and_b32 v10, 0xaa, v9\nv_and_b32 v9, 0x55, v9\nv_lshl_or_b32 v9, v10, 15, v9')
        for q in range(4):
            if q: k(f'v_lshrrev_b32 v10, {2*q}, v9')
            k(f'v_and_b32 v{dst+q}, 0x10001, v{10 if q else 9}')
            if bi < 6: k(f'v_mul_u32_u24 v{dst+q}, 0x3f80, v{dst+q}')

def f0b_addr(k):
    k(f'v_lshlrev_b32 v{AB0}, 7, v1\nv_and_b32 v2, 31, v1\nv_lshlrev_b32 v2, 7, v2\nv_add_u32 v{AB0+1}, 8192, v2')

def conv_late(k):
    def uaddr(dst, gc, use_h):
        k(f'v_lshl_add_u32 v9, v7, 1, {use_h}\nv_add_u32 v9, {gc+32}, v9')
        k('v_bfe_u32 v10, v9, 1, 3\nv_xor_b32 v10, s16, v10\nv_lshlrev_b32 v10, 4, v10')
        k(f'v_lshl_add_u32 v{dst}, v9, 7, v10')
    for j in range(4): uaddr(AF+j, -2-4*(j+4), 'v8')
    uaddr(AG, -3, 'v8')
    k('v_and_b32 v11, 1, v8')
    uaddr(AXD, 0, 'v11')
    k(f'v_lshlrev_b32 v{AST}, 5, v7\nv_lshl_add_u32 v{AST}, v11, 9, v{AST}')
    k('v_lshrrev_b32 v11, 1, v8')
    k(f'v_lshl_add_u32 v{AST}, v11, 4, v{AST}\nv_xor_b32 v11, 1, v11\nv_lshlrev_b32 v11, 6, v11\nv_xor_b32 v{AXD}, v11, v{AXD}')
    k(f's_lshl_b32 s52, s3, 12\ns_add_u32 s52, s52, {WS_HT:#x}')
    k('v_lshlrev_b32 v9, 3, v8\nv_sub_u32 v9, v9, v7\nv_add_u32 v9, 15, v9\nv_lshlrev_b32 v9, 1, v9')
    k(f'v_and_b32 v10, 1, v7\nv_xor_b32 v10, 1, v10\nv_mul_u32_u24 v10, {4*KPO-2}, v10')
    k(f'v_add3_u32 v{AK0}, v9, v10, s46\nv_add_u32 v{AK1}, 1024, v{AK0}')
    k('v_lshlrev_b32 v9, 2, v8\nv_sub_u32 v9, v9, v7\nv_add_u32 v9, 15, v9\nv_lshlrev_b32 v9, 2, v9')
    k(f's_add_u32 s53, s46, 2240\nv_add_u32 v{AQ}, s53, v9')
def conv_early(k):
    k('v_lshrrev_b32 v3, 3, v1\nv_and_b32 v4, 7, v1')
    k(f'v_lshl_add_u32 v2, v3, 5, v4\nv_lshlrev_b32 v{AP0}, 7, v2')
    k('v_lshrrev_b32 v6, 1, v3\nv_xor_b32 v4, v4, v6\ns_lshl_b32 s44, s20, 2\nv_xor_b32 v4, s44, v4')
    k(f'v_mul_u32_u24 v3, 20480, v3\nv_lshl_add_u32 v{AUX}, v4, 4, v3')
    f0b_addr(k)
    k(f's_mul_i32 s46, s16, 3072\ns_add_u32 s46, s46, {UXB}')
    k(f's_lshl_b32 s47, s2, 7\ns_mul_i32 s48, s16, {8*20480}\ns_add_u32 s47, s47, s48')
    k('s_lshl_b32 s49, s16, 10\ns_add_u32 s49, s49, 4096')
    k(f's_lshl_b32 s48, s16, 10\ns_add_u32 s48, s48, {F0:#x}')
    k('v_lshlrev_b32 v6, 4, v0')
    for r in range(72, 76): k(f'v_mov_b32 v{r}, 0')
    k('ds_write_b128 v6, v[72:75]')
    k('v_add_u32 v2, s46, v5')
    for q in range(3): k(f'ds_write_b128 v2, v[72:75] offset:{1024*q}')
    k(f's_mul_i32 s55, s16, 4608\ns_add_u32 s55, s55, {KGS}')
    k(f'v_mul_u32_u24 v2, 288, v7\nv_lshl_add_u32 v2, v8, 4, v2\nv_add_u32 v{KR}, s55, v2')
    k('v_lshrrev_b32 v9, 1, v8\nv_and_b32 v10, 1, v8\nv_lshlrev_b32 v3, 4, v7')
    k('v_lshl_add_u32 v2, v9, 8, v3\nv_lshl_add_u32 v2, v10, 3, v2')
    k(f's_add_u32 s44, s46, 1080\nv_sub_u32 v{KCW}, s44, v2')
    k(f'v_lshl_add_u32 v2, v10, 8, v3\ns_add_u32 s44, s46, {2*(536-258)-4}\nv_sub_u32 v{KCW+1}, s44, v2')
    k('v_lshrrev_b32 v2, 1, v7\nv_lshl_add_u32 v2, v10, 4, v2\nv_lshlrev_b32 v2, 2, v2\nv_and_b32 v3, 1, v7\nv_lshlrev_b32 v3, 8, v3\nv_sub_u32 v2, v3, v2')
    k(f's_add_u32 s44, s46, {2240+4*39}\nv_add_u32 v{KCW+2}, s44, v2')
    k(f'v_and_b32 v2, 7, v7\nv_lshlrev_b32 v2, 5, v2\nv_lshl_add_u32 v2, v8, 3, v2\ns_add_u32 s44, s46, {2752+4*62}\nv_sub_u32 v{KCW+3}, s44, v2')
    k(f'v_mov_b32 v{KCW+4}, s46')

LNB = 4096
class Rec:
    def __init__(s): s.L = []
    def __call__(s, t): s.L += [x for x in t.split('\n') if x]
def zipk(k, recs):
    for xs in zip(*[r.L for r in recs]):
        for x in xs: k(x)

def ln1_addr(k):
    k('v_lshrrev_b32 v2, 5, v1\nv_bfe_u32 v3, v1, 4, 1\nv_bfe_u32 v4, v1, 2, 2\nv_and_b32 v6, 3, v1')
    k('v_lshl_add_u32 v52, v2, 3, v4\nv_mul_u32_u24 v52, 1344, v52\nv_lshl_add_u32 v52, v3, 5, v52\nv_lshl_add_u32 v52, v6, 3, v52')
    k(f's_mul_i32 s17, s16, 320\ns_add_u32 s17, s17, {LNB}\nv_add_u32 v52, s17, v52')
    k('v_lshlrev_b32 v53, 9, v3\nv_lshl_add_u32 v53, v4, 7, v53\nv_lshl_add_u32 v53, v2, 6, v53\nv_lshl_add_u32 v53, v6, 4, v53')
    k('s_mul_i32 s17, s16, 5120\nv_add_u32 v53, s17, v53\nv_add_u32 v55, 4096, v53')

def ln1(k):
    X = 12; Fv = 22; S = 42
    for q in range(5): k(f'ds_write_b64 v51, {v(X+2*q,2)} offset:{8*1344+q*256}')
    for i in range(10): k(f'v_lshlrev_b32 v{Fv+2*i}, 16, v{X+i}\nv_and_b32 v{Fv+1+2*i}, 0xffff0000, v{X+i}')
    k(f'v_pk_add_f32 {v(S,2)}, {v(Fv,2)}, {v(Fv+2,2)}\nv_pk_mul_f32 {v(S+2,2)}, {v(Fv,2)}, {v(Fv,2)}')
    for i in range(1, 10):
        if i > 1: k(f'v_pk_add_f32 {v(S,2)}, {v(S,2)}, {v(Fv+2*i,2)}')
        k(f'v_pk_fma_f32 {v(S+2,2)}, {v(Fv+2*i,2)}, {v(Fv+2*i,2)}, {v(S+2,2)}')
    k(f'v_add_f32 v{S}, v{S}, v{S+1}\nv_add_f32 v{S+2}, v{S+2}, v{S+3}')
    k(f'v_mov_b32 v47, {fl(1/640)}')
    for sh in (8, 4, 2, 1):
        for q in (S, S+2): k(f'v_add_f32_dpp v{q}, v{q}, v{q} row_ror:{sh} row_mask:0xf bank_mask:0xf')
    k(f'v_mov_b32 v{S+1}, v{S}\nv_mov_b32 v{S+3}, v{S+2}\nv_permlane16_swap_b32 v{S}, v{S+1}\nv_permlane16_swap_b32 v{S+2}, v{S+3}')
    k(f'v_add_f32 v{S}, v{S}, v{S+1}\nv_add_f32 v{S+2}, v{S+2}, v{S+3}')
    k(f'v_mul_f32 v{S}, v47, v{S}\nv_mul_f32 v{S+1}, v{S}, v{S}\nv_fma_f32 v{S+2}, v{S+2}, v47, -v{S+1}\nv_max_f32 v{S+2}, 0, v{S+2}')
    r = Rec(); ln_finish(r, S, S+2, S+4)
    fin = r.L[2:]
    for x in r.L[:2]: k(x)
    for i in range(10):
        q = Fv+2*i
        k(f'v_pk_add_f32 {v(q,2)}, {v(q,2)}, {v(S,2)} op_sel_hi:[1,0] neg_lo:[0,1] neg_hi:[0,1]')
        if fin: k(fin.pop(0))
        k(f'v_cvt_pk_bf16_f32 v{q+1}, v{q}, v{q+1}\nv_lshlrev_b32 v{q}, 16, v{q+1}\nv_and_b32 v{q+1}, 0xffff0000, v{q+1}')
    assert not fin
    k('v_mov_b32 v2, 0\nglobal_load_dword v54, v2, s[32:33] sc1')
    for i in range(10):
        q = Fv+2*i
        k(f'v_pk_mul_f32 {v(q,2)}, {v(q,2)}, {v(S+2,2)} op_sel_hi:[1,0]')
        k(f'v_cvt_pk_bf16_f32 v{X+i}, v{q}, v{q+1}')
    for q in range(5): k(f'ds_write_b64 v51, {v(X+2*q,2)} offset:{q*256}')
    k('s_mul_i32 s30, s2, 20480')
    k('s_waitcnt lgkmcnt(0)\ns_barrier')
    mark(k, 0, 'H')
    O = 24
    for b in range(5):
        k(f'ds_read_b64_tr_b16 {v(O+4*b,2)}, v52 offset:{b*64}\nds_read_b64_tr_b16 {v(O+2+4*b,2)}, v52 offset:{b*64+4*1344}')
    for b in range(5):
        k(f's_waitcnt lgkmcnt({8-2*b})')
        k(f'buffer_store_dwordx4 {v(O+4*b,4)}, ' + (f'v53, s[8:11], s30 offen offset:{b*1024} sc1' if b < 4 else 'v55, s[8:11], s30 offen sc1'))
    k(f's_lshl_b32 s30, s2, 7\ns_add_u32 s30, s30, {F0:#x}')
    mark(k, 1, 'H')

def get_nonce(k):
    L = k.lab('nn'); Lo = k.lab('nok')
    k('s_mov_b32 s37, 0')
    k(f'{L}:')
    k('v_readfirstlane_b32 s6, v54')
    k(f's_add_u32 s37, s37, 1\ns_cmp_gt_u32 s37, {SPIN}\ns_cbranch_scc1 {Lo}')
    k(f's_cmp_lg_u32 s6, 0\ns_cbranch_scc1 {Lo}')
    k('v_mov_b32 v2, 0')
    k('global_load_dword v54, v2, s[32:33] sc1')
    k('s_waitcnt vmcnt(0)')
    k(f's_branch {L}')
    k(f'{Lo}:')

def ux_issue(k):
    for i in range(8):
        k(f's_add_u32 m0, s49, {i*4096}\ns_add_u32 s27, s47, {i*32*20480}')
        k(f'buffer_load_dwordx4 v{AUX}, s[8:11], s27 offen sc1 lds')
    k('s_mov_b32 s45, 1')
    mark(k, 8, 'K')

def kgen(k, sigfn):
    lg = Cnt(k, 'lgkmcnt', 15)
    DT = 68
    W, G8, GG, Z, C0, LO, HI, ACC, PK, H2 = 20, 22, 24, 32, 70, 88, 104, 120, 36, 192
    def check(pd=PD0):
        if E('KG_NOCHK'): return
        Ls = k.lab('uxs'); Lr = k.lab('uxr')
        k(f's_cmp_lg_u32 s45, 0\ns_cbranch_scc1 {Ls}')
        k('s_waitcnt vmcnt(0)')
        k(f'v_cmp_ne_u32 vcc, s6, v{pd}')
        k(f's_cbranch_vccnz {Lr}')
        ux_issue(k)
        k('s_mov_b32 m0, s55')
        k(f's_branch {Ls}')
        k(f'{Lr}:')
        k(f'buffer_load_dword v{pd}, v{AP0}, s[8:11], s48 offen sc1')
        k(f'{Ls}:')
    k(f'v_mov_b32 v{PD0}, 0\ns_mov_b32 s45, 0\ns_mov_b32 m0, s55')
    k(f'v_mul_f32 v{DT}, {fl(LOG2E)}, v{DT}\nv_exp_f32 v{DT}, v{DT}')
    round_bf16_f32(k, DT, DT)
    k(f'v_add_f32 v{DT+1}, v{DT}, v{DT}')
    mark(k, 0, 'K'); mark(k, 0, 'J')
    def setup(it):
        r = Rec(); P = PR + 4*it
        r(f'v_mul_f32 v12, {fl(LOG2E)}, v{P}\nv_mul_f32 v13, v{P+1}, v{DT}\nv_exp_f32 v12, v12')
        r(f'v_mul_f32 v13, {fl(INV2PI)}, v13\nv_mul_f32 v{C0}, v{P+2}, v{DT+1}\nv_mul_f32 v{C0+1}, v{P+3}, -v{DT+1}')
        round_bf16_f32(r, 12, 12)
        r(f'v_mul_f32 v12, v12, v{DT}\nv_mul_f32 v15, {fl(8.)}, v13\nv_mul_f32 v17, {fl(128.)}, v13\nv_mul_f32 v12, {fl(-LOG2E)}, v12')
        r('v_fract_f32 v15, v15\nv_fract_f32 v13, v13\nv_fract_f32 v17, v17')
        r(f'v_mul_f32 v14, {fl(8.)}, v12\nv_mul_f32 v16, {fl(128.)}, v12')
        for dst, m_ in ((G8, 14), (W, 12), (GG, 16)):
            r(f'v_exp_f32 v{m_}, v{m_}\nv_cos_f32 v{dst}, v{m_+1}\nv_sin_f32 v{dst+1}, v{m_+1}')
        return r.L
    tmp = [26, 28, 30]; ti = [0]
    def cmul(d, a_, b):
        t = tmp[ti[0] % 3]; ti[0] += 1
        k(f'v_pk_mul_f32 {v(t,2)}, {v(a_,2)}, {v(b,2)} op_sel:[0,0] op_sel_hi:[1,0]')
        k(f'v_pk_fma_f32 {v(d,2)}, {v(a_,2)}, {v(b,2)}, {v(t,2)} op_sel:[1,1,0] op_sel_hi:[0,1,1] neg_lo:[1,0,0]')
    WB = int(E('KG_WB', 8))
    wr = [0]
    def wflush(n):
        while wr[0] < n:
            lg.issue(f'ds_write_addtid_b32 v{PK+wr[0]} offset:{wr[0]*288}'); wr[0] += 1
    def put(row, z):
        if z is None: k(f'v_mov_b32 v{PK+row}, 0x3f80')
        else: k(f'v_cvt_pk_bf16_f32 v{PK+row}, v{z}, v{z+1}')
        if (row+1) % WB == 0: wflush(row+1)
    def flush(n, base):
        wflush(n); wr[0] = 0
        for ks in range(4): tk = lg.issue(f'ds_read_b128 {v(base+4*ks,4)}, v{KR} offset:{ks*64}')
        return tk
    def mm(it, t, H, swap):
        out = []
        for ks in range(4):
            A, B = H+4*ks, LO+4*ks
            if swap: A, B = B, A
            out.append(f'{MF} {v(ACC+4*t,4)}, {v(A,4)}, {v(B,4)}, {"0" if it == 0 and ks == 0 else v(ACC+4*t,4)}')
        return out
    plan = dict(x.split(':') for x in E('KG_PLAN', '03:sAB,10:CD,13:p,23:c').split(','))
    outl = []
    def pt(q):
        for it in range(3):
            act = plan.get(f'{it}{q}')
            if act:
                Lx = k.lab('kx'); Lb = k.lab('kb')
                k(f's_cmp_eq_u32 s44, {it}\ns_cbranch_scc1 {Lx}')
                k(f'{Lb}:')
                outl.append((Lx, Lb, act))
    for r in range(12): k(f'v_mov_b32 v{ACC+r}, 0')
    k('s_mov_b32 s44, 0')
    for x in setup(0): k(x)
    Lp = k.lab('kg')
    k(f'{Lp}:')
    for dst, m_, neg in ((G8, 14, False), (W, 12, True), (GG, 16, True)):
        k(f'v_pk_mul_f32 {v(dst,2)}, {v(dst,2)}, {v(m_,2)} op_sel_hi:[1,0]' + (' neg_hi:[0,1]' if neg else ''))
    put(0, None); put(1, G8)
    cmul(Z, G8, G8); put(2, Z)
    for j in range(3, 16): cmul(Z, Z, G8); put(j, Z)
    flush(16, LO)
    pt(0)
    put(0, C0)
    for c in range(1, 8): cmul(C0+2*c, C0+2*c-2, W); put(c, C0+2*c)
    cmul(C0+16, C0+14, W)
    for c in range(8): cmul(C0+2*c, C0+2*c, GG); put(8+c, C0+2*c)
    flush(16, HI)
    pt(1)
    cmul(C0+16, C0+16, GG); cmul(C0, C0, GG)
    for i in (2, 3):
        for c in (2, 4, 6, 8): cmul(C0+2*c, C0+2*c, GG); put(4*(i-2)+c//2-1, C0+2*c)
    for i in range(4, 8):
        for c in (4, 8): cmul(C0+2*c, C0+2*c, GG); put(8+2*(i-4)+c//4-1, C0+2*c)
    t1 = flush(16, H2)
    pt(2)
    k(f'v_cvt_pk_bf16_f32 v{PK+8}, v{C0}, v{C0+1}')
    for i in range(8, 16): cmul(C0+16, C0+16, GG); put(i-8, C0+16)
    t2 = flush(9, H2+16)
    pt(3)
    fillr = setup(1)
    fillr[6:6] = [f'v_mov_b32 v{PR+4+q}, v{PR+8+q}' for q in range(4)]
    k('s_add_u32 s44, s44, 1\ns_cmp_lt_u32 s44, 3')
    lg.wait(t1)
    for n, m_ in enumerate(mm(1, 0, HI, False) + mm(1, 1, H2, False) + mm(1, 2, H2+16, True)):
        if n == 8: lg.wait(t2)
        k(m_)
        for _ in range(2):
            if fillr: k(fillr.pop(0))
    for x in fillr: k(x)
    k(f's_cbranch_scc1 {Lp}')
    Lj = k.lab('kj')
    k(f's_branch {Lj}')
    for Lx, Lb, act in outl:
        k(f'{Lx}:')
        if 's' in act: mark(k, 10, 'K'); sigfn(); mark(k, 11, 'K')
        for q, ch in enumerate('ABCD'):
            if ch in act:
                k(f's_add_u32 s27, s28, {(q//2)*256 + (q % 2)*65536}')
                for j in range(4):
                    k(f's_add_u32 m0, s26, {q*4096 + j*1024}')
                    k(f'buffer_load_dwordx4 v{132+j}, s[12:15], s27 offen lds')
                k('s_mov_b32 m0, s55')
        if 'p' in act: mark(k, 2, 'K'); k(f'buffer_load_dword v{PD0}, v{AP0}, s[8:11], s48 offen sc1'); mark(k, 3, 'K')
        if 'c' in act: mark(k, 12, 'K'); k('s_waitcnt vmcnt(0)'); mark(k, 13, 'K'); check(); mark(k, 14, 'K')
        k(f's_branch {Lb}')
    k(f'{Lj}:')
    mark(k, 1, 'K'); mark(k, 13, 'J')
    A0, A1, A2 = ACC, ACC+4, ACC+8
    O = 4*KPO
    cv = [(A0+3, A0+2), (A0+1, A0), (A0+2, A0+1),
          (A1+3, A1+3), (A1+3, A1+2), (A1+1, A1+1), (A1+1, A1), (A1+2, A1+1),
          (A1, A1+1), (A1+2, A1+3),
          (A2+2, A2+3), (A2, A2+1), (A2, A2)]
    for q, (x, y) in enumerate(cv): k(f'v_cvt_pk_bf16_f32 v{12+q}, v{x}, v{y}')
    k(f'ds_write_b64 v{KCW}, v[12:13]')
    k(f'ds_write_b16 v{KCW}, v12 offset:{O-2}\nds_write_b32 v{KCW}, v14 offset:{O}\nds_write_b16_d16_hi v{KCW}, v13 offset:{O+4}')
    k(f'v_add_u32 v25, {O}, v{KCW+1}')
    k('s_mov_b32 exec_hi, 0')
    k(f'ds_write_b16 v{KCW+1}, v15 offset:2')
    k(f'ds_write2_b32 v{KCW+1}, v15, v16 offset0:1 offset1:2\nds_write2_b32 v{KCW+1}, v17, v18 offset0:3 offset1:4')
    k('ds_write2_b32 v25, v15, v15 offset0:0 offset1:1\nds_write2_b32 v25, v19, v17 offset0:2 offset1:3\nds_write_b16_d16_hi v25, v18 offset:16')
    k('s_mov_b32 exec_lo, 0x100')
    k(f'ds_write_b32 v{KCW+4}, v24 offset:572\nds_write_b16 v{KCW+4}, v24 offset:{O+570}\nds_write_b16 v{KCW+4}, v24 offset:{O+572}')
    k('s_mov_b32 exec_lo, 0\ns_mov_b32 exec_hi, -1')
    k(f'ds_write2_b32 v{KCW+2}, v20, v21 offset0:8 offset1:0')
    k('s_mov_b32 exec_lo, 0x00ff00ff\ns_mov_b32 exec_hi, 0x00ff00ff')
    k(f'ds_write_b64 v{KCW+3}, v[22:23]')
    k('s_mov_b64 exec, -1')
    mark(k, 4, 'K')
    check()
    mark(k, 5, 'K')

def phaseA(k):
    vm = Cnt(k, 'vmcnt', 63); lg = Cnt(k, 'lgkmcnt', 15)
    dma = Dma(k, vm); w1_items(dma, [0, 1])
    ACC = 12; KN = 44; QA = 112; QB = 124; Q8 = 136; SS = 180; VV = 204
    FB = 216; NB = 6
    prog = []
    started = set()
    def Kn(kb): return ('K', 'n', kb)
    kreg = {}
    for kb in range(17): kreg[Kn(kb)] = (KN+4*kb, AK1 if kb == 0 else AK0, 0 if kb == 0 else (16-kb)*16)
    for D in (2, 3, 4): kreg[('K', 'a', D)] = (QA+4*(D-2), AQ, (4-D)*16); kreg[('K', 'b', D)] = (QB+4*(D-2), AQ, 64+(4-D)*16)
    for D in (4, 5, 6, 7): kreg[('K', '8', D)] = (Q8+4*(D-4), AQ, 128+(7-D)*16)
    def acc(t, A, B):
        prog.append(('m', ACC+4*t, A, B, t not in started)); started.add(t)
    XF = int(E('FA_XF', 0))
    for rt in range(XF): acc(rt, XD, ('F', rt, 'X'))
    for rt in range(8):
        F0 = ('F', rt, 0)
        if rt <= 5:
            for b in (0, 1, 2): prog.append(('m', SS+4*b, F0, BND+4*b, True))
            if rt <= 3: prog.append(('m', SS+16, F0, BND+16, True))
            prog.append(('m', SS+12, ('F', rt, 'G'), BND+12, True))
            if rt <= 3: prog.append(('m', SS+20, ('F', rt, 'G'), BND+20, True))
        if rt >= XF: acc(rt, XD, ('F', rt, 'X'))
        acc(rt, Kn(0), F0)
        if rt+1 <= 7: acc(rt+1, Kn(8), F0)
        if rt+2 <= 7: acc(rt+2, Kn(16), F0)
        if rt+4 <= 7: acc(rt+4, KPT, F0)
        if rt <= 5: prog.append(('cvt', rt))
        for j in range(1, 8):
            acc(rt, Kn(j), ('F', rt, j))
            if rt+1 <= 7: acc(rt+1, Kn(j+8), ('F', rt, j))
        prog.append(('epi', rt))
        if rt <= 5:
            prog.append(('needcvt',))
            for D in (2, 3, 4):
                if rt+D <= 7: acc(rt+D, VV, ('K', 'a', D)); acc(rt+D, VV+4, ('K', 'b', D))
            if rt <= 3:
                for D in (4, 5, 6, 7):
                    if rt+D <= 7: acc(rt+D, VV+8, ('K', '8', D))
    order = []; last_use = {}
    for pi_, p in enumerate(prog):
        if p[0] == 'm':
            for o in (p[2], p[3]):
                if isinstance(o, tuple):
                    if o not in last_use: order.append(o)
                    last_use[o] = pi_
    forder = [o for o in order if o[0] == 'F']
    fbuf = {o: FB + 4*(n % NB) for n, o in enumerate(forder)}
    fidx = {o: n for n, o in enumerate(forder)}
    tok = {}
    rq = []
    for o in order:
        if o[0] == 'K':
            r, ar, off = kreg[o]
            rq.append((o, f'ds_read2_b32 {v(r,2)}, v{ar} offset0:{off} offset1:{off+1}', False))
            rq.append((o, f'ds_read2_b32 {v(r+2,2)}, v{ar} offset0:{off+2} offset1:{off+3}', True))
        else:
            _, rt, j = o
            if j == 'G': ar, off = AG, rt*4096
            elif j == 'X': ar, off = AXD, rt*4096
            else: ar, off = AF + (j % 4), rt*4096 + (2048 if j < 4 else 0)
            rq.append((o, f'ds_read_b128 {v(fbuf[o],4)}, v{ar} offset:{off}', True))
    cur = [0]
    def can_read():
        if not rq: return False
        o = rq[0][0]
        if lg.n - lg.done >= 13: return False
        if o[0] == 'F' and fidx[o] >= NB:
            return last_use[forder[fidx[o]-NB]] < cur[0]
        return True
    def do_read():
        o, t, l = rq.pop(0); tk = lg.issue(t)
        if l: tok[o] = tk
    k('v_mov_b32 v9, s53')
    tp = lg.issue(f'ds_read_u16 v11, v9 offset:{256+16*4+2}')
    early = [x for x in rq if x[0][0] == 'K'][:int(E('FA_EK', 34))]
    for n, x in enumerate(early):
        rq.remove(x); tk = lg.issue(x[1])
        if x[2]: tok[x[0]] = tk
    kq = [x for x in rq if x[0][0] == 'K']; fq = [x for x in rq if x[0][0] != 'K']
    KP = int(E('FA_KP', 2)); rq[:] = [fq.pop(0) for _ in range(NB-1)]
    while kq or fq:
        if fq: rq.append(fq.pop(0))
        for _ in range(KP):
            if kq: rq.append(kq.pop(0))
    lg.wait(tp)
    for q in range(4): k(f'v_mul_u32_u24 v{KPT+q}, v11, v{KPT+q}')
    mark(k, 3); mark(k, 6, 'K')
    Ls = k.lab('uxd')
    k(f's_cmp_lg_u32 s45, 0\ns_cbranch_scc1 {Ls}')
    poll(k, vm, AP0, 's48')
    ux_issue(k)
    k(f'{Ls}:')
    k(f's_mov_b32 s44, {F0B:#x}')
    k('s_waitcnt vmcnt(0)')
    lg.all()
    k('s_barrier')
    mark(k, 4); mark(k, 7, 'K')
    tB = []
    def f0b_issue():
        vm.issue(f'buffer_load_dword v3, v{AB0}, s[8:11], s44 offen sc1'); tB.append(vm.issue(f'buffer_load_dword v4, v{AB0+1}, s[8:11], s44 offen sc1'))
    def f0b_check():
        Lo = k.lab('f0b'); Lq = k.lab('f0q')
        vm.wait(tB[0])
        k(f'v_cmp_ne_u32 vcc, s6, v3\ns_cbranch_vccnz {Lq}\nv_cmp_ne_u32 vcc, s6, v4\ns_cbranch_vccz {Lo}')
        k(f'{Lq}:')
        poll(k, Cnt(k, 'vmcnt', 63), [AB0, AB0+1], 's44')
        k(f'{Lo}:')
        mark(k, 9, 'K')
        CT = int(E('C_TOUCH', 0))
        if CT:
            k(f's_add_u32 s45, s3, {CT}\ns_min_u32 s45, s45, 1023')
            k('s_lshr_b32 s46, s45, 8\ns_lshl_b32 s46, s46, 9\ns_and_b32 s45, s45, 255\ns_lshl_b32 s45, s45, 15\ns_add_u32 s45, s45, s46')
            k('v_lshrrev_b32 v2, 2, v1\nv_lshlrev_b32 v2, 11, v2\nv_and_b32 v3, 3, v1\nv_lshl_add_u32 v2, v3, 7, v2')
            vm.issue('buffer_load_dword v4, v2, s[12:15], s45 offen')
    hi = []; lo = []
    def epilogue(t):
        A = ACC + 4*t; ops = [None]*5
        def Em(txt): ops.append(lambda: k(txt))
        P = ACC + 4*(t & ~1) + 2*(t & 1)
        Em(f'v_cvt_pk_bf16_f32 v{P}, v{A}, v{A+1}'); Em(f'v_cvt_pk_bf16_f32 v{P+1}, v{A+2}, v{A+3}')
        if t & 1:
            Q = ACC + 4*(t-1)
            ops.append(None)
            Em(f'v_permlane16_swap_b32 v{Q}, v{Q+2}'); Em(f'v_permlane16_swap_b32 v{Q+1}, v{Q+3}')
            ops.append(lambda: vm.issue(f'buffer_store_dwordx4 {v(Q,4)}, v{AST}, s[8:11], s52 offen offset:{(t-1)*512} sc1'))
        return ops
    while can_read() and lg.n - lg.done < 12: do_read()
    nm = 0; WR = int(E('FA_WR', 4)); WLAST = int(E('FA_WLAST', 195)); WFIRST = int(E('FA_WFIRST', 40))
    for pi_, p in enumerate(prog):
        cur[0] = pi_
        if p[0] == 'cvt':
            rt = p[1]
            hi.extend([None]*2)
            for q in range(3 if rt <= 3 else 2):
                for r in range(4):
                    hi.append(lambda q=q, r=r: k(f'v_cvt_pk_bf16_f32 v{VV+4*q+r}, v{SS+8*q+r}, v{SS+8*q+4+r}'))
            continue
        if p[0] == 'needcvt':
            while hi:
                f = hi.pop(0)
                if f: f()
            continue
        if p[0] == 'epi':
            lo.extend(epilogue(p[1])); continue
        _, d, A, B, zero = p
        n0 = len(k.L)
        ops = []
        for o in (A, B):
            if isinstance(o, tuple):
                if o not in tok:
                    mine = [x for x in rq if x[0] == o]
                    for x in mine: rq.remove(x)
                    rq[0:0] = mine
                    if o[0] == 'F' and fidx[o] >= NB: assert last_use[forder[fidx[o]-NB]] < cur[0]
                    while o not in tok: do_read()
                tw = tok[o]
                if tw > lg.done and o[0] == 'F' and fidx[o]+1 < len(forder):
                    t2 = tok.get(forder[fidx[o]+1])
                    if t2 is not None and lg.n - t2 >= int(E('FA_MW', 2)): tw = max(tw, t2)
                lg.wait(tw)
                ops.append(fbuf[o] if o[0] == 'F' else kreg[o][0])
            else: ops.append(o)
        nm += 1
        if nm == max(WFIRST - int(E('FA_PL', 40)), 1): f0b_issue()
        if nm == WFIRST: f0b_check()
        if nm % WR == 0 and WFIRST <= nm <= WLAST: dma.pre()
        used = len(k.L) - n0
        k(f'{MF} {v(d,4)}, {v(ops[0],4)}, {v(ops[1],4)}, {"0" if zero else v(d,4)}')
        cur[0] = pi_ + 1
        n1 = len(k.L)
        dma.fire()
        while len(k.L) - n1 + used < 2:
            if can_read(): do_read()
            elif hi:
                f = hi.pop(0)
                if f: f()
                else: used += 1
            elif lo:
                f = lo.pop(0)
                if f: f()
                else: used += 1
            else: break
    for f in lo:
        if f: f()
    mark(k, 5)
    k(f's_lshl_b32 s44, s2, 7\ns_add_u32 s44, s44, {F1:#x}')
    signal(k, vm, 's44')
    while dma.q: dma.one()

def ln_sigma(k, mean, var, t):
    k(f'v_cvt_pk_bf16_f32 v{t}, v{mean}, v{var}')
    k(f'v_lshlrev_b32 v{mean}, 16, v{t}\nv_and_b32 v{var}, 0xffff0000, v{t}')
    k(f'v_add_f32 v{var}, {fl(1e-5)}, v{var}')
    round_bf16_f32(k, var, var)
    k(f'v_sqrt_f32 v{var}, v{var}')
    round_bf16_f32(k, var, var)

MAPB = {'A': 3, 'B': 2, 'C': 1, 'N': 0}[E('F_MAP', 'B')]
ALATE = int(E('FB_ALATE', 1)); T2E = int(E('FB_T2E', 1))
STG = 81920; Z1L = 147456; STAT = 159744; PART = STAT + 1024
CS = 28; RES = 40; MS = 52; HF = 68; AC = [116, 132, 148]; ONE = 164; SA = 168; G = 176; T = HF; WV = 192
WA = {2: 0, 3: 32, 4: 80, 5: 160, 6: 112, 7: 192}
def wreg(c, o): return v(WV+32*c+o, 4) if c < 2 else a(WA[c]+o, 4)

def stg_setup(k, R):
    for j in range(4):
        k(f'v_add_u32 v2, {4*j}, v8\nv_xor_b32 v3, v2, v7\nv_lshlrev_b32 v2, 12, v2\nv_lshl_add_u32 v{R+j}, v3, 4, v2')
    k(f's_lshl_b32 s26, s16, 14\ns_add_u32 s26, s26, {STG}')
    k('s_lshl_b32 s28, s17, 18\ns_lshl_b32 s27, s20, 17\ns_add_u32 s28, s28, s27\ns_lshl_b32 s27, s19, 11\ns_add_u32 s28, s28, s27')

def phaseB_setup(k):
    for r in range(4): k(f'v_mov_b32 v{ONE+r}, 0x3f803f80')
    k('v_lshrrev_b32 v2, 3, v1\nv_and_b32 v3, 7, v1\nv_and_b32 v4, 6, v2\nv_xor_b32 v3, v3, v4')
    k('v_lshlrev_b32 v10, 12, v2\nv_lshl_add_u32 v10, v3, 4, v10')
    stg_setup(k, 11)
    k('v_bfe_u32 v2, v1, 2, 2\nv_and_b32 v3, 3, v1\nv_lshl_add_u32 v4, v8, 2, v2')
    k('v_lshrrev_b32 v6, 1, v3\nv_and_b32 v3, 1, v3\nv_and_b32 v9, 6, v4\nv_xor_b32 v6, v6, v9')
    k('v_lshlrev_b32 v6, 4, v6\nv_lshl_add_u32 v6, v4, 7, v6\nv_lshl_add_u32 v6, v3, 3, v6')
    k('s_lshl_b32 s36, s20, 6')
    k('v_xor_b32 v16, s36, v6')
    for sg in range(1, 4): k(f'v_xor_b32 v{16+sg}, {32*sg}, v16')
    for sg in range(4): k(f'v_add_u32 v{20+sg}, 40960, v{16+sg}')
    k('s_lshl_b32 s36, s16, 5\ns_mul_i32 s35, s18, 10240')
    k('v_xor_b32 v24, s36, v6\nv_add_u32 v24, s35, v24')
    k('s_lshl_b32 s36, s19, 12')
    k('v_xor_b32 v2, v8, v7\nv_lshlrev_b32 v2, 4, v2\nv_lshl_add_u32 v2, v7, 8, v2\nv_add_u32 v2, s36, v2')
    for ks in range(4):
        k(f'v_xor_b32 v3, {64*ks}, v2\nv_add_u32 v{SA+2*ks}, s26, v3\nv_xor_b32 v3, {64*ks+4096}, v2\nv_add_u32 v{SA+2*ks+1}, s26, v3')
    k(f's_lshl_b32 s21, s17, 7\ns_lshl_b32 s36, s16, 16\ns_add_u32 s21, s21, s36\ns_add_u32 s21, s21, {WS_HT:#x}')
    k('s_lshl_b32 s25, s16, 11')

def stg_items(dma, c):
    for j in range(8):
        pre = [f's_add_u32 m0, s26, {(c % 2)*8192 + j*1024}']
        if j == 0: pre += [f's_add_u32 s55, s28, {c*256}']
        if j == 4: pre += ['s_add_u32 s55, s55, 65536']
        dma.add(pre, f'buffer_load_dwordx4 v{11+j%4}, s[12:15], s55 offen lds', 100+c)
def stg_read(dma, lg, c, wait=True):
    if wait: dma.upto(100+c); dma.vm.wait(dma.tok[100+c])
    for ks in range(4):
        for tau in range(2):
            lg.issue(f'ds_read_b128 {wreg(c, 8*ks+4*tau)}, v{SA+2*ks+tau} offset:{(c % 2)*8192}')

def phaseB(k, hiw):
    vm = Cnt(k, 'vmcnt', 63); lg = Cnt(k, 'lgkmcnt', 15)
    dma = Dma(k, vm)
    grp = [int(x) for x in E('FB_GRP', '0,1,1,2,2,2,3,3,3,3').split(',')]
    for s_ in range(10):
        for j in range(2):
            dma.add([f's_add_u32 m0, s25, {s_*8192 + j*1024}', f's_add_u32 s27, s21, {(s_*64 + j*8)*4096}'], 'buffer_load_dwordx4 v10, s[8:11], s27 offen sc1 lds', grp[s_])
    mark(k, 0, 'B')
    dma.upto(int(E('FB_PRO', 1)))
    mark(k, 1, 'B')
    stg_read(dma, lg, 0, False); stg_read(dma, lg, 1, False)
    for T_ in range(3):
        for p in range(3):
            for hp in range(2):
                k(f'v_pk_add_f32 {v(CS+4*T_+2*hp,2)}, {v(CS+4*T_+2*hp,2)}, {v(AC[0]+12*T_+4*p+2*hp,2)}')
    lg.all()
    stg_items(dma, 2); stg_items(dma, 3)
    if not T2E: w1_items(dma, [2], 103.5)
    def reads(g):
        off = g*4096; ar = 16
        if off >= 40960: off -= 40960; ar = 20
        b = HF + 16*(g % 3); out = []
        for sg in range(4):
            out += [f'ds_read_b64_tr_b16 {v(b+4*sg,2)}, v{ar+sg} offset:{off}', f'ds_read_b64_tr_b16 {v(b+4*sg+2,2)}, v{ar+sg} offset:{off+2048}']
        return out
    def mk(tiles, stats):
        def f(g):
            b = HF + 16*(g % 3); out = []
            for sg in range(4):
                if stats and sg < 2:
                    d = AC[2] + 8*sg
                    out.append(f'{MF} {v(d,4)}, {v(ONE,4)}, {v(b+4*sg,4)}, {"0" if g == 0 else v(d,4)}')
                    out.append(f'{MF} {v(d+4,4)}, {v(b+4*sg,4)}, {v(b+4*sg,4)}, {"0" if g == 0 else v(d+4,4)}')
            for sg in range(4):
                for T_ in tiles:
                    d = AC[T_] + 4*sg
                    out.append(f'{MF} {v(d,4)}, {a(80*T_+4*g,4)}, {v(b+4*sg,4)}, {"0" if g == 0 else v(d,4)}')
            return out
        return f
    mark(k, 2, 'B')
    dma.sync(0)
    mark(k, 3, 'B')
    def btouch():
        if hiw and int(E('B_TOUCH', 0)):
            L = k.lab('nt')
            k(f's_cmp_lg_u32 s16, 3\ns_cbranch_scc1 {L}')
            k('v_lshrrev_b32 v2, 2, v1\nv_lshlrev_b32 v2, 11, v2\nv_and_b32 v3, 3, v1\nv_lshl_add_u32 v2, v3, 7, v2')
            k('s_lshl_b32 s36, s2, 15\ns_add_u32 s36, s36, 1536')
            k('buffer_load_dword v15, v2, s[12:15], s36 offen')
            k(f'{L}:')
    resr = [f'ds_read_b64_tr_b16 {v(RES+2*j,2)}, v24 offset:{j*2048}' for j in range(5)]
    gemm_loop(k, lg, dma, 0, 20, reads, mk([0] if hiw else [0, 1], hiw), lambda g: grp[g//2], 1000, lambda g: float(E('FB_RATE0', 2)) if g < int(E('FB_G0', 4)) else float(E('FB_RATE', 6)), tail_reads=resr, hooks={int(E('FB_G0', 4)): btouch})
    mark(k, 8); mark(k, 4, 'B')
    if not hiw:
        stg_read(dma, lg, 2); stg_read(dma, lg, 3); lg.all()
        stg_items(dma, 4); stg_items(dma, 5)
    z2t = [0] if hiw else [0, 1]
    k(f's_lshl_b32 s36, s20, 9')
    k(f'v_lshlrev_b32 v3, 4, v7\nv_add_u32 v3, s36, v3\nv_xor_b32 v4, 512, v3\nv_add_u32 v3, {STAT}, v3\nv_add_u32 v4, {STAT}, v4')
    if hiw:
        k('v_and_b32 v2, 3, v1')
        k('v_cmp_eq_u32 vcc, 1, v2\nv_cmp_eq_u32 s[30:31], 2, v2\nv_cmp_eq_u32 s[32:33], 3, v2')
        k(f'v_mov_b32 v6, {fl(1/640)}')
        A_, B_ = [], []
        rec = []
        for sg in range(2):
            r = Rec(); S = AC[2] + 8*sg; Gm = S + 4
            r(f'v_cndmask_b32 v{Gm}, v{Gm}, v{Gm+1}, vcc\nv_cndmask_b32 v{Gm}, v{Gm}, v{Gm+2}, s[30:31]\nv_cndmask_b32 v{Gm}, v{Gm}, v{Gm+3}, s[32:33]')
            r(f'v_mul_f32 v{S}, v6, v{S}\nv_mul_f32 v{S+1}, v{S}, v{S}')
            r(f'v_fma_f32 v{S+1}, v{Gm}, v6, -v{S+1}\nv_max_f32 v{S+1}, 0, v{S+1}')
            ln_sigma(r, S, S+1, S+2)
            r(f'v_rcp_f32 v{Gm}, v{S+1}')
            r(f'v_mul_f32 v{S+2}, {fl(K1C)}, v{Gm}\nv_mul_f32 v{S+3}, v{Gm}, v{Gm}\nv_mul_f32 v{S+3}, v{S+3}, v{Gm}\nv_mul_f32 v{S+3}, {fl(K2C)}, v{S+3}')
            rec.append(r.L)
        for x, y in zip(*rec): k(x); k(y)
        k('s_mov_b32 exec_lo, 0x00f0000f\ns_mov_b32 exec_hi, 0xf0000f00')
        for sg in range(2): lg.issue(f'ds_write_b128 v3, {v(AC[2]+8*sg,4)} offset:{256*sg}')
        k('s_mov_b64 exec, -1')
    else:
        for _ in range(int(E('FB_X01', 8))): dma.one()
    lg.all()
    k('s_barrier')
    tks = [lg.issue(f'ds_read_b128 {v(MS+4*sg,4)}, v{3 + sg//2} offset:{256*(sg % 2)}') for sg in range(4)]
    if hiw:
        stg_read(dma, lg, 2); stg_read(dma, lg, 3); lg.all()
        stg_items(dma, 4); stg_items(dma, 5)
    mark(k, 5, 'B')
    def gelu(T_, ER=0, tks=None):
        prs = [(sg, hp) for sg in range(4) for hp in range(2)]
        for q in range(0, 8, 2):
            st = [[], []]
            if tks: lg.wait(tks[q//2])
            for u_ in range(2):
                sg, hp = prs[q+u_]
                z = AC[T_] + 4*sg + 2*hp; c = CS + 4*T_ + 2*hp; t = T + 2*u_
                ms = v(MS+4*sg, 2); kk = v(MS+4*sg+2, 2)
                st[u_] = [
                  f'v_pk_fma_f32 {v(z,2)}, {v(c,2)}, {ms}, {v(z,2)} op_sel_hi:[1,0,1] neg_lo:[0,1,0] neg_hi:[0,1,0]',
                  f'v_pk_mul_f32 {v(t,2)}, {v(z,2)}, {v(z,2)}',
                  f'v_pk_fma_f32 {v(t,2)}, {v(t,2)}, {kk}, {kk} op_sel:[0,1,0] op_sel_hi:[1,1,0]',
                  f'v_pk_mul_f32 {v(t,2)}, {v(t,2)}, {v(z,2)}',
                  f'v_exp_f32 v{t}, v{t}', f'v_exp_f32 v{t+1}, v{t+1}',
                  f'v_pk_fma_f32 {v(t,2)}, {v(t,2)}, {ms}, {ms} op_sel:[0,1,1] op_sel_hi:[1,1,1]',
                  f'v_rcp_f32 v{t}, v{t}', f'v_rcp_f32 v{t+1}, v{t+1}',
                  f'v_pk_mul_f32 {v(z,2)}, {v(z,2)}, {v(t,2)}']
            for n_, (x, y) in enumerate(zip(*st)):
                if ER and n_ % ER == 0: dma.pre()
                k(x); dma.fire(); k(y)
    for T_ in z2t: gelu(T_, 2 if hiw else int(E('FB_ER', 10)), tks)
    mark(k, 6, 'B')
    for sg in range(4):
        s1 = G + 2*sg; s2 = G + 8 + 2*sg; first = True
        for T_ in z2t:
            z = AC[T_] + 4*sg
            if first:
                k(f'v_pk_add_f32 {v(s1,2)}, {v(z,2)}, {v(z+2,2)}\nv_pk_mul_f32 {v(s2,2)}, {v(z,2)}, {v(z,2)}')
            else:
                k(f'v_pk_add_f32 {v(s1,2)}, {v(s1,2)}, {v(z,2)}\nv_pk_add_f32 {v(s1,2)}, {v(s1,2)}, {v(z+2,2)}')
                k(f'v_pk_fma_f32 {v(s2,2)}, {v(z,2)}, {v(z,2)}, {v(s2,2)}')
            k(f'v_pk_fma_f32 {v(s2,2)}, {v(z+2,2)}, {v(z+2,2)}, {v(s2,2)}')
            first = False
    for q in range(8): k(f'v_add_f32 v{G+2*q}, v{G+2*q}, v{G+2*q+1}')
    for b in (G, G+8): k(f'v_permlane32_swap_b32 v{b}, v{b+4}\nv_permlane32_swap_b32 v{b+2}, v{b+6}')
    for b in (G, G+8): k(f'v_add_f32 v{b}, v{b}, v{b+4}\nv_add_f32 v{b+2}, v{b+2}, v{b+6}')
    for b in (G, G+8): k(f'v_permlane16_swap_b32 v{b}, v{b+2}')
    k(f'v_add_f32 v{T}, v{G}, v{G+2}\nv_add_f32 v{T+1}, v{G+8}, v{G+10}')
    lg.issue(f'ds_write_b64 v27, {v(T,2)}')
    def barX():
        k('s_barrier')
        mark(k, 9); mark(k, 7, 'B')
    lg.all()
    if not hiw:
        barX()
        L = k.lab('npub')
        k(f's_cmp_lg_u32 s16, 0\ns_cbranch_scc1 {L}')
        k(f'v_lshlrev_b32 v9, 3, v1\nv_add_u32 v2, {PART}, v9')
        for w in range(4): k(f'ds_read_b64 {v(G+2*w,2)}, v2 offset:{512*w}')
        k('s_lshl_b32 s36, s18, 9\ns_add_u32 s36, s36, s29')
        k('s_waitcnt lgkmcnt(0)')
        k(f'v_pk_add_f32 {v(G,2)}, {v(G,2)}, {v(G+2,2)}\nv_pk_add_f32 {v(G+4,2)}, {v(G+4,2)}, {v(G+6,2)}\nv_pk_add_f32 {v(G,2)}, {v(G,2)}, {v(G+4,2)}')
        k(f'buffer_store_dwordx2 {v(G,2)}, v9, s[8:11], s36 offen sc1')
        k(f'{L}:')
    while dma.q: dma.one()
    if not T2E: vm.wait(dma.tok[103.5])
    def readB():
        stg_read(dma, lg, 4); stg_read(dma, lg, 5)
    def startC():
        lg.all()
        stg_items(dma, 6); stg_items(dma, 7)
    tk = {}
    def statloads():
        for q in range(8):
            vm.issue(f'buffer_load_dwordx2 {v(G+2*q,2)}, v25, s[8:11], s29 offen offset:{q*512} sc1')
        tk['s'] = vm.n
    def z1out(T_, jexpr_sreg):
        k(f's_mul_i32 s36, s20, 6144\ns_add_u32 s36, s36, {jexpr_sreg}\ns_mul_i32 s35, s20, 12288\ns_sub_u32 s35, s36, s35')
        k('v_add_u32 v2, s36, v5\nv_add_u32 v3, s35, v5')
        for sg in range(4):
            z = AC[T_] + 4*sg
            k(f'v_cvt_pk_bf16_f32 v{z}, v{z}, v{z+1}\nv_cvt_pk_bf16_f32 v{z+1}, v{z+2}, v{z+3}')
            lg.issue(f'ds_write_b64 v{2 + sg//2}, {v(z,2)} offset:{3072*sg}')
    def normalize():
        if hiw: k('s_add_u32 s30, s16, 2')
        else: k('s_lshl_b32 s30, s16, 1')
        k(f's_mul_i32 s31, s18, 6\ns_add_u32 s30, s30, s31\ns_lshl_b32 s30, s30, 16\ns_lshl_b32 s31, s17, 11\ns_add_u32 s30, s30, s31\ns_add_u32 s30, s30, {WS_Z2:#x}')
        k('s_lshl_b32 s31, s20, 10\ns_add_u32 s32, s30, s31\ns_xor_b32 s31, s31, 1024\ns_add_u32 s33, s30, s31')
        mark(k, 10); mark(k, 9 if hiw else 8, 'B')
        vm.wait(tk['s'])
        Lp = k.lab('spoll'); Lok = k.lab('sok')
        k('s_mov_b32 s37, 0')
        k(f'{Lp}:')
        k(f'v_min_f32 v2, v{G+1}, v{G+3}')
        for q in range(2, 8, 2): k(f'v_min3_f32 v2, v2, v{G+2*q+1}, v{G+2*q+3}')
        k('v_cmp_gt_f32 vcc, 0, v2')
        k(f's_cbranch_vccz {Lok}')
        k(f's_add_u32 s37, s37, 1\ns_cmp_gt_u32 s37, {SPIN}')
        k(f's_cbranch_scc1 {Lok}')
        n0 = vm.n; statloads(); vm.n = n0
        k('s_waitcnt vmcnt(0)')
        k(f's_branch {Lp}')
        k(f'{Lok}:')
        mark(k, 11); mark(k, 11 if hiw else 10, 'B')
        for st in (8, 4, 2):
            for q in range(0, st, 2): k(f'v_pk_add_f32 {v(G+q,2)}, {v(G+q,2)}, {v(G+q+st,2)}')
        k(f'v_mov_b32 v4, {fl(1/768)}')
        k(f'v_mul_f32 v{G}, v4, v{G}\nv_mul_f32 v{G+2}, v{G}, v{G}\nv_fma_f32 v{G+1}, v{G+1}, v4, -v{G+2}\nv_max_f32 v{G+1}, 0, v{G+1}')
        ln_finish(k, G, G+1, G+2)
        k(f'v_mul_f32 v{G}, v{G}, -v{G+1}')
        N = G + 8
        for e in range(2): k(f'v_mov_b32 v{N+e}, v{G+e}\nv_mov_b32 v{N+4+e}, v{G+e}')
        for e in range(2): k(f'v_permlane32_swap_b32 v{N+e}, v{N+4+e}')
        for e in range(2): k(f'v_mov_b32 v{N+2+e}, v{N+e}\nv_mov_b32 v{N+6+e}, v{N+4+e}')
        for e in range(2): k(f'v_permlane16_swap_b32 v{N+e}, v{N+2+e}\nv_permlane16_swap_b32 v{N+4+e}, v{N+6+e}')
        for T_ in z2t:
            for sp in range(2):
                P = AC[T_] + 8*sp
                for u_ in range(2):
                    sg = 2*sp + u_; z = AC[T_] + 4*sg; ms = v(N+2*sg, 2)
                    for hp in range(2):
                        k(f'v_pk_fma_f32 {v(z+2*hp,2)}, {v(z+2*hp,2)}, {ms}, {ms} op_sel:[0,1,0] op_sel_hi:[1,1,0]')
                    k(f'v_cvt_pk_bf16_f32 v{P+2*u_}, v{z}, v{z+1}\nv_cvt_pk_bf16_f32 v{P+2*u_+1}, v{z+2}, v{z+3}')
                k(f'v_permlane16_swap_b32 v{P}, v{P+2}\nv_permlane16_swap_b32 v{P+1}, v{P+3}')
                if T_ == 1: k(f's_add_u32 s{32+sp}, s{32+sp}, 65536')
                vm.issue(f'buffer_store_dwordx4 {v(P,4)}, v26, s[8:11], s{32+sp} offen sc1')
        k(f's_lshl_b32 s30, s18, 5\ns_add_u32 s31, s30, s17\ns_lshl_b32 s31, s31, 7\ns_add_u32 s31, s31, {F2:#x}')
        tk['z'] = vm.n
        mark(k, 13 if hiw else 12, 'B')
    def sig():
        signal(k, vm, 's31', tk['z'])
        mark(k, 12); mark(k, 14, 'B')
    R2 = float(E('FB_RATE2', 2))
    def mkhooks(pairs):
        d = {}
        for g, f in pairs: d.setdefault(g, []).append(f)
        return {g: (lambda fs=fs: [f() for f in fs]) for g, fs in d.items()}
    phaseC_bases(k)
    if not hiw:
        h = [int(x) for x in E('FB_H01', '13,6,14,11,18').split(',')]
        assert h[0] >= 8 and h[2] >= h[0]
        hk = mkhooks(zip(h, [readB, statloads, startC, normalize, sig]))
        gemm_loop(k, lg, dma, 0, 20, reads, mk([2], False), lambda g: -1, 1000, R2, hooks=hk)
        if 20 in hk: hk[20]()
        gelu(2, 2)
        if 21 in hk: hk[21]()
        k(f's_lshl_b32 s34, s20, 3\ns_add_u32 s34, s34, {Z1L}')
        z1out(2, 's34')
        while dma.q: dma.one()
        k(f'v_and_b32 v2, 31, v1\nv_lshlrev_b32 v2, 7, v2\ns_lshl_b32 s30, s30, 7\ns_add_u32 s30, s30, {F2:#x}')
        poll(k, vm, 2, 's30')
        k('s_barrier')
        mark(k, 13)
        for s_ in range(3):
            for hk_ in range(2):
                for jf in range(3):
                    k(f's_add_u32 s27, s21, {hk_*32768 + jf*65536 + s_*2048}\ns_add_u32 m0, s56, {s_*24576 + hk_*12288 + jf*2048}')
                    for hf in range(2): k(f'buffer_load_dwordx4 v5, s[8:11], s27 offen offset:{hf*1024} sc1 lds')
            if s_ == 0: stg_read(dma, lg, 6, False); stg_read(dma, lg, 7, False)
    else:
        h = [int(x) for x in E('FB_H23', '3,11,7,12,10,14').split(',')]
        assert h[1] >= 8 and h[3] >= h[1]
        hk = mkhooks(zip(h, [barX, readB, statloads, startC, normalize, sig]))
        gemm_loop(k, lg, dma, 0, 20, reads, mk([1, 2], False), lambda g: -1, 1000, 2*R2, hooks=hk)
        lg.all()
        YP = int(E('FB_YP', 1))
        if YP == 0: k('s_barrier')
        gelu(1, 2)
        while dma.q: dma.one()
        if YP == 1: k('s_barrier')
        k(f's_lshl_b32 s34, s20, 10\ns_add_u32 s34, s34, {Z1L+1024}')
        z1out(1, 's34')
        gelu(2)
        k('s_add_u32 s34, s34, 8')
        z1out(2, 's34')
        stg_read(dma, lg, 6); stg_read(dma, lg, 7)
        mark(k, 15, 'B')
    lg.all()

def phaseC_bases(k):
    k(f's_mul_i32 s21, s18, 6\ns_mul_i32 s36, s20, 3\ns_add_u32 s21, s21, s36\ns_lshl_b32 s21, s21, 16\ns_lshl_b32 s36, s19, 15\ns_add_u32 s21, s21, s36\ns_add_u32 s21, s21, {WS_Z2:#x}')
    k('s_mul_i32 s56, s16, 6144')

def phaseC(k):
    vm = Cnt(k, 'vmcnt', 63); lg = Cnt(k, 'lgkmcnt', 15)
    dma = Dma(k, vm)
    NS = 5; RED = 122880
    k('s_mov_b32 s25, s56')
    k(f's_mul_i32 s22, s18, 122880\ns_add_u32 s22, s22, s25\ns_add_u32 s22, s22, {WS_WO:#x}')
    mark(k, 0, 'C')
    for s_ in range(3): vm.n += 12; dma.tok[s_] = vm.n
    for s_ in range(3, 16):
        sl = s_ % NS; af = s_ - NS + 2 if s_ >= NS else 0
        for jf in range(3):
            for hf in range(2):
                pre = [f's_add_u32 s27, s21, {jf*65536 + s_*2048}', f's_add_u32 m0, s25, {sl*24576 + jf*2048}'] if hf == 0 else []
                dma.add(pre, f'buffer_load_dwordx4 v5, s[8:11], s27 offen offset:{hf*1024} sc1 lds', s_, af)
    for s_ in range(11, 16):
        sl = s_ % NS
        for hf in range(2):
            for j in range(3):
                pre = [f's_add_u32 s27, s22, {((sl-1) % 5)*24576 + hf*3072}', f's_add_u32 m0, s25, {sl*24576 + hf*3072}'] if j == 0 else []
                dma.add(pre, f'buffer_load_dwordx4 v5, s[8:11], s27 offen offset:{j*1024} sc1 lds', 50, min(s_+2, 16))
    ZA = 16
    k('v_bfe_u32 v2, v1, 2, 2\nv_and_b32 v3, 1, v8\nv_lshl_add_u32 v2, v3, 2, v2\nv_lshrrev_b32 v3, 1, v8\nv_lshl_add_u32 v2, v3, 4, v2')
    k('v_and_b32 v3, 3, v1\nv_lshlrev_b32 v3, 3, v3\nv_lshl_add_u32 v2, v2, 5, v3')
    k('s_mul_i32 s36, s19, 12288')
    k(f'v_add_u32 v{ZA}, s36, v2\nv_add_u32 v{ZA+1}, 49152, v{ZA}\nv_add_u32 v{ZA+2}, 98304, v{ZA}')
    k('s_lshl_b32 s23, s20, 1\ns_add_u32 s23, s23, s19')
    k('s_lshl_b32 s36, s17, 2\ns_add_u32 s24, s36, s23')
    k('s_lshl_b32 s36, s24, 5')
    k('v_lshl_add_u32 v2, v7, 1, s36')
    BS = 20
    tB = vm.issue(f'global_load_ushort v{BS}, v2, s[38:39]')
    FR = 68; ACC = 140
    lg.all()
    mark(k, 1, 'C')
    dma.sync(0)
    mark(k, 2, 'C')
    dma.novm = int(E('X_NOVM', 0)); dma.nobar = int(E('X_NOBAR', 0)); dma.nodma = int(E('X_NODMA', 0))
    def reads(g):
        s_, ks = g // 2, g % 2; sl = s_ % NS; b = FR + 24*(g % 3)
        ar = ZA + sl//2; off = (sl % 2)*24576 + ks*1024
        out = []
        for ft in range(6):
            out += [f'ds_read_b64_tr_b16 {v(b+4*ft,2)}, v{ar} offset:{off+ft*2048}', f'ds_read_b64_tr_b16 {v(b+4*ft+2,2)}, v{ar} offset:{off+ft*2048+256}']
        return out[:int(E('X_NRD', 12))]
    def mfmas(g):
        b = FR + 24*(g % 3); out = []
        for ft in range(6):
            for tau in range(2):
                d = ACC + 24*tau + 4*ft
                out.append(f'{MF} {v(d,4)}, {v(b+4*ft,4)}, {wreg(g//4, 8*(g % 4)+4*tau)}, {"0" if g == 0 else v(d,4)}')
        return out
    ZR = 24
    k(f's_mul_i32 s36, s23, 3072\ns_add_u32 s36, s36, {Z1L}')
    k('v_add_u32 v19, s36, v5')
    tail = [f'ds_read_b128 {v(ZR+4*q,4)}, v19 offset:{1024*q}' for q in range(3)]
    gemm_loop(k, lg, dma, 0, 32, reads, mfmas, lambda g: g//2, int(E('FC_LEAD', 1000)), float(E('FC_RATE', 3)), tail_reads=tail, hooks={4*i: (lambda i=i: mark(k, 2+i, 'C')) for i in range(1, 8)})
    mark(k, 10, 'C')
    while dma.ready(): dma.one()
    mark(k, 14); mark(k, 11, 'C')
    k(f's_add_u32 s36, s25, {RED}\ns_xor_b32 s35, s16, 2\ns_mul_i32 s35, s35, 6144\ns_add_u32 s35, s35, {RED}')
    k('v_add_u32 v2, s36, v5\nv_add_u32 v3, s35, v5')
    for ft in range(6): lg.issue(f'ds_write_b128 v2, {v(ACC+24+4*ft,4)} offset:{1024*ft}')
    lg.all()
    k('s_barrier'); dma.bar = 16
    mark(k, 12, 'C')
    tk = [lg.issue(f'ds_read_b128 {v(FR+4*ft,4)}, v3 offset:{1024*ft}') for ft in range(6)]
    vm.wait(tB)
    k(f'v_lshlrev_b32 v{BS}, 16, v{BS}')
    k(f's_mul_i32 s30, s24, 24576\ns_mul_i32 s31, s18, 3072\ns_add_u32 s30, s30, s31\ns_add_u32 s30, s30, {WS_P:#x}')
    TT = 36
    for ft in range(6):
        d = ACC + 4*ft; z = ZR + 2*ft; P = ACC + 8*(ft//2) + 2*(ft % 2)
        lg.wait(tk[ft])
        for hp in range(2):
            k(f'v_pk_add_f32 {v(d+2*hp,2)}, {v(d+2*hp,2)}, {v(FR+4*ft+2*hp,2)}')
            k(f'v_lshlrev_b32 v{TT+2*hp}, 16, v{z+hp}\nv_and_b32 v{TT+2*hp+1}, 0xffff0000, v{z+hp}')
            k(f'v_pk_add_f32 {v(d+2*hp,2)}, {v(d+2*hp,2)}, {v(BS,2)} op_sel_hi:[1,0]')
            k(f'v_pk_mul_f32 {v(d+2*hp,2)}, {v(d+2*hp,2)}, {v(TT+2*hp,2)}')
        k(f'v_cvt_pk_bf16_f32 v{P}, v{d}, v{d+1}\nv_cvt_pk_bf16_f32 v{P+1}, v{d+2}, v{d+3}')
        if ft % 2: vm.issue(f'buffer_store_dwordx4 {v(P-2,4)}, v5, s[8:11], s30 offen offset:{(ft//2)*1024} sc1')
    k(f's_lshl_b32 s30, s17, 3\ns_add_u32 s31, s30, s18\ns_lshl_b32 s31, s31, 7\ns_add_u32 s31, s31, {F3:#x}')
    mark(k, 13, 'C')
    signal(k, vm, 's31')
    mark(k, 15); mark(k, 14, 'C'); mark(k, 10, 'D')
    return vm, lg, dma

def phaseD(k, vm, lg, dma):
    mark(k, 0, 'D')
    k('v_add_u32 v6, 61440, v5')
    def waddr(q):
        o = (q*1024 + 24576) % 122880
        return f'v5 offset:{o}' if o < 61440 else f'v6 offset:{o-61440}'
    k(f'v_and_b32 v2, 7, v1\nv_lshlrev_b32 v2, 7, v2\ns_lshl_b32 s30, s17, 10\ns_add_u32 s30, s30, {F3:#x}')
    for q in range(60):
        lg.issue(f'ds_read_b128 {a(4*q,4)}, {waddr(q)}')
        if q % 4 == 3: dma.one()
    assert not dma.q
    k(f's_lshl_b32 s31, s17, 2\ns_add_u32 s31, s31, s16\ns_mul_i32 s32, s31, 24576\ns_add_u32 s32, s32, {WS_P:#x}')
    mark(k, 1, 'D')
    poll(k, vm, 2, 's30')
    mark(k, 2, 'D')
    PF = 68; FR = 164; ACC = 224
    pt = []
    def pld():
        g = len(pt)
        if g >= 24: return
        if g % 4 == 0 and g: k('s_add_u32 s32, s32, 4096')
        pt.append(vm.issue(f'buffer_load_dwordx4 {v(PF+4*g,4)}, v5, s[8:11], s32 offen offset:{(g % 4)*1024} sc1'))
    for _ in range(int(E('FD_PRE', 10))): pld()
    k('s_mul_i32 s33, s31, 20480\ns_mul_i32 s34, s18, 160\ns_add_u32 s33, s33, s34')
    k('v_mul_u32_u24 v9, 1280, v7\nv_lshl_add_u32 v10, v8, 3, v9')
    k('v_and_b32 v3, 1, v8\nv_lshl_add_u32 v9, v3, 5, v9\nv_lshrrev_b32 v3, 1, v8\nv_lshl_add_u32 v9, v3, 4, v9')
    mark(k, 3, 'D')
    lg.all()
    ft = {}
    def rd(g): return [f'ds_read_b128 {v(FR+20*(g % 3)+4*j,4)}, {waddr(5*g+j)}' for j in range(5)]
    for g in range(24):
        vm.wait(pt[g])
        if g % 6 == 0: mark(k, 4+g//6, 'D')
        if g == 9: k('s_barrier')
        if g >= 12: lg.wait(ft[g])
        rr = rd(g+2) if 12 <= g+2 < 24 else []
        for j in range(5):
            A = a(20*g+4*j, 4) if g < 12 else v(FR+20*(g % 3)+4*j, 4)
            k(f'{MF} {v(ACC+4*j,4)}, {A}, {v(PF+4*g,4)}, {"0" if g == 0 else v(ACC+4*j,4)}')
            if j in (0, 3): pld()
            if rr: ft[g+2] = lg.issue(rr.pop(0))
    TT = 36
    mark(k, 8, 'D')
    OST = E('F_OST', '')
    for j in range(5):
        d = ACC + 4*j; P = ACC + 8*(j//2) + 2*(j % 2)
        for hp in range(2):
            k(f'v_lshlrev_b32 v{TT+2*hp}, 16, v{RES+2*j+hp}\nv_and_b32 v{TT+2*hp+1}, 0xffff0000, v{RES+2*j+hp}')
            k(f'v_pk_add_f32 {v(d+2*hp,2)}, {v(d+2*hp,2)}, {v(TT+2*hp,2)}')
        k(f'v_cvt_pk_bf16_f32 v{P}, v{d}, v{d+1}\nv_cvt_pk_bf16_f32 v{P+1}, v{d+2}, v{d+3}')
        if j % 2:
            k(f'v_permlane16_swap_b32 v{P-2}, v{P}\nv_permlane16_swap_b32 v{P-1}, v{P+1}')
            k(f'buffer_store_dwordx4 {v(P-2,4)}, v9, s[40:43], s33 offen offset:{32*(j-1)} {OST}')
        elif j == 4:
            k(f'buffer_store_dwordx2 {v(P,2)}, v10, s[40:43], s33 offen offset:128 {OST}')

def helper0(k, vm):
    lg = Cnt(k, 'lgkmcnt', 15)
    k('v_lshrrev_b32 v2, 2, v1\nv_and_b32 v3, 3, v1\nv_mul_u32_u24 v2, 160, v2\nv_lshl_add_u32 v2, v3, 3, v2\ns_lshl_b32 s27, s16, 5\nv_add_u32 v57, s27, v2')
    tk = []
    for p in range(5):
        lg.issue(f'ds_read_b64_tr_b16 {v(12+4*p,2)}, v57 offset:{p*5120}')
        tk.append(lg.issue(f'ds_read_b64_tr_b16 {v(14+4*p,2)}, v57 offset:{p*5120+2560}'))
    for r in range(4): k(f'v_mov_b32 v{48+r}, 0x3f803f80')
    k('s_and_b32 s45, s44, 3\ns_and_b32 s46, s44, -4\ns_add_u32 s46, s46, s16')
    k(f's_mul_i32 s47, s46, 20\ns_mul_i32 s50, s45, 5\ns_add_u32 s47, s47, s50\ns_lshl_b32 s47, s47, 10\ns_add_u32 s47, s47, {WS_W1:#x}\ns_add_u32 s50, s47, 4096')
    for p in range(5):
        lg.wait(tk[p])
        k(f'{MF} v[44:47], {v(12+4*p,4)}, v[48:51], {"0" if p == 0 else "v[44:47]"}')
        vm.issue(f'buffer_store_dwordx4 {v(12+4*p,4)}, v5, s[8:11], ' + (f's47 offen offset:{p*1024} sc1' if p < 4 else 's50 offen sc1'))
    k(f's_mul_i32 s47, s45, 6144\ns_lshl_b32 s50, s46, 6\ns_add_u32 s47, s47, s50\ns_add_u32 s47, s47, {WS_CS:#x}')
    k('v_lshlrev_b32 v2, 4, v8')
    k('s_mov_b32 exec_lo, 0x00010001\ns_mov_b32 exec_hi, 0x00010001')
    tS = vm.issue('buffer_store_dwordx4 v[44:47], v2, s[8:11], s47 offen sc1')
    k('s_mov_b64 exec, -1')
    for p in range(3):
        vm.issue(f'global_load_dwordx4 {v(164+4*p,4)}, v191, s[48:49]')
        if p < 2: k(f'v_add_u32 v191, {32*1280}, v191')
    k(f's_lshl_b32 s47, s44, 7\ns_add_u32 s47, s47, {F0B:#x}')
    mark(k, 12, 'H')
    signal(k, vm, 's47', tS)

def helper1(k):
    for p in range(3): k(f'ds_write_b128 v56, {v(164+4*p,4)} offset:{p*5120}')
    k('s_lshr_b32 s47, s44, 3\ns_lshl_b32 s47, s47, 2\ns_add_u32 s47, s47, s16\ns_mul_i32 s48, s47, 52\ns_lshr_b32 s48, s48, 8\ns_mul_i32 s49, s48, 5\ns_sub_u32 s49, s47, s49')
    k(f's_and_b32 s47, s44, 7\ns_mul_i32 s47, s47, 15\ns_mul_i32 s48, s48, 120\ns_add_u32 s47, s47, s48\ns_add_u32 s47, s47, s49\ns_lshl_b32 s47, s47, 10\ns_add_u32 s47, s47, {WS_WO:#x}')
    k('s_waitcnt lgkmcnt(0)\ns_barrier')
    for p in range(3):
        k(f'ds_read_b64_tr_b16 {v(12+4*p,2)}, v57 offset:{p*5120}\nds_read_b64_tr_b16 {v(14+4*p,2)}, v57 offset:{p*5120+2560}')
    k('s_waitcnt lgkmcnt(0)\ns_barrier')
    L = k.lab('nwo')
    k(f's_cmp_ge_u32 s44, 80\ns_cbranch_scc1 {L}')
    for p in range(3):
        k(f'buffer_store_dwordx4 {v(12+4*p,4)}, v5, s[8:11], s47 offen sc1')
        if p < 2: k('s_add_u32 s47, s47, 5120')
    k(f'{L}:')

def gen_ks():
    k = Kern(NAME, 256, 256, 163840)
    k.short = 'ks'
    Lend = 'Lks_end'
    k(f's_cmp_ge_u32 s2, 256\ns_cbranch_scc1 {Lend}')
    stamp_begin(k)
    k('s_load_dwordx16 s[44:59], s[0:1], 0')
    k('s_load_dwordx2 s[6:7], s[0:1], 112')
    k('s_load_dwordx4 s[28:31], s[0:1], 96')
    k('s_load_dwordx8 s[20:27], s[0:1], 64')
    k('s_memrealtime s[4:5]')
    k('s_getpc_b64 s[18:19]')
    k('Lks_pc:')
    k(f's_sub_u32 s18, s18, Lks_pc-{NAME}\ns_subb_u32 s19, s19, 0')
    k('s_lshr_b32 s17, s2, 3\ns_lshl_b32 s17, s17, 11')
    k(f'v_lshrrev_b32 v2, 4, v0\nv_lshlrev_b32 v2, 7, v2\nv_add_u32 v2, s17, v2\nv_min_u32 v2, Lcode_end-{NAME}-4, v2')
    k('global_load_dword v239, v2, s[18:19]')
    k('v_lshrrev_b32 v5, 6, v0')
    k('v_readfirstlane_b32 s16, v5')
    k('v_and_b32 v1, 63, v0\nv_lshlrev_b32 v5, 4, v1\nv_and_b32 v7, 15, v1\nv_lshrrev_b32 v8, 4, v1')
    k('v_lshrrev_b32 v2, 5, v0\nv_and_b32 v3, 31, v0\nv_lshlrev_b32 v3, 3, v3')
    k('v_mul_u32_u24 v50, 1280, v2\ns_mul_i32 s3, s2, 10240\nv_add3_u32 v50, v50, v3, s3')
    k(f'v_mul_u32_u24 v51, 1344, v2\nv_add_u32 v51, v51, v3\nv_add_u32 v51, {LNB}, v51')
    ln1_addr(k)
    k('s_lshl_b32 s3, s2, 2\ns_add_u32 s3, s3, s16')
    k('s_mul_i32 s17, s3, 384\nv_lshl_add_u32 v2, v1, 1, s17\ns_lshl_b32 s17, s3, 1\nv_mov_b32 v3, s17')
    for r in list(range(PR, PR+13)) + [AUX, AP0, AST, 190, 191, 132, 133, 134, 135]: k(f'v_mov_b32 v{r}, 0')
    k('s_lshl_b32 s34, s3, 1\ns_and_b32 s34, s34, -4')
    k('s_waitcnt lgkmcnt(0)')
    L = k.lab('nnw')
    k(f's_cmp_lg_u32 s3, 0\ns_cbranch_scc1 {L}')
    k('s_or_b32 s4, s4, 1\nv_mov_b32 v4, 0\nv_mov_b32 v6, s4\ns_mov_b64 exec, 1')
    k('global_store_dword v4, v6, s[30:31] sc1')
    k('s_mov_b64 exec, -1')
    k(f'{L}:')
    for q in range(5): k(f'global_load_dwordx2 {v(12+2*q,2)}, v50, s[44:45] offset:{q*256}')
    mark(k, 0)
    k('s_cmp_ge_u32 s2, 160\ns_cbranch_scc1 Lks_h0')
    def common_setup():
        srd(k, 8, 6, WS_SIZE); srd(k, 12, 22, 2048*4096); srd(k, 40, 28, 2048*1280)
        k('s_mov_b64 s[32:33], s[30:31]')
        k('s_mov_b64 s[38:39], s[24:25]')
        cb = MAPB
        k(f's_and_b32 s17, s2, 7\ns_lshr_b32 s17, s17, {3-cb}\ns_lshl_b32 s17, s17, {5-cb}\ns_lshr_b32 s18, s2, {3+cb}\ns_add_u32 s17, s17, s18')
        k(f's_and_b32 s18, s2, {(1 << (3-cb))-1}\ns_lshl_b32 s18, s18, {cb}\ns_lshr_b32 s19, s2, 3\ns_and_b32 s19, s19, {(1 << cb)-1}\ns_add_u32 s18, s18, s19')
        k('s_lshr_b32 s19, s16, 1\ns_and_b32 s20, s16, 1')
        k('s_lshl_b32 s25, s16, 1\ns_add_u32 s26, s16, 2\ns_cmp_lt_u32 s16, 2')
        k('s_cselect_b32 s22, s25, s26\ns_add_u32 s22, s22, 48')
        k('s_add_u32 s26, s25, 49\ns_sub_u32 s27, s25, 2\ns_cmp_lt_u32 s16, 2\ns_cselect_b32 s23, s26, s27')
        k('s_sub_u32 s27, s25, 1\ns_cmp_lt_u32 s16, 2\ns_cselect_b32 s24, s16, s27')
        k('s_mul_i32 s25, s18, 6')
        for r in (22, 23, 24): k(f's_add_u32 s{r}, s{r}, s25\ns_lshl_b32 s{r+35}, s{r}, 6\ns_add_u32 s{r+35}, s{r+35}, {WS_CS:#x}\ns_mul_i32 s{r}, s{r}, 20480\ns_add_u32 s{r}, s{r}, {WS_W1:#x}')
        k(f's_lshl_b32 s29, s17, 12\ns_add_u32 s29, s29, {WS_ST:#x}')
        k('s_lshl_b32 s27, s18, 9\ns_add_u32 s27, s27, s29\ns_lshl_b32 s26, s16, 7\ns_add_u32 s27, s27, s26')
        k('v_lshlrev_b32 v2, 3, v7\nv_mov_b32 v10, -1.0\nv_mov_b32 v11, -1.0')
        k('buffer_store_dwordx2 v[10:11], v2, s[8:11], s27 offen sc1')
    k('global_load_short_d16_hi v68, v3, s[54:55]')
    for g in range(3):
        for i in range(4): k(f'global_load_short_d16_hi v{PR+4*g+i}, v2, s[{46+2*i}:{47+2*i}] offset:{128*g}')
    k('s_load_dword s35, s[56:57], s34')
    PFS = int(E('C_PFS', 0))
    k('s_mov_b64 s[4:5], s[20:21]\ns_mov_b64 s[36:37], s[26:27]')
    PFW = int(E('C_PFW', 0))
    def pfw_addr():
        k('v_min_u32 v2, 23, v1\nv_lshlrev_b32 v2, 7, v2\ns_mul_i32 s27, s3, 3072\nv_add_u32 v2, s27, v2')
        k('v_min_u32 v3, 11, v1\nv_lshlrev_b32 v3, 7, v3\ns_mul_i32 s27, s3, 1536\nv_add_u32 v3, s27, v3')
    if PFW == 2:
        pfw_addr(); k('global_load_dword v190, v2, s[4:5]\nglobal_load_dword v191, v3, s[36:37]')
    common_setup()
    conv_early(k)
    conv_late(k)
    stg_setup(k, 132)
    conv_bands(k)
    if PFW == 1: pfw_addr()
    k(f's_waitcnt vmcnt({14 + 2*(PFW == 2)})')
    if PFW == 1: k('global_load_dword v190, v2, s[4:5]\nglobal_load_dword v191, v3, s[36:37]')
    k('s_branch Lks_ln')
    k('Lks_h0:')
    k('s_mov_b64 s[46:47], s[20:21]\ns_mov_b64 s[48:49], s[26:27]\ns_sub_u32 s44, s2, 160')
    common_setup()
    f0b_addr(k)
    k('v_lshrrev_b32 v2, 3, v0\nv_and_b32 v3, 7, v0\nv_lshlrev_b32 v3, 4, v3')
    k(f's_and_b32 s45, s44, 3\ns_mul_i32 s45, s45, {160*3072}\ns_lshr_b32 s27, s44, 2\ns_lshl_b32 s27, s27, 7\ns_add_u32 s45, s45, s27')
    k('v_mul_u32_u24 v4, 3072, v2\nv_add3_u32 v190, v4, v3, s45')
    k(f's_min_u32 s27, s44, 79\ns_and_b32 s45, s27, 7\ns_mul_i32 s45, s45, {96*1280}\ns_lshr_b32 s27, s27, 3\ns_lshl_b32 s27, s27, 7\ns_add_u32 s45, s45, s27')
    k('v_mul_u32_u24 v4, 1280, v2\nv_add3_u32 v191, v4, v3, s45')
    k('v_mul_u32_u24 v56, 160, v2\nv_add_u32 v56, v56, v3')
    k('s_waitcnt vmcnt(1)')
    k('Lks_ln:')
    mark(k, 1)
    ln1(k)
    k('s_cmp_ge_u32 s2, 160\ns_cbranch_scc1 Lks_h1')
    k('s_and_b32 s50, s3, 1\ns_xor_b32 s50, s50, 1\ns_lshl_b32 s50, s50, 4\ns_lshl_b32 s51, s35, s50\ns_lshr_b32 s51, s51, 16')
    k('v_mov_b32 v2, 0x3f80\nv_mov_b32 v3, s51\nv_cmp_gt_u32 vcc, 2, v8\nv_cndmask_b32 v2, v3, v2, vcc')
    for q in range(4): k(f'v_mul_u32_u24 v{XD+q}, v2, v{XD+q}')
    k(f's_waitcnt vmcnt({7 + 2*bool(PFW)})')
    if PFS:
        k('v_lshrrev_b32 v2, 2, v1\nv_lshlrev_b32 v2, 11, v2\nv_and_b32 v3, 3, v1\nv_lshl_add_u32 v2, v3, 7, v2')
        for j in range(PFS):
            k(f's_add_u32 s45, s3, {640*j}\ns_min_u32 s45, s45, 1023')
            k('s_lshr_b32 s27, s45, 8\ns_lshl_b32 s27, s27, 9\ns_and_b32 s45, s45, 255\ns_lshl_b32 s45, s45, 15\ns_add_u32 s45, s45, s27')
            k(f'buffer_load_dword v{186+j}, v2, s[12:15], s45 offen')
    def sig0():
        k(f's_waitcnt vmcnt({PFS})')
        get_nonce(k)
        signal(k, Cnt(k, 'vmcnt', 63), 's30')
        mark(k, 2)
    kgen(k, sig0)
    phaseA(k)
    k('s_branch Lks_B')
    k('Lks_h1:')
    k('s_waitcnt vmcnt(5)')
    get_nonce(k)
    vm = Cnt(k, 'vmcnt', 63)
    for p in range(5):
        vm.issue(f'global_load_dwordx4 {v(144+4*p,4)}, v190, s[46:47]')
        if p < 4: k(f'v_add_u32 v190, {32*3072}, v190')
    mark(k, 7, 'H')
    k('s_waitcnt vmcnt(5)')
    mark(k, 8, 'H')
    signal(k, vm, 's30', 0)
    mark(k, 2); mark(k, 9, 'H')
    k('s_waitcnt vmcnt(0)')
    mark(k, 10, 'H')
    for p in range(5): k(f'ds_write_b128 v56, {v(144+4*p,4)} offset:{p*5120}')
    k('s_waitcnt lgkmcnt(0)\ns_barrier')
    k('s_sub_u32 s44, s2, 160')
    mark(k, 11, 'H')
    helper0(k, Cnt(k, 'vmcnt', 63))
    mark(k, 13, 'H')
    mark(k, 3)
    PFH = E('F_PFH', '2,0')
    def touch(js):
        for j in js:
            k(f's_lshl_b32 s45, s44, 2\ns_add_u32 s45, s45, s16\ns_add_u32 s45, s45, {384*j + int(E("F_PFB", 256))}\ns_min_u32 s45, s45, 1023')
            if LIN: k('s_lshl_b32 s45, s45, 13')
            else: k('s_lshr_b32 s46, s45, 8\ns_lshl_b32 s46, s46, 9\ns_and_b32 s45, s45, 255\ns_lshl_b32 s45, s45, 15\ns_add_u32 s45, s45, s46')
            k(f'buffer_load_dword v{100+j}, v99, s[12:15], s45 offen {E("F_PFF", "")}')
    n1, n2 = [int(x) for x in PFH.split(',')]
    LIN = int(E('F_LIN', 0))
    if LIN: k('v_lshlrev_b32 v99, 7, v1')
    else: k('v_lshrrev_b32 v2, 2, v1\nv_lshlrev_b32 v2, 11, v2\nv_and_b32 v3, 3, v1\nv_lshl_add_u32 v99, v3, 7, v2')
    touch(range(n1))
    vm = Cnt(k, 'vmcnt', 63); dma = Dma(k, vm); w1_items(dma, [0, 1])
    k(f's_mov_b32 s47, {F0B:#x}')
    poll(k, vm, [AB0, AB0+1], 's47')
    mark(k, 4)
    helper1(k)
    while dma.q: dma.one()
    touch(range(n1, n1+n2))
    stg_setup(k, 11)
    stg_items(dma, 0); stg_items(dma, 1)
    while dma.q: dma.one()
    k('s_waitcnt vmcnt(28)')
    k('Lks_B:')
    mark(k, 6)
    phaseB_setup(k)
    k(f's_lshl_b32 s36, s20, 8\ns_lshl_b32 s35, s16, 9\ns_add_u32 s35, s35, {PART}')
    k('v_lshlrev_b32 v9, 3, v1\nv_xor_b32 v25, s36, v9\nv_add_u32 v27, s35, v25')
    k('v_and_b32 v2, 3, v7\nv_bfe_u32 v3, v7, 2, 1\nv_lshl_add_u32 v2, v3, 3, v2\nv_bfe_u32 v3, v7, 3, 1\nv_lshl_add_u32 v2, v3, 2, v2')
    k('v_and_b32 v3, 1, v8\nv_lshl_add_u32 v2, v3, 4, v2\nv_lshlrev_b32 v2, 5, v2\nv_lshrrev_b32 v3, 1, v8\nv_lshl_add_u32 v26, v3, 4, v2')
    vm = Cnt(k, 'vmcnt', 63); dma = Dma(k, vm)
    k('v_lshlrev_b32 v2, 4, v8')
    for p in range(1, 4): k(f'v_add_u32 v{HF+p}, {6144*p}, v2')
    for T_ in range(3):
        vm.issue(f'buffer_load_dwordx4 {v(CS+4*T_,4)}, v2, s[8:11], s{57+T_} offen sc1')
        for p in range(3): vm.issue(f'buffer_load_dwordx4 {v(AC[0]+12*T_+4*p,4)}, v{HF+1+p}, s[8:11], s{57+T_} offen sc1')
    if T2E: w1_items(dma, [2])
    while dma.q: dma.one()
    k('v_min_u32 v2, 39, v1\nv_lshrrev_b32 v3, 2, v2\nv_and_b32 v2, 3, v2\nv_lshl_add_u32 v2, v3, 4, v2\nv_lshlrev_b32 v2, 7, v2')
    k(f's_lshl_b32 s30, s16, 9\ns_add_u32 s30, s30, {F1:#x}')
    poll(k, vm, 2, 's30')
    mark(k, 7)
    k('s_cmp_ge_u32 s16, 2\ns_cbranch_scc1 Lks_Bhi')
    phaseB(k, False)
    k('s_branch Lks_C')
    k('Lks_Bhi:')
    phaseB(k, True)
    k('Lks_C:')
    vm, lg, dma = phaseC(k)
    phaseD(k, vm, lg, dma)
    mark(k, 9, 'D')
    stamp_end(k, 2)
    k(f'{Lend}:')
    k('s_endpgm')
    return k
```

```python
from common import *
GC = 0.7978845608028654
K1C = -2*GC*LOG2E
K2C = K1C*0.044715
def a(n, c=1): return 'a%d' % n if c == 1 else 'a[%d:%d]' % (n, n+c-1)
MF = 'v_mfma_f32_16x16x32_bf16'
E = os.environ.get
SPIN = 0x20000
F1, F2, F3, F0, F0B = [WS_FL + 0x8000*i for i in range(5)]
NAME = 'sequential_preLN__ssm_conv_s4d__mixer_gmlp__prompt_kernel'

def signal(k, vm, soff_expr, tok=None):
    k.nsig = getattr(k, 'nsig', 0) + 1
    if str(k.nsig) not in E('X_NODRAIN', '').split(','): vm.wait(vm.n if tok is None else tok)
    else: print('skip drain at signal', k.nsig, soff_expr)
    k('s_barrier')
    L = k.lab('sig')
    k(f's_cmp_lg_u32 s16, 0\ns_cbranch_scc1 {L}')
    k('v_mov_b32 v2, 0\nv_mov_b32 v3, s6')
    k('s_mov_b64 exec, 1')
    k(f'buffer_store_dword v3, v2, s[8:11], {soff_expr} offen sc1')
    k('s_mov_b64 exec, -1')
    k(f'{L}:')

def poll(k, vm, vaddrs, sreg, data=(3, 4)):
    if isinstance(vaddrs, int): vaddrs = [vaddrs]
    L = k.lab('poll'); Lo = k.lab('pok')
    k('s_mov_b32 s37, 0')
    k(f'{L}:')
    for q, va in enumerate(vaddrs): k(f'buffer_load_dword v{data[q]}, v{va}, s[8:11], {sreg} offen sc1')
    k(f's_add_u32 s37, s37, 1\ns_cmp_gt_u32 s37, {SPIN}')
    k(f's_cbranch_scc1 {Lo}')
    k('s_waitcnt vmcnt(0)')
    for q in range(len(vaddrs)):
        k(f'v_cmp_ne_u32 vcc, s6, v{data[q]}')
        k(f's_cbranch_vccnz {L}')
    k(f'{Lo}:')
    k('s_waitcnt vmcnt(0)')
    vm.done = vm.n

def w1_items(dma, tiles, stage=0):
    for T in tiles:
        for ks4 in range(5):
            for q in range(4):
                ks = 4*ks4 + q
                dma.add([f's_add_u32 s27, s{22+T}, {ks4*4096}'] if q == 0 else [], f'buffer_load_dwordx4 {a(80*T+4*ks,4)}, v5, s[8:11], s27 offen offset:{q*1024} sc1', stage)

KGS = 288*128; UXB = KGS + 4*4608
BND = 156; KPT = 152
AF = 244; AG = 248; AXD = 249; AST = 250; XD = 240
AK0, AK1, AQ, AUX, AP0, PD0, AB0 = 251, 252, 253, 183, 184, 185, 254
PR = 56; IDX = 132; KW = 140; KR = 144; KCW = 145

def conv_bands(k):
    k('v_lshlrev_b32 v6, 3, v8')
    bands = [(-5, -3, -16), (-10, -6, -16), (-13, -11, -16), (-18, -14, -24), (-11, -5, -16), (-20, -12, -24), (12-16, 13-16, -16)]
    for bi, (lo, hi, e0) in enumerate(bands + [(0, 0, 0)]):
        dst = BND + 4*bi if bi < 6 else KPT if bi == 6 else XD
        msk = ((1 << (hi-lo+1)) - 1) << (lo - e0)
        if bi == 7: msk = 0x10001
        k(f'v_mov_b32 v9, {msk:#x}\nv_lshlrev_b32 v9, v7, v9\nv_lshrrev_b32 v9, v6, v9')
        k('v_and_b32 v10, 0xaa, v9\nv_and_b32 v9, 0x55, v9\nv_lshl_or_b32 v9, v10, 15, v9')
        for q in range(4):
            if q: k(f'v_lshrrev_b32 v10, {2*q}, v9')
            k(f'v_and_b32 v{dst+q}, 0x10001, v{10 if q else 9}')
            if bi < 6: k(f'v_mul_u32_u24 v{dst+q}, 0x3f80, v{dst+q}')

def f0b_addr(k):
    k(f'v_lshlrev_b32 v{AB0}, 7, v1\nv_and_b32 v2, 31, v1\nv_lshlrev_b32 v2, 7, v2\nv_add_u32 v{AB0+1}, 8192, v2')

def conv_late(k):
    def uaddr(dst, gc, use_h):
        k(f'v_lshl_add_u32 v9, v7, 1, {use_h}\nv_add_u32 v9, {gc+32}, v9')
        k('v_bfe_u32 v10, v9, 1, 3\nv_xor_b32 v10, s16, v10\nv_lshlrev_b32 v10, 4, v10')
        k(f'v_lshl_add_u32 v{dst}, v9, 7, v10')
    for j in range(4): uaddr(AF+j, -2-4*(j+4), 'v8')
    uaddr(AG, -3, 'v8')
    k('v_and_b32 v11, 1, v8')
    uaddr(AXD, 0, 'v11')
    k(f'v_lshlrev_b32 v{AST}, 5, v7\nv_lshl_add_u32 v{AST}, v11, 9, v{AST}')
    k('v_lshrrev_b32 v11, 1, v8')
    k(f'v_lshl_add_u32 v{AST}, v11, 4, v{AST}\nv_xor_b32 v11, 1, v11\nv_lshlrev_b32 v11, 6, v11\nv_xor_b32 v{AXD}, v11, v{AXD}')
    k(f's_lshl_b32 s52, s3, 12\ns_add_u32 s52, s52, {WS_HT:#x}')
    k('v_lshlrev_b32 v9, 3, v8\nv_sub_u32 v9, v9, v7\nv_add_u32 v9, 15, v9\nv_lshlrev_b32 v9, 1, v9')
    k(f'v_and_b32 v10, 1, v7\nv_xor_b32 v10, 1, v10\nv_mul_u32_u24 v10, {4*KPO-2}, v10')
    k(f'v_add3_u32 v{AK0}, v9, v10, s46\nv_add_u32 v{AK1}, 1024, v{AK0}')
    k('v_lshlrev_b32 v9, 2, v8\nv_sub_u32 v9, v9, v7\nv_add_u32 v9, 15, v9\nv_lshlrev_b32 v9, 2, v9')
    k(f's_add_u32 s53, s46, 2240\nv_add_u32 v{AQ}, s53, v9')
def conv_early(k):
    k('v_lshrrev_b32 v3, 3, v1\nv_and_b32 v4, 7, v1')
    k(f'v_lshl_add_u32 v2, v3, 5, v4\nv_lshlrev_b32 v{AP0}, 7, v2')
    k('v_lshrrev_b32 v6, 1, v3\nv_xor_b32 v4, v4, v6\ns_lshl_b32 s44, s20, 2\nv_xor_b32 v4, s44, v4')
    k(f'v_mul_u32_u24 v3, 20480, v3\nv_lshl_add_u32 v{AUX}, v4, 4, v3')
    f0b_addr(k)
    k(f's_mul_i32 s46, s16, 3072\ns_add_u32 s46, s46, {UXB}')
    k(f's_lshl_b32 s47, s2, 7\ns_mul_i32 s48, s16, {8*20480}\ns_add_u32 s47, s47, s48')
    k('s_lshl_b32 s49, s16, 10\ns_add_u32 s49, s49, 4096')
    k(f's_lshl_b32 s48, s16, 10\ns_add_u32 s48, s48, {F0:#x}')
    k('v_lshlrev_b32 v6, 4, v0')
    for r in range(72, 76): k(f'v_mov_b32 v{r}, 0')
    k('ds_write_b128 v6, v[72:75]')
    k('v_add_u32 v2, s46, v5')
    for q in range(3): k(f'ds_write_b128 v2, v[72:75] offset:{1024*q}')
    k(f's_mul_i32 s55, s16, 4608\ns_add_u32 s55, s55, {KGS}')
    k(f'v_mul_u32_u24 v2, 288, v7\nv_lshl_add_u32 v2, v8, 4, v2\nv_add_u32 v{KR}, s55, v2')
    k('v_lshrrev_b32 v9, 1, v8\nv_and_b32 v10, 1, v8\nv_lshlrev_b32 v3, 4, v7')
    k('v_lshl_add_u32 v2, v9, 8, v3\nv_lshl_add_u32 v2, v10, 3, v2')
    k(f's_add_u32 s44, s46, 1080\nv_sub_u32 v{KCW}, s44, v2')
    k(f'v_lshl_add_u32 v2, v10, 8, v3\ns_add_u32 s44, s46, {2*(536-258)-4}\nv_sub_u32 v{KCW+1}, s44, v2')
    k('v_lshrrev_b32 v2, 1, v7\nv_lshl_add_u32 v2, v10, 4, v2\nv_lshlrev_b32 v2, 2, v2\nv_and_b32 v3, 1, v7\nv_lshlrev_b32 v3, 8, v3\nv_sub_u32 v2, v3, v2')
    k(f's_add_u32 s44, s46, {2240+4*39}\nv_add_u32 v{KCW+2}, s44, v2')
    k(f'v_and_b32 v2, 7, v7\nv_lshlrev_b32 v2, 5, v2\nv_lshl_add_u32 v2, v8, 3, v2\ns_add_u32 s44, s46, {2752+4*62}\nv_sub_u32 v{KCW+3}, s44, v2')
    k(f'v_mov_b32 v{KCW+4}, s46')

LNB = 4096
class Rec:
    def __init__(s): s.L = []
    def __call__(s, t): s.L += [x for x in t.split('\n') if x]
def zipk(k, recs):
    for xs in zip(*[r.L for r in recs]):
        for x in xs: k(x)

def ln1_addr(k):
    k('v_lshrrev_b32 v2, 5, v1\nv_bfe_u32 v3, v1, 4, 1\nv_bfe_u32 v4, v1, 2, 2\nv_and_b32 v6, 3, v1')
    k('v_lshl_add_u32 v52, v2, 3, v4\nv_mul_u32_u24 v52, 1344, v52\nv_lshl_add_u32 v52, v3, 5, v52\nv_lshl_add_u32 v52, v6, 3, v52')
    k(f's_mul_i32 s17, s16, 320\ns_add_u32 s17, s17, {LNB}\nv_add_u32 v52, s17, v52')
    k('v_lshlrev_b32 v53, 9, v3\nv_lshl_add_u32 v53, v4, 7, v53\nv_lshl_add_u32 v53, v2, 6, v53\nv_lshl_add_u32 v53, v6, 4, v53')
    k('s_mul_i32 s17, s16, 5120\nv_add_u32 v53, s17, v53\nv_add_u32 v55, 4096, v53')

def ln1(k):
    X = 12; Fv = 22; S = 42
    for q in range(5): k(f'ds_write_b64 v51, {v(X+2*q,2)} offset:{8*1344+q*256}')
    for i in range(10): k(f'v_lshlrev_b32 v{Fv+2*i}, 16, v{X+i}\nv_and_b32 v{Fv+1+2*i}, 0xffff0000, v{X+i}')
    k(f'v_pk_add_f32 {v(S,2)}, {v(Fv,2)}, {v(Fv+2,2)}\nv_pk_mul_f32 {v(S+2,2)}, {v(Fv,2)}, {v(Fv,2)}')
    for i in range(1, 10):
        if i > 1: k(f'v_pk_add_f32 {v(S,2)}, {v(S,2)}, {v(Fv+2*i,2)}')
        k(f'v_pk_fma_f32 {v(S+2,2)}, {v(Fv+2*i,2)}, {v(Fv+2*i,2)}, {v(S+2,2)}')
    k(f'v_add_f32 v{S}, v{S}, v{S+1}\nv_add_f32 v{S+2}, v{S+2}, v{S+3}')
    k(f'v_mov_b32 v47, {fl(1/640)}')
    for sh in (8, 4, 2, 1):
        for q in (S, S+2): k(f'v_add_f32_dpp v{q}, v{q}, v{q} row_ror:{sh} row_mask:0xf bank_mask:0xf')
    k(f'v_mov_b32 v{S+1}, v{S}\nv_mov_b32 v{S+3}, v{S+2}\nv_permlane16_swap_b32 v{S}, v{S+1}\nv_permlane16_swap_b32 v{S+2}, v{S+3}')
    k(f'v_add_f32 v{S}, v{S}, v{S+1}\nv_add_f32 v{S+2}, v{S+2}, v{S+3}')
    k(f'v_mul_f32 v{S}, v47, v{S}\nv_mul_f32 v{S+1}, v{S}, v{S}\nv_fma_f32 v{S+2}, v{S+2}, v47, -v{S+1}\nv_max_f32 v{S+2}, 0, v{S+2}')
    r = Rec(); ln_finish(r, S, S+2, S+4)
    fin = r.L[2:]
    for x in r.L[:2]: k(x)
    for i in range(10):
        q = Fv+2*i
        k(f'v_pk_add_f32 {v(q,2)}, {v(q,2)}, {v(S,2)} op_sel_hi:[1,0] neg_lo:[0,1] neg_hi:[0,1]')
        if fin: k(fin.pop(0))
        k(f'v_cvt_pk_bf16_f32 v{q+1}, v{q}, v{q+1}\nv_lshlrev_b32 v{q}, 16, v{q+1}\nv_and_b32 v{q+1}, 0xffff0000, v{q+1}')
    assert not fin
    k('v_mov_b32 v2, 0\nglobal_load_dword v54, v2, s[32:33] sc1')
    for i in range(10):
        q = Fv+2*i
        k(f'v_pk_mul_f32 {v(q,2)}, {v(q,2)}, {v(S+2,2)} op_sel_hi:[1,0]')
        k(f'v_cvt_pk_bf16_f32 v{X+i}, v{q}, v{q+1}')
    for q in range(5): k(f'ds_write_b64 v51, {v(X+2*q,2)} offset:{q*256}')
    k('s_mul_i32 s30, s2, 20480')
    k('s_waitcnt lgkmcnt(0)\ns_barrier')
    mark(k, 0, 'H')
    O = 24
    for b in range(5):
        k(f'ds_read_b64_tr_b16 {v(O+4*b,2)}, v52 offset:{b*64}\nds_read_b64_tr_b16 {v(O+2+4*b,2)}, v52 offset:{b*64+4*1344}')
    for b in range(5):
        k(f's_waitcnt lgkmcnt({8-2*b})')
        k(f'buffer_store_dwordx4 {v(O+4*b,4)}, ' + (f'v53, s[8:11], s30 offen offset:{b*1024} sc1' if b < 4 else 'v55, s[8:11], s30 offen sc1'))
    k(f's_lshl_b32 s30, s2, 7\ns_add_u32 s30, s30, {F0:#x}')
    mark(k, 1, 'H')

def get_nonce(k):
    L = k.lab('nn'); Lo = k.lab('nok')
    k('s_mov_b32 s37, 0')
    k(f'{L}:')
    k('v_readfirstlane_b32 s6, v54')
    k(f's_add_u32 s37, s37, 1\ns_cmp_gt_u32 s37, {SPIN}\ns_cbranch_scc1 {Lo}')
    k(f's_cmp_lg_u32 s6, 0\ns_cbranch_scc1 {Lo}')
    k('v_mov_b32 v2, 0')
    k('global_load_dword v54, v2, s[32:33] sc1')
    k('s_waitcnt vmcnt(0)')
    k(f's_branch {L}')
    k(f'{Lo}:')

def ux_issue(k):
    for i in range(8):
        k(f's_add_u32 m0, s49, {i*4096}\ns_add_u32 s27, s47, {i*32*20480}')
        k(f'buffer_load_dwordx4 v{AUX}, s[8:11], s27 offen sc1 lds')
    k('s_mov_b32 s45, 1')
    mark(k, 8, 'K')

def kgen(k, sigfn):
    lg = Cnt(k, 'lgkmcnt', 15)
    DT = 68
    W, G8, GG, Z, C0, LO, HI, ACC, PK, H2 = 20, 22, 24, 32, 70, 88, 104, 120, 36, 192
    def check(pd=PD0):
        if E('KG_NOCHK'): return
        Ls = k.lab('uxs'); Lr = k.lab('uxr')
        k(f's_cmp_lg_u32 s45, 0\ns_cbranch_scc1 {Ls}')
        k('s_waitcnt vmcnt(0)')
        k(f'v_cmp_ne_u32 vcc, s6, v{pd}')
        k(f's_cbranch_vccnz {Lr}')
        ux_issue(k)
        k('s_mov_b32 m0, s55')
        k(f's_branch {Ls}')
        k(f'{Lr}:')
        k(f'buffer_load_dword v{pd}, v{AP0}, s[8:11], s48 offen sc1')
        k(f'{Ls}:')
    k(f'v_mov_b32 v{PD0}, 0\ns_mov_b32 s45, 0\ns_mov_b32 m0, s55')
    k(f'v_mul_f32 v{DT}, {fl(LOG2E)}, v{DT}\nv_exp_f32 v{DT}, v{DT}')
    round_bf16_f32(k, DT, DT)
    k(f'v_add_f32 v{DT+1}, v{DT}, v{DT}')
    mark(k, 0, 'K'); mark(k, 0, 'J')
    def setup(it):
        r = Rec(); P = PR + 4*it
        r(f'v_mul_f32 v12, {fl(LOG2E)}, v{P}\nv_mul_f32 v13, v{P+1}, v{DT}\nv_exp_f32 v12, v12')
        r(f'v_mul_f32 v13, {fl(INV2PI)}, v13\nv_mul_f32 v{C0}, v{P+2}, v{DT+1}\nv_mul_f32 v{C0+1}, v{P+3}, -v{DT+1}')
        round_bf16_f32(r, 12, 12)
        r(f'v_mul_f32 v12, v12, v{DT}\nv_mul_f32 v15, {fl(8.)}, v13\nv_mul_f32 v17, {fl(128.)}, v13\nv_mul_f32 v12, {fl(-LOG2E)}, v12')
        r('v_fract_f32 v15, v15\nv_fract_f32 v13, v13\nv_fract_f32 v17, v17')
        r(f'v_mul_f32 v14, {fl(8.)}, v12\nv_mul_f32 v16, {fl(128.)}, v12')
        for dst, m_ in ((G8, 14), (W, 12), (GG, 16)):
            r(f'v_exp_f32 v{m_}, v{m_}\nv_cos_f32 v{dst}, v{m_+1}\nv_sin_f32 v{dst+1}, v{m_+1}')
        return r.L
    tmp = [26, 28, 30]; ti = [0]
    def cmul(d, a_, b):
        t = tmp[ti[0] % 3]; ti[0] += 1
        k(f'v_pk_mul_f32 {v(t,2)}, {v(a_,2)}, {v(b,2)} op_sel:[0,0] op_sel_hi:[1,0]')
        k(f'v_pk_fma_f32 {v(d,2)}, {v(a_,2)}, {v(b,2)}, {v(t,2)} op_sel:[1,1,0] op_sel_hi:[0,1,1] neg_lo:[1,0,0]')
    WB = int(E('KG_WB', 8))
    wr = [0]
    SL = int(E('KG_SLOT', 0)); sn = [0]
    def slot():
        if not SL or sn[0] >= 8: return
        j = sn[0]; sn[0] += 1
        L = k.lab('sl')
        k(f's_cbranch_vccnz {L}')
        k(f's_add_u32 m0, s54, {j*1024}')
        if j == 4: k('s_add_u32 s56, s56, 65536')
        k(f'buffer_load_dwordx4 v{132+j%4}, s[12:15], s56 offen lds')
        k('s_mov_b32 m0, s55')
        k(f'{L}:')
    def wflush(n):
        while wr[0] < n:
            lg.issue(f'ds_write_addtid_b32 v{PK+wr[0]} offset:{wr[0]*288}'); wr[0] += 1
    def put(row, z):
        if z is None: k(f'v_mov_b32 v{PK+row}, 0x3f80')
        else: k(f'v_cvt_pk_bf16_f32 v{PK+row}, v{z}, v{z+1}')
        if (row+1) % WB == 0: wflush(row+1)
        if row in (3, 11) or (row == 6 and sn[0] == 7): slot()
    def flush(n, base):
        wflush(n); wr[0] = 0
        for ks in range(4): tk = lg.issue(f'ds_read_b128 {v(base+4*ks,4)}, v{KR} offset:{ks*64}')
        return tk
    def mm(it, t, H, swap):
        out = []
        for ks in range(4):
            A, B = H+4*ks, LO+4*ks
            if swap: A, B = B, A
            out.append(f'{MF} {v(ACC+4*t,4)}, {v(A,4)}, {v(B,4)}, {"0" if it == 0 and ks == 0 else v(ACC+4*t,4)}')
        return out
    plan = dict(x.split(':') for x in E('KG_PLAN', '03:s,13:p,23:c').split(','))
    outl = []
    def pt(q):
        for it in range(3):
            act = plan.get(f'{it}{q}')
            if act:
                Lx = k.lab('kx'); Lb = k.lab('kb')
                k(f's_cmp_eq_u32 s44, {it}\ns_cbranch_scc1 {Lx}')
                k(f'{Lb}:')
                outl.append((Lx, Lb, act, (8*it + sn[0]) if SL else 0))
                assert 'c' not in act or sn[0] == 8 or not SL
    for r in range(12): k(f'v_mov_b32 v{ACC+r}, 0')
    k('s_mov_b32 s44, 0\ns_mov_b64 vcc, 0\ns_mov_b32 s54, s26\ns_mov_b32 s56, s28')
    for x in setup(0): k(x)
    Lp = k.lab('kg')
    k(f'{Lp}:')
    for dst, m_, neg in ((G8, 14, False), (W, 12, True), (GG, 16, True)):
        k(f'v_pk_mul_f32 {v(dst,2)}, {v(dst,2)}, {v(m_,2)} op_sel_hi:[1,0]' + (' neg_hi:[0,1]' if neg else ''))
    put(0, None); put(1, G8)
    cmul(Z, G8, G8); put(2, Z)
    for j in range(3, 16): cmul(Z, Z, G8); put(j, Z)
    flush(16, LO)
    pt(0)
    put(0, C0)
    for c in range(1, 8): cmul(C0+2*c, C0+2*c-2, W); put(c, C0+2*c)
    cmul(C0+16, C0+14, W)
    for c in range(8): cmul(C0+2*c, C0+2*c, GG); put(8+c, C0+2*c)
    flush(16, HI)
    pt(1)
    cmul(C0+16, C0+16, GG); cmul(C0, C0, GG)
    for i in (2, 3):
        for c in (2, 4, 6, 8): cmul(C0+2*c, C0+2*c, GG); put(4*(i-2)+c//2-1, C0+2*c)
    for i in range(4, 8):
        for c in (4, 8): cmul(C0+2*c, C0+2*c, GG); put(8+2*(i-4)+c//4-1, C0+2*c)
    t1 = flush(16, H2)
    pt(2)
    k(f'v_cvt_pk_bf16_f32 v{PK+8}, v{C0}, v{C0+1}')
    for i in range(8, 16): cmul(C0+16, C0+16, GG); put(i-8, C0+16)
    t2 = flush(9, H2+16)
    pt(3)
    fillr = setup(1)
    fillr[6:6] = [f'v_mov_b32 v{PR+4+q}, v{PR+8+q}' for q in range(4)]
    assert sn[0] == 8 or not SL
    k('s_add_u32 s54, s26, 8192\ns_add_u32 s56, s28, 256\ns_cmp_eq_u32 s44, 1\ns_cselect_b64 vcc, -1, 0')
    k('s_add_u32 s44, s44, 1\ns_cmp_lt_u32 s44, 3')
    lg.wait(t1)
    for n, m_ in enumerate(mm(1, 0, HI, False) + mm(1, 1, H2, False) + mm(1, 2, H2+16, True)):
        if n == 8: lg.wait(t2)
        k(m_)
        for _ in range(2):
            if fillr: k(fillr.pop(0))
    for x in fillr: k(x)
    k(f's_cbranch_scc1 {Lp}')
    Lj = k.lab('kj')
    k(f's_branch {Lj}')
    for Lx, Lb, act, nsl in outl:
        k(f'{Lx}:')
        if 's' in act: mark(k, 10, 'K'); sigfn(nsl); mark(k, 11, 'K')
        for q, ch in enumerate('ABCD'):
            if ch in act:
                k(f's_add_u32 s27, s28, {(q//2)*256 + (q % 2)*65536}')
                for j in range(4):
                    k(f's_add_u32 m0, s26, {q*4096 + j*1024}')
                    k(f'buffer_load_dwordx4 v{132+j}, s[12:15], s27 offen lds')
                k('s_mov_b32 m0, s55')
        if 'p' in act: mark(k, 2, 'K'); k(f'buffer_load_dword v{PD0}, v{AP0}, s[8:11], s48 offen sc1'); mark(k, 3, 'K')
        if 'c' in act: mark(k, 12, 'K'); k('s_waitcnt vmcnt(0)'); mark(k, 13, 'K'); check(); mark(k, 14, 'K')
        k(f's_branch {Lb}')
    k(f'{Lj}:')
    mark(k, 1, 'K'); mark(k, 13, 'J')
    A0, A1, A2 = ACC, ACC+4, ACC+8
    O = 4*KPO
    cv = [(A0+3, A0+2), (A0+1, A0), (A0+2, A0+1),
          (A1+3, A1+3), (A1+3, A1+2), (A1+1, A1+1), (A1+1, A1), (A1+2, A1+1),
          (A1, A1+1), (A1+2, A1+3),
          (A2+2, A2+3), (A2, A2+1), (A2, A2)]
    for q, (x, y) in enumerate(cv): k(f'v_cvt_pk_bf16_f32 v{12+q}, v{x}, v{y}')
    k(f'ds_write_b64 v{KCW}, v[12:13]')
    k(f'ds_write_b16 v{KCW}, v12 offset:{O-2}\nds_write_b32 v{KCW}, v14 offset:{O}\nds_write_b16_d16_hi v{KCW}, v13 offset:{O+4}')
    k(f'v_add_u32 v25, {O}, v{KCW+1}')
    k('s_mov_b32 exec_hi, 0')
    k(f'ds_write_b16 v{KCW+1}, v15 offset:2')
    k(f'ds_write2_b32 v{KCW+1}, v15, v16 offset0:1 offset1:2\nds_write2_b32 v{KCW+1}, v17, v18 offset0:3 offset1:4')
    k('ds_write2_b32 v25, v15, v15 offset0:0 offset1:1\nds_write2_b32 v25, v19, v17 offset0:2 offset1:3\nds_write_b16_d16_hi v25, v18 offset:16')
    k('s_mov_b32 exec_lo, 0x100')
    k(f'ds_write_b32 v{KCW+4}, v24 offset:572\nds_write_b16 v{KCW+4}, v24 offset:{O+570}\nds_write_b16 v{KCW+4}, v24 offset:{O+572}')
    k('s_mov_b32 exec_lo, 0\ns_mov_b32 exec_hi, -1')
    k(f'ds_write2_b32 v{KCW+2}, v20, v21 offset0:8 offset1:0')
    k('s_mov_b32 exec_lo, 0x00ff00ff\ns_mov_b32 exec_hi, 0x00ff00ff')
    k(f'ds_write_b64 v{KCW+3}, v[22:23]')
    k('s_mov_b64 exec, -1')
    mark(k, 4, 'K')
    check()
    mark(k, 5, 'K')

def phaseA(k):
    vm = Cnt(k, 'vmcnt', 63); lg = Cnt(k, 'lgkmcnt', 15)
    dma = Dma(k, vm); w1_items(dma, [0, 1])
    ACC = 12; KN = 44; QA = 112; QB = 124; Q8 = 136; SS = 180; VV = 204
    FB = 216; NB = 6
    prog = []
    started = set()
    def Kn(kb): return ('K', 'n', kb)
    kreg = {}
    for kb in range(17): kreg[Kn(kb)] = (KN+4*kb, AK1 if kb == 0 else AK0, 0 if kb == 0 else (16-kb)*16)
    for D in (2, 3, 4): kreg[('K', 'a', D)] = (QA+4*(D-2), AQ, (4-D)*16); kreg[('K', 'b', D)] = (QB+4*(D-2), AQ, 64+(4-D)*16)
    for D in (4, 5, 6, 7): kreg[('K', '8', D)] = (Q8+4*(D-4), AQ, 128+(7-D)*16)
    def acc(t, A, B):
        prog.append(('m', ACC+4*t, A, B, t not in started)); started.add(t)
    XF = int(E('FA_XF', 0))
    for rt in range(XF): acc(rt, XD, ('F', rt, 'X'))
    for rt in range(8):
        F0 = ('F', rt, 0)
        if rt <= 5:
            for b in (0, 1, 2): prog.append(('m', SS+4*b, F0, BND+4*b, True))
            if rt <= 3: prog.append(('m', SS+16, F0, BND+16, True))
            prog.append(('m', SS+12, ('F', rt, 'G'), BND+12, True))
            if rt <= 3: prog.append(('m', SS+20, ('F', rt, 'G'), BND+20, True))
        if rt >= XF: acc(rt, XD, ('F', rt, 'X'))
        acc(rt, Kn(0), F0)
        if rt+1 <= 7: acc(rt+1, Kn(8), F0)
        if rt+2 <= 7: acc(rt+2, Kn(16), F0)
        if rt+4 <= 7: acc(rt+4, KPT, F0)
        if rt <= 5: prog.append(('cvt', rt))
        for j in range(1, 8):
            acc(rt, Kn(j), ('F', rt, j))
            if rt+1 <= 7: acc(rt+1, Kn(j+8), ('F', rt, j))
        prog.append(('epi', rt))
        if rt <= 5:
            prog.append(('needcvt',))
            for D in (2, 3, 4):
                if rt+D <= 7: acc(rt+D, VV, ('K', 'a', D)); acc(rt+D, VV+4, ('K', 'b', D))
            if rt <= 3:
                for D in (4, 5, 6, 7):
                    if rt+D <= 7: acc(rt+D, VV+8, ('K', '8', D))
    order = []; last_use = {}
    for pi_, p in enumerate(prog):
        if p[0] == 'm':
            for o in (p[2], p[3]):
                if isinstance(o, tuple):
                    if o not in last_use: order.append(o)
                    last_use[o] = pi_
    forder = [o for o in order if o[0] == 'F']
    fbuf = {o: FB + 4*(n % NB) for n, o in enumerate(forder)}
    fidx = {o: n for n, o in enumerate(forder)}
    tok = {}
    rq = []
    for o in order:
        if o[0] == 'K':
            r, ar, off = kreg[o]
            rq.append((o, f'ds_read2_b32 {v(r,2)}, v{ar} offset0:{off} offset1:{off+1}', False))
            rq.append((o, f'ds_read2_b32 {v(r+2,2)}, v{ar} offset0:{off+2} offset1:{off+3}', True))
        else:
            _, rt, j = o
            if j == 'G': ar, off = AG, rt*4096
            elif j == 'X': ar, off = AXD, rt*4096
            else: ar, off = AF + (j % 4), rt*4096 + (2048 if j < 4 else 0)
            rq.append((o, f'ds_read_b128 {v(fbuf[o],4)}, v{ar} offset:{off}', True))
    cur = [0]
    def can_read():
        if not rq: return False
        o = rq[0][0]
        if lg.n - lg.done >= 13: return False
        if o[0] == 'F' and fidx[o] >= NB:
            return last_use[forder[fidx[o]-NB]] < cur[0]
        return True
    def do_read():
        o, t, l = rq.pop(0); tk = lg.issue(t)
        if l: tok[o] = tk
    k('v_mov_b32 v9, s53')
    tp = lg.issue(f'ds_read_u16 v11, v9 offset:{256+16*4+2}')
    early = [x for x in rq if x[0][0] == 'K'][:int(E('FA_EK', 34))]
    for n, x in enumerate(early):
        rq.remove(x); tk = lg.issue(x[1])
        if x[2]: tok[x[0]] = tk
    kq = [x for x in rq if x[0][0] == 'K']; fq = [x for x in rq if x[0][0] != 'K']
    KP = int(E('FA_KP', 2)); rq[:] = [fq.pop(0) for _ in range(NB-1)]
    while kq or fq:
        if fq: rq.append(fq.pop(0))
        for _ in range(KP):
            if kq: rq.append(kq.pop(0))
    lg.wait(tp)
    for q in range(4): k(f'v_mul_u32_u24 v{KPT+q}, v11, v{KPT+q}')
    mark(k, 3); mark(k, 6, 'K')
    Ls = k.lab('uxd')
    k(f's_cmp_lg_u32 s45, 0\ns_cbranch_scc1 {Ls}')
    poll(k, vm, AP0, 's48')
    ux_issue(k)
    k(f'{Ls}:')
    k(f's_mov_b32 s44, {F0B:#x}')
    k('s_waitcnt vmcnt(0)')
    lg.all()
    k('s_barrier')
    mark(k, 4); mark(k, 7, 'K')
    tB = []
    def f0b_issue():
        vm.issue(f'buffer_load_dword v3, v{AB0}, s[8:11], s44 offen sc1'); tB.append(vm.issue(f'buffer_load_dword v4, v{AB0+1}, s[8:11], s44 offen sc1'))
    def f0b_check():
        Lo = k.lab('f0b'); Lq = k.lab('f0q')
        vm.wait(tB[0])
        k(f'v_cmp_ne_u32 vcc, s6, v3\ns_cbranch_vccnz {Lq}\nv_cmp_ne_u32 vcc, s6, v4\ns_cbranch_vccz {Lo}')
        k(f'{Lq}:')
        poll(k, Cnt(k, 'vmcnt', 63), [AB0, AB0+1], 's44')
        k(f'{Lo}:')
        mark(k, 9, 'K')
        CT = int(E('C_TOUCH', 0))
        if CT:
            k(f's_add_u32 s45, s3, {CT}\ns_min_u32 s45, s45, 1023')
            k('s_lshr_b32 s46, s45, 8\ns_lshl_b32 s46, s46, 9\ns_and_b32 s45, s45, 255\ns_lshl_b32 s45, s45, 15\ns_add_u32 s45, s45, s46')
            k('v_lshrrev_b32 v2, 2, v1\nv_lshlrev_b32 v2, 11, v2\nv_and_b32 v3, 3, v1\nv_lshl_add_u32 v2, v3, 7, v2')
            vm.issue('buffer_load_dword v4, v2, s[12:15], s45 offen')
    hi = []; lo = []
    def epilogue(t):
        A = ACC + 4*t; ops = [None]*5
        def Em(txt): ops.append(lambda: k(txt))
        P = ACC + 4*(t & ~1) + 2*(t & 1)
        Em(f'v_cvt_pk_bf16_f32 v{P}, v{A}, v{A+1}'); Em(f'v_cvt_pk_bf16_f32 v{P+1}, v{A+2}, v{A+3}')
        if t & 1:
            Q = ACC + 4*(t-1)
            ops.append(None)
            Em(f'v_permlane16_swap_b32 v{Q}, v{Q+2}'); Em(f'v_permlane16_swap_b32 v{Q+1}, v{Q+3}')
            ops.append(lambda: vm.issue(f'buffer_store_dwordx4 {v(Q,4)}, v{AST}, s[8:11], s52 offen offset:{(t-1)*512} sc1'))
        return ops
    while can_read() and lg.n - lg.done < 12: do_read()
    nm = 0; WR = int(E('FA_WR', 4)); WLAST = int(E('FA_WLAST', 195)); WFIRST = int(E('FA_WFIRST', 40))
    for pi_, p in enumerate(prog):
        cur[0] = pi_
        if p[0] == 'cvt':
            rt = p[1]
            hi.extend([None]*2)
            for q in range(3 if rt <= 3 else 2):
                for r in range(4):
                    hi.append(lambda q=q, r=r: k(f'v_cvt_pk_bf16_f32 v{VV+4*q+r}, v{SS+8*q+r}, v{SS+8*q+4+r}'))
            continue
        if p[0] == 'needcvt':
            while hi:
                f = hi.pop(0)
                if f: f()
            continue
        if p[0] == 'epi':
            lo.extend(epilogue(p[1])); continue
        _, d, A, B, zero = p
        n0 = len(k.L)
        ops = []
        for o in (A, B):
            if isinstance(o, tuple):
                if o not in tok:
                    mine = [x for x in rq if x[0] == o]
                    for x in mine: rq.remove(x)
                    rq[0:0] = mine
                    if o[0] == 'F' and fidx[o] >= NB: assert last_use[forder[fidx[o]-NB]] < cur[0]
                    while o not in tok: do_read()
                tw = tok[o]
                if tw > lg.done and o[0] == 'F' and fidx[o]+1 < len(forder):
                    t2 = tok.get(forder[fidx[o]+1])
                    if t2 is not None and lg.n - t2 >= int(E('FA_MW', 2)): tw = max(tw, t2)
                lg.wait(tw)
                ops.append(fbuf[o] if o[0] == 'F' else kreg[o][0])
            else: ops.append(o)
        nm += 1
        if nm == max(WFIRST - int(E('FA_PL', 40)), 1): f0b_issue()
        if nm == WFIRST: f0b_check()
        if nm % WR == 0 and WFIRST <= nm <= WLAST: dma.pre()
        used = len(k.L) - n0
        k(f'{MF} {v(d,4)}, {v(ops[0],4)}, {v(ops[1],4)}, {"0" if zero else v(d,4)}')
        cur[0] = pi_ + 1
        n1 = len(k.L)
        dma.fire()
        while len(k.L) - n1 + used < 2:
            if can_read(): do_read()
            elif hi:
                f = hi.pop(0)
                if f: f()
                else: used += 1
            elif lo:
                f = lo.pop(0)
                if f: f()
                else: used += 1
            else: break
    for f in lo:
        if f: f()
    mark(k, 5)
    k(f's_lshl_b32 s44, s2, 7\ns_add_u32 s44, s44, {F1:#x}')
    signal(k, vm, 's44')
    while dma.q: dma.one()

def ln_sigma(k, mean, var, t):
    k(f'v_cvt_pk_bf16_f32 v{t}, v{mean}, v{var}')
    k(f'v_lshlrev_b32 v{mean}, 16, v{t}\nv_and_b32 v{var}, 0xffff0000, v{t}')
    k(f'v_add_f32 v{var}, {fl(1e-5)}, v{var}')
    round_bf16_f32(k, var, var)
    k(f'v_sqrt_f32 v{var}, v{var}')
    round_bf16_f32(k, var, var)

MAPB = {'A': 3, 'B': 2, 'C': 1, 'N': 0}[E('F_MAP', 'B')]
ALATE = int(E('FB_ALATE', 1)); T2E = int(E('FB_T2E', 1))
STG = 81920; Z1L = 147456; STAT = 159744; PART = STAT + 1024
CS = 28; RES = 40; MS = 52; HF = 68; AC = [116, 132, 148]; ONE = 164; SA = 168; G = 176; T = HF; WV = 192
WA = {2: 0, 3: 32, 4: 80, 5: 160, 6: 112, 7: 192}
def wreg(c, o): return v(WV+32*c+o, 4) if c < 2 else a(WA[c]+o, 4)

def stg_setup(k, R):
    for j in range(4):
        k(f'v_add_u32 v2, {4*j}, v8\nv_xor_b32 v3, v2, v7\nv_lshlrev_b32 v2, 12, v2\nv_lshl_add_u32 v{R+j}, v3, 4, v2')
    k(f's_lshl_b32 s26, s16, 14\ns_add_u32 s26, s26, {STG}')
    k('s_lshl_b32 s28, s17, 18\ns_lshl_b32 s27, s20, 17\ns_add_u32 s28, s28, s27\ns_lshl_b32 s27, s19, 11\ns_add_u32 s28, s28, s27')

def phaseB_setup(k):
    for r in range(4): k(f'v_mov_b32 v{ONE+r}, 0x3f803f80')
    k('v_lshrrev_b32 v2, 3, v1\nv_and_b32 v3, 7, v1\nv_and_b32 v4, 6, v2\nv_xor_b32 v3, v3, v4')
    k('v_lshlrev_b32 v10, 12, v2\nv_lshl_add_u32 v10, v3, 4, v10')
    stg_setup(k, 11)
    k('v_bfe_u32 v2, v1, 2, 2\nv_and_b32 v3, 3, v1\nv_lshl_add_u32 v4, v8, 2, v2')
    k('v_lshrrev_b32 v6, 1, v3\nv_and_b32 v3, 1, v3\nv_and_b32 v9, 6, v4\nv_xor_b32 v6, v6, v9')
    k('v_lshlrev_b32 v6, 4, v6\nv_lshl_add_u32 v6, v4, 7, v6\nv_lshl_add_u32 v6, v3, 3, v6')
    k('s_lshl_b32 s36, s20, 6')
    k('v_xor_b32 v16, s36, v6')
    for sg in range(1, 4): k(f'v_xor_b32 v{16+sg}, {32*sg}, v16')
    for sg in range(4): k(f'v_add_u32 v{20+sg}, 40960, v{16+sg}')
    k('s_lshl_b32 s36, s16, 5\ns_mul_i32 s35, s18, 10240')
    k('v_xor_b32 v24, s36, v6\nv_add_u32 v24, s35, v24')
    k('s_lshl_b32 s36, s19, 12')
    k('v_xor_b32 v2, v8, v7\nv_lshlrev_b32 v2, 4, v2\nv_lshl_add_u32 v2, v7, 8, v2\nv_add_u32 v2, s36, v2')
    for ks in range(4):
        k(f'v_xor_b32 v3, {64*ks}, v2\nv_add_u32 v{SA+2*ks}, s26, v3\nv_xor_b32 v3, {64*ks+4096}, v2\nv_add_u32 v{SA+2*ks+1}, s26, v3')
    k(f's_lshl_b32 s21, s17, 7\ns_lshl_b32 s36, s16, 16\ns_add_u32 s21, s21, s36\ns_add_u32 s21, s21, {WS_HT:#x}')
    k('s_lshl_b32 s25, s16, 11')

def stg_items(dma, c):
    for j in range(8):
        pre = [f's_add_u32 m0, s26, {(c % 2)*8192 + j*1024}']
        if j == 0: pre += [f's_add_u32 s55, s28, {c*256}']
        if j == 4: pre += ['s_add_u32 s55, s55, 65536']
        dma.add(pre, f'buffer_load_dwordx4 v{11+j%4}, s[12:15], s55 offen lds', 100+c)
def stg_read(dma, lg, c, wait=True):
    if wait: dma.upto(100+c); dma.vm.wait(dma.tok[100+c])
    for ks in range(4):
        for tau in range(2):
            lg.issue(f'ds_read_b128 {wreg(c, 8*ks+4*tau)}, v{SA+2*ks+tau} offset:{(c % 2)*8192}')

def phaseB(k, hiw):
    vm = Cnt(k, 'vmcnt', 63); lg = Cnt(k, 'lgkmcnt', 15)
    dma = Dma(k, vm)
    grp = [int(x) for x in E('FB_GRP', '0,1,1,2,2,2,3,3,3,3').split(',')]
    for s_ in range(10):
        for j in range(2):
            dma.add([f's_add_u32 m0, s25, {s_*8192 + j*1024}', f's_add_u32 s27, s21, {(s_*64 + j*8)*4096}'], 'buffer_load_dwordx4 v10, s[8:11], s27 offen sc1 lds', grp[s_])
    mark(k, 0, 'B')
    dma.upto(int(E('FB_PRO', 1)))
    mark(k, 1, 'B')
    stg_read(dma, lg, 0, False); stg_read(dma, lg, 1, False)
    for T_ in range(3):
        for p in range(3):
            for hp in range(2):
                k(f'v_pk_add_f32 {v(CS+4*T_+2*hp,2)}, {v(CS+4*T_+2*hp,2)}, {v(AC[0]+12*T_+4*p+2*hp,2)}')
    lg.all()
    stg_items(dma, 2); stg_items(dma, 3)
    if not T2E: w1_items(dma, [2], 103.5)
    def reads(g):
        off = g*4096; ar = 16
        if off >= 40960: off -= 40960; ar = 20
        b = HF + 16*(g % 3); out = []
        for sg in range(4):
            out += [f'ds_read_b64_tr_b16 {v(b+4*sg,2)}, v{ar+sg} offset:{off}', f'ds_read_b64_tr_b16 {v(b+4*sg+2,2)}, v{ar+sg} offset:{off+2048}']
        return out
    def mk(tiles, stats):
        def f(g):
            b = HF + 16*(g % 3); out = []
            for sg in range(4):
                if stats and sg < 2:
                    d = AC[2] + 8*sg
                    out.append(f'{MF} {v(d,4)}, {v(ONE,4)}, {v(b+4*sg,4)}, {"0" if g == 0 else v(d,4)}')
                    out.append(f'{MF} {v(d+4,4)}, {v(b+4*sg,4)}, {v(b+4*sg,4)}, {"0" if g == 0 else v(d+4,4)}')
            for sg in range(4):
                for T_ in tiles:
                    d = AC[T_] + 4*sg
                    out.append(f'{MF} {v(d,4)}, {a(80*T_+4*g,4)}, {v(b+4*sg,4)}, {"0" if g == 0 else v(d,4)}')
            return out
        return f
    mark(k, 2, 'B')
    dma.sync(0)
    mark(k, 3, 'B')
    def btouch():
        if hiw and int(E('B_TOUCH', 0)):
            L = k.lab('nt')
            k(f's_cmp_lg_u32 s16, 3\ns_cbranch_scc1 {L}')
            k('v_lshrrev_b32 v2, 2, v1\nv_lshlrev_b32 v2, 11, v2\nv_and_b32 v3, 3, v1\nv_lshl_add_u32 v2, v3, 7, v2')
            k('s_lshl_b32 s36, s2, 15\ns_add_u32 s36, s36, 1536')
            k('buffer_load_dword v15, v2, s[12:15], s36 offen')
            k(f'{L}:')
    resr = [f'ds_read_b64_tr_b16 {v(RES+2*j,2)}, v24 offset:{j*2048}' for j in range(5)]
    gemm_loop(k, lg, dma, 0, 20, reads, mk([0] if hiw else [0, 1], hiw), lambda g: grp[g//2], 1000, lambda g: float(E('FB_RATE0', 2)) if g < int(E('FB_G0', 4)) else float(E('FB_RATE', 6)), tail_reads=resr, hooks={int(E('FB_G0', 4)): btouch})
    mark(k, 8); mark(k, 4, 'B')
    if not hiw:
        stg_read(dma, lg, 2); stg_read(dma, lg, 3); lg.all()
        stg_items(dma, 4); stg_items(dma, 5)
    z2t = [0] if hiw else [0, 1]
    k(f's_lshl_b32 s36, s20, 9')
    k(f'v_lshlrev_b32 v3, 4, v7\nv_add_u32 v3, s36, v3\nv_xor_b32 v4, 512, v3\nv_add_u32 v3, {STAT}, v3\nv_add_u32 v4, {STAT}, v4')
    if hiw:
        k('v_and_b32 v2, 3, v1')
        k('v_cmp_eq_u32 vcc, 1, v2\nv_cmp_eq_u32 s[30:31], 2, v2\nv_cmp_eq_u32 s[32:33], 3, v2')
        k(f'v_mov_b32 v6, {fl(1/640)}')
        A_, B_ = [], []
        rec = []
        for sg in range(2):
            r = Rec(); S = AC[2] + 8*sg; Gm = S + 4
            r(f'v_cndmask_b32 v{Gm}, v{Gm}, v{Gm+1}, vcc\nv_cndmask_b32 v{Gm}, v{Gm}, v{Gm+2}, s[30:31]\nv_cndmask_b32 v{Gm}, v{Gm}, v{Gm+3}, s[32:33]')
            r(f'v_mul_f32 v{S}, v6, v{S}\nv_mul_f32 v{S+1}, v{S}, v{S}')
            r(f'v_fma_f32 v{S+1}, v{Gm}, v6, -v{S+1}\nv_max_f32 v{S+1}, 0, v{S+1}')
            ln_sigma(r, S, S+1, S+2)
            r(f'v_rcp_f32 v{Gm}, v{S+1}')
            r(f'v_mul_f32 v{S+2}, {fl(K1C)}, v{Gm}\nv_mul_f32 v{S+3}, v{Gm}, v{Gm}\nv_mul_f32 v{S+3}, v{S+3}, v{Gm}\nv_mul_f32 v{S+3}, {fl(K2C)}, v{S+3}')
            rec.append(r.L)
        for x, y in zip(*rec): k(x); k(y)
        k('s_mov_b32 exec_lo, 0x00f0000f\ns_mov_b32 exec_hi, 0xf0000f00')
        for sg in range(2): lg.issue(f'ds_write_b128 v3, {v(AC[2]+8*sg,4)} offset:{256*sg}')
        k('s_mov_b64 exec, -1')
    else:
        for _ in range(int(E('FB_X01', 8))): dma.one()
    lg.all()
    k('s_barrier')
    tks = [lg.issue(f'ds_read_b128 {v(MS+4*sg,4)}, v{3 + sg//2} offset:{256*(sg % 2)}') for sg in range(4)]
    if hiw:
        stg_read(dma, lg, 2); stg_read(dma, lg, 3); lg.all()
        stg_items(dma, 4); stg_items(dma, 5)
    mark(k, 5, 'B')
    def gelu(T_, ER=0, tks=None):
        prs = [(sg, hp) for sg in range(4) for hp in range(2)]
        for q in range(0, 8, 2):
            st = [[], []]
            if tks: lg.wait(tks[q//2])
            for u_ in range(2):
                sg, hp = prs[q+u_]
                z = AC[T_] + 4*sg + 2*hp; c = CS + 4*T_ + 2*hp; t = T + 2*u_
                ms = v(MS+4*sg, 2); kk = v(MS+4*sg+2, 2)
                st[u_] = [
                  f'v_pk_fma_f32 {v(z,2)}, {v(c,2)}, {ms}, {v(z,2)} op_sel_hi:[1,0,1] neg_lo:[0,1,0] neg_hi:[0,1,0]',
                  f'v_pk_mul_f32 {v(t,2)}, {v(z,2)}, {v(z,2)}',
                  f'v_pk_fma_f32 {v(t,2)}, {v(t,2)}, {kk}, {kk} op_sel:[0,1,0] op_sel_hi:[1,1,0]',
                  f'v_pk_mul_f32 {v(t,2)}, {v(t,2)}, {v(z,2)}',
                  f'v_exp_f32 v{t}, v{t}', f'v_exp_f32 v{t+1}, v{t+1}',
                  f'v_pk_fma_f32 {v(t,2)}, {v(t,2)}, {ms}, {ms} op_sel:[0,1,1] op_sel_hi:[1,1,1]',
                  f'v_rcp_f32 v{t}, v{t}', f'v_rcp_f32 v{t+1}, v{t+1}',
                  f'v_pk_mul_f32 {v(z,2)}, {v(z,2)}, {v(t,2)}']
            for n_, (x, y) in enumerate(zip(*st)):
                if ER and n_ % ER == 0: dma.pre()
                k(x); dma.fire(); k(y)
    for T_ in z2t: gelu(T_, 2 if hiw else int(E('FB_ER', 10)), tks)
    mark(k, 6, 'B')
    for sg in range(4):
        s1 = G + 2*sg; s2 = G + 8 + 2*sg; first = True
        for T_ in z2t:
            z = AC[T_] + 4*sg
            if first:
                k(f'v_pk_add_f32 {v(s1,2)}, {v(z,2)}, {v(z+2,2)}\nv_pk_mul_f32 {v(s2,2)}, {v(z,2)}, {v(z,2)}')
            else:
                k(f'v_pk_add_f32 {v(s1,2)}, {v(s1,2)}, {v(z,2)}\nv_pk_add_f32 {v(s1,2)}, {v(s1,2)}, {v(z+2,2)}')
                k(f'v_pk_fma_f32 {v(s2,2)}, {v(z,2)}, {v(z,2)}, {v(s2,2)}')
            k(f'v_pk_fma_f32 {v(s2,2)}, {v(z+2,2)}, {v(z+2,2)}, {v(s2,2)}')
            first = False
    for q in range(8): k(f'v_add_f32 v{G+2*q}, v{G+2*q}, v{G+2*q+1}')
    for b in (G, G+8): k(f'v_permlane32_swap_b32 v{b}, v{b+4}\nv_permlane32_swap_b32 v{b+2}, v{b+6}')
    for b in (G, G+8): k(f'v_add_f32 v{b}, v{b}, v{b+4}\nv_add_f32 v{b+2}, v{b+2}, v{b+6}')
    for b in (G, G+8): k(f'v_permlane16_swap_b32 v{b}, v{b+2}')
    k(f'v_add_f32 v{T}, v{G}, v{G+2}\nv_add_f32 v{T+1}, v{G+8}, v{G+10}')
    lg.issue(f'ds_write_b64 v27, {v(T,2)}')
    def barX():
        k('s_barrier')
        mark(k, 9); mark(k, 7, 'B')
    lg.all()
    if not hiw:
        barX()
        L = k.lab('npub')
        k(f's_cmp_lg_u32 s16, 0\ns_cbranch_scc1 {L}')
        k(f'v_lshlrev_b32 v9, 3, v1\nv_add_u32 v2, {PART}, v9')
        for w in range(4): k(f'ds_read_b64 {v(G+2*w,2)}, v2 offset:{512*w}')
        k('s_lshl_b32 s36, s18, 9\ns_add_u32 s36, s36, s29')
        k('s_waitcnt lgkmcnt(0)')
        k(f'v_pk_add_f32 {v(G,2)}, {v(G,2)}, {v(G+2,2)}\nv_pk_add_f32 {v(G+4,2)}, {v(G+4,2)}, {v(G+6,2)}\nv_pk_add_f32 {v(G,2)}, {v(G,2)}, {v(G+4,2)}')
        k(f'buffer_store_dwordx2 {v(G,2)}, v9, s[8:11], s36 offen sc1')
        k(f'{L}:')
    while dma.q: dma.one()
    if not T2E: vm.wait(dma.tok[103.5])
    def readB():
        stg_read(dma, lg, 4); stg_read(dma, lg, 5)
    def startC():
        lg.all()
        stg_items(dma, 6); stg_items(dma, 7)
    tk = {}
    def statloads():
        for q in range(8):
            vm.issue(f'buffer_load_dwordx2 {v(G+2*q,2)}, v25, s[8:11], s29 offen offset:{q*512} sc1')
        tk['s'] = vm.n
    def z1out(T_, jexpr_sreg):
        k(f's_mul_i32 s36, s20, 6144\ns_add_u32 s36, s36, {jexpr_sreg}\ns_mul_i32 s35, s20, 12288\ns_sub_u32 s35, s36, s35')
        k('v_add_u32 v2, s36, v5\nv_add_u32 v3, s35, v5')
        for sg in range(4):
            z = AC[T_] + 4*sg
            k(f'v_cvt_pk_bf16_f32 v{z}, v{z}, v{z+1}\nv_cvt_pk_bf16_f32 v{z+1}, v{z+2}, v{z+3}')
            lg.issue(f'ds_write_b64 v{2 + sg//2}, {v(z,2)} offset:{3072*sg}')
    def normalize():
        if hiw: k('s_add_u32 s30, s16, 2')
        else: k('s_lshl_b32 s30, s16, 1')
        k(f's_mul_i32 s31, s18, 6\ns_add_u32 s30, s30, s31\ns_lshl_b32 s30, s30, 16\ns_lshl_b32 s31, s17, 11\ns_add_u32 s30, s30, s31\ns_add_u32 s30, s30, {WS_Z2:#x}')
        k('s_lshl_b32 s31, s20, 10\ns_add_u32 s32, s30, s31\ns_xor_b32 s31, s31, 1024\ns_add_u32 s33, s30, s31')
        mark(k, 10); mark(k, 9 if hiw else 8, 'B')
        vm.wait(tk['s'])
        Lp = k.lab('spoll'); Lok = k.lab('sok')
        k('s_mov_b32 s37, 0')
        k(f'{Lp}:')
        k(f'v_min_f32 v2, v{G+1}, v{G+3}')
        for q in range(2, 8, 2): k(f'v_min3_f32 v2, v2, v{G+2*q+1}, v{G+2*q+3}')
        k('v_cmp_gt_f32 vcc, 0, v2')
        k(f's_cbranch_vccz {Lok}')
        k(f's_add_u32 s37, s37, 1\ns_cmp_gt_u32 s37, {SPIN}')
        k(f's_cbranch_scc1 {Lok}')
        n0 = vm.n; statloads(); vm.n = n0
        k('s_waitcnt vmcnt(0)')
        k(f's_branch {Lp}')
        k(f'{Lok}:')
        mark(k, 11); mark(k, 11 if hiw else 10, 'B')
        for st in (8, 4, 2):
            for q in range(0, st, 2): k(f'v_pk_add_f32 {v(G+q,2)}, {v(G+q,2)}, {v(G+q+st,2)}')
        k(f'v_mov_b32 v4, {fl(1/768)}')
        k(f'v_mul_f32 v{G}, v4, v{G}\nv_mul_f32 v{G+2}, v{G}, v{G}\nv_fma_f32 v{G+1}, v{G+1}, v4, -v{G+2}\nv_max_f32 v{G+1}, 0, v{G+1}')
        ln_finish(k, G, G+1, G+2)
        k(f'v_mul_f32 v{G}, v{G}, -v{G+1}')
        N = G + 8
        for e in range(2): k(f'v_mov_b32 v{N+e}, v{G+e}\nv_mov_b32 v{N+4+e}, v{G+e}')
        for e in range(2): k(f'v_permlane32_swap_b32 v{N+e}, v{N+4+e}')
        for e in range(2): k(f'v_mov_b32 v{N+2+e}, v{N+e}\nv_mov_b32 v{N+6+e}, v{N+4+e}')
        for e in range(2): k(f'v_permlane16_swap_b32 v{N+e}, v{N+2+e}\nv_permlane16_swap_b32 v{N+4+e}, v{N+6+e}')
        for T_ in z2t:
            for sp in range(2):
                P = AC[T_] + 8*sp
                for u_ in range(2):
                    sg = 2*sp + u_; z = AC[T_] + 4*sg; ms = v(N+2*sg, 2)
                    for hp in range(2):
                        k(f'v_pk_fma_f32 {v(z+2*hp,2)}, {v(z+2*hp,2)}, {ms}, {ms} op_sel:[0,1,0] op_sel_hi:[1,1,0]')
                    k(f'v_cvt_pk_bf16_f32 v{P+2*u_}, v{z}, v{z+1}\nv_cvt_pk_bf16_f32 v{P+2*u_+1}, v{z+2}, v{z+3}')
                k(f'v_permlane16_swap_b32 v{P}, v{P+2}\nv_permlane16_swap_b32 v{P+1}, v{P+3}')
                if T_ == 1: k(f's_add_u32 s{32+sp}, s{32+sp}, 65536')
                vm.issue(f'buffer_store_dwordx4 {v(P,4)}, v26, s[8:11], s{32+sp} offen sc1')
        k(f's_lshl_b32 s30, s18, 5\ns_add_u32 s31, s30, s17\ns_lshl_b32 s31, s31, 7\ns_add_u32 s31, s31, {F2:#x}')
        tk['z'] = vm.n
        mark(k, 13 if hiw else 12, 'B')
    def sig():
        signal(k, vm, 's31', tk['z'])
        mark(k, 12); mark(k, 14, 'B')
    R2 = float(E('FB_RATE2', 2))
    def mkhooks(pairs):
        d = {}
        for g, f in pairs: d.setdefault(g, []).append(f)
        return {g: (lambda fs=fs: [f() for f in fs]) for g, fs in d.items()}
    phaseC_bases(k)
    if not hiw:
        h = [int(x) for x in E('FB_H01', '13,6,14,11,18').split(',')]
        assert h[0] >= 8 and h[2] >= h[0]
        hk = mkhooks(zip(h, [readB, statloads, startC, normalize, sig]))
        gemm_loop(k, lg, dma, 0, 20, reads, mk([2], False), lambda g: -1, 1000, R2, hooks=hk)
        if 20 in hk: hk[20]()
        gelu(2, 2)
        if 21 in hk: hk[21]()
        k(f's_lshl_b32 s34, s20, 3\ns_add_u32 s34, s34, {Z1L}')
        z1out(2, 's34')
        while dma.q: dma.one()
        k(f'v_and_b32 v2, 31, v1\nv_lshlrev_b32 v2, 7, v2\ns_lshl_b32 s30, s30, 7\ns_add_u32 s30, s30, {F2:#x}')
        poll(k, vm, 2, 's30')
        k('s_barrier')
        mark(k, 13)
        for s_ in range(3):
            for hk_ in range(2):
                for jf in range(3):
                    k(f's_add_u32 s27, s21, {hk_*32768 + jf*65536 + s_*2048}\ns_add_u32 m0, s56, {s_*24576 + hk_*12288 + jf*2048}')
                    for hf in range(2): k(f'buffer_load_dwordx4 v5, s[8:11], s27 offen offset:{hf*1024} sc1 lds')
            if s_ == 0: stg_read(dma, lg, 6, False); stg_read(dma, lg, 7, False)
    else:
        h = [int(x) for x in E('FB_H23', '3,11,7,12,10,14').split(',')]
        assert h[1] >= 8 and h[3] >= h[1]
        hk = mkhooks(zip(h, [barX, readB, statloads, startC, normalize, sig]))
        gemm_loop(k, lg, dma, 0, 20, reads, mk([1, 2], False), lambda g: -1, 1000, 2*R2, hooks=hk)
        lg.all()
        YP = int(E('FB_YP', 1))
        if YP == 0: k('s_barrier')
        gelu(1, 2)
        while dma.q: dma.one()
        if YP == 1: k('s_barrier')
        k(f's_lshl_b32 s34, s20, 10\ns_add_u32 s34, s34, {Z1L+1024}')
        z1out(1, 's34')
        gelu(2)
        k('s_add_u32 s34, s34, 8')
        z1out(2, 's34')
        stg_read(dma, lg, 6); stg_read(dma, lg, 7)
        mark(k, 15, 'B')
    lg.all()

def phaseC_bases(k):
    k(f's_mul_i32 s21, s18, 6\ns_mul_i32 s36, s20, 3\ns_add_u32 s21, s21, s36\ns_lshl_b32 s21, s21, 16\ns_lshl_b32 s36, s19, 15\ns_add_u32 s21, s21, s36\ns_add_u32 s21, s21, {WS_Z2:#x}')
    k('s_mul_i32 s56, s16, 6144')

def waddr(q):
    o = (q*1024 + 24576) % 122880
    return f'v5 offset:{o}' if o < 61440 else f'v6 offset:{o-61440}'

def phaseC(k):
    vm = Cnt(k, 'vmcnt', 63); lg = Cnt(k, 'lgkmcnt', 15)
    dma = Dma(k, vm)
    NS = 5; RED = 122880
    k('s_mov_b32 s25, s56')
    k(f's_mul_i32 s22, s18, 122880\ns_add_u32 s22, s22, s25\ns_add_u32 s22, s22, {WS_WO:#x}')
    mark(k, 0, 'C')
    for s_ in range(3): vm.n += 12; dma.tok[s_] = vm.n
    for s_ in range(3, 16):
        sl = s_ % NS; af = s_ - NS + 2 if s_ >= NS else 0
        for jf in range(3):
            for hf in range(2):
                pre = [f's_add_u32 s27, s21, {jf*65536 + s_*2048}', f's_add_u32 m0, s25, {sl*24576 + jf*2048}'] if hf == 0 else []
                dma.add(pre, f'buffer_load_dwordx4 v5, s[8:11], s27 offen offset:{hf*1024} sc1 lds', s_, af)
    for s_ in range(11, 16):
        sl = s_ % NS
        for hf in range(2):
            for j in range(3):
                pre = [f's_add_u32 s27, s22, {((sl-1) % 5)*24576 + hf*3072}', f's_add_u32 m0, s25, {sl*24576 + hf*3072}'] if j == 0 else []
                dma.add(pre, f'buffer_load_dwordx4 v5, s[8:11], s27 offen offset:{j*1024} sc1 lds', 50 + s_ - 11, min(s_+2, 16))
    ZA = 16
    k('v_bfe_u32 v2, v1, 2, 2\nv_and_b32 v3, 1, v8\nv_lshl_add_u32 v2, v3, 2, v2\nv_lshrrev_b32 v3, 1, v8\nv_lshl_add_u32 v2, v3, 4, v2')
    k('v_and_b32 v3, 3, v1\nv_lshlrev_b32 v3, 3, v3\nv_lshl_add_u32 v2, v2, 5, v3')
    k('s_mul_i32 s36, s19, 12288')
    k(f'v_add_u32 v{ZA}, s36, v2\nv_add_u32 v{ZA+1}, 49152, v{ZA}\nv_add_u32 v{ZA+2}, 98304, v{ZA}')
    k('s_lshl_b32 s23, s20, 1\ns_add_u32 s23, s23, s19')
    k('s_lshl_b32 s36, s17, 2\ns_add_u32 s24, s36, s23')
    k('s_lshl_b32 s36, s24, 5')
    k('v_lshl_add_u32 v2, v7, 1, s36')
    BS = 20
    tB = vm.issue(f'global_load_ushort v{BS}, v2, s[38:39]')
    FR = 68; ACC = 140
    lg.all()
    mark(k, 1, 'C')
    dma.sync(0)
    mark(k, 2, 'C')
    dma.novm = int(E('X_NOVM', 0)); dma.nobar = int(E('X_NOBAR', 0)); dma.nodma = int(E('X_NODMA', 0))
    def reads(g):
        s_, ks = g // 2, g % 2; sl = s_ % NS; b = FR + 24*(g % 3)
        ar = ZA + sl//2; off = (sl % 2)*24576 + ks*1024
        out = []
        for ft in range(6):
            out += [f'ds_read_b64_tr_b16 {v(b+4*ft,2)}, v{ar} offset:{off+ft*2048}', f'ds_read_b64_tr_b16 {v(b+4*ft+2,2)}, v{ar} offset:{off+ft*2048+256}']
        return out[:int(E('X_NRD', 12))]
    def mfmas(g):
        b = FR + 24*(g % 3); out = []
        for ft in range(6):
            for tau in range(2):
                d = ACC + 24*tau + 4*ft
                out.append(f'{MF} {v(d,4)}, {v(b+4*ft,4)}, {wreg(g//4, 8*(g % 4)+4*tau)}, {"0" if g == 0 else v(d,4)}')
        return out
    ZR = 24
    k(f's_mul_i32 s36, s23, 3072\ns_add_u32 s36, s36, {Z1L}')
    k('v_add_u32 v19, s36, v5')
    tail = [f'ds_read_b128 {v(ZR+4*q,4)}, v19 offset:{1024*q}' for q in range(3)]
    gemm_loop(k, lg, dma, 0, 32, reads, mfmas, lambda g: g//2, int(E('FC_LEAD', 1000)), float(E('FC_RATE', 3)), tail_reads=tail, hooks={4*i: (lambda i=i: mark(k, 2+i, 'C')) for i in range(1, 8)})
    mark(k, 10, 'C')
    while dma.ready(): dma.one()
    mark(k, 14); mark(k, 11, 'C')
    k(f's_add_u32 s36, s25, {RED}\ns_xor_b32 s35, s16, 2\ns_mul_i32 s35, s35, 6144\ns_add_u32 s35, s35, {RED}')
    k('v_add_u32 v2, s36, v5\nv_add_u32 v3, s35, v5')
    for ft in range(6): lg.issue(f'ds_write_b128 v2, {v(ACC+24+4*ft,4)} offset:{1024*ft}')
    vm.wait(dma.tok[51])
    lg.all()
    k('s_barrier'); dma.bar = 16
    mark(k, 12, 'C')
    tk = [lg.issue(f'ds_read_b128 {v(FR+4*ft,4)}, v3 offset:{1024*ft}') for ft in range(6)]
    vm.wait(tB)
    k(f'v_lshlrev_b32 v{BS}, 16, v{BS}')
    k(f's_mul_i32 s30, s24, 24576\ns_mul_i32 s31, s18, 3072\ns_add_u32 s30, s30, s31\ns_add_u32 s30, s30, {WS_P:#x}')
    TT = 36
    for ft in range(6):
        d = ACC + 4*ft; z = ZR + 2*ft; P = ACC + 8*(ft//2) + 2*(ft % 2)
        lg.wait(tk[ft])
        for hp in range(2):
            k(f'v_pk_add_f32 {v(d+2*hp,2)}, {v(d+2*hp,2)}, {v(FR+4*ft+2*hp,2)}')
            k(f'v_lshlrev_b32 v{TT+2*hp}, 16, v{z+hp}\nv_and_b32 v{TT+2*hp+1}, 0xffff0000, v{z+hp}')
            k(f'v_pk_add_f32 {v(d+2*hp,2)}, {v(d+2*hp,2)}, {v(BS,2)} op_sel_hi:[1,0]')
            k(f'v_pk_mul_f32 {v(d+2*hp,2)}, {v(d+2*hp,2)}, {v(TT+2*hp,2)}')
        k(f'v_cvt_pk_bf16_f32 v{P}, v{d}, v{d+1}\nv_cvt_pk_bf16_f32 v{P+1}, v{d+2}, v{d+3}')
        if ft % 2: tP = vm.issue(f'buffer_store_dwordx4 {v(P-2,4)}, v5, s[8:11], s30 offen offset:{(ft//2)*1024} sc1')
        if ft < 5:
            for _ in range(int(E('FC_WE', 0))): dma.one()
    k(f's_lshl_b32 s30, s17, 3\ns_add_u32 s31, s30, s18\ns_lshl_b32 s31, s31, 7\ns_add_u32 s31, s31, {F3:#x}')
    mark(k, 13, 'C')
    k('v_add_u32 v6, 61440, v5')
    SQ = int(E('FC_SQ', 12))
    for q in range(45):
        if q == SQ: signal(k, vm, 's31', tP)
        lg.issue(f'ds_read_b128 {a(4*q,4)}, {waddr(q)}')
        if q % 3 == 2: dma.one()
    assert not dma.q
    if SQ == 45: signal(k, vm, 's31', tP)
    mark(k, 15); mark(k, 14, 'C'); mark(k, 10, 'D')
    return vm, lg, dma

def phaseD(k, vm, lg, dma):
    mark(k, 0, 'D')
    k(f'v_and_b32 v2, 7, v1\nv_lshlrev_b32 v2, 7, v2\ns_lshl_b32 s30, s17, 10\ns_add_u32 s30, s30, {F3:#x}')
    for q in range(45, 60): lg.issue(f'ds_read_b128 {a(4*q,4)}, {waddr(q)}')
    k(f's_lshl_b32 s31, s17, 2\ns_add_u32 s31, s31, s16\ns_mul_i32 s32, s31, 24576\ns_add_u32 s32, s32, {WS_P:#x}')
    mark(k, 1, 'D')
    poll(k, vm, 2, 's30')
    mark(k, 2, 'D')
    PF = 68; FR = 164; ACC = 224
    pt = []
    def pld():
        g = len(pt)
        if g >= 24: return
        if g % 4 == 0 and g: k('s_add_u32 s32, s32, 4096')
        pt.append(vm.issue(f'buffer_load_dwordx4 {v(PF+4*g,4)}, v5, s[8:11], s32 offen offset:{(g % 4)*1024} sc1'))
    for _ in range(int(E('FD_PRE', 10))): pld()
    k('s_mul_i32 s33, s31, 20480\ns_mul_i32 s34, s18, 160\ns_add_u32 s33, s33, s34')
    k('v_mul_u32_u24 v9, 1280, v7\nv_lshl_add_u32 v10, v8, 3, v9')
    k('v_and_b32 v3, 1, v8\nv_lshl_add_u32 v9, v3, 5, v9\nv_lshrrev_b32 v3, 1, v8\nv_lshl_add_u32 v9, v3, 4, v9')
    mark(k, 3, 'D')
    lg.all()
    ft = {}
    def rd(g): return [f'ds_read_b128 {v(FR+20*(g % 3)+4*j,4)}, {waddr(5*g+j)}' for j in range(5)]
    for g in range(24):
        vm.wait(pt[g])
        if g % 6 == 0: mark(k, 4+g//6, 'D')
        if g == 9: k('s_barrier')
        if g >= 12: lg.wait(ft[g])
        rr = rd(g+2) if 12 <= g+2 < 24 else []
        for j in range(5):
            A = a(20*g+4*j, 4) if g < 12 else v(FR+20*(g % 3)+4*j, 4)
            k(f'{MF} {v(ACC+4*j,4)}, {A}, {v(PF+4*g,4)}, {"0" if g == 0 else v(ACC+4*j,4)}')
            if j in (0, 3): pld()
            if rr: ft[g+2] = lg.issue(rr.pop(0))
    TT = 36
    mark(k, 8, 'D')
    OST = E('F_OST', '')
    for j in range(5):
        d = ACC + 4*j; P = ACC + 8*(j//2) + 2*(j % 2)
        for hp in range(2):
            k(f'v_lshlrev_b32 v{TT+2*hp}, 16, v{RES+2*j+hp}\nv_and_b32 v{TT+2*hp+1}, 0xffff0000, v{RES+2*j+hp}')
            k(f'v_pk_add_f32 {v(d+2*hp,2)}, {v(d+2*hp,2)}, {v(TT+2*hp,2)}')
        k(f'v_cvt_pk_bf16_f32 v{P}, v{d}, v{d+1}\nv_cvt_pk_bf16_f32 v{P+1}, v{d+2}, v{d+3}')
        if j % 2:
            k(f'v_permlane16_swap_b32 v{P-2}, v{P}\nv_permlane16_swap_b32 v{P-1}, v{P+1}')
            k(f'buffer_store_dwordx4 {v(P-2,4)}, v9, s[40:43], s33 offen offset:{32*(j-1)} {OST}')
        elif j == 4:
            k(f'buffer_store_dwordx2 {v(P,2)}, v10, s[40:43], s33 offen offset:128 {OST}')

def helper0(k, vm):
    lg = Cnt(k, 'lgkmcnt', 15)
    k('v_lshrrev_b32 v2, 2, v1\nv_and_b32 v3, 3, v1\nv_mul_u32_u24 v2, 160, v2\nv_lshl_add_u32 v2, v3, 3, v2\ns_lshl_b32 s27, s16, 5\nv_add_u32 v57, s27, v2')
    tk = []
    for p in range(5):
        lg.issue(f'ds_read_b64_tr_b16 {v(12+4*p,2)}, v57 offset:{p*5120}')
        tk.append(lg.issue(f'ds_read_b64_tr_b16 {v(14+4*p,2)}, v57 offset:{p*5120+2560}'))
    for r in range(4): k(f'v_mov_b32 v{48+r}, 0x3f803f80')
    k('s_and_b32 s45, s44, 3\ns_and_b32 s46, s44, -4\ns_add_u32 s46, s46, s16')
    k(f's_mul_i32 s47, s46, 20\ns_mul_i32 s50, s45, 5\ns_add_u32 s47, s47, s50\ns_lshl_b32 s47, s47, 10\ns_add_u32 s47, s47, {WS_W1:#x}\ns_add_u32 s50, s47, 4096')
    for p in range(5):
        lg.wait(tk[p])
        k(f'{MF} v[44:47], {v(12+4*p,4)}, v[48:51], {"0" if p == 0 else "v[44:47]"}')
        vm.issue(f'buffer_store_dwordx4 {v(12+4*p,4)}, v5, s[8:11], ' + (f's47 offen offset:{p*1024} sc1' if p < 4 else 's50 offen sc1'))
    k(f's_mul_i32 s47, s45, 6144\ns_lshl_b32 s50, s46, 6\ns_add_u32 s47, s47, s50\ns_add_u32 s47, s47, {WS_CS:#x}')
    k('v_lshlrev_b32 v2, 4, v8')
    k('s_mov_b32 exec_lo, 0x00010001\ns_mov_b32 exec_hi, 0x00010001')
    tS = vm.issue('buffer_store_dwordx4 v[44:47], v2, s[8:11], s47 offen sc1')
    k('s_mov_b64 exec, -1')
    for p in range(3):
        vm.issue(f'global_load_dwordx4 {v(164+4*p,4)}, v191, s[48:49]')
        if p < 2: k(f'v_add_u32 v191, {32*1280}, v191')
    k(f's_lshl_b32 s47, s44, 7\ns_add_u32 s47, s47, {F0B:#x}')
    mark(k, 12, 'H')
    signal(k, vm, 's47', tS)

def helper1(k):
    for p in range(3): k(f'ds_write_b128 v56, {v(164+4*p,4)} offset:{p*5120}')
    k('s_lshr_b32 s47, s44, 3\ns_lshl_b32 s47, s47, 2\ns_add_u32 s47, s47, s16\ns_mul_i32 s48, s47, 52\ns_lshr_b32 s48, s48, 8\ns_mul_i32 s49, s48, 5\ns_sub_u32 s49, s47, s49')
    k(f's_and_b32 s47, s44, 7\ns_mul_i32 s47, s47, 15\ns_mul_i32 s48, s48, 120\ns_add_u32 s47, s47, s48\ns_add_u32 s47, s47, s49\ns_lshl_b32 s47, s47, 10\ns_add_u32 s47, s47, {WS_WO:#x}')
    k('s_waitcnt lgkmcnt(0)\ns_barrier')
    for p in range(3):
        k(f'ds_read_b64_tr_b16 {v(12+4*p,2)}, v57 offset:{p*5120}\nds_read_b64_tr_b16 {v(14+4*p,2)}, v57 offset:{p*5120+2560}')
    k('s_waitcnt lgkmcnt(0)\ns_barrier')
    L = k.lab('nwo')
    k(f's_cmp_ge_u32 s44, 80\ns_cbranch_scc1 {L}')
    for p in range(3):
        k(f'buffer_store_dwordx4 {v(12+4*p,4)}, v5, s[8:11], s47 offen sc1')
        if p < 2: k('s_add_u32 s47, s47, 5120')
    k(f'{L}:')

def gen_ks():
    k = Kern(NAME, 256, 256, 163840)
    k.short = 'ks'
    Lend = 'Lks_end'
    k(f's_cmp_ge_u32 s2, 256\ns_cbranch_scc1 {Lend}')
    stamp_begin(k)
    k('s_load_dwordx16 s[44:59], s[0:1], 0')
    k('s_load_dwordx2 s[6:7], s[0:1], 112')
    k('s_load_dwordx4 s[28:31], s[0:1], 96')
    k('s_load_dwordx8 s[20:27], s[0:1], 64')
    k('s_memrealtime s[4:5]')
    k('s_getpc_b64 s[18:19]')
    k('Lks_pc:')
    k(f's_sub_u32 s18, s18, Lks_pc-{NAME}\ns_subb_u32 s19, s19, 0')
    k('s_lshr_b32 s17, s2, 3\ns_lshl_b32 s17, s17, 11')
    k(f'v_lshrrev_b32 v2, 4, v0\nv_lshlrev_b32 v2, 7, v2\nv_add_u32 v2, s17, v2\nv_min_u32 v2, Lcode_end-{NAME}-4, v2')
    k('global_load_dword v239, v2, s[18:19]')
    k('v_lshrrev_b32 v5, 6, v0')
    k('v_readfirstlane_b32 s16, v5')
    k('v_and_b32 v1, 63, v0\nv_lshlrev_b32 v5, 4, v1\nv_and_b32 v7, 15, v1\nv_lshrrev_b32 v8, 4, v1')
    k('v_lshrrev_b32 v2, 5, v0\nv_and_b32 v3, 31, v0\nv_lshlrev_b32 v3, 3, v3')
    k('v_mul_u32_u24 v50, 1280, v2\ns_mul_i32 s3, s2, 10240\nv_add3_u32 v50, v50, v3, s3')
    k(f'v_mul_u32_u24 v51, 1344, v2\nv_add_u32 v51, v51, v3\nv_add_u32 v51, {LNB}, v51')
    ln1_addr(k)
    k('s_lshl_b32 s3, s2, 2\ns_add_u32 s3, s3, s16')
    k('s_mul_i32 s17, s3, 384\nv_lshl_add_u32 v2, v1, 1, s17\ns_lshl_b32 s17, s3, 1\nv_mov_b32 v3, s17')
    for r in list(range(PR, PR+13)) + [AUX, AP0, AST, 190, 191, 132, 133, 134, 135]: k(f'v_mov_b32 v{r}, 0')
    k('s_lshl_b32 s34, s3, 1\ns_and_b32 s34, s34, -4')
    k('s_waitcnt lgkmcnt(0)')
    L = k.lab('nnw')
    k(f's_cmp_lg_u32 s3, 0\ns_cbranch_scc1 {L}')
    k('s_or_b32 s4, s4, 1\nv_mov_b32 v4, 0\nv_mov_b32 v6, s4\ns_mov_b64 exec, 1')
    k('global_store_dword v4, v6, s[30:31] sc1')
    k('s_mov_b64 exec, -1')
    k(f'{L}:')
    for q in range(5): k(f'global_load_dwordx2 {v(12+2*q,2)}, v50, s[44:45] offset:{q*256}')
    mark(k, 0)
    k('s_cmp_ge_u32 s2, 160\ns_cbranch_scc1 Lks_h0')
    def common_setup():
        srd(k, 8, 6, WS_SIZE); srd(k, 12, 22, 2048*4096); srd(k, 40, 28, 2048*1280)
        k('s_mov_b64 s[32:33], s[30:31]')
        k('s_mov_b64 s[38:39], s[24:25]')
        cb = MAPB
        k(f's_and_b32 s17, s2, 7\ns_lshr_b32 s17, s17, {3-cb}\ns_lshl_b32 s17, s17, {5-cb}\ns_lshr_b32 s18, s2, {3+cb}\ns_add_u32 s17, s17, s18')
        k(f's_and_b32 s18, s2, {(1 << (3-cb))-1}\ns_lshl_b32 s18, s18, {cb}\ns_lshr_b32 s19, s2, 3\ns_and_b32 s19, s19, {(1 << cb)-1}\ns_add_u32 s18, s18, s19')
        k('s_lshr_b32 s19, s16, 1\ns_and_b32 s20, s16, 1')
        k('s_lshl_b32 s25, s16, 1\ns_add_u32 s26, s16, 2\ns_cmp_lt_u32 s16, 2')
        k('s_cselect_b32 s22, s25, s26\ns_add_u32 s22, s22, 48')
        k('s_add_u32 s26, s25, 49\ns_sub_u32 s27, s25, 2\ns_cmp_lt_u32 s16, 2\ns_cselect_b32 s23, s26, s27')
        k('s_sub_u32 s27, s25, 1\ns_cmp_lt_u32 s16, 2\ns_cselect_b32 s24, s16, s27')
        k('s_mul_i32 s25, s18, 6')
        for r in (22, 23, 24): k(f's_add_u32 s{r}, s{r}, s25\ns_lshl_b32 s{r+35}, s{r}, 6\ns_add_u32 s{r+35}, s{r+35}, {WS_CS:#x}\ns_mul_i32 s{r}, s{r}, 20480\ns_add_u32 s{r}, s{r}, {WS_W1:#x}')
        k(f's_lshl_b32 s29, s17, 12\ns_add_u32 s29, s29, {WS_ST:#x}')
        k('s_lshl_b32 s27, s18, 9\ns_add_u32 s27, s27, s29\ns_lshl_b32 s26, s16, 7\ns_add_u32 s27, s27, s26')
        k('v_lshlrev_b32 v2, 3, v7\nv_mov_b32 v10, -1.0\nv_mov_b32 v11, -1.0')
        k('buffer_store_dwordx2 v[10:11], v2, s[8:11], s27 offen sc1')
    k('global_load_short_d16_hi v68, v3, s[54:55]')
    for g in range(3):
        for i in range(4): k(f'global_load_short_d16_hi v{PR+4*g+i}, v2, s[{46+2*i}:{47+2*i}] offset:{128*g}')
    k('s_load_dword s35, s[56:57], s34')
    PFS = int(E('C_PFS', 0))
    k('s_mov_b64 s[4:5], s[20:21]\ns_mov_b64 s[36:37], s[26:27]')
    PFW = int(E('C_PFW', 0))
    def pfw_addr():
        k('v_min_u32 v2, 23, v1\nv_lshlrev_b32 v2, 7, v2\ns_mul_i32 s27, s3, 3072\nv_add_u32 v2, s27, v2')
        k('v_min_u32 v3, 11, v1\nv_lshlrev_b32 v3, 7, v3\ns_mul_i32 s27, s3, 1536\nv_add_u32 v3, s27, v3')
    if PFW == 2:
        pfw_addr(); k('global_load_dword v190, v2, s[4:5]\nglobal_load_dword v191, v3, s[36:37]')
    common_setup()
    stg_setup(k, 132)
    A0 = int(E('C_A0', 1))
    r = Rec(); conv_early(r); conv_late(r); conv_bands(r)
    dq = []
    if A0:
        for q in range(4):
            for j in range(4):
                dq.append(f's_add_u32 s31, s28, {(q//2)*256 + (q % 2)*65536}\ns_add_u32 m0, s26, {q*4096 + j*1024}\nbuffer_load_dwordx4 v{132+j}, s[12:15], s31 offen lds')
    for n, x in enumerate(r.L):
        if n % int(E('C_A0R', 14)) == 0 and n >= int(E('C_A0S', 0)) and dq: k(dq.pop(0))
        k(x)
    for x in dq: k(x)
    if PFW == 1: pfw_addr()
    k(f's_waitcnt vmcnt({14 + 2*(PFW == 2) + 16*A0})')
    if PFW == 1: k('global_load_dword v190, v2, s[4:5]\nglobal_load_dword v191, v3, s[36:37]')
    k('s_branch Lks_ln')
    k('Lks_h0:')
    k('s_mov_b64 s[46:47], s[20:21]\ns_mov_b64 s[48:49], s[26:27]\ns_sub_u32 s44, s2, 160')
    common_setup()
    f0b_addr(k)
    k('v_lshrrev_b32 v2, 3, v0\nv_and_b32 v3, 7, v0\nv_lshlrev_b32 v3, 4, v3')
    k(f's_and_b32 s45, s44, 3\ns_mul_i32 s45, s45, {160*3072}\ns_lshr_b32 s27, s44, 2\ns_lshl_b32 s27, s27, 7\ns_add_u32 s45, s45, s27')
    k('v_mul_u32_u24 v4, 3072, v2\nv_add3_u32 v190, v4, v3, s45')
    k(f's_min_u32 s27, s44, 79\ns_and_b32 s45, s27, 7\ns_mul_i32 s45, s45, {96*1280}\ns_lshr_b32 s27, s27, 3\ns_lshl_b32 s27, s27, 7\ns_add_u32 s45, s45, s27')
    k('v_mul_u32_u24 v4, 1280, v2\nv_add3_u32 v191, v4, v3, s45')
    k('v_mul_u32_u24 v56, 160, v2\nv_add_u32 v56, v56, v3')
    k('s_waitcnt vmcnt(1)')
    k('Lks_ln:')
    mark(k, 1)
    ln1(k)
    k('s_cmp_ge_u32 s2, 160\ns_cbranch_scc1 Lks_h1')
    k('s_and_b32 s50, s3, 1\ns_xor_b32 s50, s50, 1\ns_lshl_b32 s50, s50, 4\ns_lshl_b32 s51, s35, s50\ns_lshr_b32 s51, s51, 16')
    k('v_mov_b32 v2, 0x3f80\nv_mov_b32 v3, s51\nv_cmp_gt_u32 vcc, 2, v8\nv_cndmask_b32 v2, v3, v2, vcc')
    for q in range(4): k(f'v_mul_u32_u24 v{XD+q}, v2, v{XD+q}')
    k(f's_waitcnt vmcnt({7 + 2*bool(PFW) + 16*A0})')
    if PFS:
        k('v_lshrrev_b32 v2, 2, v1\nv_lshlrev_b32 v2, 11, v2\nv_and_b32 v3, 3, v1\nv_lshl_add_u32 v2, v3, 7, v2')
        for j in range(PFS):
            k(f's_add_u32 s45, s3, {640*j}\ns_min_u32 s45, s45, 1023')
            k('s_lshr_b32 s27, s45, 8\ns_lshl_b32 s27, s27, 9\ns_and_b32 s45, s45, 255\ns_lshl_b32 s45, s45, 15\ns_add_u32 s45, s45, s27')
            k(f'buffer_load_dword v{186+j}, v2, s[12:15], s45 offen')
    def sig0(nsl):
        k(f's_waitcnt vmcnt({PFS + nsl})')
        get_nonce(k)
        signal(k, Cnt(k, 'vmcnt', 63), 's30')
        mark(k, 2)
    kgen(k, sig0)
    phaseA(k)
    k('s_branch Lks_B')
    k('Lks_h1:')
    k('s_waitcnt vmcnt(5)')
    get_nonce(k)
    vm = Cnt(k, 'vmcnt', 63)
    for p in range(5):
        vm.issue(f'global_load_dwordx4 {v(144+4*p,4)}, v190, s[46:47]')
        if p < 4: k(f'v_add_u32 v190, {32*3072}, v190')
    mark(k, 7, 'H')
    k('s_waitcnt vmcnt(5)')
    mark(k, 8, 'H')
    signal(k, vm, 's30', 0)
    mark(k, 2); mark(k, 9, 'H')
    k('s_waitcnt vmcnt(0)')
    mark(k, 10, 'H')
    for p in range(5): k(f'ds_write_b128 v56, {v(144+4*p,4)} offset:{p*5120}')
    k('s_waitcnt lgkmcnt(0)\ns_barrier')
    k('s_sub_u32 s44, s2, 160')
    mark(k, 11, 'H')
    helper0(k, Cnt(k, 'vmcnt', 63))
    mark(k, 13, 'H')
    mark(k, 3)
    PFH = E('F_PFH', '2,0')
    def touch(js):
        for j in js:
            k(f's_lshl_b32 s45, s44, 2\ns_add_u32 s45, s45, s16\ns_add_u32 s45, s45, {384*j + int(E("F_PFB", 256))}\ns_min_u32 s45, s45, 1023')
            if LIN: k('s_lshl_b32 s45, s45, 13')
            else: k('s_lshr_b32 s46, s45, 8\ns_lshl_b32 s46, s46, 9\ns_and_b32 s45, s45, 255\ns_lshl_b32 s45, s45, 15\ns_add_u32 s45, s45, s46')
            k(f'buffer_load_dword v{100+j}, v99, s[12:15], s45 offen {E("F_PFF", "")}')
    n1, n2 = [int(x) for x in PFH.split(',')]
    LIN = int(E('F_LIN', 0))
    if LIN: k('v_lshlrev_b32 v99, 7, v1')
    else: k('v_lshrrev_b32 v2, 2, v1\nv_lshlrev_b32 v2, 11, v2\nv_and_b32 v3, 3, v1\nv_lshl_add_u32 v99, v3, 7, v2')
    touch(range(n1))
    vm = Cnt(k, 'vmcnt', 63); dma = Dma(k, vm); w1_items(dma, [0, 1])
    k(f's_mov_b32 s47, {F0B:#x}')
    poll(k, vm, [AB0, AB0+1], 's47')
    mark(k, 4)
    helper1(k)
    while dma.q: dma.one()
    touch(range(n1, n1+n2))
    stg_setup(k, 11)
    stg_items(dma, 0); stg_items(dma, 1)
    while dma.q: dma.one()
    k('s_waitcnt vmcnt(28)')
    k('Lks_B:')
    mark(k, 6)
    phaseB_setup(k)
    k(f's_lshl_b32 s36, s20, 8\ns_lshl_b32 s35, s16, 9\ns_add_u32 s35, s35, {PART}')
    k('v_lshlrev_b32 v9, 3, v1\nv_xor_b32 v25, s36, v9\nv_add_u32 v27, s35, v25')
    k('v_and_b32 v2, 3, v7\nv_bfe_u32 v3, v7, 2, 1\nv_lshl_add_u32 v2, v3, 3, v2\nv_bfe_u32 v3, v7, 3, 1\nv_lshl_add_u32 v2, v3, 2, v2')
    k('v_and_b32 v3, 1, v8\nv_lshl_add_u32 v2, v3, 4, v2\nv_lshlrev_b32 v2, 5, v2\nv_lshrrev_b32 v3, 1, v8\nv_lshl_add_u32 v26, v3, 4, v2')
    vm = Cnt(k, 'vmcnt', 63); dma = Dma(k, vm)
    k('v_lshlrev_b32 v2, 4, v8')
    for p in range(1, 4): k(f'v_add_u32 v{HF+p}, {6144*p}, v2')
    for T_ in range(3):
        vm.issue(f'buffer_load_dwordx4 {v(CS+4*T_,4)}, v2, s[8:11], s{57+T_} offen sc1')
        for p in range(3): vm.issue(f'buffer_load_dwordx4 {v(AC[0]+12*T_+4*p,4)}, v{HF+1+p}, s[8:11], s{57+T_} offen sc1')
    if T2E: w1_items(dma, [2])
    while dma.q: dma.one()
    k('v_min_u32 v2, 39, v1\nv_lshrrev_b32 v3, 2, v2\nv_and_b32 v2, 3, v2\nv_lshl_add_u32 v2, v3, 4, v2\nv_lshlrev_b32 v2, 7, v2')
    k(f's_lshl_b32 s30, s16, 9\ns_add_u32 s30, s30, {F1:#x}')
    poll(k, vm, 2, 's30')
    mark(k, 7)
    k('s_cmp_ge_u32 s16, 2\ns_cbranch_scc1 Lks_Bhi')
    phaseB(k, False)
    k('s_branch Lks_C')
    k('Lks_Bhi:')
    phaseB(k, True)
    k('Lks_C:')
    vm, lg, dma = phaseC(k)
    phaseD(k, vm, lg, dma)
    mark(k, 9, 'D')
    stamp_end(k, 2)
    k(f'{Lend}:')
    k('s_endpgm')
    return k
```

```python
from common import *
GC = 0.7978845608028654
K1C = -2*GC*LOG2E
K2C = K1C*0.044715
def a(n, c=1): return 'a%d' % n if c == 1 else 'a[%d:%d]' % (n, n+c-1)
MF = 'v_mfma_f32_16x16x32_bf16'
E = os.environ.get
SPIN = 0x20000
F1, F2, F3, F0, F0B, F3A = [WS_FL + 0x8000*i for i in range(6)]
NAME = 'sequential_preLN__ssm_conv_s4d__mixer_gmlp__prompt_kernel'

def signal(k, vm, soff_expr, tok=None):
    k.nsig = getattr(k, 'nsig', 0) + 1
    if str(k.nsig) not in E('X_NODRAIN', '').split(','): vm.wait(vm.n if tok is None else tok)
    else: print('skip drain at signal', k.nsig, soff_expr)
    k('s_barrier')
    L = k.lab('sig')
    k(f's_cmp_lg_u32 s16, 0\ns_cbranch_scc1 {L}')
    k('v_mov_b32 v2, 0\nv_mov_b32 v3, s6')
    k('s_mov_b64 exec, 1')
    k(f'buffer_store_dword v3, v2, s[8:11], {soff_expr} offen sc1')
    k('s_mov_b64 exec, -1')
    k(f'{L}:')

def poll(k, vm, vaddrs, sreg, data=(3, 4)):
    if isinstance(vaddrs, int): vaddrs = [vaddrs]
    L = k.lab('poll'); Lo = k.lab('pok')
    k('s_mov_b32 s37, 0')
    k(f'{L}:')
    for q, va in enumerate(vaddrs): k(f'buffer_load_dword v{data[q]}, v{va}, s[8:11], {sreg} offen sc1')
    k(f's_add_u32 s37, s37, 1\ns_cmp_gt_u32 s37, {SPIN}')
    k(f's_cbranch_scc1 {Lo}')
    k('s_waitcnt vmcnt(0)')
    for q in range(len(vaddrs)):
        k(f'v_cmp_ne_u32 vcc, s6, v{data[q]}')
        k(f's_cbranch_vccnz {L}')
    k(f'{Lo}:')
    k('s_waitcnt vmcnt(0)')
    vm.done = vm.n

def w1_items(dma, tiles, stage=0, blocks=range(5)):
    for T in tiles:
        for ks4 in blocks:
            for q in range(4):
                ks = 4*ks4 + q
                dma.add([f's_add_u32 s27, s{22+T}, {ks4*4096}'] if q == 0 else [], f'buffer_load_dwordx4 {a(80*T+4*ks,4)}, v5, s[8:11], s27 offen offset:{q*1024} sc1', stage)

KGS = 288*128; UXB = KGS + 4*4608
BND = 156; KPT = 152
AF = 244; AG = 248; AXD = 249; AST = 250; XD = 240
AK0, AK1, AQ, AUX, AP0, PD0, AB0 = 251, 252, 253, 183, 184, 185, 254
PR = 56; IDX = 132; KW = 140; KR = 144; KCW = 145

def conv_bands(k):
    k('v_lshlrev_b32 v6, 3, v8')
    bands = [(-5, -3, -16), (-10, -6, -16), (-13, -11, -16), (-18, -14, -24), (-11, -5, -16), (-20, -12, -24), (12-16, 13-16, -16)]
    for bi, (lo, hi, e0) in enumerate(bands + [(0, 0, 0)]):
        dst = BND + 4*bi if bi < 6 else KPT if bi == 6 else XD
        msk = ((1 << (hi-lo+1)) - 1) << (lo - e0)
        if bi == 7: msk = 0x10001
        k(f'v_mov_b32 v9, {msk:#x}\nv_lshlrev_b32 v9, v7, v9\nv_lshrrev_b32 v9, v6, v9')
        k('v_and_b32 v10, 0xaa, v9\nv_and_b32 v9, 0x55, v9\nv_lshl_or_b32 v9, v10, 15, v9')
        for q in range(4):
            if q: k(f'v_lshrrev_b32 v10, {2*q}, v9')
            k(f'v_and_b32 v{dst+q}, 0x10001, v{10 if q else 9}')
            if bi < 6: k(f'v_mul_u32_u24 v{dst+q}, 0x3f80, v{dst+q}')

def f0b_addr(k):
    k(f'v_lshlrev_b32 v{AB0}, 7, v1\nv_and_b32 v2, 31, v1\nv_lshlrev_b32 v2, 7, v2\nv_add_u32 v{AB0+1}, 8192, v2')

def conv_late(k):
    def uaddr(dst, gc, use_h):
        k(f'v_lshl_add_u32 v9, v7, 1, {use_h}\nv_add_u32 v9, {gc+32}, v9')
        k('v_bfe_u32 v10, v9, 1, 3\nv_xor_b32 v10, s16, v10\nv_lshlrev_b32 v10, 4, v10')
        k(f'v_lshl_add_u32 v{dst}, v9, 7, v10')
    for j in range(4): uaddr(AF+j, -2-4*(j+4), 'v8')
    uaddr(AG, -3, 'v8')
    k('v_and_b32 v11, 1, v8')
    uaddr(AXD, 0, 'v11')
    k(f'v_lshlrev_b32 v{AST}, 5, v7\nv_lshl_add_u32 v{AST}, v11, 9, v{AST}')
    k('v_lshrrev_b32 v11, 1, v8')
    k(f'v_lshl_add_u32 v{AST}, v11, 4, v{AST}\nv_xor_b32 v11, 1, v11\nv_lshlrev_b32 v11, 6, v11\nv_xor_b32 v{AXD}, v11, v{AXD}')
    k(f's_lshl_b32 s52, s3, 12\ns_add_u32 s52, s52, {WS_HT:#x}')
    k('v_lshlrev_b32 v9, 3, v8\nv_sub_u32 v9, v9, v7\nv_add_u32 v9, 15, v9\nv_lshlrev_b32 v9, 1, v9')
    k(f'v_and_b32 v10, 1, v7\nv_xor_b32 v10, 1, v10\nv_mul_u32_u24 v10, {4*KPO-2}, v10')
    k(f'v_add3_u32 v{AK0}, v9, v10, s46\nv_add_u32 v{AK1}, 1024, v{AK0}')
    k('v_lshlrev_b32 v9, 2, v8\nv_sub_u32 v9, v9, v7\nv_add_u32 v9, 15, v9\nv_lshlrev_b32 v9, 2, v9')
    k(f's_add_u32 s53, s46, 2240\nv_add_u32 v{AQ}, s53, v9')
def conv_early(k):
    k('v_lshrrev_b32 v3, 3, v1\nv_and_b32 v4, 7, v1')
    k(f'v_lshl_add_u32 v2, v3, 5, v4\nv_lshlrev_b32 v{AP0}, 7, v2')
    k('v_lshrrev_b32 v6, 1, v3\nv_xor_b32 v4, v4, v6\ns_lshl_b32 s44, s20, 2\nv_xor_b32 v4, s44, v4')
    k(f'v_mul_u32_u24 v3, 20480, v3\nv_lshl_add_u32 v{AUX}, v4, 4, v3')
    f0b_addr(k)
    k(f's_mul_i32 s46, s16, 3072\ns_add_u32 s46, s46, {UXB}')
    k(f's_lshl_b32 s47, s2, 7\ns_mul_i32 s48, s16, {8*20480}\ns_add_u32 s47, s47, s48')
    k('s_lshl_b32 s49, s16, 10\ns_add_u32 s49, s49, 4096')
    k(f's_lshl_b32 s48, s16, 10\ns_add_u32 s48, s48, {F0:#x}')
    k('v_lshlrev_b32 v6, 4, v0')
    for r in range(72, 76): k(f'v_mov_b32 v{r}, 0')
    k('ds_write_b128 v6, v[72:75]')
    k('v_add_u32 v2, s46, v5')
    for q in range(3): k(f'ds_write_b128 v2, v[72:75] offset:{1024*q}')
    k(f's_mul_i32 s55, s16, 4608\ns_add_u32 s55, s55, {KGS}')
    k(f'v_mul_u32_u24 v2, 288, v7\nv_lshl_add_u32 v2, v8, 4, v2\nv_add_u32 v{KR}, s55, v2')
    k('v_lshrrev_b32 v9, 1, v8\nv_and_b32 v10, 1, v8\nv_lshlrev_b32 v3, 4, v7')
    k('v_lshl_add_u32 v2, v9, 8, v3\nv_lshl_add_u32 v2, v10, 3, v2')
    k(f's_add_u32 s44, s46, 1080\nv_sub_u32 v{KCW}, s44, v2')
    k(f'v_lshl_add_u32 v2, v10, 8, v3\ns_add_u32 s44, s46, {2*(536-258)-4}\nv_sub_u32 v{KCW+1}, s44, v2')
    k('v_lshrrev_b32 v2, 1, v7\nv_lshl_add_u32 v2, v10, 4, v2\nv_lshlrev_b32 v2, 2, v2\nv_and_b32 v3, 1, v7\nv_lshlrev_b32 v3, 8, v3\nv_sub_u32 v2, v3, v2')
    k(f's_add_u32 s44, s46, {2240+4*39}\nv_add_u32 v{KCW+2}, s44, v2')
    k(f'v_and_b32 v2, 7, v7\nv_lshlrev_b32 v2, 5, v2\nv_lshl_add_u32 v2, v8, 3, v2\ns_add_u32 s44, s46, {2752+4*62}\nv_sub_u32 v{KCW+3}, s44, v2')
    k(f'v_mov_b32 v{KCW+4}, s46')

LNB = 4096
class Rec:
    def __init__(s): s.L = []
    def __call__(s, t): s.L += [x for x in t.split('\n') if x]
def zipk(k, recs):
    for xs in zip(*[r.L for r in recs]):
        for x in xs: k(x)

def ln1_addr(k):
    k('v_lshrrev_b32 v2, 5, v1\nv_bfe_u32 v3, v1, 4, 1\nv_bfe_u32 v4, v1, 2, 2\nv_and_b32 v6, 3, v1')
    k('v_lshl_add_u32 v52, v2, 3, v4\nv_mul_u32_u24 v52, 1344, v52\nv_lshl_add_u32 v52, v3, 5, v52\nv_lshl_add_u32 v52, v6, 3, v52')
    k(f's_mul_i32 s17, s16, 320\ns_add_u32 s17, s17, {LNB}\nv_add_u32 v52, s17, v52')
    k('v_lshlrev_b32 v53, 9, v3\nv_lshl_add_u32 v53, v4, 7, v53\nv_lshl_add_u32 v53, v2, 6, v53\nv_lshl_add_u32 v53, v6, 4, v53')
    k('s_mul_i32 s17, s16, 5120\nv_add_u32 v53, s17, v53\nv_add_u32 v55, 4096, v53')

def ln1(k):
    X = 12; Fv = 22; S = 42
    for q in range(5): k(f'ds_write_b64 v51, {v(X+2*q,2)} offset:{8*1344+q*256}')
    for i in range(10): k(f'v_lshlrev_b32 v{Fv+2*i}, 16, v{X+i}\nv_and_b32 v{Fv+1+2*i}, 0xffff0000, v{X+i}')
    k(f'v_pk_add_f32 {v(S,2)}, {v(Fv,2)}, {v(Fv+2,2)}\nv_pk_mul_f32 {v(S+2,2)}, {v(Fv,2)}, {v(Fv,2)}')
    for i in range(1, 10):
        if i > 1: k(f'v_pk_add_f32 {v(S,2)}, {v(S,2)}, {v(Fv+2*i,2)}')
        k(f'v_pk_fma_f32 {v(S+2,2)}, {v(Fv+2*i,2)}, {v(Fv+2*i,2)}, {v(S+2,2)}')
    k(f'v_add_f32 v{S}, v{S}, v{S+1}\nv_add_f32 v{S+2}, v{S+2}, v{S+3}')
    k(f'v_mov_b32 v47, {fl(1/640)}')
    for sh in (8, 4, 2, 1):
        for q in (S, S+2): k(f'v_add_f32_dpp v{q}, v{q}, v{q} row_ror:{sh} row_mask:0xf bank_mask:0xf')
    k(f'v_mov_b32 v{S+1}, v{S}\nv_mov_b32 v{S+3}, v{S+2}\nv_permlane16_swap_b32 v{S}, v{S+1}\nv_permlane16_swap_b32 v{S+2}, v{S+3}')
    k(f'v_add_f32 v{S}, v{S}, v{S+1}\nv_add_f32 v{S+2}, v{S+2}, v{S+3}')
    k(f'v_mul_f32 v{S}, v47, v{S}\nv_mul_f32 v{S+1}, v{S}, v{S}\nv_fma_f32 v{S+2}, v{S+2}, v47, -v{S+1}\nv_max_f32 v{S+2}, 0, v{S+2}')
    r = Rec(); ln_finish(r, S, S+2, S+4)
    fin = r.L[2:]
    for x in r.L[:2]: k(x)
    for i in range(10):
        q = Fv+2*i
        k(f'v_pk_add_f32 {v(q,2)}, {v(q,2)}, {v(S,2)} op_sel_hi:[1,0] neg_lo:[0,1] neg_hi:[0,1]')
        if fin: k(fin.pop(0))
        k(f'v_cvt_pk_bf16_f32 v{q+1}, v{q}, v{q+1}\nv_lshlrev_b32 v{q}, 16, v{q+1}\nv_and_b32 v{q+1}, 0xffff0000, v{q+1}')
    assert not fin
    k('v_mov_b32 v2, 0\nglobal_load_dword v54, v2, s[32:33] sc1')
    for i in range(10):
        q = Fv+2*i
        k(f'v_pk_mul_f32 {v(q,2)}, {v(q,2)}, {v(S+2,2)} op_sel_hi:[1,0]')
        k(f'v_cvt_pk_bf16_f32 v{X+i}, v{q}, v{q+1}')
    for q in range(5): k(f'ds_write_b64 v51, {v(X+2*q,2)} offset:{q*256}')
    k('s_mul_i32 s30, s2, 20480')
    k('s_waitcnt lgkmcnt(0)\ns_barrier')
    mark(k, 0, 'H')
    O = 24
    for b in range(5):
        k(f'ds_read_b64_tr_b16 {v(O+4*b,2)}, v52 offset:{b*64}\nds_read_b64_tr_b16 {v(O+2+4*b,2)}, v52 offset:{b*64+4*1344}')
    for b in range(5):
        k(f's_waitcnt lgkmcnt({8-2*b})')
        k(f'buffer_store_dwordx4 {v(O+4*b,4)}, ' + (f'v53, s[8:11], s30 offen offset:{b*1024} sc1' if b < 4 else 'v55, s[8:11], s30 offen sc1'))
    k(f's_lshl_b32 s30, s2, 7\ns_add_u32 s30, s30, {F0:#x}')
    mark(k, 1, 'H')

def get_nonce(k):
    L = k.lab('nn'); Lo = k.lab('nok')
    k('s_mov_b32 s37, 0')
    k(f'{L}:')
    k('v_readfirstlane_b32 s6, v54')
    k(f's_add_u32 s37, s37, 1\ns_cmp_gt_u32 s37, {SPIN}\ns_cbranch_scc1 {Lo}')
    k(f's_cmp_lg_u32 s6, 0\ns_cbranch_scc1 {Lo}')
    k('v_mov_b32 v2, 0')
    k('global_load_dword v54, v2, s[32:33] sc1')
    k('s_waitcnt vmcnt(0)')
    k(f's_branch {L}')
    k(f'{Lo}:')

def ux_issue(k):
    for i in range(8):
        k(f's_add_u32 m0, s49, {i*4096}\ns_add_u32 s27, s47, {i*32*20480}')
        k(f'buffer_load_dwordx4 v{AUX}, s[8:11], s27 offen sc1 lds')
    k('s_mov_b32 s45, 1')
    mark(k, 8, 'K')

def kgen(k, sigfn):
    lg = Cnt(k, 'lgkmcnt', 15)
    DT = 68
    W, G8, GG, Z, C0, LO, HI, ACC, PK, H2 = 20, 22, 24, 32, 70, 88, 104, 120, 36, 192
    def check(pd=PD0):
        if E('KG_NOCHK'): return
        Ls = k.lab('uxs'); Lr = k.lab('uxr')
        k(f's_cmp_lg_u32 s45, 0\ns_cbranch_scc1 {Ls}')
        k('s_waitcnt vmcnt(0)')
        k(f'v_cmp_ne_u32 vcc, s6, v{pd}')
        k(f's_cbranch_vccnz {Lr}')
        ux_issue(k)
        k('s_mov_b32 m0, s55')
        k(f's_branch {Ls}')
        k(f'{Lr}:')
        k(f'buffer_load_dword v{pd}, v{AP0}, s[8:11], s48 offen sc1')
        k(f'{Ls}:')
    k(f'v_mov_b32 v{PD0}, 0\ns_mov_b32 s45, 0\ns_mov_b32 m0, s55')
    k(f'v_mul_f32 v{DT}, {fl(LOG2E)}, v{DT}\nv_exp_f32 v{DT}, v{DT}')
    round_bf16_f32(k, DT, DT)
    k(f'v_add_f32 v{DT+1}, v{DT}, v{DT}')
    mark(k, 0, 'K'); mark(k, 0, 'J')
    def setup(it):
        r = Rec(); P = PR + 4*it
        r(f'v_mul_f32 v12, {fl(LOG2E)}, v{P}\nv_mul_f32 v13, v{P+1}, v{DT}\nv_exp_f32 v12, v12')
        r(f'v_mul_f32 v13, {fl(INV2PI)}, v13\nv_mul_f32 v{C0}, v{P+2}, v{DT+1}\nv_mul_f32 v{C0+1}, v{P+3}, -v{DT+1}')
        round_bf16_f32(r, 12, 12)
        r(f'v_mul_f32 v12, v12, v{DT}\nv_mul_f32 v15, {fl(8.)}, v13\nv_mul_f32 v17, {fl(128.)}, v13\nv_mul_f32 v12, {fl(-LOG2E)}, v12')
        r('v_fract_f32 v15, v15\nv_fract_f32 v13, v13\nv_fract_f32 v17, v17')
        r(f'v_mul_f32 v14, {fl(8.)}, v12\nv_mul_f32 v16, {fl(128.)}, v12')
        for dst, m_ in ((G8, 14), (W, 12), (GG, 16)):
            r(f'v_exp_f32 v{m_}, v{m_}\nv_cos_f32 v{dst}, v{m_+1}\nv_sin_f32 v{dst+1}, v{m_+1}')
        return r.L
    tmp = [26, 28, 30]; ti = [0]
    def cmul(d, a_, b):
        t = tmp[ti[0] % 3]; ti[0] += 1
        k(f'v_pk_mul_f32 {v(t,2)}, {v(a_,2)}, {v(b,2)} op_sel:[0,0] op_sel_hi:[1,0]')
        k(f'v_pk_fma_f32 {v(d,2)}, {v(a_,2)}, {v(b,2)}, {v(t,2)} op_sel:[1,1,0] op_sel_hi:[0,1,1] neg_lo:[1,0,0]')
    WB = int(E('KG_WB', 4))
    wr = [0]
    SL = int(E('KG_SLOT', 0)); sn = [0]
    def slot():
        if not SL or sn[0] >= 8: return
        j = sn[0]; sn[0] += 1
        L = k.lab('sl')
        k(f's_cbranch_vccnz {L}')
        k(f's_add_u32 m0, s54, {j*1024}')
        if j == 4: k('s_add_u32 s56, s56, 65536')
        k(f'buffer_load_dwordx4 v{132+j%4}, s[12:15], s56 offen lds')
        k('s_mov_b32 m0, s55')
        k(f'{L}:')
    def wflush(n):
        while wr[0] < n:
            lg.issue(f'ds_write_addtid_b32 v{PK+wr[0]} offset:{wr[0]*288}'); wr[0] += 1
    def put(row, z):
        if z is None: k(f'v_mov_b32 v{PK+row}, 0x3f80')
        else: k(f'v_cvt_pk_bf16_f32 v{PK+row}, v{z}, v{z+1}')
        if (row+1) % WB == 0: wflush(row+1)
        if row in (3, 11) or (row == 6 and sn[0] == 7): slot()
    def flush(n, base):
        wflush(n); wr[0] = 0
        for ks in range(4): tk = lg.issue(f'ds_read_b128 {v(base+4*ks,4)}, v{KR} offset:{ks*64}')
        return tk
    def mm(it, t, H, swap):
        out = []
        for ks in range(4):
            A, B = H+4*ks, LO+4*ks
            if swap: A, B = B, A
            out.append(f'{MF} {v(ACC+4*t,4)}, {v(A,4)}, {v(B,4)}, {"0" if it == 0 and ks == 0 else v(ACC+4*t,4)}')
        return out
    plan = dict(x.split(':') for x in E('KG_PLAN', '02:sAB,10:CD,12:p,22:c').split(','))
    outl = []
    INL = int(E('KG_INL', 1))
    def event(act, nsl):
        if 's' in act: mark(k, 10, 'K'); sigfn(nsl); mark(k, 11, 'K')
        for q, ch in enumerate('ABCD'):
            if ch in act:
                k(f's_add_u32 s27, s28, {(q//2)*256 + (q % 2)*65536}')
                for j in range(4):
                    k(f's_add_u32 m0, s26, {q*4096 + j*1024}')
                    k(f'buffer_load_dwordx4 v{132+j}, s[12:15], s27 offen lds')
                k('s_mov_b32 m0, s55')
        if 'p' in act: mark(k, 2, 'K'); k(f'buffer_load_dword v{PD0}, v{AP0}, s[8:11], s48 offen sc1'); mark(k, 3, 'K')
        if 'c' in act: mark(k, 12, 'K'); k('s_waitcnt vmcnt(0)'); mark(k, 13, 'K'); check(); mark(k, 14, 'K')

    def pt(q):
        for it in range(3):
            act = plan.get(f'{it}{q}')
            if act:
                Lx = k.lab('kx'); Lb = k.lab('kb')
                nsl = (8*it + sn[0]) if SL else 0
                if INL:
                    k(f's_cmp_eq_u32 s44, {it}\ns_cbranch_scc0 {Lb}')
                    event(act, nsl)
                    k(f'{Lb}:')
                else:
                    k(f's_cmp_eq_u32 s44, {it}\ns_cbranch_scc1 {Lx}')
                    k(f'{Lb}:')
                    outl.append((Lx, Lb, act, nsl))
    for r in range(12): k(f'v_mov_b32 v{ACC+r}, 0')
    k('s_mov_b32 s44, 0\ns_mov_b64 vcc, 0\ns_mov_b32 s54, s26\ns_mov_b32 s56, s28')
    for x in setup(0): k(x)
    Lp = k.lab('kg')
    k(f'{Lp}:')
    for dst, m_, neg in ((G8, 14, False), (W, 12, True), (GG, 16, True)):
        k(f'v_pk_mul_f32 {v(dst,2)}, {v(dst,2)}, {v(m_,2)} op_sel_hi:[1,0]' + (' neg_hi:[0,1]' if neg else ''))
    put(0, None); put(1, G8)
    cmul(Z, G8, G8); put(2, Z)
    for j in range(3, 16): cmul(Z, Z, G8); put(j, Z)
    flush(16, LO)
    pt(0)
    put(0, C0)
    for c in range(1, 8): cmul(C0+2*c, C0+2*c-2, W); put(c, C0+2*c)
    cmul(C0+16, C0+14, W)
    for c in range(8): cmul(C0+2*c, C0+2*c, GG); put(8+c, C0+2*c)
    flush(16, HI)
    pt(1)
    cmul(C0+16, C0+16, GG); cmul(C0, C0, GG)
    for i in (2, 3):
        for c in (2, 4, 6, 8): cmul(C0+2*c, C0+2*c, GG); put(4*(i-2)+c//2-1, C0+2*c)
    for i in range(4, 8):
        for c in (4, 8): cmul(C0+2*c, C0+2*c, GG); put(8+2*(i-4)+c//4-1, C0+2*c)
    t1 = flush(16, H2)
    pt(2)
    k(f'v_cvt_pk_bf16_f32 v{PK+8}, v{C0}, v{C0+1}')
    for i in range(8, 16): cmul(C0+16, C0+16, GG); put(i-8, C0+16)
    t2 = flush(9, H2+16)
    pt(3)
    fillr = setup(1)
    fillr[6:6] = [f'v_mov_b32 v{PR+4+q}, v{PR+8+q}' for q in range(4)]
    assert sn[0] == 8 or not SL
    k('s_add_u32 s54, s26, 8192\ns_add_u32 s56, s28, 256\ns_cmp_eq_u32 s44, 1\ns_cselect_b64 vcc, -1, 0')
    k('s_add_u32 s44, s44, 1\ns_cmp_lt_u32 s44, 3')
    lg.wait(t1)
    for n, m_ in enumerate(mm(1, 0, HI, False) + mm(1, 1, H2, False) + mm(1, 2, H2+16, True)):
        if n == 8: lg.wait(t2)
        k(m_)
        for _ in range(2):
            if fillr: k(fillr.pop(0))
    for x in fillr: k(x)
    k(f's_cbranch_scc1 {Lp}')
    Lj = k.lab('kj')
    if outl: k(f's_branch {Lj}')
    for Lx, Lb, act, nsl in outl:
        k(f'{Lx}:')
        event(act, nsl)
        k(f's_branch {Lb}')
    k(f'{Lj}:')
    mark(k, 1, 'K'); mark(k, 13, 'J')
    A0, A1, A2 = ACC, ACC+4, ACC+8
    O = 4*KPO
    cv = [(A0+3, A0+2), (A0+1, A0), (A0+2, A0+1),
          (A1+3, A1+3), (A1+3, A1+2), (A1+1, A1+1), (A1+1, A1), (A1+2, A1+1),
          (A1, A1+1), (A1+2, A1+3),
          (A2+2, A2+3), (A2, A2+1), (A2, A2)]
    for q, (x, y) in enumerate(cv): k(f'v_cvt_pk_bf16_f32 v{12+q}, v{x}, v{y}')
    k(f'ds_write_b64 v{KCW}, v[12:13]')
    k(f'ds_write_b16 v{KCW}, v12 offset:{O-2}\nds_write_b32 v{KCW}, v14 offset:{O}\nds_write_b16_d16_hi v{KCW}, v13 offset:{O+4}')
    k(f'v_add_u32 v25, {O}, v{KCW+1}')
    k('s_mov_b32 exec_hi, 0')
    k(f'ds_write_b16 v{KCW+1}, v15 offset:2')
    k(f'ds_write2_b32 v{KCW+1}, v15, v16 offset0:1 offset1:2\nds_write2_b32 v{KCW+1}, v17, v18 offset0:3 offset1:4')
    k('ds_write2_b32 v25, v15, v15 offset0:0 offset1:1\nds_write2_b32 v25, v19, v17 offset0:2 offset1:3\nds_write_b16_d16_hi v25, v18 offset:16')
    k('s_mov_b32 exec_lo, 0x100')
    k(f'ds_write_b32 v{KCW+4}, v24 offset:572\nds_write_b16 v{KCW+4}, v24 offset:{O+570}\nds_write_b16 v{KCW+4}, v24 offset:{O+572}')
    k('s_mov_b32 exec_lo, 0\ns_mov_b32 exec_hi, -1')
    k(f'ds_write2_b32 v{KCW+2}, v20, v21 offset0:8 offset1:0')
    k('s_mov_b32 exec_lo, 0x00ff00ff\ns_mov_b32 exec_hi, 0x00ff00ff')
    k(f'ds_write_b64 v{KCW+3}, v[22:23]')
    k('s_mov_b64 exec, -1')
    mark(k, 4, 'K')
    check()
    mark(k, 5, 'K')

def phaseA(k):
    vm = Cnt(k, 'vmcnt', 63); lg = Cnt(k, 'lgkmcnt', 15)
    dma = Dma(k, vm); w1_items(dma, [0, 1])
    AC_ = int(E('FA_A', 0)); dmA = Dma(k, vm); AR = [2, 6, 9, 10]
    if AC_:
        for q in range(4):
            for j in range(4):
                dmA.add(([f's_add_u32 s31, s28, {(q//2)*256 + (q % 2)*65536}'] if j == 0 else []) + [f's_add_u32 m0, s26, {q*4096 + j*1024}'], f'buffer_load_dwordx4 v{AR[j]}, s[12:15], s31 offen lds', 0)
    ACC = 12; KN = 44; QA = 112; QB = 124; Q8 = 136; SS = 180; VV = 204
    FB = 216; NB = 6
    prog = []
    started = set()
    def Kn(kb): return ('K', 'n', kb)
    kreg = {}
    for kb in range(17): kreg[Kn(kb)] = (KN+4*kb, AK1 if kb == 0 else AK0, 0 if kb == 0 else (16-kb)*16)
    for D in (2, 3, 4): kreg[('K', 'a', D)] = (QA+4*(D-2), AQ, (4-D)*16); kreg[('K', 'b', D)] = (QB+4*(D-2), AQ, 64+(4-D)*16)
    for D in (4, 5, 6, 7): kreg[('K', '8', D)] = (Q8+4*(D-4), AQ, 128+(7-D)*16)
    def acc(t, A, B):
        prog.append(('m', ACC+4*t, A, B, t not in started)); started.add(t)
    XF = int(E('FA_XF', 0))
    for rt in range(XF): acc(rt, XD, ('F', rt, 'X'))
    for rt in range(8):
        F0 = ('F', rt, 0)
        if rt <= 5:
            for b in (0, 1, 2): prog.append(('m', SS+4*b, F0, BND+4*b, True))
            if rt <= 3: prog.append(('m', SS+16, F0, BND+16, True))
            prog.append(('m', SS+12, ('F', rt, 'G'), BND+12, True))
            if rt <= 3: prog.append(('m', SS+20, ('F', rt, 'G'), BND+20, True))
        if rt >= XF: acc(rt, XD, ('F', rt, 'X'))
        acc(rt, Kn(0), F0)
        if rt+1 <= 7: acc(rt+1, Kn(8), F0)
        if rt+2 <= 7: acc(rt+2, Kn(16), F0)
        if rt+4 <= 7: acc(rt+4, KPT, F0)
        if rt <= 5: prog.append(('cvt', rt))
        for j in range(1, 8):
            acc(rt, Kn(j), ('F', rt, j))
            if rt+1 <= 7: acc(rt+1, Kn(j+8), ('F', rt, j))
        prog.append(('epi', rt))
        if rt <= 5:
            prog.append(('needcvt',))
            for D in (2, 3, 4):
                if rt+D <= 7: acc(rt+D, VV, ('K', 'a', D)); acc(rt+D, VV+4, ('K', 'b', D))
            if rt <= 3:
                for D in (4, 5, 6, 7):
                    if rt+D <= 7: acc(rt+D, VV+8, ('K', '8', D))
    order = []; last_use = {}
    for pi_, p in enumerate(prog):
        if p[0] == 'm':
            for o in (p[2], p[3]):
                if isinstance(o, tuple):
                    if o not in last_use: order.append(o)
                    last_use[o] = pi_
    forder = [o for o in order if o[0] == 'F']
    fbuf = {o: FB + 4*(n % NB) for n, o in enumerate(forder)}
    fidx = {o: n for n, o in enumerate(forder)}
    tok = {}
    rq = []
    for o in order:
        if o[0] == 'K':
            r, ar, off = kreg[o]
            rq.append((o, f'ds_read2_b32 {v(r,2)}, v{ar} offset0:{off} offset1:{off+1}', False))
            rq.append((o, f'ds_read2_b32 {v(r+2,2)}, v{ar} offset0:{off+2} offset1:{off+3}', True))
        else:
            _, rt, j = o
            if j == 'G': ar, off = AG, rt*4096
            elif j == 'X': ar, off = AXD, rt*4096
            else: ar, off = AF + (j % 4), rt*4096 + (2048 if j < 4 else 0)
            rq.append((o, f'ds_read_b128 {v(fbuf[o],4)}, v{ar} offset:{off}', True))
    cur = [0]
    def can_read():
        if not rq: return False
        o = rq[0][0]
        if lg.n - lg.done >= 13: return False
        if o[0] == 'F' and fidx[o] >= NB:
            return last_use[forder[fidx[o]-NB]] < cur[0]
        return True
    def do_read():
        o, t, l = rq.pop(0); tk = lg.issue(t)
        if l: tok[o] = tk
    if E('C_LATE', '1') == '1': conv_late(k)
    k('v_mov_b32 v9, s53')
    tp = lg.issue(f'ds_read_u16 v11, v9 offset:{256+16*4+2}')
    early = [x for x in rq if x[0][0] == 'K'][:int(E('FA_EK', 54))]
    r = Rec()
    if E('C_BL', '1') == '1': conv_bands(r)
    r('v_mov_b32 v2, 0x3f80\nv_mov_b32 v3, s51\nv_cmp_gt_u32 vcc, 2, v8\nv_cndmask_b32 v2, v3, v2, vcc')
    for q in range(4): r(f'v_mul_u32_u24 v{XD+q}, v2, v{XD+q}')
    bl = r.L
    for n, x in enumerate(early):
        rq.remove(x); tk = lg.issue(x[1])
        if x[2]: tok[x[0]] = tk
        if n % 6 == 5:
            for _ in range(16):
                if bl: k(bl.pop(0))
    for x in bl: k(x)
    kq = [x for x in rq if x[0][0] == 'K']; fq = [x for x in rq if x[0][0] != 'K']
    KP = int(E('FA_KP', 2)); rq[:] = [fq.pop(0) for _ in range(NB-1)]
    while kq or fq:
        if fq: rq.append(fq.pop(0))
        for _ in range(KP):
            if kq: rq.append(kq.pop(0))
    lg.wait(tp)
    for q in range(4): k(f'v_mul_u32_u24 v{KPT+q}, v11, v{KPT+q}')
    if AC_:
        for j in range(4): k(f'v_add_u32 v3, {4*j}, v8\nv_xor_b32 v4, v3, v7\nv_lshlrev_b32 v3, 12, v3\nv_lshl_add_u32 v{AR[j]}, v4, 4, v3')
    mark(k, 3); mark(k, 6, 'K')
    Ls = k.lab('uxd')
    k(f's_cmp_lg_u32 s45, 0\ns_cbranch_scc1 {Ls}')
    poll(k, vm, AP0, 's48')
    ux_issue(k)
    k(f'{Ls}:')
    k(f's_mov_b32 s44, {F0B:#x}')
    k('s_waitcnt vmcnt(0)')
    lg.all()
    k('s_barrier')
    mark(k, 4); mark(k, 7, 'K')
    tB = []
    def f0b_issue():
        vm.issue(f'buffer_load_dword v3, v{AB0}, s[8:11], s44 offen sc1'); tB.append(vm.issue(f'buffer_load_dword v4, v{AB0+1}, s[8:11], s44 offen sc1'))
    def f0b_check():
        Lo = k.lab('f0b'); Lq = k.lab('f0q')
        vm.wait(tB[0])
        k(f'v_cmp_ne_u32 vcc, s6, v3\ns_cbranch_vccnz {Lq}\nv_cmp_ne_u32 vcc, s6, v4\ns_cbranch_vccz {Lo}')
        k(f'{Lq}:')
        poll(k, Cnt(k, 'vmcnt', 63), [AB0, AB0+1], 's44')
        k(f'{Lo}:')
        mark(k, 9, 'K')
        CT = int(E('C_TOUCH', 0))
        if CT:
            k(f's_add_u32 s45, s3, {CT}\ns_min_u32 s45, s45, 1023')
            k('s_lshr_b32 s46, s45, 8\ns_lshl_b32 s46, s46, 9\ns_and_b32 s45, s45, 255\ns_lshl_b32 s45, s45, 15\ns_add_u32 s45, s45, s46')
            k('v_lshrrev_b32 v2, 2, v1\nv_lshlrev_b32 v2, 11, v2\nv_and_b32 v3, 3, v1\nv_lshl_add_u32 v2, v3, 7, v2')
            vm.issue('buffer_load_dword v4, v2, s[12:15], s45 offen')
    hi = []; lo = []
    def epilogue(t):
        A = ACC + 4*t; ops = [None]*5
        def Em(txt): ops.append(lambda: k(txt))
        P = ACC + 4*(t & ~1) + 2*(t & 1)
        Em(f'v_cvt_pk_bf16_f32 v{P}, v{A}, v{A+1}'); Em(f'v_cvt_pk_bf16_f32 v{P+1}, v{A+2}, v{A+3}')
        if t & 1:
            Q = ACC + 4*(t-1)
            ops.append(None)
            Em(f'v_permlane16_swap_b32 v{Q}, v{Q+2}'); Em(f'v_permlane16_swap_b32 v{Q+1}, v{Q+3}')
            ops.append(lambda: vm.issue(f'buffer_store_dwordx4 {v(Q,4)}, v{AST}, s[8:11], s52 offen offset:{(t-1)*512} sc1'))
        return ops
    while can_read() and lg.n - lg.done < 12: do_read()
    nm = 0; wacc = [0.0]; WR = float(E('FA_WR', 4)); WLAST = int(E('FA_WLAST', 195)); WFIRST = int(E('FA_WFIRST', 40))
    for pi_, p in enumerate(prog):
        cur[0] = pi_
        if p[0] == 'cvt':
            rt = p[1]
            hi.extend([None]*2)
            for q in range(3 if rt <= 3 else 2):
                for r in range(4):
                    hi.append(lambda q=q, r=r: k(f'v_cvt_pk_bf16_f32 v{VV+4*q+r}, v{SS+8*q+r}, v{SS+8*q+4+r}'))
            continue
        if p[0] == 'needcvt':
            while hi:
                f = hi.pop(0)
                if f: f()
            continue
        if p[0] == 'epi':
            lo.extend(epilogue(p[1])); continue
        _, d, A, B, zero = p
        n0 = len(k.L)
        ops = []
        for o in (A, B):
            if isinstance(o, tuple):
                if o not in tok:
                    mine = [x for x in rq if x[0] == o]
                    for x in mine: rq.remove(x)
                    rq[0:0] = mine
                    if o[0] == 'F' and fidx[o] >= NB: assert last_use[forder[fidx[o]-NB]] < cur[0]
                    while o not in tok: do_read()
                tw = tok[o]
                if tw > lg.done and o[0] == 'F' and fidx[o]+1 < len(forder):
                    t2 = tok.get(forder[fidx[o]+1])
                    if t2 is not None and lg.n - t2 >= int(E('FA_MW', 2)): tw = max(tw, t2)
                lg.wait(tw)
                ops.append(fbuf[o] if o[0] == 'F' else kreg[o][0])
            else: ops.append(o)
        nm += 1
        if nm == max(WFIRST - int(E('FA_PL', 40)), 1): f0b_issue()
        if nm == WFIRST: f0b_check()
        wacc[0] += 1.0/WR
        if wacc[0] >= 1.0:
            wacc[0] -= 1.0
            if dmA.q and (AC_ == 1 or not dma.q) and nm <= WLAST: dmA.pre()
            elif WFIRST <= nm <= WLAST: dma.pre()
        used = len(k.L) - n0
        k(f'{MF} {v(d,4)}, {v(ops[0],4)}, {v(ops[1],4)}, {"0" if zero else v(d,4)}')
        cur[0] = pi_ + 1
        n1 = len(k.L)
        dma.fire(); dmA.fire()
        while len(k.L) - n1 + used < 2:
            if can_read(): do_read()
            elif hi:
                f = hi.pop(0)
                if f: f()
                else: used += 1
            elif lo:
                f = lo.pop(0)
                if f: f()
                else: used += 1
            else: break
    for f in lo:
        if f: f()
    mark(k, 5)
    tH = vm.n
    while dmA.q: dmA.one()
    k(f's_lshl_b32 s44, s2, 7\ns_add_u32 s44, s44, {F1:#x}')
    signal(k, vm, 's44', tH)
    while dma.q: dma.one()

def ln_sigma(k, mean, var, t):
    k(f'v_cvt_pk_bf16_f32 v{t}, v{mean}, v{var}')
    k(f'v_lshlrev_b32 v{mean}, 16, v{t}\nv_and_b32 v{var}, 0xffff0000, v{t}')
    k(f'v_add_f32 v{var}, {fl(1e-5)}, v{var}')
    round_bf16_f32(k, var, var)
    k(f'v_sqrt_f32 v{var}, v{var}')
    round_bf16_f32(k, var, var)

MAPB = {'A': 3, 'B': 2, 'C': 1, 'N': 0}[E('F_MAP', 'B')]
ALATE = int(E('FB_ALATE', 1)); T2E = int(E('FB_T2E', 0))
STG = 81920; Z1L = 147456; STAT = 159744; PART = STAT + 1024
CS = 28; RES = 40; MS = 52; HF = 68; AC = [116, 132, 148]; ONE = 164; SA = 168; G = 176; T = HF; WV = 192
WA = {2: 0, 3: 32, 4: 80, 5: 160, 6: 112, 7: 192}
def wreg(c, o): return v(WV+32*c+o, 4) if c < 2 else a(WA[c]+o, 4)

def stg_setup(k, R):
    for j in range(4):
        k(f'v_add_u32 v2, {4*j}, v8\nv_xor_b32 v3, v2, v7\nv_lshlrev_b32 v2, 12, v2\nv_lshl_add_u32 v{R+j}, v3, 4, v2')
    k(f's_lshl_b32 s26, s16, 14\ns_add_u32 s26, s26, {STG}')
    k('s_lshl_b32 s28, s17, 18\ns_lshl_b32 s27, s20, 17\ns_add_u32 s28, s28, s27\ns_lshl_b32 s27, s19, 11\ns_add_u32 s28, s28, s27')

def phaseB_setup(k):
    for r in range(4): k(f'v_mov_b32 v{ONE+r}, 0x3f803f80')
    k('v_lshrrev_b32 v2, 3, v1\nv_and_b32 v3, 7, v1\nv_and_b32 v4, 6, v2\nv_xor_b32 v3, v3, v4')
    k('v_lshlrev_b32 v10, 12, v2\nv_lshl_add_u32 v10, v3, 4, v10')
    stg_setup(k, 11)
    k('v_bfe_u32 v2, v1, 2, 2\nv_and_b32 v3, 3, v1\nv_lshl_add_u32 v4, v8, 2, v2')
    k('v_lshrrev_b32 v6, 1, v3\nv_and_b32 v3, 1, v3\nv_and_b32 v9, 6, v4\nv_xor_b32 v6, v6, v9')
    k('v_lshlrev_b32 v6, 4, v6\nv_lshl_add_u32 v6, v4, 7, v6\nv_lshl_add_u32 v6, v3, 3, v6')
    k('s_lshl_b32 s36, s20, 6')
    k('v_xor_b32 v16, s36, v6')
    for sg in range(1, 4): k(f'v_xor_b32 v{16+sg}, {32*sg}, v16')
    for sg in range(4): k(f'v_add_u32 v{20+sg}, 40960, v{16+sg}')
    k('s_lshl_b32 s36, s16, 5\ns_mul_i32 s35, s18, 10240')
    k('v_xor_b32 v24, s36, v6\nv_add_u32 v24, s35, v24')
    k('s_lshl_b32 s36, s19, 12')
    k('v_xor_b32 v2, v8, v7\nv_lshlrev_b32 v2, 4, v2\nv_lshl_add_u32 v2, v7, 8, v2\nv_add_u32 v2, s36, v2')
    for ks in range(4):
        k(f'v_xor_b32 v3, {64*ks}, v2\nv_add_u32 v{SA+2*ks}, s26, v3\nv_xor_b32 v3, {64*ks+4096}, v2\nv_add_u32 v{SA+2*ks+1}, s26, v3')
    k(f's_lshl_b32 s21, s17, 7\ns_lshl_b32 s36, s16, 16\ns_add_u32 s21, s21, s36\ns_add_u32 s21, s21, {WS_HT:#x}')
    k('s_lshl_b32 s25, s16, 11')

def stg_items(dma, c):
    for j in range(8):
        pre = [f's_add_u32 m0, s26, {(c % 2)*8192 + j*1024}']
        if j == 0: pre += [f's_add_u32 s55, s28, {c*256}']
        if j == 4: pre += ['s_add_u32 s55, s55, 65536']
        dma.add(pre, f'buffer_load_dwordx4 v{11+j%4}, s[12:15], s55 offen lds', 100+c)
def stg_read(dma, lg, c, wait=True):
    if wait: dma.upto(100+c); dma.vm.wait(dma.tok[100+c])
    for ks in range(4):
        for tau in range(2):
            lg.issue(f'ds_read_b128 {wreg(c, 8*ks+4*tau)}, v{SA+2*ks+tau} offset:{(c % 2)*8192}')

def phaseB(k, hiw):
    vm = Cnt(k, 'vmcnt', 63); lg = Cnt(k, 'lgkmcnt', 15)
    dma = Dma(k, vm)
    grp = [int(x) for x in E('FB_GRP', '0,1,1,2,2,2,3,3,3,3').split(',')]
    for s_ in range(10):
        for j in range(2):
            dma.add([f's_add_u32 m0, s25, {s_*8192 + j*1024}', f's_add_u32 s27, s21, {(s_*64 + j*8)*4096}'], 'buffer_load_dwordx4 v10, s[8:11], s27 offen sc1 lds', grp[s_])
    mark(k, 0, 'B')
    dma.upto(int(E('FB_PRO', 2)))
    mark(k, 1, 'B')
    stg_read(dma, lg, 0, False); stg_read(dma, lg, 1, False)
    for T_ in range(3):
        for p in range(3):
            for hp in range(2):
                k(f'v_pk_add_f32 {v(CS+4*T_+2*hp,2)}, {v(CS+4*T_+2*hp,2)}, {v(AC[0]+12*T_+4*p+2*hp,2)}')
    lg.all()
    stg_items(dma, 2); stg_items(dma, 3)
    if T2E < 5: w1_items(dma, [2], 103.5, range(T2E, 5))
    def reads(g):
        off = g*4096; ar = 16
        if off >= 40960: off -= 40960; ar = 20
        b = HF + 16*(g % 3); out = []
        for sg in range(4):
            out += [f'ds_read_b64_tr_b16 {v(b+4*sg,2)}, v{ar+sg} offset:{off}', f'ds_read_b64_tr_b16 {v(b+4*sg+2,2)}, v{ar+sg} offset:{off+2048}']
        return out
    def mk(tiles, stats):
        def f(g):
            b = HF + 16*(g % 3); out = []
            for sg in range(4):
                if stats and sg < 2:
                    d = AC[2] + 8*sg
                    out.append(f'{MF} {v(d,4)}, {v(ONE,4)}, {v(b+4*sg,4)}, {"0" if g == 0 else v(d,4)}')
                    out.append(f'{MF} {v(d+4,4)}, {v(b+4*sg,4)}, {v(b+4*sg,4)}, {"0" if g == 0 else v(d+4,4)}')
            for sg in range(4):
                for T_ in tiles:
                    d = AC[T_] + 4*sg
                    out.append(f'{MF} {v(d,4)}, {a(80*T_+4*g,4)}, {v(b+4*sg,4)}, {"0" if g == 0 else v(d,4)}')
            return out
        return f
    mark(k, 2, 'B')
    dma.sync(0)
    mark(k, 3, 'B')
    def btouch():
        if hiw and int(E('B_TOUCH', 0)):
            L = k.lab('nt')
            k(f's_cmp_lg_u32 s16, 3\ns_cbranch_scc1 {L}')
            k('v_lshrrev_b32 v2, 2, v1\nv_lshlrev_b32 v2, 11, v2\nv_and_b32 v3, 3, v1\nv_lshl_add_u32 v2, v3, 7, v2')
            k('s_lshl_b32 s36, s2, 15\ns_add_u32 s36, s36, 1536')
            k('buffer_load_dword v15, v2, s[12:15], s36 offen')
            k(f'{L}:')
    resr = [f'ds_read_b64_tr_b16 {v(RES+2*j,2)}, v24 offset:{j*2048}' for j in range(5)]
    gemm_loop(k, lg, dma, 0, 20, reads, mk([0] if hiw else [0, 1], hiw), lambda g: grp[g//2], 1000, lambda g: float(E('FB_RATE0', 2)) if g < int(E('FB_G0', 4)) else float(E('FB_RATE', 4)), tail_reads=resr, hooks={int(E('FB_G0', 4)): btouch})
    mark(k, 8); mark(k, 4, 'B')
    if not hiw:
        stg_read(dma, lg, 2); stg_read(dma, lg, 3); lg.all()
        stg_items(dma, 4); stg_items(dma, 5)
    z2t = [0] if hiw else [0, 1]
    k(f's_lshl_b32 s36, s20, 9')
    k(f'v_lshlrev_b32 v3, 4, v7\nv_add_u32 v3, s36, v3\nv_xor_b32 v4, 512, v3\nv_add_u32 v3, {STAT}, v3\nv_add_u32 v4, {STAT}, v4')
    if hiw:
        k('v_and_b32 v2, 3, v1')
        k('v_cmp_eq_u32 vcc, 1, v2\nv_cmp_eq_u32 s[30:31], 2, v2\nv_cmp_eq_u32 s[32:33], 3, v2')
        k(f'v_mov_b32 v6, {fl(1/640)}')
        A_, B_ = [], []
        rec = []
        for sg in range(2):
            r = Rec(); S = AC[2] + 8*sg; Gm = S + 4
            r(f'v_cndmask_b32 v{Gm}, v{Gm}, v{Gm+1}, vcc\nv_cndmask_b32 v{Gm}, v{Gm}, v{Gm+2}, s[30:31]\nv_cndmask_b32 v{Gm}, v{Gm}, v{Gm+3}, s[32:33]')
            r(f'v_mul_f32 v{S}, v6, v{S}\nv_mul_f32 v{S+1}, v{S}, v{S}')
            r(f'v_fma_f32 v{S+1}, v{Gm}, v6, -v{S+1}\nv_max_f32 v{S+1}, 0, v{S+1}')
            ln_sigma(r, S, S+1, S+2)
            r(f'v_rcp_f32 v{Gm}, v{S+1}')
            r(f'v_mul_f32 v{S+2}, {fl(K1C)}, v{Gm}\nv_mul_f32 v{S+3}, v{Gm}, v{Gm}\nv_mul_f32 v{S+3}, v{S+3}, v{Gm}\nv_mul_f32 v{S+3}, {fl(K2C)}, v{S+3}')
            rec.append(r.L)
        for x, y in zip(*rec): k(x); k(y)
        k('s_mov_b32 exec_lo, 0x00f0000f\ns_mov_b32 exec_hi, 0xf0000f00')
        for sg in range(2): lg.issue(f'ds_write_b128 v3, {v(AC[2]+8*sg,4)} offset:{256*sg}')
        k('s_mov_b64 exec, -1')
    else:
        for _ in range(int(E('FB_X01', 8))): dma.one()
    lg.all()
    k('s_barrier')
    tks = [lg.issue(f'ds_read_b128 {v(MS+4*sg,4)}, v{3 + sg//2} offset:{256*(sg % 2)}') for sg in range(4)]
    if hiw:
        stg_read(dma, lg, 2); stg_read(dma, lg, 3); lg.all()
        stg_items(dma, 4); stg_items(dma, 5)
    mark(k, 5, 'B')
    def gelu(T_, ER=0, tks=None):
        prs = [(sg, hp) for sg in range(4) for hp in range(2)]
        for q in range(0, 8, 2):
            st = [[], []]
            if tks: lg.wait(tks[q//2])
            for u_ in range(2):
                sg, hp = prs[q+u_]
                z = AC[T_] + 4*sg + 2*hp; c = CS + 4*T_ + 2*hp; t = T + 2*u_
                ms = v(MS+4*sg, 2); kk = v(MS+4*sg+2, 2)
                st[u_] = [
                  f'v_pk_fma_f32 {v(z,2)}, {v(c,2)}, {ms}, {v(z,2)} op_sel_hi:[1,0,1] neg_lo:[0,1,0] neg_hi:[0,1,0]',
                  f'v_pk_mul_f32 {v(t,2)}, {v(z,2)}, {v(z,2)}',
                  f'v_pk_fma_f32 {v(t,2)}, {v(t,2)}, {kk}, {kk} op_sel:[0,1,0] op_sel_hi:[1,1,0]',
                  f'v_pk_mul_f32 {v(t,2)}, {v(t,2)}, {v(z,2)}',
                  f'v_exp_f32 v{t}, v{t}', f'v_exp_f32 v{t+1}, v{t+1}',
                  f'v_pk_fma_f32 {v(t,2)}, {v(t,2)}, {ms}, {ms} op_sel:[0,1,1] op_sel_hi:[1,1,1]',
                  f'v_rcp_f32 v{t}, v{t}', f'v_rcp_f32 v{t+1}, v{t+1}',
                  f'v_pk_mul_f32 {v(z,2)}, {v(z,2)}, {v(t,2)}']
            for n_, (x, y) in enumerate(zip(*st)):
                if ER and n_ % ER == 0: dma.pre()
                k(x); dma.fire(); k(y)
    for T_ in z2t: gelu(T_, 2 if hiw else int(E('FB_ER', 10)), tks)
    mark(k, 6, 'B')
    for sg in range(4):
        s1 = G + 2*sg; s2 = G + 8 + 2*sg; first = True
        for T_ in z2t:
            z = AC[T_] + 4*sg
            if first:
                k(f'v_pk_add_f32 {v(s1,2)}, {v(z,2)}, {v(z+2,2)}\nv_pk_mul_f32 {v(s2,2)}, {v(z,2)}, {v(z,2)}')
            else:
                k(f'v_pk_add_f32 {v(s1,2)}, {v(s1,2)}, {v(z,2)}\nv_pk_add_f32 {v(s1,2)}, {v(s1,2)}, {v(z+2,2)}')
                k(f'v_pk_fma_f32 {v(s2,2)}, {v(z,2)}, {v(z,2)}, {v(s2,2)}')
            k(f'v_pk_fma_f32 {v(s2,2)}, {v(z+2,2)}, {v(z+2,2)}, {v(s2,2)}')
            first = False
    for q in range(8): k(f'v_add_f32 v{G+2*q}, v{G+2*q}, v{G+2*q+1}')
    for b in (G, G+8): k(f'v_permlane32_swap_b32 v{b}, v{b+4}\nv_permlane32_swap_b32 v{b+2}, v{b+6}')
    for b in (G, G+8): k(f'v_add_f32 v{b}, v{b}, v{b+4}\nv_add_f32 v{b+2}, v{b+2}, v{b+6}')
    for b in (G, G+8): k(f'v_permlane16_swap_b32 v{b}, v{b+2}')
    k(f'v_add_f32 v{T}, v{G}, v{G+2}\nv_add_f32 v{T+1}, v{G+8}, v{G+10}')
    lg.issue(f'ds_write_b64 v27, {v(T,2)}')
    def barX():
        k('s_barrier')
        mark(k, 9); mark(k, 7, 'B')
    lg.all()
    if not hiw:
        barX()
        L = k.lab('npub')
        k(f's_cmp_lg_u32 s16, 0\ns_cbranch_scc1 {L}')
        k(f'v_lshlrev_b32 v9, 3, v1\nv_add_u32 v2, {PART}, v9')
        for w in range(4): k(f'ds_read_b64 {v(G+2*w,2)}, v2 offset:{512*w}')
        k('s_lshl_b32 s36, s18, 9\ns_add_u32 s36, s36, s29')
        k('s_waitcnt lgkmcnt(0)')
        k(f'v_pk_add_f32 {v(G,2)}, {v(G,2)}, {v(G+2,2)}\nv_pk_add_f32 {v(G+4,2)}, {v(G+4,2)}, {v(G+6,2)}\nv_pk_add_f32 {v(G,2)}, {v(G,2)}, {v(G+4,2)}')
        k(f'buffer_store_dwordx2 {v(G,2)}, v9, s[8:11], s36 offen sc1')
        k(f'{L}:')
    while dma.q: dma.one()
    if T2E < 5: vm.wait(dma.tok[103.5])
    def readB():
        stg_read(dma, lg, 4); stg_read(dma, lg, 5)
    def startC():
        lg.all()
        stg_items(dma, 6); stg_items(dma, 7)
    tk = {}
    def statloads():
        for q in range(8):
            vm.issue(f'buffer_load_dwordx2 {v(G+2*q,2)}, v25, s[8:11], s29 offen offset:{q*512} sc1')
        tk['s'] = vm.n
    def z1out(T_, jexpr_sreg):
        k(f's_mul_i32 s36, s20, 6144\ns_add_u32 s36, s36, {jexpr_sreg}\ns_mul_i32 s35, s20, 12288\ns_sub_u32 s35, s36, s35')
        k('v_add_u32 v2, s36, v5\nv_add_u32 v3, s35, v5')
        for sg in range(4):
            z = AC[T_] + 4*sg
            k(f'v_cvt_pk_bf16_f32 v{z}, v{z}, v{z+1}\nv_cvt_pk_bf16_f32 v{z+1}, v{z+2}, v{z+3}')
            lg.issue(f'ds_write_b64 v{2 + sg//2}, {v(z,2)} offset:{3072*sg}')
    def normalize():
        if hiw: k('s_add_u32 s30, s16, 2')
        else: k('s_lshl_b32 s30, s16, 1')
        k(f's_mul_i32 s31, s18, 6\ns_add_u32 s30, s30, s31\ns_lshl_b32 s30, s30, 16\ns_lshl_b32 s31, s17, 11\ns_add_u32 s30, s30, s31\ns_add_u32 s30, s30, {WS_Z2:#x}')
        k('s_lshl_b32 s31, s20, 10\ns_add_u32 s32, s30, s31\ns_xor_b32 s31, s31, 1024\ns_add_u32 s33, s30, s31')
        mark(k, 10); mark(k, 9 if hiw else 8, 'B')
        vm.wait(tk['s'])
        Lp = k.lab('spoll'); Lok = k.lab('sok')
        k('s_mov_b32 s37, 0')
        k(f'{Lp}:')
        k(f'v_min_f32 v2, v{G+1}, v{G+3}')
        for q in range(2, 8, 2): k(f'v_min3_f32 v2, v2, v{G+2*q+1}, v{G+2*q+3}')
        k('v_cmp_gt_f32 vcc, 0, v2')
        k(f's_cbranch_vccz {Lok}')
        k(f's_add_u32 s37, s37, 1\ns_cmp_gt_u32 s37, {SPIN}')
        k(f's_cbranch_scc1 {Lok}')
        n0 = vm.n; statloads(); vm.n = n0
        k('s_waitcnt vmcnt(0)')
        k(f's_branch {Lp}')
        k(f'{Lok}:')
        mark(k, 11); mark(k, 11 if hiw else 10, 'B')
        for st in (8, 4, 2):
            for q in range(0, st, 2): k(f'v_pk_add_f32 {v(G+q,2)}, {v(G+q,2)}, {v(G+q+st,2)}')
        k(f'v_mov_b32 v4, {fl(1/768)}')
        k(f'v_mul_f32 v{G}, v4, v{G}\nv_mul_f32 v{G+2}, v{G}, v{G}\nv_fma_f32 v{G+1}, v{G+1}, v4, -v{G+2}\nv_max_f32 v{G+1}, 0, v{G+1}')
        ln_finish(k, G, G+1, G+2)
        k(f'v_mul_f32 v{G}, v{G}, -v{G+1}')
        N = G + 8
        for e in range(2): k(f'v_mov_b32 v{N+e}, v{G+e}\nv_mov_b32 v{N+4+e}, v{G+e}')
        for e in range(2): k(f'v_permlane32_swap_b32 v{N+e}, v{N+4+e}')
        for e in range(2): k(f'v_mov_b32 v{N+2+e}, v{N+e}\nv_mov_b32 v{N+6+e}, v{N+4+e}')
        for e in range(2): k(f'v_permlane16_swap_b32 v{N+e}, v{N+2+e}\nv_permlane16_swap_b32 v{N+4+e}, v{N+6+e}')
        for T_ in z2t:
            for sp in range(2):
                P = AC[T_] + 8*sp
                for u_ in range(2):
                    sg = 2*sp + u_; z = AC[T_] + 4*sg; ms = v(N+2*sg, 2)
                    for hp in range(2):
                        k(f'v_pk_fma_f32 {v(z+2*hp,2)}, {v(z+2*hp,2)}, {ms}, {ms} op_sel:[0,1,0] op_sel_hi:[1,1,0]')
                    k(f'v_cvt_pk_bf16_f32 v{P+2*u_}, v{z}, v{z+1}\nv_cvt_pk_bf16_f32 v{P+2*u_+1}, v{z+2}, v{z+3}')
                k(f'v_permlane16_swap_b32 v{P}, v{P+2}\nv_permlane16_swap_b32 v{P+1}, v{P+3}')
                if T_ == 1: k(f's_add_u32 s{32+sp}, s{32+sp}, 65536')
                vm.issue(f'buffer_store_dwordx4 {v(P,4)}, v26, s[8:11], s{32+sp} offen sc1')
        k(f's_lshl_b32 s30, s18, 5\ns_add_u32 s31, s30, s17\ns_lshl_b32 s31, s31, 7\ns_add_u32 s31, s31, {F2:#x}')
        tk['z'] = vm.n
        mark(k, 13 if hiw else 12, 'B')
    def sig():
        signal(k, vm, 's31', tk['z'])
        mark(k, 12); mark(k, 14, 'B')
    R2 = float(E('FB_RATE2', 2))
    def mkhooks(pairs):
        d = {}
        for g, f in pairs: d.setdefault(g, []).append(f)
        return {g: (lambda fs=fs: [f() for f in fs]) for g, fs in d.items()}
    phaseC_bases(k)
    if not hiw:
        h = [int(x) for x in E('FB_H01', '13,6,14,11,18').split(',')]
        assert h[0] >= 8 and h[2] >= h[0]
        hk = mkhooks(zip(h, [readB, statloads, startC, normalize, sig]))
        gemm_loop(k, lg, dma, 0, 20, reads, mk([2], False), lambda g: -1, 1000, R2, hooks=hk)
        if 20 in hk: hk[20]()
        gelu(2, 2)
        if 21 in hk: hk[21]()
        k(f's_lshl_b32 s34, s20, 3\ns_add_u32 s34, s34, {Z1L}')
        z1out(2, 's34')
        while dma.q: dma.one()
        k(f'v_and_b32 v2, 31, v1\nv_lshlrev_b32 v2, 7, v2\ns_lshl_b32 s30, s30, 7\ns_add_u32 s30, s30, {F2:#x}')
        poll(k, vm, 2, 's30')
        k('s_barrier')
        mark(k, 13)
        for s_ in range(NPRO):
            for hk_ in range(2):
                for jf in range(2):
                    k(f's_add_u32 s27, s21, {hk_*32768 + jf*65536 + s_*2048}\ns_add_u32 m0, s56, {s_*16384 + hk_*8192 + jf*2048}')
                    for hf in range(2): k(f'buffer_load_dwordx4 v5, s[8:11], s27 offen offset:{hf*1024} sc1 lds')
            if s_ == 0: stg_read(dma, lg, 6, False); stg_read(dma, lg, 7, False)
    else:
        h = [int(x) for x in E('FB_H23', '3,11,7,12,10,14').split(',')]
        assert h[1] >= 8 and h[3] >= h[1]
        hk = mkhooks(zip(h, [barX, readB, statloads, startC, normalize, sig]))
        gemm_loop(k, lg, dma, 0, 20, reads, mk([1, 2], False), lambda g: -1, 1000, 2*R2, hooks=hk)
        lg.all()
        YP = int(E('FB_YP', 1))
        if YP == 0: k('s_barrier')
        gelu(1, 2)
        while dma.q: dma.one()
        if YP == 1: k('s_barrier')
        k(f's_lshl_b32 s34, s20, 10\ns_add_u32 s34, s34, {Z1L+1024}')
        z1out(1, 's34')
        gelu(2)
        k('s_add_u32 s34, s34, 8')
        z1out(2, 's34')
        stg_read(dma, lg, 6); stg_read(dma, lg, 7)
        mark(k, 15, 'B')
    lg.all()

NPRO = int(E('FC_NPRO', 4))
def phaseC_bases(k):
    k(f's_mul_i32 s21, s18, 6\ns_add_u32 s21, s21, s20\ns_lshl_b32 s21, s21, 16\ns_lshl_b32 s36, s19, 15\ns_add_u32 s21, s21, s36\ns_add_u32 s21, s21, {WS_Z2:#x}')
    k('s_add_u32 s54, s21, 0x40000\ns_lshl_b32 s36, s20, 16\ns_add_u32 s21, s21, s36\ns_lshl_b32 s56, s16, 12')

WOB = [((17+c) % 7)*16384 for c in range(7)] + [114688]
def waddr(q):
    o = WOB[q//16] + (q % 16)*1024
    return f'v5 offset:{o}' if o < 61440 else f'v6 offset:{o-61440}'

def flag_store(k, soff):
    L = k.lab('sig')
    k(f's_cmp_lg_u32 s16, 0\ns_cbranch_scc1 {L}')
    k('v_mov_b32 v2, 0\nv_mov_b32 v3, s6\ns_mov_b64 exec, 1')
    k(f'buffer_store_dword v3, v2, s[8:11], {soff} offen sc1')
    k('s_mov_b64 exec, -1')
    k(f'{L}:')

def phaseCD(k):
    vm = Cnt(k, 'vmcnt', 63); lg = Cnt(k, 'lgkmcnt', 15)
    dma = Dma(k, vm)
    NS = 7; RED = 122880
    k(f's_mul_i32 s22, s18, 122880\ns_add_u32 s22, s22, {WS_WO:#x}\ns_lshr_b32 s25, s56, 1\ns_add_u32 s26, s22, s25\ns_add_u32 s22, s22, s56')
    mark(k, 0, 'C')
    GS = [int(x) for x in E('FC_GS', '0,1,2,4,6,8,10,12,14,16,18,19,20,21,22,23').split(',')]
    grp = lambda st: max(i for i, f in enumerate(GS) if f <= st)
    def freeat(X):
        c = [i for i, f in enumerate(GS) if f >= X+2]
        return c[0] if c else 99
    for s_ in range(NPRO): vm.n += 8; dma.tok[grp(s_)] = vm.n
    for s_ in range(NPRO, 24):
        sl = s_ % NS; af = freeat(s_ - NS) if s_ >= NS else 0
        assert af < grp(s_)
        for q in range(4):
            if s_ < 16:
                jf, hf = q//2, q % 2
                pre = [f's_add_u32 s27, s21, {jf*65536 + (s_ % int(E("X_ZM", 99)))*2048}', f's_add_u32 m0, s56, {sl*16384 + jf*2048}'] if hf == 0 else []
                off = hf*1024
            else:
                pre = [f's_add_u32 s27, s54, {(s_-16)*4096}', f's_add_u32 m0, s56, {sl*16384}'] if q == 0 else []
                off = q*1024
            dma.add(pre, f'buffer_load_dwordx4 v5, s[8:11], s27 offen offset:{off} sc1 lds', grp(s_), af)
    for c in range(7):
        for q in range(4):
            pre = [f's_add_u32 s27, s22, {c*16384}', f's_add_u32 m0, s56, {WOB[c]}'] if q == 0 else []
            dma.add(pre, f'buffer_load_dwordx4 v5, s[8:11], s27 offen offset:{q*1024} sc1 lds', 150+c, freeat(17+c))
    for q in range(2):
        pre = [f's_add_u32 s27, s26, {7*16384}', f's_add_u32 m0, s25, {WOB[7]}'] if q == 0 else []
        dma.add(pre, f'buffer_load_dwordx4 v5, s[8:11], s27 offen offset:{q*1024} sc1 lds', 157, 99)
    ZA = 16
    k('v_bfe_u32 v2, v1, 2, 2\nv_and_b32 v3, 1, v8\nv_lshl_add_u32 v2, v3, 2, v2\nv_lshrrev_b32 v3, 1, v8\nv_lshl_add_u32 v2, v3, 4, v2')
    k('v_and_b32 v3, 3, v1\nv_lshlrev_b32 v3, 3, v3\nv_lshl_add_u32 v2, v2, 5, v3')
    k('s_lshl_b32 s36, s19, 13')
    k(f'v_add_u32 v{ZA}, s36, v2\nv_add_u32 v{ZA+1}, 0x10000, v{ZA}')
    k('s_lshl_b32 s23, s20, 1\ns_add_u32 s23, s23, s19')
    k('s_lshl_b32 s36, s17, 2\ns_add_u32 s24, s36, s23')
    k('s_lshl_b32 s36, s24, 5')
    k('v_lshl_add_u32 v2, v7, 1, s36')
    BS = 20
    tB = vm.issue(f'global_load_ushort v{BS}, v2, s[38:39]')
    k(f's_mul_i32 s36, s16, 6144\ns_add_u32 s36, s36, {RED}\ns_xor_b32 s35, s16, 2\ns_mul_i32 s35, s35, 6144\ns_add_u32 s35, s35, {RED}')
    k('v_add_u32 v11, s36, v5\nv_add_u32 v12, s35, v5\nv_add_u32 v6, 61440, v5')
    k(f's_mul_i32 s36, s23, 3072\ns_add_u32 s36, s36, {Z1L}\nv_add_u32 v19, s36, v5')
    k(f's_mul_i32 s30, s24, 24576\ns_lshl_b32 s31, s18, 10\ns_add_u32 s30, s30, s31\ns_add_u32 s30, s30, {WS_P:#x}\ns_add_u32 s29, s30, 16384\ns_add_u32 s30, s30, s31')
    k(f's_lshl_b32 s28, s17, 10\ns_lshl_b32 s31, s18, 7\ns_add_u32 s31, s31, s28\ns_add_u32 s33, s31, {F3A:#x}\ns_add_u32 s31, s31, {F3:#x}')
    k(f's_add_u32 s34, s28, {F3A:#x}\ns_add_u32 s28, s28, {F3:#x}')
    k('v_and_b32 v13, 7, v1\nv_lshlrev_b32 v13, 7, v13')
    FR = 68
    def accr(ft, tau): return 116 + 16*tau + 4*ft if ft < 4 else 148 + 8*tau + 4*(ft-4)
    lg.all()
    mark(k, 1, 'C')
    dma.sync(0)
    mark(k, 2, 'C')
    def reads(g):
        s_, hf = g // 2, g % 2; sl = s_ % NS; b = FR + 16*(g % 3)
        ar = ZA + sl//4; off = (sl % 4)*16384
        out = []
        for q in range(4):
            o = off + (q*2048 + hf*1024 if g < 32 else (q % 2)*4096 + (2*hf + q//2)*1024)
            out += [f'ds_read_b64_tr_b16 {v(b+4*q,2)}, v{ar} offset:{o}', f'ds_read_b64_tr_b16 {v(b+4*q+2,2)}, v{ar} offset:{o+256}']
        return out
    def mfmas(g):
        b = FR + 16*(g % 3); out = []
        for q in range(4):
            ft, ks = (q, g) if g < 32 else (4 + q % 2, 2*(g-32) + q//2)
            for tau in range(2):
                d = accr(ft, tau)
                out.append(f'{MF} {v(d,4)}, {v(b+4*q,4)}, {wreg(ks//4, 8*(ks % 4)+4*tau)}, {"0" if ks == 0 else v(d,4)}')
        return out
    ZR = 24; TT = 36
    tk = {}
    def z1rd():
        for q in range(3): lg.issue(f'ds_read_b128 {v(ZR+4*q,4)}, v19 offset:{1024*q}')
        vm.wait(tB)
        k(f'v_lshlrev_b32 v{BS}, 16, v{BS}')
    def redw(fts):
        for ft in fts: lg.issue(f'ds_write_b128 v11, {v(accr(ft,1),4)} offset:{1024*ft}')
        lg.all()
    def redr(fts):
        for ft in fts: tk[ft] = lg.issue(f'ds_read_b128 {v(accr(ft,1),4)}, v12 offset:{1024*ft}')
    def epi(fts):
        for ft in fts:
            d = accr(ft, 0); z = ZR + 2*ft; P = accr(ft & ~1, 0) + 2*(ft % 2)
            lg.wait(tk[ft])
            for hp in range(2):
                k(f'v_pk_add_f32 {v(d+2*hp,2)}, {v(d+2*hp,2)}, {v(accr(ft,1)+2*hp,2)}')
                k(f'v_lshlrev_b32 v{TT+2*hp}, 16, v{z+hp}\nv_and_b32 v{TT+2*hp+1}, 0xffff0000, v{z+hp}')
                k(f'v_pk_add_f32 {v(d+2*hp,2)}, {v(d+2*hp,2)}, {v(BS,2)} op_sel_hi:[1,0]')
                k(f'v_pk_mul_f32 {v(d+2*hp,2)}, {v(d+2*hp,2)}, {v(TT+2*hp,2)}')
            k(f'v_cvt_pk_bf16_f32 v{P}, v{d}, v{d+1}\nv_cvt_pk_bf16_f32 v{P+1}, v{d+2}, v{d+3}')
            if ft % 2:
                tk['p'] = vm.issue(f'buffer_store_dwordx4 {v(P-2,4)}, v5, s[8:11], ' + (f's30 offen offset:{(ft//2)*1024} sc1' if ft < 4 else 's29 offen sc1'))
    def issue_poll(sreg): tk['f'] = vm.issue(f'buffer_load_dword v14, v13, s[8:11], {sreg} offen sc1')
    def check_poll(sreg):
        Lo = k.lab('fok')
        vm.wait(tk['f'])
        k(f'v_cmp_ne_u32 vcc, s6, v14\ns_cbranch_vccz {Lo}')
        poll(k, Cnt(k, 'vmcnt', 63), 13, sreg)
        k(f'{Lo}:')
    h = [int(x) for x in E('FC_H', '34,35,36,40,46').split(',')]
    assert h[0] >= 32 and h[0] % 2 == 0 and h[3] % 2 == 0 and (h[0]+2)//2 in GS and (h[3]+2)//2 in GS
    hooks = {30: z1rd, h[0]: lambda: redw(range(4)), h[1]: lambda: redr(range(4)), h[2]: lambda: epi(range(4)),
             h[3]: lambda: vm.wait(tk['p']), h[3]+1: lambda: flag_store(k, 's33'), h[4]: lambda: issue_poll('s34')}
    for i in range(1, 4): hooks[8*i] = (lambda i=i: mark(k, 2+i, 'C'))
    dma.novm = int(E('X_NOVM', 0)); dma.nobar = int(E('X_NOBAR', 0)); dma.nodma = int(E('X_NODMA', 0))
    gemm_loop(k, lg, dma, 0, 48, reads, mfmas, lambda g: grp(g//2), 1000, float(E('FC_RATE', 3)), hooks=hooks)
    while dma.ready(): dma.one()
    mark(k, 14); mark(k, 11, 'C'); mark(k, 0, 'D')
    redw((4, 5))
    k('s_barrier'); dma.bar = 99
    dma.upto(154)
    redr((4, 5))
    k(f's_lshl_b32 s35, s17, 2\ns_add_u32 s35, s35, s16\ns_mul_i32 s32, s35, 24576\ns_add_u32 s32, s32, {WS_P:#x}')
    epi((4, 5))
    mark(k, 1, 'D')
    check_poll('s34')
    PFR = list(range(68, 148, 4)) + list(range(164, 180, 4)); ACC = 232
    pt = []
    def pld(lim):
        g = len(pt)
        if g >= lim: return False
        if g % 4 == 0 and g: k('s_add_u32 s32, s32, 4096')
        pt.append(vm.issue(f'buffer_load_dwordx4 {v(PFR[g],4)}, v5, s[8:11], s32 offen offset:{(g % 4)*1024} sc1'))
        return True
    for _ in range(int(E('FD_PRE', 8))): pld(16)
    k('s_mul_i32 s33, s35, 20480\ns_mul_i32 s34, s18, 160\ns_add_u32 s33, s33, s34')
    k('v_mul_u32_u24 v9, 1280, v7\nv_lshl_add_u32 v10, v8, 3, v9')
    k('v_and_b32 v3, 1, v8\nv_lshl_add_u32 v9, v3, 5, v9\nv_lshrrev_b32 v3, 1, v8\nv_lshl_add_u32 v9, v3, 4, v9')
    mark(k, 2, 'D')
    signal(k, vm, 's31', tk['p'])
    mark(k, 15); mark(k, 3, 'D')
    ft = {}
    def rd(g): return [f'ds_read_b128 {a(20*(g % 3)+4*j,4)}, {waddr(5*g+j)}' for j in range(5)]
    for g in range(2):
        for r in rd(g): ft[g] = lg.issue(r)
    GP = int(E('FD_GP', 11))
    for g in range(16):
        if g == GP:
            while dma.q: dma.one()
            issue_poll('s28')
        vm.wait(pt[g]); lg.wait(ft[g])
        if g % 8 == 0: mark(k, 4+g//8, 'D')
        rr = rd(g+2) if g+2 < 16 else []
        for j in range(5):
            if j in (0, 3) and len(pt) >= 16: dma.pre()
            k(f'{MF} {v(ACC+4*j,4)}, {a(20*(g % 3)+4*j,4)}, {v(PFR[g],4)}, {"0" if g == 0 else v(ACC+4*j,4)}')
            if j in (0, 3):
                if dma.pend is not None: dma.fire()
                else: pld(16)
            if rr: ft[g+2] = lg.issue(rr.pop(0))
    mark(k, 6, 'D')
    vm.wait(dma.tok[157])
    k('s_barrier')
    for q in range(80, 100): tw = lg.issue(f'ds_read_b128 {a(60+4*(q-80),4)}, {waddr(q)}')
    check_poll('s28')
    mark(k, 7, 'D')
    while pld(24): pass
    for q in range(100, 120): tw2 = lg.issue(f'ds_read_b128 {a(60+4*(q-80),4)}, {waddr(q)}')
    for g in range(16, 24):
        vm.wait(pt[g]); lg.wait(tw if g < 20 else tw2)
        for j in range(5):
            k(f'{MF} {v(ACC+4*j,4)}, {a(60+20*(g-16)+4*j,4)}, {v(PFR[g],4)}, {v(ACC+4*j,4)}')
    TT = 36
    mark(k, 8, 'D')
    OST = E('F_OST', '')
    for j in range(5):
        d = ACC + 4*j; P = ACC + 8*(j//2) + 2*(j % 2)
        for hp in range(2):
            k(f'v_lshlrev_b32 v{TT+2*hp}, 16, v{RES+2*j+hp}\nv_and_b32 v{TT+2*hp+1}, 0xffff0000, v{RES+2*j+hp}')
            k(f'v_pk_add_f32 {v(d+2*hp,2)}, {v(d+2*hp,2)}, {v(TT+2*hp,2)}')
        k(f'v_cvt_pk_bf16_f32 v{P}, v{d}, v{d+1}\nv_cvt_pk_bf16_f32 v{P+1}, v{d+2}, v{d+3}')
        if j % 2:
            k(f'v_permlane16_swap_b32 v{P-2}, v{P}\nv_permlane16_swap_b32 v{P-1}, v{P+1}')
            k(f'buffer_store_dwordx4 {v(P-2,4)}, v9, s[40:43], s33 offen offset:{32*(j-1)} {OST}')
        elif j == 4:
            k(f'buffer_store_dwordx2 {v(P,2)}, v10, s[40:43], s33 offen offset:128 {OST}')

def helper0(k, vm):
    lg = Cnt(k, 'lgkmcnt', 15)
    k('v_lshrrev_b32 v2, 2, v1\nv_and_b32 v3, 3, v1\nv_mul_u32_u24 v2, 160, v2\nv_lshl_add_u32 v2, v3, 3, v2\ns_lshl_b32 s27, s16, 5\nv_add_u32 v57, s27, v2')
    tk = []
    for p in range(5):
        lg.issue(f'ds_read_b64_tr_b16 {v(12+4*p,2)}, v57 offset:{p*5120}')
        tk.append(lg.issue(f'ds_read_b64_tr_b16 {v(14+4*p,2)}, v57 offset:{p*5120+2560}'))
    for r in range(4): k(f'v_mov_b32 v{48+r}, 0x3f803f80')
    k('s_and_b32 s45, s44, 3\ns_and_b32 s46, s44, -4\ns_add_u32 s46, s46, s16')
    k(f's_mul_i32 s47, s46, 20\ns_mul_i32 s50, s45, 5\ns_add_u32 s47, s47, s50\ns_lshl_b32 s47, s47, 10\ns_add_u32 s47, s47, {WS_W1:#x}\ns_add_u32 s50, s47, 4096')
    for p in range(5):
        lg.wait(tk[p])
        k(f'{MF} v[44:47], {v(12+4*p,4)}, v[48:51], {"0" if p == 0 else "v[44:47]"}')
        vm.issue(f'buffer_store_dwordx4 {v(12+4*p,4)}, v5, s[8:11], ' + (f's47 offen offset:{p*1024} sc1' if p < 4 else 's50 offen sc1'))
    k(f's_mul_i32 s47, s45, 6144\ns_lshl_b32 s50, s46, 6\ns_add_u32 s47, s47, s50\ns_add_u32 s47, s47, {WS_CS:#x}')
    k('v_lshlrev_b32 v2, 4, v8')
    k('s_mov_b32 exec_lo, 0x00010001\ns_mov_b32 exec_hi, 0x00010001')
    tS = vm.issue('buffer_store_dwordx4 v[44:47], v2, s[8:11], s47 offen sc1')
    k('s_mov_b64 exec, -1')
    for p in range(3):
        vm.issue(f'global_load_dwordx4 {v(164+4*p,4)}, v191, s[48:49]')
        if p < 2: k(f'v_add_u32 v191, {32*1280}, v191')
    k(f's_lshl_b32 s47, s44, 7\ns_add_u32 s47, s47, {F0B:#x}')
    mark(k, 12, 'H')
    signal(k, vm, 's47', tS)

def helper1(k):
    for p in range(3): k(f'ds_write_b128 v56, {v(164+4*p,4)} offset:{p*5120}')
    k('s_lshr_b32 s47, s44, 3\ns_lshl_b32 s47, s47, 2\ns_add_u32 s47, s47, s16\ns_mul_i32 s48, s47, 52\ns_lshr_b32 s48, s48, 8\ns_mul_i32 s49, s48, 5\ns_sub_u32 s49, s47, s49')
    k(f's_and_b32 s47, s44, 7\ns_mul_i32 s50, s47, 5120\ns_mul_i32 s48, s48, 120\ns_add_u32 s47, s48, s49\ns_lshl_b32 s47, s47, 10\ns_add_u32 s47, s47, {WS_WO:#x}\ns_add_u32 s47, s47, s50\ns_add_u32 s51, s47, {16*5120}\ns_add_u32 s47, s47, s50')
    k('s_waitcnt lgkmcnt(0)\ns_barrier')
    for p in range(3):
        k(f'ds_read_b64_tr_b16 {v(12+4*p,2)}, v57 offset:{p*5120}\nds_read_b64_tr_b16 {v(14+4*p,2)}, v57 offset:{p*5120+2560}')
    k('s_waitcnt lgkmcnt(0)\ns_barrier')
    L = k.lab('nwo')
    k(f's_cmp_ge_u32 s44, 80\ns_cbranch_scc1 {L}')
    for p in range(3):
        k(f'buffer_store_dwordx4 {v(12+4*p,4)}, v5, s[8:11], s{47 if p < 2 else 51} offen sc1')
        if p == 0: k('s_add_u32 s47, s47, 5120')
    k(f'{L}:')

def gen_ks():
    k = Kern(NAME, 256, 256, 163840)
    k.short = 'ks'
    Lend = 'Lks_end'
    k(f's_cmp_ge_u32 s2, 256\ns_cbranch_scc1 {Lend}')
    stamp_begin(k)
    k('s_load_dwordx16 s[44:59], s[0:1], 0')
    k('s_load_dwordx2 s[6:7], s[0:1], 112')
    k('s_load_dwordx4 s[28:31], s[0:1], 96')
    k('s_load_dwordx8 s[20:27], s[0:1], 64')
    k('s_memrealtime s[4:5]')
    k('s_getpc_b64 s[18:19]')
    k('Lks_pc:')
    k(f's_sub_u32 s18, s18, Lks_pc-{NAME}\ns_subb_u32 s19, s19, 0')
    k('s_lshr_b32 s17, s2, 3\ns_lshl_b32 s17, s17, 11')
    k(f'v_lshrrev_b32 v2, 4, v0\nv_lshlrev_b32 v2, 7, v2\nv_add_u32 v2, s17, v2\nv_min_u32 v2, Lcode_end-{NAME}-4, v2')
    k('global_load_dword v239, v2, s[18:19]')
    k('v_lshrrev_b32 v5, 6, v0')
    k('v_readfirstlane_b32 s16, v5')
    k('v_and_b32 v1, 63, v0\nv_lshlrev_b32 v5, 4, v1\nv_and_b32 v7, 15, v1\nv_lshrrev_b32 v8, 4, v1')
    k('v_lshrrev_b32 v2, 5, v0\nv_and_b32 v3, 31, v0\nv_lshlrev_b32 v3, 3, v3')
    k('v_mul_u32_u24 v50, 1280, v2\ns_mul_i32 s3, s2, 10240\nv_add3_u32 v50, v50, v3, s3')
    k(f'v_mul_u32_u24 v51, 1344, v2\nv_add_u32 v51, v51, v3\nv_add_u32 v51, {LNB}, v51')
    ln1_addr(k)
    k('s_lshl_b32 s3, s2, 2\ns_add_u32 s3, s3, s16')
    k('s_mul_i32 s17, s3, 384\nv_lshl_add_u32 v2, v1, 1, s17\ns_lshl_b32 s17, s3, 1\nv_mov_b32 v3, s17')
    for r in list(range(PR, PR+13)) + [AUX, AP0, AST, 190, 191, 132, 133, 134, 135]: k(f'v_mov_b32 v{r}, 0')
    k('s_lshl_b32 s34, s3, 1\ns_and_b32 s34, s34, -4')
    k('s_waitcnt lgkmcnt(0)')
    L = k.lab('nnw')
    k(f's_cmp_lg_u32 s3, 0\ns_cbranch_scc1 {L}')
    k('s_or_b32 s4, s4, 1\nv_mov_b32 v4, 0\nv_mov_b32 v6, s4\ns_mov_b64 exec, 1')
    k('global_store_dword v4, v6, s[30:31] sc1')
    k('s_mov_b64 exec, -1')
    k(f'{L}:')
    for q in range(5): k(f'global_load_dwordx2 {v(12+2*q,2)}, v50, s[44:45] offset:{q*256}')
    mark(k, 0)
    k('s_cmp_ge_u32 s2, 160\ns_cbranch_scc1 Lks_h0')
    def common_setup():
        srd(k, 8, 6, WS_SIZE); srd(k, 12, 22, 2048*4096); srd(k, 40, 28, 2048*1280)
        k('s_mov_b64 s[32:33], s[30:31]')
        k('s_mov_b64 s[38:39], s[24:25]')
        cb = MAPB
        k(f's_and_b32 s17, s2, 7\ns_lshr_b32 s17, s17, {3-cb}\ns_lshl_b32 s17, s17, {5-cb}\ns_lshr_b32 s18, s2, {3+cb}\ns_add_u32 s17, s17, s18')
        k(f's_and_b32 s18, s2, {(1 << (3-cb))-1}\ns_lshl_b32 s18, s18, {cb}\ns_lshr_b32 s19, s2, 3\ns_and_b32 s19, s19, {(1 << cb)-1}\ns_add_u32 s18, s18, s19')
        k('s_lshr_b32 s19, s16, 1\ns_and_b32 s20, s16, 1')
        k('s_lshl_b32 s25, s16, 1\ns_add_u32 s26, s16, 2\ns_cmp_lt_u32 s16, 2')
        k('s_cselect_b32 s22, s25, s26\ns_add_u32 s22, s22, 48')
        k('s_add_u32 s26, s25, 49\ns_sub_u32 s27, s25, 2\ns_cmp_lt_u32 s16, 2\ns_cselect_b32 s23, s26, s27')
        k('s_sub_u32 s27, s25, 1\ns_cmp_lt_u32 s16, 2\ns_cselect_b32 s24, s16, s27')
        k('s_mul_i32 s25, s18, 6')
        for r in (22, 23, 24): k(f's_add_u32 s{r}, s{r}, s25\ns_lshl_b32 s{r+35}, s{r}, 6\ns_add_u32 s{r+35}, s{r+35}, {WS_CS:#x}\ns_mul_i32 s{r}, s{r}, 20480\ns_add_u32 s{r}, s{r}, {WS_W1:#x}')
        k(f's_lshl_b32 s29, s17, 12\ns_add_u32 s29, s29, {WS_ST:#x}')
        k('s_lshl_b32 s27, s18, 9\ns_add_u32 s27, s27, s29\ns_lshl_b32 s26, s16, 7\ns_add_u32 s27, s27, s26')
        k('v_lshlrev_b32 v2, 3, v7\nv_mov_b32 v10, -1.0\nv_mov_b32 v11, -1.0')
        k('buffer_store_dwordx2 v[10:11], v2, s[8:11], s27 offen sc1')
    k('global_load_short_d16_hi v68, v3, s[54:55]')
    for g in range(3):
        for i in range(4): k(f'global_load_short_d16_hi v{PR+4*g+i}, v2, s[{46+2*i}:{47+2*i}] offset:{128*g}')
    k('s_load_dword s35, s[56:57], s34')
    PFS = int(E('C_PFS', 0))
    k('s_mov_b64 s[4:5], s[20:21]\ns_mov_b64 s[36:37], s[26:27]')
    PFW = int(E('C_PFW', 0))
    def pfw_addr():
        k('v_min_u32 v2, 23, v1\nv_lshlrev_b32 v2, 7, v2\ns_mul_i32 s27, s3, 3072\nv_add_u32 v2, s27, v2')
        k('v_min_u32 v3, 11, v1\nv_lshlrev_b32 v3, 7, v3\ns_mul_i32 s27, s3, 1536\nv_add_u32 v3, s27, v3')
    if PFW == 2:
        pfw_addr(); k('global_load_dword v190, v2, s[4:5]\nglobal_load_dword v191, v3, s[36:37]')
    common_setup()
    stg_setup(k, 132)
    A0 = int(E('C_A0', 0))
    r = Rec(); conv_early(r)
    if E('C_LATE', '1') == '0': conv_late(r)
    if E('C_BL', '1') == '0': conv_bands(r)
    dq = []
    if A0:
        for q in range(4):
            for j in range(4):
                dq.append(f's_add_u32 s31, s28, {(q//2)*256 + (q % 2)*65536}\ns_add_u32 m0, s26, {q*4096 + j*1024}\nbuffer_load_dwordx4 v{132+j}, s[12:15], s31 offen lds')
    for n, x in enumerate(r.L):
        if n % int(E('C_A0R', 4)) == 0 and n >= int(E('C_A0S', 0)) and dq: k(dq.pop(0))
        k(x)
    for x in dq: k(x)
    if PFW == 1: pfw_addr()
    k(f's_waitcnt vmcnt({14 + 2*(PFW == 2) + 16*A0})')
    if PFW == 1: k('global_load_dword v190, v2, s[4:5]\nglobal_load_dword v191, v3, s[36:37]')
    k('s_branch Lks_ln')
    k('Lks_h0:')
    k('s_mov_b64 s[46:47], s[20:21]\ns_mov_b64 s[48:49], s[26:27]\ns_sub_u32 s44, s2, 160')
    common_setup()
    f0b_addr(k)
    k('v_lshrrev_b32 v2, 3, v0\nv_and_b32 v3, 7, v0\nv_lshlrev_b32 v3, 4, v3')
    k(f's_and_b32 s45, s44, 3\ns_mul_i32 s45, s45, {160*3072}\ns_lshr_b32 s27, s44, 2\ns_lshl_b32 s27, s27, 7\ns_add_u32 s45, s45, s27')
    k('v_mul_u32_u24 v4, 3072, v2\nv_add3_u32 v190, v4, v3, s45')
    k(f's_min_u32 s27, s44, 79\ns_and_b32 s45, s27, 7\ns_mul_i32 s45, s45, {96*1280}\ns_lshr_b32 s27, s27, 3\ns_lshl_b32 s27, s27, 7\ns_add_u32 s45, s45, s27')
    k('v_mul_u32_u24 v4, 1280, v2\nv_add3_u32 v191, v4, v3, s45')
    k('v_mul_u32_u24 v56, 160, v2\nv_add_u32 v56, v56, v3')
    k('s_waitcnt vmcnt(1)')
    k('Lks_ln:')
    mark(k, 1)
    ln1(k)
    k('s_cmp_ge_u32 s2, 160\ns_cbranch_scc1 Lks_h1')
    k('s_and_b32 s50, s3, 1\ns_xor_b32 s50, s50, 1\ns_lshl_b32 s50, s50, 4\ns_lshl_b32 s51, s35, s50\ns_lshr_b32 s51, s51, 16')
    k(f's_waitcnt vmcnt({7 + 2*bool(PFW) + 16*A0})')
    if PFS:
        k('v_lshrrev_b32 v2, 2, v1\nv_lshlrev_b32 v2, 11, v2\nv_and_b32 v3, 3, v1\nv_lshl_add_u32 v2, v3, 7, v2')
        for j in range(PFS):
            k(f's_add_u32 s45, s3, {640*j}\ns_min_u32 s45, s45, 1023')
            k('s_lshr_b32 s27, s45, 8\ns_lshl_b32 s27, s27, 9\ns_and_b32 s45, s45, 255\ns_lshl_b32 s45, s45, 15\ns_add_u32 s45, s45, s27')
            k(f'buffer_load_dword v{186+j}, v2, s[12:15], s45 offen')
    def sig0(nsl):
        k(f's_waitcnt vmcnt({PFS + nsl})')
        get_nonce(k)
        signal(k, Cnt(k, 'vmcnt', 63), 's30')
        mark(k, 2)
    kgen(k, sig0)
    phaseA(k)
    k('s_branch Lks_B')
    k('Lks_h1:')
    k('s_waitcnt vmcnt(5)')
    get_nonce(k)
    vm = Cnt(k, 'vmcnt', 63)
    for p in range(5):
        vm.issue(f'global_load_dwordx4 {v(144+4*p,4)}, v190, s[46:47]')
        if p < 4: k(f'v_add_u32 v190, {32*3072}, v190')
    mark(k, 7, 'H')
    k('s_waitcnt vmcnt(5)')
    mark(k, 8, 'H')
    signal(k, vm, 's30', 0)
    mark(k, 2); mark(k, 9, 'H')
    k('s_waitcnt vmcnt(0)')
    mark(k, 10, 'H')
    for p in range(5): k(f'ds_write_b128 v56, {v(144+4*p,4)} offset:{p*5120}')
    k('s_waitcnt lgkmcnt(0)\ns_barrier')
    k('s_sub_u32 s44, s2, 160')
    mark(k, 11, 'H')
    helper0(k, Cnt(k, 'vmcnt', 63))
    mark(k, 13, 'H')
    mark(k, 3)
    PFH = E('F_PFH', '2,0')
    def touch(js):
        for j in js:
            k(f's_lshl_b32 s45, s44, 2\ns_add_u32 s45, s45, s16\ns_add_u32 s45, s45, {384*j + int(E("F_PFB", 256))}\ns_min_u32 s45, s45, 1023')
            if LIN: k('s_lshl_b32 s45, s45, 13')
            else: k('s_lshr_b32 s46, s45, 8\ns_lshl_b32 s46, s46, 9\ns_and_b32 s45, s45, 255\ns_lshl_b32 s45, s45, 15\ns_add_u32 s45, s45, s46')
            k(f'buffer_load_dword v{100+j}, v99, s[12:15], s45 offen {E("F_PFF", "")}')
    n1, n2 = [int(x) for x in PFH.split(',')]
    LIN = int(E('F_LIN', 0))
    if LIN: k('v_lshlrev_b32 v99, 7, v1')
    else: k('v_lshrrev_b32 v2, 2, v1\nv_lshlrev_b32 v2, 11, v2\nv_and_b32 v3, 3, v1\nv_lshl_add_u32 v99, v3, 7, v2')
    touch(range(n1))
    vm = Cnt(k, 'vmcnt', 63); dma = Dma(k, vm); w1_items(dma, [0, 1])
    k(f's_mov_b32 s47, {F0B:#x}')
    poll(k, vm, [AB0, AB0+1], 's47')
    mark(k, 4)
    helper1(k)
    while dma.q: dma.one()
    touch(range(n1, n1+n2))
    stg_setup(k, 11)
    stg_items(dma, 0); stg_items(dma, 1)
    while dma.q: dma.one()
    k('s_waitcnt vmcnt(28)')
    k('Lks_B:')
    mark(k, 6)
    phaseB_setup(k)
    k(f's_lshl_b32 s36, s20, 8\ns_lshl_b32 s35, s16, 9\ns_add_u32 s35, s35, {PART}')
    k('v_lshlrev_b32 v9, 3, v1\nv_xor_b32 v25, s36, v9\nv_add_u32 v27, s35, v25')
    k('v_and_b32 v2, 3, v7\nv_bfe_u32 v3, v7, 2, 1\nv_lshl_add_u32 v2, v3, 3, v2\nv_bfe_u32 v3, v7, 3, 1\nv_lshl_add_u32 v2, v3, 2, v2')
    k('v_and_b32 v3, 1, v8\nv_lshl_add_u32 v2, v3, 4, v2\nv_lshlrev_b32 v2, 5, v2\nv_lshrrev_b32 v3, 1, v8\nv_lshl_add_u32 v26, v3, 4, v2')
    vm = Cnt(k, 'vmcnt', 63); dma = Dma(k, vm)
    k('v_lshlrev_b32 v2, 4, v8')
    for p in range(1, 4): k(f'v_add_u32 v{HF+p}, {6144*p}, v2')
    for T_ in range(3):
        vm.issue(f'buffer_load_dwordx4 {v(CS+4*T_,4)}, v2, s[8:11], s{57+T_} offen sc1')
        for p in range(3): vm.issue(f'buffer_load_dwordx4 {v(AC[0]+12*T_+4*p,4)}, v{HF+1+p}, s[8:11], s{57+T_} offen sc1')
    w1_items(dma, [2], 0, range(T2E))
    while dma.q: dma.one()
    k('v_min_u32 v2, 39, v1\nv_lshrrev_b32 v3, 2, v2\nv_and_b32 v2, 3, v2\nv_lshl_add_u32 v2, v3, 4, v2\nv_lshlrev_b32 v2, 7, v2')
    k(f's_lshl_b32 s30, s16, 9\ns_add_u32 s30, s30, {F1:#x}')
    poll(k, vm, 2, 's30')
    mark(k, 7)
    k('s_cmp_ge_u32 s16, 2\ns_cbranch_scc1 Lks_Bhi')
    phaseB(k, False)
    k('s_branch Lks_C')
    k('Lks_Bhi:')
    phaseB(k, True)
    k('Lks_C:')
    phaseCD(k)
    mark(k, 9, 'D')
    stamp_end(k, 2)
    k(f'{Lend}:')
    k('s_endpgm')
    return k
```

```python
from asmlib import *
WS_UX  = 0x000000
WS_KP  = 0x500000
WS_HT  = 0x700000
WS_CS  = 0x980000
WS_ST  = 0x990000
WS_FL  = 0x9B0000
WS_W1  = 0xA00000
WS_WO  = 0xC00000
WS_Z2  = 0xD00000
WS_P   = 0x1040000
WS_SIZE = 0x1400000
import os
ZS = 65536 + int(os.environ.get('ZPAD', 0))
KPO = 272
KA = dict(x=0, logA=8, Aim=16, Cr=24, Ci=32, logdt=40, D=48, win=64, wsp=72, bsp=80, wout=88, out=96, dbg=104, ws=112)
LOG2E = 1.4426950408889634
INV2PI = 0.15915494309189535

def srd(k, d, base, nbytes):
    k(f's_mov_b32 s{d}, s{base}\ns_mov_b32 s{d+1}, s{base+1}\ns_mov_b32 s{d+2}, {nbytes:#x}\ns_mov_b32 s{d+3}, 0x20000')

class Cnt:
    def __init__(s, k, name, mx):
        s.k = k; s.name = name; s.mx = mx; s.n = 0; s.done = 0
    def issue(s, text):
        s.k(text); s.n += 1; return s.n
    def wait(s, tok):
        if tok <= s.done: return
        left = s.n - tok
        if left > s.mx: left = s.mx
        s.k(f's_waitcnt {s.name}({left})')
        s.done = s.n - left
    def all(s): s.wait(s.n)

def round_bf16_f32(k, dst, src):
    k(f'v_cvt_pk_bf16_f32 v{dst}, v{src}, v{src}')
    k(f'v_and_b32 v{dst}, 0xffff0000, v{dst}')

def ln_finish(k, mean, var, t):
    k(f'v_cvt_pk_bf16_f32 v{t}, v{mean}, v{var}')
    k(f'v_lshlrev_b32 v{mean}, 16, v{t}')
    k(f'v_and_b32 v{var}, 0xffff0000, v{t}')
    k(f'v_add_f32 v{var}, {fl(1e-5)}, v{var}')
    round_bf16_f32(k, var, var)
    k(f'v_sqrt_f32 v{var}, v{var}')
    round_bf16_f32(k, var, var)
    k(f'v_rcp_f32 v{var}, v{var}')

import os
STAMP = os.environ.get('STAMP', '')
WS_STAMP = 0x1380000
DELAY = os.environ.get('DELAY', '')
def delay_at(k, i):
    if DELAY and int(DELAY.split(':')[0]) == i:
        L = k.lab('dly')
        k(f'{L}:\ns_memrealtime s[94:95]\ns_waitcnt lgkmcnt(0)\ns_sub_u32 s94, s94, s96\ns_cmp_lt_u32 s94, {int(DELAY.split(":")[1])}\ns_cbranch_scc1 {L}')
def stamp_begin(k):
    if STAMP or DELAY: k('s_memrealtime s[96:97]')
WS_MARK = 0x13a0000
def mark(k, i, grp=''):
    if grp == '': delay_at(k, i)
    if STAMP in ('ws', 'dbg1') and (grp == os.environ.get('MGRP', '') or k.name.startswith('k1')):
        k(f's_waitcnt lgkmcnt(0)\n{"s_memtime" if os.environ.get("MCLK") else "s_memrealtime"} s[{60+2*i}:{61+2*i}]\ns_waitcnt lgkmcnt(0)'); k.nmark = max(getattr(k, 'nmark', 0), i+1)
def stamp_end(k, kidx):
    delay_at(k, 99)
    if STAMP == 'dbg1':
        if kidx == 2:
            L = k.lab('nost')
            k('s_waitcnt vmcnt(0) lgkmcnt(0)\ns_memrealtime s[60:61]')
            k(f's_load_dwordx2 s[94:95], s[0:1], {KA["dbg"]}')
            k(f's_waitcnt lgkmcnt(0)\ns_cmp_eq_u32 s2, {os.environ.get("DBGWG", 37)}\ns_cbranch_scc1 {L}\ns_endpgm\n{L}:')
            k('s_mov_b64 exec, 1\nv_mov_b32 v0, 0')
            for i in range(16):
                k(f's_sub_u32 s93, s{60+2*i}, s96\nv_mov_b32 v2, s93\nglobal_atomic_umax v0, v2, s[94:95] offset:{4*i}')
    elif STAMP:
        k('s_waitcnt vmcnt(0) lgkmcnt(0)')
        k('s_memrealtime s[98:99]')
        k(f's_load_dwordx2 s[94:95], s[0:1], {KA["ws"] if STAMP == "ws" else KA["dbg"]}')
        k('s_waitcnt lgkmcnt(0)')
        k('s_not_b32 s96, s96')
        if STAMP == 'ws':
            k(f's_lshl_b32 s97, s2, 3\ns_add_u32 s97, s97, {WS_STAMP + kidx*8192:#x}')
        else:
            nk = int(os.environ.get('NK', '5'))
            L = k.lab('nost')
            k(f's_add_u32 s94, s94, {(nk-1-kidx)*512}\ns_addc_u32 s95, s95, 0\ns_mov_b32 s97, {kidx*8}')
            k(f's_mul_i32 s93, s2, 37\ns_and_b32 s93, s93, 31\ns_cmp_eq_u32 s93, 0\ns_cbranch_scc1 {L}\ns_endpgm\n{L}:')
        k('s_mov_b64 exec, 1')
        k('v_mov_b32 v0, s97\nv_mov_b32 v2, s96\nv_mov_b32 v3, s98')
        k('global_atomic_umax v0, v2, s[94:95]\nglobal_atomic_umax v0, v3, s[94:95] offset:4')
        if STAMP == 'ws' and getattr(k, 'nmark', 0):
            k(f's_lshl_b32 s97, s2, 6\ns_add_u32 s97, s97, {WS_MARK + kidx*65536:#x}\nv_mov_b32 v0, s97')
            for i in range(k.nmark):
                k(f'v_mov_b32 v2, s{60+2*i}\nglobal_atomic_umax v0, v2, s[94:95] offset:{4*i}')
            k.nmark = 0
    k('s_endpgm')

class Dma:
    def __init__(s, k, vm):
        s.k = k; s.vm = vm; s.q = []; s.tok = {}; s.bar = -1; s.pend = None
    def add(s, pre, ins, stage, after=-1):
        s.q.append(dict(pre=pre, ins=ins, stage=stage, after=after))
    def ready(s, maxstage=10**9):
        return bool(s.q) and s.q[0]['after'] <= s.bar and s.q[0]['stage'] <= maxstage
    def pre(s, maxstage=10**9):
        if s.pend is None and s.ready(maxstage):
            s.pend = s.q.pop(0)
            for p in s.pend['pre']: s.k(p)
    def fire(s):
        if s.pend is not None:
            s.tok[s.pend['stage']] = s.vm.issue(s.pend['ins']) if not getattr(s, 'nodma', 0) else s.vm.n
            s.pend = None
    def one(s, maxstage=10**9):
        s.pre(maxstage); s.fire()
    def upto(s, stage):
        s.fire()
        while s.q and any(it['stage'] <= stage for it in s.q):
            assert s.q[0]['after'] <= s.bar, (s.q[0], s.bar)
            s.one()
    def sync(s, stage):
        s.upto(stage)
        if not getattr(s, 'novm', 0): s.vm.wait(max(t for st, t in s.tok.items() if st <= stage))
        if not getattr(s, 'nobar', 0): s.k('s_barrier')
        s.bar = stage

def gemm_loop(k, lg, dma, g0, g1, reads, mfmas, stage_of, lead, rate, PD=2, tail_reads=None, hooks={}):
    ftok = {}
    synced = dma.bar
    def need_sync(g):
        st = stage_of(g)
        if st > dma.bar: dma.sync(st)
    for g in range(g0, min(g0+PD, g1)):
        need_sync(g)
        for r in reads(g): ftok[g] = lg.issue(r)
    cnt = 0.0
    for g in range(g0, g1):
        if g in hooks: hooks[g]()
        lg.wait(ftok[g])
        n = g + PD
        rr = []
        if n < g1:
            need_sync(n); rr = list(reads(n))
        elif n == g1 and tail_reads: rr = list(tail_reads)
        mm = mfmas(g)
        nm = len(mm); nr = len(rr); done = 0
        for i, m_ in enumerate(mm):
            cnt += 1.0/(rate(g) if callable(rate) else rate)
            if cnt >= 1.0:
                dma.pre(dma.bar + lead)
            k(m_)
            if dma.pend is not None: dma.fire(); cnt -= 1.0
            cnt = min(cnt, 1.0)
            want = -(-(i+1)*nr//nm)
            while done < want:
                ftok[n] = lg.issue(rr[done]); done += 1
```

```python
from common import *
GC = 0.7978845608028654
K1C = -2*GC*LOG2E
K2C = K1C*0.044715
def a(n, c=1): return 'a%d' % n if c == 1 else 'a[%d:%d]' % (n, n+c-1)
MF = 'v_mfma_f32_16x16x32_bf16'
E = os.environ.get
SPIN = 0x20000
F1, F2, F3, F0, F0B, F3A = [WS_FL + 0x8000*i for i in range(6)]
NAME = 'sequential_preLN__ssm_conv_s4d__mixer_gmlp__prompt_kernel'

def signal(k, vm, soff_expr, tok=None):
    k.nsig = getattr(k, 'nsig', 0) + 1
    if str(k.nsig) not in E('X_NODRAIN', '').split(','): vm.wait(vm.n if tok is None else tok)
    else: print('skip drain at signal', k.nsig, soff_expr)
    k('s_barrier')
    L = k.lab('sig')
    k(f's_cmp_lg_u32 s16, 0\ns_cbranch_scc1 {L}')
    k('v_mov_b32 v2, 0\nv_mov_b32 v3, s6')
    k('s_mov_b64 exec, 1')
    k(f'buffer_store_dword v3, v2, s[8:11], {soff_expr} offen sc1')
    k('s_mov_b64 exec, -1')
    k(f'{L}:')

def poll(k, vm, vaddrs, sreg, data=(3, 4)):
    if isinstance(vaddrs, int): vaddrs = [vaddrs]
    L = k.lab('poll'); Lo = k.lab('pok')
    k('s_mov_b32 s37, 0')
    k(f'{L}:')
    for q, va in enumerate(vaddrs): k(f'buffer_load_dword v{data[q]}, v{va}, s[8:11], {sreg} offen sc1')
    k(f's_add_u32 s37, s37, 1\ns_cmp_gt_u32 s37, {SPIN}')
    k(f's_cbranch_scc1 {Lo}')
    k('s_waitcnt vmcnt(0)')
    for q in range(len(vaddrs)):
        k(f'v_cmp_ne_u32 vcc, s6, v{data[q]}')
        k(f's_cbranch_vccnz {L}')
    k(f'{Lo}:')
    k('s_waitcnt vmcnt(0)')
    vm.done = vm.n

def w1_items(dma, tiles, stage=0, blocks=range(5)):
    for T in tiles:
        for ks4 in blocks:
            for q in range(4):
                ks = 4*ks4 + q
                dma.add([f's_add_u32 s27, s{22+T}, {ks4*4096}'] if q == 0 else [], f'buffer_load_dwordx4 {a(80*T+4*ks,4)}, v5, s[8:11], s27 offen offset:{q*1024} sc1', stage)

KGS = 288*128; UXB = KGS + 4*4608
BND = 156; KPT = 152
AF = 244; AG = 248; AXD = 249; AST = 250; XD = 240
AK0, AK1, AQ, AUX, AP0, PD0, AB0 = 251, 252, 253, 183, 184, 185, 254
PR = 56; IDX = 132; KW = 140; KR = 144; KCW = 145

def conv_bands(k):
    k('v_lshlrev_b32 v6, 3, v8')
    bands = [(-5, -3, -16), (-10, -6, -16), (-13, -11, -16), (-18, -14, -24), (-11, -5, -16), (-20, -12, -24), (12-16, 13-16, -16)]
    for bi, (lo, hi, e0) in enumerate(bands + [(0, 0, 0)]):
        dst = BND + 4*bi if bi < 6 else KPT if bi == 6 else XD
        msk = ((1 << (hi-lo+1)) - 1) << (lo - e0)
        if bi == 7: msk = 0x10001
        k(f'v_mov_b32 v9, {msk:#x}\nv_lshlrev_b32 v9, v7, v9\nv_lshrrev_b32 v9, v6, v9')
        k('v_and_b32 v10, 0xaa, v9\nv_and_b32 v9, 0x55, v9\nv_lshl_or_b32 v9, v10, 15, v9')
        for q in range(4):
            if q: k(f'v_lshrrev_b32 v10, {2*q}, v9')
            k(f'v_and_b32 v{dst+q}, 0x10001, v{10 if q else 9}')
            if bi < 6: k(f'v_mul_u32_u24 v{dst+q}, 0x3f80, v{dst+q}')

def f0b_addr(k):
    k(f'v_lshlrev_b32 v{AB0}, 7, v1\nv_and_b32 v2, 31, v1\nv_lshlrev_b32 v2, 7, v2\nv_add_u32 v{AB0+1}, 8192, v2')

def conv_late(k):
    def uaddr(dst, gc, use_h):
        k(f'v_lshl_add_u32 v9, v7, 1, {use_h}\nv_add_u32 v9, {gc+32}, v9')
        k('v_bfe_u32 v10, v9, 1, 3\nv_xor_b32 v10, s16, v10\nv_lshlrev_b32 v10, 4, v10')
        k(f'v_lshl_add_u32 v{dst}, v9, 7, v10')
    for j in range(4): uaddr(AF+j, -2-4*(j+4), 'v8')
    uaddr(AG, -3, 'v8')
    k('v_and_b32 v11, 1, v8')
    uaddr(AXD, 0, 'v11')
    k(f'v_lshlrev_b32 v{AST}, 5, v7\nv_lshl_add_u32 v{AST}, v11, 9, v{AST}')
    k('v_lshrrev_b32 v11, 1, v8')
    k(f'v_lshl_add_u32 v{AST}, v11, 4, v{AST}\nv_xor_b32 v11, 1, v11\nv_lshlrev_b32 v11, 6, v11\nv_xor_b32 v{AXD}, v11, v{AXD}')
    k(f's_lshl_b32 s52, s3, 12\ns_add_u32 s52, s52, {WS_HT:#x}')
    k('v_lshlrev_b32 v9, 3, v8\nv_sub_u32 v9, v9, v7\nv_add_u32 v9, 15, v9\nv_lshlrev_b32 v9, 1, v9')
    k(f'v_and_b32 v10, 1, v7\nv_xor_b32 v10, 1, v10\nv_mul_u32_u24 v10, {4*KPO-2}, v10')
    k(f'v_add3_u32 v{AK0}, v9, v10, s46\nv_add_u32 v{AK1}, 1024, v{AK0}')
    k('v_lshlrev_b32 v9, 2, v8\nv_sub_u32 v9, v9, v7\nv_add_u32 v9, 15, v9\nv_lshlrev_b32 v9, 2, v9')
    k(f's_add_u32 s53, s46, 2240\nv_add_u32 v{AQ}, s53, v9')
def conv_early(k):
    k('v_lshrrev_b32 v3, 3, v1\nv_and_b32 v4, 7, v1')
    k(f'v_lshl_add_u32 v2, v3, 5, v4\nv_lshlrev_b32 v{AP0}, 7, v2')
    k('v_lshrrev_b32 v6, 1, v3\nv_xor_b32 v4, v4, v6\ns_lshl_b32 s44, s20, 2\nv_xor_b32 v4, s44, v4')
    k(f'v_mul_u32_u24 v3, 20480, v3\nv_lshl_add_u32 v{AUX}, v4, 4, v3')
    f0b_addr(k)
    k(f's_mul_i32 s46, s16, 3072\ns_add_u32 s46, s46, {UXB}')
    k(f's_lshl_b32 s47, s2, 7\ns_mul_i32 s48, s16, {8*20480}\ns_add_u32 s47, s47, s48')
    k('s_lshl_b32 s49, s16, 10\ns_add_u32 s49, s49, 4096')
    k(f's_lshl_b32 s48, s16, 10\ns_add_u32 s48, s48, {F0:#x}')
    k('v_lshlrev_b32 v6, 4, v0')
    for r in range(72, 76): k(f'v_mov_b32 v{r}, 0')
    k('ds_write_b128 v6, v[72:75]')
    k('v_add_u32 v2, s46, v5')
    for q in range(3): k(f'ds_write_b128 v2, v[72:75] offset:{1024*q}')
    k(f's_mul_i32 s55, s16, 4608\ns_add_u32 s55, s55, {KGS}')
    k(f'v_mul_u32_u24 v2, 288, v7\nv_lshl_add_u32 v2, v8, 4, v2\nv_add_u32 v{KR}, s55, v2')
    k('v_lshrrev_b32 v9, 1, v8\nv_and_b32 v10, 1, v8\nv_lshlrev_b32 v3, 4, v7')
    k('v_lshl_add_u32 v2, v9, 8, v3\nv_lshl_add_u32 v2, v10, 3, v2')
    k(f's_add_u32 s44, s46, 1080\nv_sub_u32 v{KCW}, s44, v2')
    k(f'v_lshl_add_u32 v2, v10, 8, v3\ns_add_u32 s44, s46, {2*(536-258)-4}\nv_sub_u32 v{KCW+1}, s44, v2')
    k('v_lshrrev_b32 v2, 1, v7\nv_lshl_add_u32 v2, v10, 4, v2\nv_lshlrev_b32 v2, 2, v2\nv_and_b32 v3, 1, v7\nv_lshlrev_b32 v3, 8, v3\nv_sub_u32 v2, v3, v2')
    k(f's_add_u32 s44, s46, {2240+4*39}\nv_add_u32 v{KCW+2}, s44, v2')
    k(f'v_and_b32 v2, 7, v7\nv_lshlrev_b32 v2, 5, v2\nv_lshl_add_u32 v2, v8, 3, v2\ns_add_u32 s44, s46, {2752+4*62}\nv_sub_u32 v{KCW+3}, s44, v2')
    k(f'v_mov_b32 v{KCW+4}, s46')

LNB = 4096
class Rec:
    def __init__(s): s.L = []
    def __call__(s, t): s.L += [x for x in t.split('\n') if x]
def zipk(k, recs):
    for xs in zip(*[r.L for r in recs]):
        for x in xs: k(x)

def ln1_addr(k):
    k('v_lshrrev_b32 v2, 5, v1\nv_bfe_u32 v3, v1, 4, 1\nv_bfe_u32 v4, v1, 2, 2\nv_and_b32 v6, 3, v1')
    k('v_lshl_add_u32 v52, v2, 3, v4\nv_mul_u32_u24 v52, 1344, v52\nv_lshl_add_u32 v52, v3, 5, v52\nv_lshl_add_u32 v52, v6, 3, v52')
    k(f's_mul_i32 s17, s16, 320\ns_add_u32 s17, s17, {LNB}\nv_add_u32 v52, s17, v52')
    k('v_lshlrev_b32 v53, 9, v3\nv_lshl_add_u32 v53, v4, 7, v53\nv_lshl_add_u32 v53, v2, 6, v53\nv_lshl_add_u32 v53, v6, 4, v53')
    k('s_mul_i32 s17, s16, 5120\nv_add_u32 v53, s17, v53\nv_add_u32 v55, 4096, v53')

def ln1(k):
    X = 12; Fv = 22; S = 42
    for q in range(5): k(f'ds_write_b64 v51, {v(X+2*q,2)} offset:{8*1344+q*256}')
    for i in range(10): k(f'v_lshlrev_b32 v{Fv+2*i}, 16, v{X+i}\nv_and_b32 v{Fv+1+2*i}, 0xffff0000, v{X+i}')
    k(f'v_pk_add_f32 {v(S,2)}, {v(Fv,2)}, {v(Fv+2,2)}\nv_pk_mul_f32 {v(S+2,2)}, {v(Fv,2)}, {v(Fv,2)}')
    for i in range(1, 10):
        if i > 1: k(f'v_pk_add_f32 {v(S,2)}, {v(S,2)}, {v(Fv+2*i,2)}')
        k(f'v_pk_fma_f32 {v(S+2,2)}, {v(Fv+2*i,2)}, {v(Fv+2*i,2)}, {v(S+2,2)}')
    k(f'v_add_f32 v{S}, v{S}, v{S+1}\nv_add_f32 v{S+2}, v{S+2}, v{S+3}')
    k(f'v_mov_b32 v47, {fl(1/640)}')
    for sh in (8, 4, 2, 1):
        for q in (S, S+2): k(f'v_add_f32_dpp v{q}, v{q}, v{q} row_ror:{sh} row_mask:0xf bank_mask:0xf')
    k(f'v_mov_b32 v{S+1}, v{S}\nv_mov_b32 v{S+3}, v{S+2}\nv_permlane16_swap_b32 v{S}, v{S+1}\nv_permlane16_swap_b32 v{S+2}, v{S+3}')
    k(f'v_add_f32 v{S}, v{S}, v{S+1}\nv_add_f32 v{S+2}, v{S+2}, v{S+3}')
    k(f'v_mul_f32 v{S}, v47, v{S}\nv_mul_f32 v{S+1}, v{S}, v{S}\nv_fma_f32 v{S+2}, v{S+2}, v47, -v{S+1}\nv_max_f32 v{S+2}, 0, v{S+2}')
    r = Rec(); ln_finish(r, S, S+2, S+4)
    fin = r.L[2:]
    for x in r.L[:2]: k(x)
    for i in range(10):
        q = Fv+2*i
        k(f'v_pk_add_f32 {v(q,2)}, {v(q,2)}, {v(S,2)} op_sel_hi:[1,0] neg_lo:[0,1] neg_hi:[0,1]')
        if fin: k(fin.pop(0))
        k(f'v_cvt_pk_bf16_f32 v{q+1}, v{q}, v{q+1}\nv_lshlrev_b32 v{q}, 16, v{q+1}\nv_and_b32 v{q+1}, 0xffff0000, v{q+1}')
    assert not fin
    k('v_mov_b32 v2, 0\nglobal_load_dword v54, v2, s[32:33] sc1')
    for i in range(10):
        q = Fv+2*i
        k(f'v_pk_mul_f32 {v(q,2)}, {v(q,2)}, {v(S+2,2)} op_sel_hi:[1,0]')
        k(f'v_cvt_pk_bf16_f32 v{X+i}, v{q}, v{q+1}')
    for q in range(5): k(f'ds_write_b64 v51, {v(X+2*q,2)} offset:{q*256}')
    k('s_mul_i32 s30, s2, 20480')
    k('s_waitcnt lgkmcnt(0)\ns_barrier')
    mark(k, 0, 'H')
    O = 24
    for b in range(5):
        k(f'ds_read_b64_tr_b16 {v(O+4*b,2)}, v52 offset:{b*64}\nds_read_b64_tr_b16 {v(O+2+4*b,2)}, v52 offset:{b*64+4*1344}')
    for b in range(5):
        k(f's_waitcnt lgkmcnt({8-2*b})')
        k(f'buffer_store_dwordx4 {v(O+4*b,4)}, ' + (f'v53, s[8:11], s30 offen offset:{b*1024} sc1' if b < 4 else 'v55, s[8:11], s30 offen sc1'))
    k(f's_lshl_b32 s30, s2, 7\ns_add_u32 s30, s30, {F0:#x}')
    mark(k, 1, 'H')

def get_nonce(k):
    L = k.lab('nn'); Lo = k.lab('nok')
    k('s_mov_b32 s37, 0')
    k(f'{L}:')
    k('v_readfirstlane_b32 s6, v54')
    k(f's_add_u32 s37, s37, 1\ns_cmp_gt_u32 s37, {SPIN}\ns_cbranch_scc1 {Lo}')
    k(f's_cmp_lg_u32 s6, 0\ns_cbranch_scc1 {Lo}')
    k('v_mov_b32 v2, 0')
    k('global_load_dword v54, v2, s[32:33] sc1')
    k('s_waitcnt vmcnt(0)')
    k(f's_branch {L}')
    k(f'{Lo}:')

def ux_issue(k):
    for i in range(8):
        k(f's_add_u32 m0, s49, {i*4096}\ns_add_u32 s27, s47, {i*32*20480}')
        k(f'buffer_load_dwordx4 v{AUX}, s[8:11], s27 offen sc1 lds')
    k('s_mov_b32 s45, 1')
    mark(k, 8, 'K')

def kgen(k, sigfn):
    lg = Cnt(k, 'lgkmcnt', 15)
    DT = 68
    W, G8, GG, Z, C0, LO, HI, ACC, PK, H2 = 20, 22, 24, 32, 70, 88, 104, 120, 36, 192
    def check(pd=PD0):
        if E('KG_NOCHK'): return
        Ls = k.lab('uxs'); Lr = k.lab('uxr')
        k(f's_cmp_lg_u32 s45, 0\ns_cbranch_scc1 {Ls}')
        k('s_waitcnt vmcnt(0)')
        k(f'v_cmp_ne_u32 vcc, s6, v{pd}')
        k(f's_cbranch_vccnz {Lr}')
        ux_issue(k)
        k('s_mov_b32 m0, s55')
        k(f's_branch {Ls}')
        k(f'{Lr}:')
        k(f'buffer_load_dword v{pd}, v{AP0}, s[8:11], s48 offen sc1')
        k(f'{Ls}:')
    k(f'v_mov_b32 v{PD0}, 0\ns_mov_b32 s45, 0\ns_mov_b32 m0, s55')
    k(f'v_mul_f32 v{DT}, {fl(LOG2E)}, v{DT}\nv_exp_f32 v{DT}, v{DT}')
    round_bf16_f32(k, DT, DT)
    k(f'v_add_f32 v{DT+1}, v{DT}, v{DT}')
    mark(k, 0, 'K'); mark(k, 0, 'J')
    def setup(it):
        r = Rec(); P = PR + 4*it
        r(f'v_mul_f32 v12, {fl(LOG2E)}, v{P}\nv_mul_f32 v13, v{P+1}, v{DT}\nv_exp_f32 v12, v12')
        r(f'v_mul_f32 v13, {fl(INV2PI)}, v13\nv_mul_f32 v{C0}, v{P+2}, v{DT+1}\nv_mul_f32 v{C0+1}, v{P+3}, -v{DT+1}')
        round_bf16_f32(r, 12, 12)
        r(f'v_mul_f32 v12, v12, v{DT}\nv_mul_f32 v15, {fl(8.)}, v13\nv_mul_f32 v17, {fl(128.)}, v13\nv_mul_f32 v12, {fl(-LOG2E)}, v12')
        r('v_fract_f32 v15, v15\nv_fract_f32 v13, v13\nv_fract_f32 v17, v17')
        r(f'v_mul_f32 v14, {fl(8.)}, v12\nv_mul_f32 v16, {fl(128.)}, v12')
        for dst, m_ in ((G8, 14), (W, 12), (GG, 16)):
            r(f'v_exp_f32 v{m_}, v{m_}\nv_cos_f32 v{dst}, v{m_+1}\nv_sin_f32 v{dst+1}, v{m_+1}')
        return r.L
    tmp = [26, 28, 30]; ti = [0]
    def cmul(d, a_, b):
        t = tmp[ti[0] % 3]; ti[0] += 1
        k(f'v_pk_mul_f32 {v(t,2)}, {v(a_,2)}, {v(b,2)} op_sel:[0,0] op_sel_hi:[1,0]')
        k(f'v_pk_fma_f32 {v(d,2)}, {v(a_,2)}, {v(b,2)}, {v(t,2)} op_sel:[1,1,0] op_sel_hi:[0,1,1] neg_lo:[1,0,0]')
    WB = int(E('KG_WB', 4))
    wr = [0]
    SL = int(E('KG_SLOT', 0)); sn = [0]
    def slot():
        if not SL or sn[0] >= 8: return
        j = sn[0]; sn[0] += 1
        L = k.lab('sl')
        k(f's_cbranch_vccnz {L}')
        k(f's_add_u32 m0, s54, {j*1024}')
        if j == 4: k('s_add_u32 s56, s56, 65536')
        k(f'buffer_load_dwordx4 v{132+j%4}, s[12:15], s56 offen lds')
        k('s_mov_b32 m0, s55')
        k(f'{L}:')
    def wflush(n):
        while wr[0] < n:
            lg.issue(f'ds_write_addtid_b32 v{PK+wr[0]} offset:{wr[0]*288}'); wr[0] += 1
    def put(row, z):
        if z is None: k(f'v_mov_b32 v{PK+row}, 0x3f80')
        else: k(f'v_cvt_pk_bf16_f32 v{PK+row}, v{z}, v{z+1}')
        if (row+1) % WB == 0: wflush(row+1)
        if row in (3, 11) or (row == 6 and sn[0] == 7): slot()
    def flush(n, base):
        wflush(n); wr[0] = 0
        for ks in range(4): tk = lg.issue(f'ds_read_b128 {v(base+4*ks,4)}, v{KR} offset:{ks*64}')
        return tk
    def mm(it, t, H, swap):
        out = []
        for ks in range(4):
            A, B = H+4*ks, LO+4*ks
            if swap: A, B = B, A
            out.append(f'{MF} {v(ACC+4*t,4)}, {v(A,4)}, {v(B,4)}, {"0" if it == 0 and ks == 0 else v(ACC+4*t,4)}')
        return out
    plan = dict(x.split(':') for x in E('KG_PLAN', '02:sAB,10:CD,12:p,22:c').split(','))
    outl = []
    INL = int(E('KG_INL', 1))
    def event(act, nsl):
        if 's' in act: mark(k, 10, 'K'); sigfn(nsl); mark(k, 11, 'K')
        for q, ch in enumerate('ABCD'):
            if ch in act:
                k(f's_add_u32 s27, s28, {(q//2)*256 + (q % 2)*65536}')
                for j in range(4):
                    k(f's_add_u32 m0, s26, {q*4096 + j*1024}')
                    k(f'buffer_load_dwordx4 v{132+j}, s[12:15], s27 offen lds')
                k('s_mov_b32 m0, s55')
        if 'p' in act: mark(k, 2, 'K'); k(f'buffer_load_dword v{PD0}, v{AP0}, s[8:11], s48 offen sc1'); mark(k, 3, 'K')
        if 'c' in act: mark(k, 12, 'K'); k('s_waitcnt vmcnt(0)'); mark(k, 13, 'K'); check(); mark(k, 14, 'K')

    def pt(q):
        for it in range(3):
            act = plan.get(f'{it}{q}')
            if act:
                Lx = k.lab('kx'); Lb = k.lab('kb')
                nsl = (8*it + sn[0]) if SL else 0
                if INL:
                    k(f's_cmp_eq_u32 s44, {it}\ns_cbranch_scc0 {Lb}')
                    event(act, nsl)
                    k(f'{Lb}:')
                else:
                    k(f's_cmp_eq_u32 s44, {it}\ns_cbranch_scc1 {Lx}')
                    k(f'{Lb}:')
                    outl.append((Lx, Lb, act, nsl))
    for r in range(12): k(f'v_mov_b32 v{ACC+r}, 0')
    k('s_mov_b32 s44, 0\ns_mov_b64 vcc, 0\ns_mov_b32 s54, s26\ns_mov_b32 s56, s28')
    for x in setup(0): k(x)
    Lp = k.lab('kg')
    k(f'{Lp}:')
    for dst, m_, neg in ((G8, 14, False), (W, 12, True), (GG, 16, True)):
        k(f'v_pk_mul_f32 {v(dst,2)}, {v(dst,2)}, {v(m_,2)} op_sel_hi:[1,0]' + (' neg_hi:[0,1]' if neg else ''))
    put(0, None); put(1, G8)
    cmul(Z, G8, G8); put(2, Z)
    for j in range(3, 16): cmul(Z, Z, G8); put(j, Z)
    flush(16, LO)
    pt(0)
    put(0, C0)
    for c in range(1, 8): cmul(C0+2*c, C0+2*c-2, W); put(c, C0+2*c)
    cmul(C0+16, C0+14, W)
    for c in range(8): cmul(C0+2*c, C0+2*c, GG); put(8+c, C0+2*c)
    flush(16, HI)
    pt(1)
    cmul(C0+16, C0+16, GG); cmul(C0, C0, GG)
    for i in (2, 3):
        for c in (2, 4, 6, 8): cmul(C0+2*c, C0+2*c, GG); put(4*(i-2)+c//2-1, C0+2*c)
    for i in range(4, 8):
        for c in (4, 8): cmul(C0+2*c, C0+2*c, GG); put(8+2*(i-4)+c//4-1, C0+2*c)
    t1 = flush(16, H2)
    pt(2)
    k(f'v_cvt_pk_bf16_f32 v{PK+8}, v{C0}, v{C0+1}')
    for i in range(8, 16): cmul(C0+16, C0+16, GG); put(i-8, C0+16)
    t2 = flush(9, H2+16)
    pt(3)
    fillr = setup(1)
    fillr[6:6] = [f'v_mov_b32 v{PR+4+q}, v{PR+8+q}' for q in range(4)]
    assert sn[0] == 8 or not SL
    k('s_add_u32 s54, s26, 8192\ns_add_u32 s56, s28, 256\ns_cmp_eq_u32 s44, 1\ns_cselect_b64 vcc, -1, 0')
    k('s_add_u32 s44, s44, 1\ns_cmp_lt_u32 s44, 3')
    lg.wait(t1)
    for n, m_ in enumerate(mm(1, 0, HI, False) + mm(1, 1, H2, False) + mm(1, 2, H2+16, True)):
        if n == 8: lg.wait(t2)
        k(m_)
        for _ in range(2):
            if fillr: k(fillr.pop(0))
    for x in fillr: k(x)
    k(f's_cbranch_scc1 {Lp}')
    Lj = k.lab('kj')
    if outl: k(f's_branch {Lj}')
    for Lx, Lb, act, nsl in outl:
        k(f'{Lx}:')
        event(act, nsl)
        k(f's_branch {Lb}')
    k(f'{Lj}:')
    mark(k, 1, 'K'); mark(k, 13, 'J')
    A0, A1, A2 = ACC, ACC+4, ACC+8
    O = 4*KPO
    cv = [(A0+3, A0+2), (A0+1, A0), (A0+2, A0+1),
          (A1+3, A1+3), (A1+3, A1+2), (A1+1, A1+1), (A1+1, A1), (A1+2, A1+1),
          (A1, A1+1), (A1+2, A1+3),
          (A2+2, A2+3), (A2, A2+1), (A2, A2)]
    for q, (x, y) in enumerate(cv): k(f'v_cvt_pk_bf16_f32 v{12+q}, v{x}, v{y}')
    k(f'ds_write_b64 v{KCW}, v[12:13]')
    k(f'ds_write_b16 v{KCW}, v12 offset:{O-2}\nds_write_b32 v{KCW}, v14 offset:{O}\nds_write_b16_d16_hi v{KCW}, v13 offset:{O+4}')
    k(f'v_add_u32 v25, {O}, v{KCW+1}')
    k('s_mov_b32 exec_hi, 0')
    k(f'ds_write_b16 v{KCW+1}, v15 offset:2')
    k(f'ds_write2_b32 v{KCW+1}, v15, v16 offset0:1 offset1:2\nds_write2_b32 v{KCW+1}, v17, v18 offset0:3 offset1:4')
    k('ds_write2_b32 v25, v15, v15 offset0:0 offset1:1\nds_write2_b32 v25, v19, v17 offset0:2 offset1:3\nds_write_b16_d16_hi v25, v18 offset:16')
    k('s_mov_b32 exec_lo, 0x100')
    k(f'ds_write_b32 v{KCW+4}, v24 offset:572\nds_write_b16 v{KCW+4}, v24 offset:{O+570}\nds_write_b16 v{KCW+4}, v24 offset:{O+572}')
    k('s_mov_b32 exec_lo, 0\ns_mov_b32 exec_hi, -1')
    k(f'ds_write2_b32 v{KCW+2}, v20, v21 offset0:8 offset1:0')
    k('s_mov_b32 exec_lo, 0x00ff00ff\ns_mov_b32 exec_hi, 0x00ff00ff')
    k(f'ds_write_b64 v{KCW+3}, v[22:23]')
    k('s_mov_b64 exec, -1')
    mark(k, 4, 'K')
    check()
    mark(k, 5, 'K')

def phaseA(k):
    vm = Cnt(k, 'vmcnt', 63); lg = Cnt(k, 'lgkmcnt', 15)
    dma = Dma(k, vm); w1_items(dma, [0, 1])
    AC_ = int(E('FA_A', 0)); dmA = Dma(k, vm); AR = [2, 6, 9, 10]
    if AC_:
        for q in range(4):
            for j in range(4):
                dmA.add(([f's_add_u32 s31, s28, {(q//2)*256 + (q % 2)*65536}'] if j == 0 else []) + [f's_add_u32 m0, s26, {q*4096 + j*1024}'], f'buffer_load_dwordx4 v{AR[j]}, s[12:15], s31 offen lds', 0)
    ACC = 12; KN = 44; QA = 112; QB = 124; Q8 = 136; SS = 180; VV = 204
    FB = 216; NB = 6
    prog = []
    started = set()
    def Kn(kb): return ('K', 'n', kb)
    kreg = {}
    for kb in range(17): kreg[Kn(kb)] = (KN+4*kb, AK1 if kb == 0 else AK0, 0 if kb == 0 else (16-kb)*16)
    for D in (2, 3, 4): kreg[('K', 'a', D)] = (QA+4*(D-2), AQ, (4-D)*16); kreg[('K', 'b', D)] = (QB+4*(D-2), AQ, 64+(4-D)*16)
    for D in (4, 5, 6, 7): kreg[('K', '8', D)] = (Q8+4*(D-4), AQ, 128+(7-D)*16)
    def acc(t, A, B):
        prog.append(('m', ACC+4*t, A, B, t not in started)); started.add(t)
    XF = int(E('FA_XF', 0))
    for rt in range(XF): acc(rt, XD, ('F', rt, 'X'))
    for rt in range(8):
        F0 = ('F', rt, 0)
        if rt <= 5:
            for b in (0, 1, 2): prog.append(('m', SS+4*b, F0, BND+4*b, True))
            if rt <= 3: prog.append(('m', SS+16, F0, BND+16, True))
            prog.append(('m', SS+12, ('F', rt, 'G'), BND+12, True))
            if rt <= 3: prog.append(('m', SS+20, ('F', rt, 'G'), BND+20, True))
        if rt >= XF: acc(rt, XD, ('F', rt, 'X'))
        acc(rt, Kn(0), F0)
        if rt+1 <= 7: acc(rt+1, Kn(8), F0)
        if rt+2 <= 7: acc(rt+2, Kn(16), F0)
        if rt+4 <= 7: acc(rt+4, KPT, F0)
        if rt <= 5: prog.append(('cvt', rt))
        for j in range(1, 8):
            acc(rt, Kn(j), ('F', rt, j))
            if rt+1 <= 7: acc(rt+1, Kn(j+8), ('F', rt, j))
        prog.append(('epi', rt))
        if rt <= 5:
            prog.append(('needcvt',))
            for D in (2, 3, 4):
                if rt+D <= 7: acc(rt+D, VV, ('K', 'a', D)); acc(rt+D, VV+4, ('K', 'b', D))
            if rt <= 3:
                for D in (4, 5, 6, 7):
                    if rt+D <= 7: acc(rt+D, VV+8, ('K', '8', D))
    order = []; last_use = {}
    for pi_, p in enumerate(prog):
        if p[0] == 'm':
            for o in (p[2], p[3]):
                if isinstance(o, tuple):
                    if o not in last_use: order.append(o)
                    last_use[o] = pi_
    forder = [o for o in order if o[0] == 'F']
    fbuf = {o: FB + 4*(n % NB) for n, o in enumerate(forder)}
    fidx = {o: n for n, o in enumerate(forder)}
    tok = {}
    rq = []
    for o in order:
        if o[0] == 'K':
            r, ar, off = kreg[o]
            rq.append((o, f'ds_read2_b32 {v(r,2)}, v{ar} offset0:{off} offset1:{off+1}', False))
            rq.append((o, f'ds_read2_b32 {v(r+2,2)}, v{ar} offset0:{off+2} offset1:{off+3}', True))
        else:
            _, rt, j = o
            if j == 'G': ar, off = AG, rt*4096
            elif j == 'X': ar, off = AXD, rt*4096
            else: ar, off = AF + (j % 4), rt*4096 + (2048 if j < 4 else 0)
            rq.append((o, f'ds_read_b128 {v(fbuf[o],4)}, v{ar} offset:{off}', True))
    cur = [0]
    def can_read():
        if not rq: return False
        o = rq[0][0]
        if lg.n - lg.done >= 13: return False
        if o[0] == 'F' and fidx[o] >= NB:
            return last_use[forder[fidx[o]-NB]] < cur[0]
        return True
    def do_read():
        o, t, l = rq.pop(0); tk = lg.issue(t)
        if l: tok[o] = tk
    if E('C_LATE', '1') == '1': conv_late(k)
    k('v_mov_b32 v9, s53')
    tp = lg.issue(f'ds_read_u16 v11, v9 offset:{256+16*4+2}')
    early = [x for x in rq if x[0][0] == 'K'][:int(E('FA_EK', 54))]
    r = Rec()
    if E('C_BL', '1') == '1': conv_bands(r)
    r('v_mov_b32 v2, 0x3f80\nv_mov_b32 v3, s51\nv_cmp_gt_u32 vcc, 2, v8\nv_cndmask_b32 v2, v3, v2, vcc')
    for q in range(4): r(f'v_mul_u32_u24 v{XD+q}, v2, v{XD+q}')
    bl = r.L
    for n, x in enumerate(early):
        rq.remove(x); tk = lg.issue(x[1])
        if x[2]: tok[x[0]] = tk
        if n % 6 == 5:
            for _ in range(16):
                if bl: k(bl.pop(0))
    for x in bl: k(x)
    kq = [x for x in rq if x[0][0] == 'K']; fq = [x for x in rq if x[0][0] != 'K']
    KP = int(E('FA_KP', 2)); rq[:] = [fq.pop(0) for _ in range(NB-1)]
    while kq or fq:
        if fq: rq.append(fq.pop(0))
        for _ in range(KP):
            if kq: rq.append(kq.pop(0))
    lg.wait(tp)
    for q in range(4): k(f'v_mul_u32_u24 v{KPT+q}, v11, v{KPT+q}')
    if AC_:
        for j in range(4): k(f'v_add_u32 v3, {4*j}, v8\nv_xor_b32 v4, v3, v7\nv_lshlrev_b32 v3, 12, v3\nv_lshl_add_u32 v{AR[j]}, v4, 4, v3')
    mark(k, 3); mark(k, 6, 'K')
    Ls = k.lab('uxd')
    k(f's_cmp_lg_u32 s45, 0\ns_cbranch_scc1 {Ls}')
    poll(k, vm, AP0, 's48')
    ux_issue(k)
    k(f'{Ls}:')
    k(f's_mov_b32 s44, {F0B:#x}')
    k('s_waitcnt vmcnt(0)')
    lg.all()
    k('s_barrier')
    mark(k, 4); mark(k, 7, 'K')
    tB = []
    def f0b_issue():
        vm.issue(f'buffer_load_dword v3, v{AB0}, s[8:11], s44 offen sc1'); tB.append(vm.issue(f'buffer_load_dword v4, v{AB0+1}, s[8:11], s44 offen sc1'))
    def f0b_check():
        Lo = k.lab('f0b'); Lq = k.lab('f0q')
        vm.wait(tB[0])
        k(f'v_cmp_ne_u32 vcc, s6, v3\ns_cbranch_vccnz {Lq}\nv_cmp_ne_u32 vcc, s6, v4\ns_cbranch_vccz {Lo}')
        k(f'{Lq}:')
        poll(k, Cnt(k, 'vmcnt', 63), [AB0, AB0+1], 's44')
        k(f'{Lo}:')
        mark(k, 9, 'K')
        CT = int(E('C_TOUCH', 0))
        if CT:
            k(f's_add_u32 s45, s3, {CT}\ns_min_u32 s45, s45, 1023')
            k('s_lshr_b32 s46, s45, 8\ns_lshl_b32 s46, s46, 9\ns_and_b32 s45, s45, 255\ns_lshl_b32 s45, s45, 15\ns_add_u32 s45, s45, s46')
            k('v_lshrrev_b32 v2, 2, v1\nv_lshlrev_b32 v2, 11, v2\nv_and_b32 v3, 3, v1\nv_lshl_add_u32 v2, v3, 7, v2')
            vm.issue('buffer_load_dword v4, v2, s[12:15], s45 offen')
    hi = []; lo = []
    def epilogue(t):
        A = ACC + 4*t; ops = [None]*5
        def Em(txt): ops.append(lambda: k(txt))
        P = ACC + 4*(t & ~1) + 2*(t & 1)
        Em(f'v_cvt_pk_bf16_f32 v{P}, v{A}, v{A+1}'); Em(f'v_cvt_pk_bf16_f32 v{P+1}, v{A+2}, v{A+3}')
        if t & 1:
            Q = ACC + 4*(t-1)
            ops.append(None)
            Em(f'v_permlane16_swap_b32 v{Q}, v{Q+2}'); Em(f'v_permlane16_swap_b32 v{Q+1}, v{Q+3}')
            ops.append(lambda: vm.issue(f'buffer_store_dwordx4 {v(Q,4)}, v{AST}, s[8:11], s52 offen offset:{(t-1)*512} sc1'))
        return ops
    while can_read() and lg.n - lg.done < 12: do_read()
    nm = 0; wacc = [0.0]; WR = float(E('FA_WR', 4)); WLAST = int(E('FA_WLAST', 195)); WFIRST = int(E('FA_WFIRST', 40))
    for pi_, p in enumerate(prog):
        cur[0] = pi_
        if p[0] == 'cvt':
            rt = p[1]
            hi.extend([None]*2)
            for q in range(3 if rt <= 3 else 2):
                for r in range(4):
                    hi.append(lambda q=q, r=r: k(f'v_cvt_pk_bf16_f32 v{VV+4*q+r}, v{SS+8*q+r}, v{SS+8*q+4+r}'))
            continue
        if p[0] == 'needcvt':
            while hi:
                f = hi.pop(0)
                if f: f()
            continue
        if p[0] == 'epi':
            lo.extend(epilogue(p[1])); continue
        _, d, A, B, zero = p
        n0 = len(k.L)
        ops = []
        for o in (A, B):
            if isinstance(o, tuple):
                if o not in tok:
                    mine = [x for x in rq if x[0] == o]
                    for x in mine: rq.remove(x)
                    rq[0:0] = mine
                    if o[0] == 'F' and fidx[o] >= NB: assert last_use[forder[fidx[o]-NB]] < cur[0]
                    while o not in tok: do_read()
                tw = tok[o]
                if tw > lg.done and o[0] == 'F' and fidx[o]+1 < len(forder):
                    t2 = tok.get(forder[fidx[o]+1])
                    if t2 is not None and lg.n - t2 >= int(E('FA_MW', 2)): tw = max(tw, t2)
                lg.wait(tw)
                ops.append(fbuf[o] if o[0] == 'F' else kreg[o][0])
            else: ops.append(o)
        nm += 1
        if nm == max(WFIRST - int(E('FA_PL', 40)), 1): f0b_issue()
        if nm == WFIRST: f0b_check()
        wacc[0] += 1.0/WR
        if wacc[0] >= 1.0:
            wacc[0] -= 1.0
            if dmA.q and (AC_ == 1 or not dma.q) and nm <= WLAST: dmA.pre()
            elif WFIRST <= nm <= WLAST: dma.pre()
        used = len(k.L) - n0
        k(f'{MF} {v(d,4)}, {v(ops[0],4)}, {v(ops[1],4)}, {"0" if zero else v(d,4)}')
        cur[0] = pi_ + 1
        n1 = len(k.L)
        dma.fire(); dmA.fire()
        while len(k.L) - n1 + used < 2:
            if can_read(): do_read()
            elif hi:
                f = hi.pop(0)
                if f: f()
                else: used += 1
            elif lo:
                f = lo.pop(0)
                if f: f()
                else: used += 1
            else: break
    for f in lo:
        if f: f()
    mark(k, 5)
    tH = vm.n
    while dmA.q: dmA.one()
    k(f's_lshl_b32 s44, s2, 7\ns_add_u32 s44, s44, {F1:#x}')
    signal(k, vm, 's44', tH)
    while dma.q: dma.one()

def ln_sigma(k, mean, var, t):
    k(f'v_cvt_pk_bf16_f32 v{t}, v{mean}, v{var}')
    k(f'v_lshlrev_b32 v{mean}, 16, v{t}\nv_and_b32 v{var}, 0xffff0000, v{t}')
    k(f'v_add_f32 v{var}, {fl(1e-5)}, v{var}')
    round_bf16_f32(k, var, var)
    k(f'v_sqrt_f32 v{var}, v{var}')
    round_bf16_f32(k, var, var)

MAPB = {'A': 3, 'B': 2, 'C': 1, 'N': 0}[E('F_MAP', 'B')]
ALATE = int(E('FB_ALATE', 1)); T2E = int(E('FB_T2E', 0))
STG = 81920; Z1L = 147456; STAT = 159744; PART = STAT + 1024
CS = 28; RES = 40; MS = 52; HF = 68; AC = [116, 132, 148]; ONE = 164; SA = 168; G = 176; T = HF; WV = 192
WA = {2: 0, 3: 32, 4: 80, 5: 160, 6: 112, 7: 192}
def wreg(c, o): return v(WV+32*c+o, 4) if c < 2 else a(WA[c]+o, 4)

def stg_setup(k, R):
    for j in range(4):
        k(f'v_add_u32 v2, {4*j}, v8\nv_xor_b32 v3, v2, v7\nv_lshlrev_b32 v2, 12, v2\nv_lshl_add_u32 v{R+j}, v3, 4, v2')
    k(f's_lshl_b32 s26, s16, 14\ns_add_u32 s26, s26, {STG}')
    k('s_lshl_b32 s28, s17, 18\ns_lshl_b32 s27, s20, 17\ns_add_u32 s28, s28, s27\ns_lshl_b32 s27, s19, 11\ns_add_u32 s28, s28, s27')

def phaseB_setup(k):
    for r in range(4): k(f'v_mov_b32 v{ONE+r}, 0x3f803f80')
    k('v_lshrrev_b32 v2, 3, v1\nv_and_b32 v3, 7, v1\nv_and_b32 v4, 6, v2\nv_xor_b32 v3, v3, v4')
    k('v_lshlrev_b32 v10, 12, v2\nv_lshl_add_u32 v10, v3, 4, v10')
    stg_setup(k, 11)
    k('v_bfe_u32 v2, v1, 2, 2\nv_and_b32 v3, 3, v1\nv_lshl_add_u32 v4, v8, 2, v2')
    k('v_lshrrev_b32 v6, 1, v3\nv_and_b32 v3, 1, v3\nv_and_b32 v9, 6, v4\nv_xor_b32 v6, v6, v9')
    k('v_lshlrev_b32 v6, 4, v6\nv_lshl_add_u32 v6, v4, 7, v6\nv_lshl_add_u32 v6, v3, 3, v6')
    k('s_lshl_b32 s36, s20, 6')
    k('v_xor_b32 v16, s36, v6')
    for sg in range(1, 4): k(f'v_xor_b32 v{16+sg}, {32*sg}, v16')
    for sg in range(4): k(f'v_add_u32 v{20+sg}, 40960, v{16+sg}')
    k('s_lshl_b32 s36, s16, 5\ns_mul_i32 s35, s18, 10240')
    k('v_xor_b32 v24, s36, v6\nv_add_u32 v24, s35, v24')
    k('s_lshl_b32 s36, s19, 12')
    k('v_xor_b32 v2, v8, v7\nv_lshlrev_b32 v2, 4, v2\nv_lshl_add_u32 v2, v7, 8, v2\nv_add_u32 v2, s36, v2')
    for ks in range(4):
        k(f'v_xor_b32 v3, {64*ks}, v2\nv_add_u32 v{SA+2*ks}, s26, v3\nv_xor_b32 v3, {64*ks+4096}, v2\nv_add_u32 v{SA+2*ks+1}, s26, v3')
    k(f's_lshl_b32 s21, s17, 7\ns_lshl_b32 s36, s16, 16\ns_add_u32 s21, s21, s36\ns_add_u32 s21, s21, {WS_HT:#x}')
    k('s_lshl_b32 s25, s16, 11')

def stg_items(dma, c):
    for j in range(8):
        pre = [f's_add_u32 m0, s26, {(c % 2)*8192 + j*1024}']
        if j == 0: pre += [f's_add_u32 s55, s28, {c*256}']
        if j == 4: pre += ['s_add_u32 s55, s55, 65536']
        dma.add(pre, f'buffer_load_dwordx4 v{11+j%4}, s[12:15], s55 offen lds', 100+c)
def stg_read(dma, lg, c, wait=True):
    if wait: dma.upto(100+c); dma.vm.wait(dma.tok[100+c])
    for ks in range(4):
        for tau in range(2):
            lg.issue(f'ds_read_b128 {wreg(c, 8*ks+4*tau)}, v{SA+2*ks+tau} offset:{(c % 2)*8192}')

def phaseB(k, hiw):
    vm = Cnt(k, 'vmcnt', 63); lg = Cnt(k, 'lgkmcnt', 15)
    dma = Dma(k, vm)
    grp = [int(x) for x in E('FB_GRP', '0,1,1,2,2,2,3,3,3,3').split(',')]
    for s_ in range(10):
        for j in range(2):
            dma.add([f's_add_u32 m0, s25, {s_*8192 + j*1024}', f's_add_u32 s27, s21, {(s_*64 + j*8)*4096}'], 'buffer_load_dwordx4 v10, s[8:11], s27 offen sc1 lds', grp[s_])
    mark(k, 0, 'B')
    dma.upto(int(E('FB_PRO', 2)))
    mark(k, 1, 'B')
    stg_read(dma, lg, 0, False); stg_read(dma, lg, 1, False)
    for T_ in range(3):
        for p in range(3):
            for hp in range(2):
                k(f'v_pk_add_f32 {v(CS+4*T_+2*hp,2)}, {v(CS+4*T_+2*hp,2)}, {v(AC[0]+12*T_+4*p+2*hp,2)}')
    lg.all()
    stg_items(dma, 2); stg_items(dma, 3)
    if T2E < 5: w1_items(dma, [2], 103.5, range(T2E, 5))
    def reads(g):
        off = g*4096; ar = 16
        if off >= 40960: off -= 40960; ar = 20
        b = HF + 16*(g % 3); out = []
        for sg in range(4):
            out += [f'ds_read_b64_tr_b16 {v(b+4*sg,2)}, v{ar+sg} offset:{off}', f'ds_read_b64_tr_b16 {v(b+4*sg+2,2)}, v{ar+sg} offset:{off+2048}']
        return out
    def mk(tiles, stats):
        def f(g):
            b = HF + 16*(g % 3); out = []
            for sg in range(4):
                if stats and sg < 2:
                    d = AC[2] + 8*sg
                    out.append(f'{MF} {v(d,4)}, {v(ONE,4)}, {v(b+4*sg,4)}, {"0" if g == 0 else v(d,4)}')
                    out.append(f'{MF} {v(d+4,4)}, {v(b+4*sg,4)}, {v(b+4*sg,4)}, {"0" if g == 0 else v(d+4,4)}')
            for sg in range(4):
                for T_ in tiles:
                    d = AC[T_] + 4*sg
                    out.append(f'{MF} {v(d,4)}, {a(80*T_+4*g,4)}, {v(b+4*sg,4)}, {"0" if g == 0 else v(d,4)}')
            return out
        return f
    mark(k, 2, 'B')
    dma.sync(0)
    mark(k, 3, 'B')
    def btouch():
        if hiw and int(E('B_TOUCH', 0)):
            L = k.lab('nt')
            k(f's_cmp_lg_u32 s16, 3\ns_cbranch_scc1 {L}')
            k('v_lshrrev_b32 v2, 2, v1\nv_lshlrev_b32 v2, 11, v2\nv_and_b32 v3, 3, v1\nv_lshl_add_u32 v2, v3, 7, v2')
            k('s_lshl_b32 s36, s2, 15\ns_add_u32 s36, s36, 1536')
            k('buffer_load_dword v15, v2, s[12:15], s36 offen')
            k(f'{L}:')
    resr = [f'ds_read_b64_tr_b16 {v(RES+2*j,2)}, v24 offset:{j*2048}' for j in range(5)]
    gemm_loop(k, lg, dma, 0, 20, reads, mk([0] if hiw else [0, 1], hiw), lambda g: grp[g//2], 1000, lambda g: float(E('FB_RATE0', 2)) if g < int(E('FB_G0', 4)) else float(E('FB_RATE', 4)), tail_reads=resr, hooks={int(E('FB_G0', 4)): btouch})
    mark(k, 8); mark(k, 4, 'B')
    if not hiw:
        stg_read(dma, lg, 2); stg_read(dma, lg, 3); lg.all()
        stg_items(dma, 4); stg_items(dma, 5)
    z2t = [0] if hiw else [0, 1]
    k(f's_lshl_b32 s36, s20, 9')
    k(f'v_lshlrev_b32 v3, 4, v7\nv_add_u32 v3, s36, v3\nv_xor_b32 v4, 512, v3\nv_add_u32 v3, {STAT}, v3\nv_add_u32 v4, {STAT}, v4')
    if hiw:
        k('v_and_b32 v2, 3, v1')
        k('v_cmp_eq_u32 vcc, 1, v2\nv_cmp_eq_u32 s[30:31], 2, v2\nv_cmp_eq_u32 s[32:33], 3, v2')
        k(f'v_mov_b32 v6, {fl(1/640)}')
        A_, B_ = [], []
        rec = []
        for sg in range(2):
            r = Rec(); S = AC[2] + 8*sg; Gm = S + 4
            r(f'v_cndmask_b32 v{Gm}, v{Gm}, v{Gm+1}, vcc\nv_cndmask_b32 v{Gm}, v{Gm}, v{Gm+2}, s[30:31]\nv_cndmask_b32 v{Gm}, v{Gm}, v{Gm+3}, s[32:33]')
            r(f'v_mul_f32 v{S}, v6, v{S}\nv_mul_f32 v{S+1}, v{S}, v{S}')
            r(f'v_fma_f32 v{S+1}, v{Gm}, v6, -v{S+1}\nv_max_f32 v{S+1}, 0, v{S+1}')
            ln_sigma(r, S, S+1, S+2)
            r(f'v_rcp_f32 v{Gm}, v{S+1}')
            r(f'v_mul_f32 v{S+2}, {fl(K1C)}, v{Gm}\nv_mul_f32 v{S+3}, v{Gm}, v{Gm}\nv_mul_f32 v{S+3}, v{S+3}, v{Gm}\nv_mul_f32 v{S+3}, {fl(K2C)}, v{S+3}')
            rec.append(r.L)
        for x, y in zip(*rec): k(x); k(y)
        k('s_mov_b32 exec_lo, 0x00f0000f\ns_mov_b32 exec_hi, 0xf0000f00')
        for sg in range(2): lg.issue(f'ds_write_b128 v3, {v(AC[2]+8*sg,4)} offset:{256*sg}')
        k('s_mov_b64 exec, -1')
    else:
        for _ in range(int(E('FB_X01', 8))): dma.one()
    lg.all()
    k('s_barrier')
    tks = [lg.issue(f'ds_read_b128 {v(MS+4*sg,4)}, v{3 + sg//2} offset:{256*(sg % 2)}') for sg in range(4)]
    if hiw:
        stg_read(dma, lg, 2); stg_read(dma, lg, 3); lg.all()
        stg_items(dma, 4); stg_items(dma, 5)
    mark(k, 5, 'B')
    def gelu(T_, ER=0, tks=None):
        prs = [(sg, hp) for sg in range(4) for hp in range(2)]
        for q in range(0, 8, 2):
            st = [[], []]
            if tks: lg.wait(tks[q//2])
            for u_ in range(2):
                sg, hp = prs[q+u_]
                z = AC[T_] + 4*sg + 2*hp; c = CS + 4*T_ + 2*hp; t = T + 2*u_
                ms = v(MS+4*sg, 2); kk = v(MS+4*sg+2, 2)
                st[u_] = [
                  f'v_pk_fma_f32 {v(z,2)}, {v(c,2)}, {ms}, {v(z,2)} op_sel_hi:[1,0,1] neg_lo:[0,1,0] neg_hi:[0,1,0]',
                  f'v_pk_mul_f32 {v(t,2)}, {v(z,2)}, {v(z,2)}',
                  f'v_pk_fma_f32 {v(t,2)}, {v(t,2)}, {kk}, {kk} op_sel:[0,1,0] op_sel_hi:[1,1,0]',
                  f'v_pk_mul_f32 {v(t,2)}, {v(t,2)}, {v(z,2)}',
                  f'v_exp_f32 v{t}, v{t}', f'v_exp_f32 v{t+1}, v{t+1}',
                  f'v_pk_fma_f32 {v(t,2)}, {v(t,2)}, {ms}, {ms} op_sel:[0,1,1] op_sel_hi:[1,1,1]',
                  f'v_rcp_f32 v{t}, v{t}', f'v_rcp_f32 v{t+1}, v{t+1}',
                  f'v_pk_mul_f32 {v(z,2)}, {v(z,2)}, {v(t,2)}']
            for n_, (x, y) in enumerate(zip(*st)):
                if ER and n_ % ER == 0: dma.pre()
                k(x); dma.fire(); k(y)
    for T_ in z2t: gelu(T_, 2 if hiw else int(E('FB_ER', 10)), tks)
    mark(k, 6, 'B')
    for sg in range(4):
        s1 = G + 2*sg; s2 = G + 8 + 2*sg; first = True
        for T_ in z2t:
            z = AC[T_] + 4*sg
            if first:
                k(f'v_pk_add_f32 {v(s1,2)}, {v(z,2)}, {v(z+2,2)}\nv_pk_mul_f32 {v(s2,2)}, {v(z,2)}, {v(z,2)}')
            else:
                k(f'v_pk_add_f32 {v(s1,2)}, {v(s1,2)}, {v(z,2)}\nv_pk_add_f32 {v(s1,2)}, {v(s1,2)}, {v(z+2,2)}')
                k(f'v_pk_fma_f32 {v(s2,2)}, {v(z,2)}, {v(z,2)}, {v(s2,2)}')
            k(f'v_pk_fma_f32 {v(s2,2)}, {v(z+2,2)}, {v(z+2,2)}, {v(s2,2)}')
            first = False
    for q in range(8): k(f'v_add_f32 v{G+2*q}, v{G+2*q}, v{G+2*q+1}')
    for b in (G, G+8): k(f'v_permlane32_swap_b32 v{b}, v{b+4}\nv_permlane32_swap_b32 v{b+2}, v{b+6}')
    for b in (G, G+8): k(f'v_add_f32 v{b}, v{b}, v{b+4}\nv_add_f32 v{b+2}, v{b+2}, v{b+6}')
    for b in (G, G+8): k(f'v_permlane16_swap_b32 v{b}, v{b+2}')
    k(f'v_add_f32 v{T}, v{G}, v{G+2}\nv_add_f32 v{T+1}, v{G+8}, v{G+10}')
    lg.issue(f'ds_write_b64 v27, {v(T,2)}')
    def barX():
        k('s_barrier')
        mark(k, 9); mark(k, 7, 'B')
    lg.all()
    if not hiw:
        barX()
        L = k.lab('npub')
        k(f's_cmp_lg_u32 s16, 0\ns_cbranch_scc1 {L}')
        k(f'v_lshlrev_b32 v9, 3, v1\nv_add_u32 v2, {PART}, v9')
        for w in range(4): k(f'ds_read_b64 {v(G+2*w,2)}, v2 offset:{512*w}')
        k('s_lshl_b32 s36, s18, 9\ns_add_u32 s36, s36, s29')
        k('s_waitcnt lgkmcnt(0)')
        k(f'v_pk_add_f32 {v(G,2)}, {v(G,2)}, {v(G+2,2)}\nv_pk_add_f32 {v(G+4,2)}, {v(G+4,2)}, {v(G+6,2)}\nv_pk_add_f32 {v(G,2)}, {v(G,2)}, {v(G+4,2)}')
        k(f'buffer_store_dwordx2 {v(G,2)}, v9, s[8:11], s36 offen sc1')
        k(f'{L}:')
    while dma.q: dma.one()
    if T2E < 5: vm.wait(dma.tok[103.5])
    def readB():
        stg_read(dma, lg, 4); stg_read(dma, lg, 5)
    def startC():
        lg.all()
        stg_items(dma, 6); stg_items(dma, 7)
    tk = {}
    def statloads():
        for q in range(8):
            vm.issue(f'buffer_load_dwordx2 {v(G+2*q,2)}, v25, s[8:11], s29 offen offset:{q*512} sc1')
        tk['s'] = vm.n
    def z1out(T_, jexpr_sreg):
        k(f's_mul_i32 s36, s20, 6144\ns_add_u32 s36, s36, {jexpr_sreg}\ns_mul_i32 s35, s20, 12288\ns_sub_u32 s35, s36, s35')
        k('v_add_u32 v2, s36, v5\nv_add_u32 v3, s35, v5')
        for sg in range(4):
            z = AC[T_] + 4*sg
            k(f'v_cvt_pk_bf16_f32 v{z}, v{z}, v{z+1}\nv_cvt_pk_bf16_f32 v{z+1}, v{z+2}, v{z+3}')
            lg.issue(f'ds_write_b64 v{2 + sg//2}, {v(z,2)} offset:{3072*sg}')
    def normalize():
        if hiw: k('s_add_u32 s30, s16, 2')
        else: k('s_lshl_b32 s30, s16, 1')
        k(f's_mul_i32 s31, s18, 6\ns_add_u32 s30, s30, s31\ns_mul_i32 s30, s30, {ZS}\ns_lshl_b32 s31, s17, 11\ns_add_u32 s30, s30, s31\ns_add_u32 s30, s30, {WS_Z2:#x}')
        k('s_lshl_b32 s31, s20, 10\ns_add_u32 s32, s30, s31\ns_xor_b32 s31, s31, 1024\ns_add_u32 s33, s30, s31')
        mark(k, 10); mark(k, 9 if hiw else 8, 'B')
        vm.wait(tk['s'])
        Lp = k.lab('spoll'); Lok = k.lab('sok')
        k('s_mov_b32 s37, 0')
        k(f'{Lp}:')
        k(f'v_min_f32 v2, v{G+1}, v{G+3}')
        for q in range(2, 8, 2): k(f'v_min3_f32 v2, v2, v{G+2*q+1}, v{G+2*q+3}')
        k('v_cmp_gt_f32 vcc, 0, v2')
        k(f's_cbranch_vccz {Lok}')
        k(f's_add_u32 s37, s37, 1\ns_cmp_gt_u32 s37, {SPIN}')
        k(f's_cbranch_scc1 {Lok}')
        n0 = vm.n; statloads(); vm.n = n0
        k('s_waitcnt vmcnt(0)')
        k(f's_branch {Lp}')
        k(f'{Lok}:')
        mark(k, 11); mark(k, 11 if hiw else 10, 'B')
        for st in (8, 4, 2):
            for q in range(0, st, 2): k(f'v_pk_add_f32 {v(G+q,2)}, {v(G+q,2)}, {v(G+q+st,2)}')
        k(f'v_mov_b32 v4, {fl(1/768)}')
        k(f'v_mul_f32 v{G}, v4, v{G}\nv_mul_f32 v{G+2}, v{G}, v{G}\nv_fma_f32 v{G+1}, v{G+1}, v4, -v{G+2}\nv_max_f32 v{G+1}, 0, v{G+1}')
        ln_finish(k, G, G+1, G+2)
        k(f'v_mul_f32 v{G}, v{G}, -v{G+1}')
        N = G + 8
        for e in range(2): k(f'v_mov_b32 v{N+e}, v{G+e}\nv_mov_b32 v{N+4+e}, v{G+e}')
        for e in range(2): k(f'v_permlane32_swap_b32 v{N+e}, v{N+4+e}')
        for e in range(2): k(f'v_mov_b32 v{N+2+e}, v{N+e}\nv_mov_b32 v{N+6+e}, v{N+4+e}')
        for e in range(2): k(f'v_permlane16_swap_b32 v{N+e}, v{N+2+e}\nv_permlane16_swap_b32 v{N+4+e}, v{N+6+e}')
        for T_ in z2t:
            for sp in range(2):
                P = AC[T_] + 8*sp
                for u_ in range(2):
                    sg = 2*sp + u_; z = AC[T_] + 4*sg; ms = v(N+2*sg, 2)
                    for hp in range(2):
                        k(f'v_pk_fma_f32 {v(z+2*hp,2)}, {v(z+2*hp,2)}, {ms}, {ms} op_sel:[0,1,0] op_sel_hi:[1,1,0]')
                    k(f'v_cvt_pk_bf16_f32 v{P+2*u_}, v{z}, v{z+1}\nv_cvt_pk_bf16_f32 v{P+2*u_+1}, v{z+2}, v{z+3}')
                k(f'v_permlane16_swap_b32 v{P}, v{P+2}\nv_permlane16_swap_b32 v{P+1}, v{P+3}')
                if T_ == 1: k(f's_add_u32 s{32+sp}, s{32+sp}, {ZS}')
                vm.issue(f'buffer_store_dwordx4 {v(P,4)}, v26, s[8:11], s{32+sp} offen sc1')
        k(f's_lshl_b32 s30, s18, 5\ns_add_u32 s31, s30, s17\ns_lshl_b32 s31, s31, 7\ns_add_u32 s31, s31, {F2:#x}')
        tk['z'] = vm.n
        mark(k, 13 if hiw else 12, 'B')
    def sig():
        signal(k, vm, 's31', tk['z'])
        mark(k, 12); mark(k, 14, 'B')
    R2 = float(E('FB_RATE2', 2))
    def mkhooks(pairs):
        d = {}
        for g, f in pairs: d.setdefault(g, []).append(f)
        return {g: (lambda fs=fs: [f() for f in fs]) for g, fs in d.items()}
    phaseC_bases(k)
    if not hiw:
        h = [int(x) for x in E('FB_H01', '13,6,14,11,18').split(',')]
        assert h[0] >= 8 and h[2] >= h[0]
        hk = mkhooks(zip(h, [readB, statloads, startC, normalize, sig]))
        gemm_loop(k, lg, dma, 0, 20, reads, mk([2], False), lambda g: -1, 1000, R2, hooks=hk)
        if 20 in hk: hk[20]()
        gelu(2, 2)
        if 21 in hk: hk[21]()
        k(f's_lshl_b32 s34, s20, 3\ns_add_u32 s34, s34, {Z1L}')
        z1out(2, 's34')
        while dma.q: dma.one()
        k(f'v_and_b32 v2, 31, v1\nv_lshlrev_b32 v2, 7, v2\ns_lshl_b32 s30, s30, 7\ns_add_u32 s30, s30, {F2:#x}')
        poll(k, vm, 2, 's30')
        k('s_barrier')
        mark(k, 13)
        for s_ in range(NPRO):
            for hk_ in range(2):
                for jf in range(2):
                    k(f's_add_u32 s27, s21, {hk_*32768 + jf*ZS + s_*2048}\ns_add_u32 m0, s56, {s_*16384 + hk_*8192 + jf*2048}')
                    for hf in range(2): k(f'buffer_load_dwordx4 v5, s[8:11], s27 offen offset:{hf*1024} sc1 lds')
            if s_ == 0: stg_read(dma, lg, 6, False); stg_read(dma, lg, 7, False)
    else:
        h = [int(x) for x in E('FB_H23', '3,11,7,12,10,14').split(',')]
        assert h[1] >= 8 and h[3] >= h[1]
        hk = mkhooks(zip(h, [barX, readB, statloads, startC, normalize, sig]))
        gemm_loop(k, lg, dma, 0, 20, reads, mk([1, 2], False), lambda g: -1, 1000, 2*R2, hooks=hk)
        lg.all()
        YP = int(E('FB_YP', 1))
        if YP == 0: k('s_barrier')
        gelu(1, 2)
        while dma.q: dma.one()
        if YP == 1: k('s_barrier')
        k(f's_lshl_b32 s34, s20, 10\ns_add_u32 s34, s34, {Z1L+1024}')
        z1out(1, 's34')
        gelu(2)
        k('s_add_u32 s34, s34, 8')
        z1out(2, 's34')
        stg_read(dma, lg, 6); stg_read(dma, lg, 7)
        mark(k, 15, 'B')
    lg.all()

NPRO = int(E('FC_NPRO', 4)); P1S = int(E('FD_P1S', 0))
def phaseC_bases(k):
    k(f's_mul_i32 s21, s18, 6\ns_add_u32 s21, s21, s20\ns_mul_i32 s21, s21, {ZS}\ns_lshl_b32 s36, s19, 15\ns_add_u32 s21, s21, s36\ns_add_u32 s21, s21, {WS_Z2:#x}')
    k(f's_add_u32 s54, s21, {4*ZS}\ns_mul_i32 s36, s20, {ZS}\ns_add_u32 s21, s21, s36\ns_lshl_b32 s56, s16, 12')

WOB = [((17+c) % 7)*16384 for c in range(7)] + [114688]
def waddr(q):
    o = WOB[q//16] + (q % 16)*1024
    return f'v5 offset:{o}' if o < 61440 else f'v6 offset:{o-61440}'

def flag_store(k, soff):
    L = k.lab('sig')
    k(f's_cmp_lg_u32 s16, 0\ns_cbranch_scc1 {L}')
    k('v_mov_b32 v2, 0\nv_mov_b32 v3, s6\ns_mov_b64 exec, 1')
    k(f'buffer_store_dword v3, v2, s[8:11], {soff} offen sc1')
    k('s_mov_b64 exec, -1')
    k(f'{L}:')

def phaseCD(k):
    vm = Cnt(k, 'vmcnt', 63); lg = Cnt(k, 'lgkmcnt', 15)
    dma = Dma(k, vm)
    NS = 7; RED = 122880
    k(f's_mul_i32 s22, s18, 122880\ns_add_u32 s22, s22, {WS_WO:#x}\ns_lshr_b32 s25, s56, 1\ns_add_u32 s26, s22, s25\ns_add_u32 s22, s22, s56')
    mark(k, 0, 'C')
    GS = [int(x) for x in E('FC_GS', '0,1,2,4,6,8,10,12,14,16,17,18,19,20,21,22,23').split(',')]
    grp = lambda st: max(i for i, f in enumerate(GS) if f <= st)
    def freeat(X):
        c = [i for i, f in enumerate(GS) if f >= X+2]
        return c[0] if c else 99
    for s_ in range(NPRO): vm.n += 8; dma.tok[grp(s_)] = vm.n
    for s_ in range(NPRO, 24):
        sl = s_ % NS; af = freeat(s_ - NS) if s_ >= NS else 0
        assert af < grp(s_)
        for q in range(4):
            if s_ < 16:
                jf, hf = q//2, q % 2
                pre = [f's_add_u32 s27, s21, {jf*ZS + (s_ % int(E("X_ZM", 99)))*2048}', f's_add_u32 m0, s56, {sl*16384 + jf*2048}'] if hf == 0 else []
                off = hf*1024
            else:
                pre = [f's_add_u32 s27, s54, {(s_-16)*4096}' if not E('X_ZM') else f's_add_u32 s27, s21, {(s_ % 2)*4096}', f's_add_u32 m0, s56, {sl*16384}'] if q == 0 else []
                off = q*1024
            dma.add(pre, f'buffer_load_dwordx4 v5, s[8:11], s27 offen offset:{off} sc1 lds', grp(s_), af)
    for c in range(7):
        for q in range(4):
            pre = [f's_add_u32 s27, s22, {c*16384}', f's_add_u32 m0, s56, {WOB[c]}'] if q == 0 else []
            dma.add(pre, f'buffer_load_dwordx4 v5, s[8:11], s27 offen offset:{q*1024} sc1 lds', 150+c, freeat(17+c))
    for q in range(2):
        pre = [f's_add_u32 s27, s26, {7*16384}', f's_add_u32 m0, s25, {WOB[7]}'] if q == 0 else []
        dma.add(pre, f'buffer_load_dwordx4 v5, s[8:11], s27 offen offset:{q*1024} sc1 lds', 157, 99)
    ZA = 16
    k('v_bfe_u32 v2, v1, 2, 2\nv_and_b32 v3, 1, v8\nv_lshl_add_u32 v2, v3, 2, v2\nv_lshrrev_b32 v3, 1, v8\nv_lshl_add_u32 v2, v3, 4, v2')
    k('v_and_b32 v3, 3, v1\nv_lshlrev_b32 v3, 3, v3\nv_lshl_add_u32 v2, v2, 5, v3')
    k('s_lshl_b32 s36, s19, 13')
    k(f'v_add_u32 v{ZA}, s36, v2\nv_add_u32 v{ZA+1}, 0x10000, v{ZA}')
    k('s_lshl_b32 s23, s20, 1\ns_add_u32 s23, s23, s19')
    k('s_lshl_b32 s36, s17, 2\ns_add_u32 s24, s36, s23')
    k('s_lshl_b32 s36, s24, 5')
    k('v_lshl_add_u32 v2, v7, 1, s36')
    BS = 20
    tB = vm.issue(f'global_load_ushort v{BS}, v2, s[38:39]')
    k(f's_mul_i32 s36, s16, 6144\ns_add_u32 s36, s36, {RED}\ns_xor_b32 s35, s16, 2\ns_mul_i32 s35, s35, 6144\ns_add_u32 s35, s35, {RED}')
    k('v_add_u32 v11, s36, v5\nv_add_u32 v12, s35, v5\nv_add_u32 v6, 61440, v5')
    k(f's_mul_i32 s36, s23, 3072\ns_add_u32 s36, s36, {Z1L}\nv_add_u32 v19, s36, v5')
    k(f's_mul_i32 s30, s24, 24576\ns_lshl_b32 s31, s18, 10\ns_add_u32 s30, s30, s31\ns_add_u32 s30, s30, {WS_P:#x}\ns_add_u32 s29, s30, 16384\ns_add_u32 s30, s30, s31')
    k(f's_lshl_b32 s28, s17, 10\ns_lshl_b32 s31, s18, 7\ns_add_u32 s31, s31, s28\ns_add_u32 s33, s31, {F3A:#x}\ns_add_u32 s31, s31, {F3:#x}')
    k(f's_add_u32 s34, s28, {F3A:#x}\ns_add_u32 s28, s28, {F3:#x}')
    k('v_and_b32 v13, 7, v1\nv_lshlrev_b32 v13, 7, v13')
    FR = 68
    def accr(ft, tau): return 116 + 16*tau + 4*ft if ft < 4 else 148 + 8*tau + 4*(ft-4)
    lg.all()
    mark(k, 1, 'C')
    dma.sync(0)
    mark(k, 2, 'C')
    def reads(g):
        s_, hf = g // 2, g % 2; sl = s_ % NS; b = FR + 16*(g % 3)
        ar = ZA + sl//4; off = (sl % 4)*16384
        out = []
        for q in range(4):
            o = off + (q*2048 + hf*1024 if g < 32 else (q % 2)*4096 + (2*hf + q//2)*1024)
            out += [f'ds_read_b64_tr_b16 {v(b+4*q,2)}, v{ar} offset:{o}', f'ds_read_b64_tr_b16 {v(b+4*q+2,2)}, v{ar} offset:{o+256}']
        return out
    def mfmas(g):
        b = FR + 16*(g % 3); out = []
        for q in range(4):
            ft, ks = (q, g) if g < 32 else (4 + q % 2, 2*(g-32) + q//2)
            if E('X_M32'):
                d = 116 + 16*(q//2) if g < 32 else 148
                z = (g == 0 and q % 2 == 0) or (g == 32 and q == 0)
                out.append(f'v_mfma_f32_32x32x16_bf16 {v(d,16)}, {v(b+4*q,4)}, {wreg(ks//4, 8*(ks % 4)+4*(q % 2))}, {"0" if z else v(d,16)}')
                continue
            for tau in range(2):
                d = accr(ft, tau)
                out.append(f'{MF} {v(d,4)}, {v(b+4*q,4)}, {wreg(ks//4, 8*(ks % 4)+4*tau)}, {"0" if ks == 0 else v(d,4)}')
        return out
    ZR = 24; TT = 36
    tk = {}
    def z1rd():
        for q in range(3): lg.issue(f'ds_read_b128 {v(ZR+4*q,4)}, v19 offset:{1024*q}')
        vm.wait(tB)
        k(f'v_lshlrev_b32 v{BS}, 16, v{BS}')
    def redw(fts):
        for ft in fts: lg.issue(f'ds_write_b128 v11, {v(accr(ft,1),4)} offset:{1024*ft}')
        lg.all()
    def redr(fts):
        for ft in fts: tk[ft] = lg.issue(f'ds_read_b128 {v(accr(ft,1),4)}, v12 offset:{1024*ft}')
    def epi(fts):
        for ft in fts:
            d = accr(ft, 0); z = ZR + 2*ft; P = accr(ft & ~1, 0) + 2*(ft % 2)
            lg.wait(tk[ft])
            for hp in range(2):
                k(f'v_pk_add_f32 {v(d+2*hp,2)}, {v(d+2*hp,2)}, {v(accr(ft,1)+2*hp,2)}')
                k(f'v_lshlrev_b32 v{TT+2*hp}, 16, v{z+hp}\nv_and_b32 v{TT+2*hp+1}, 0xffff0000, v{z+hp}')
                k(f'v_pk_add_f32 {v(d+2*hp,2)}, {v(d+2*hp,2)}, {v(BS,2)} op_sel_hi:[1,0]')
                k(f'v_pk_mul_f32 {v(d+2*hp,2)}, {v(d+2*hp,2)}, {v(TT+2*hp,2)}')
            k(f'v_cvt_pk_bf16_f32 v{P}, v{d}, v{d+1}\nv_cvt_pk_bf16_f32 v{P+1}, v{d+2}, v{d+3}')
            if ft % 2:
                tk['p'] = vm.issue(f'buffer_store_dwordx4 {v(P-2,4)}, v5, s[8:11], ' + (f's30 offen offset:{(ft//2)*1024} sc1' if ft < 4 else 's29 offen sc1'))
    def issue_poll(sreg): tk['f'] = vm.issue(f'buffer_load_dword v14, v13, s[8:11], {sreg} offen sc1')
    def check_poll(sreg):
        Lo = k.lab('fok')
        vm.wait(tk['f'])
        k(f'v_cmp_ne_u32 vcc, s6, v14\ns_cbranch_vccz {Lo}')
        poll(k, Cnt(k, 'vmcnt', 63), 13, sreg)
        k(f'{Lo}:')
    k(f's_lshl_b32 s23, s17, 2\ns_add_u32 s23, s23, s16\ns_mul_i32 s32, s23, 24576\ns_add_u32 s32, s32, {WS_P:#x}')
    PFR = list(range(116, 148, 4)) + list(range(164, 180, 4)) + list(range(68, 116, 4)); ACC = 232
    pt = []
    def pld(lim):
        g = len(pt)
        if g >= lim: return False
        if g % 4 == 0 and g: k('s_add_u32 s32, s32, 4096')
        pt.append(vm.issue(f'buffer_load_dwordx4 {v(PFR[g],4)}, v5, s[8:11], s32 offen offset:{(g % 4)*1024} sc1'))
        return True
    k('s_mov_b32 s24, s32')
    h = [int(x) for x in E('FC_H', '32,33,34,38,46').split(',')]
    assert h[0] >= 32 and h[0] % 2 == 0 and h[3] % 2 == 0 and (h[0]+2)//2 in GS and (h[3]+2)//2 in GS
    hooks = {30: z1rd, h[0]: lambda: redw(range(4)), h[1]: lambda: redr(range(4)), h[2]: lambda: epi(range(4)),
             h[3]: lambda: vm.wait(tk['p']), h[3]+1: lambda: flag_store(k, 's33'), h[4]: lambda: issue_poll('s34')}
    if P1S:
        for q in (h[3], h[3]+1, h[4]): del hooks[q]
        for g in range(int(E('FD_G1', 44)), 48): hooks[g] = lambda: [pld(12) for _ in range(int(E('FD_N1', 2)))]
    for i in range(1, 4): hooks[8*i] = (lambda i=i: mark(k, 2+i, 'C'))
    dma.novm = int(E('X_NOVM', 0)); dma.nobar = int(E('X_NOBAR', 0)); dma.nodma = int(E('X_NODMA', 0))
    gemm_loop(k, lg, dma, 0, 48, reads, mfmas, lambda g: grp(g//2), 1000, float(E('FC_RATE', 3)), hooks=hooks)
    while dma.ready(): dma.one()
    mark(k, 14); mark(k, 11, 'C'); mark(k, 0, 'D')
    SG = int(E('FD_SG', 0))
    P0 = int(E('FD_P0', 6))
    for ft in (4, 5): lg.issue(f'ds_write_b128 v11, {v(accr(ft,1),4)} offset:{1024*ft}')
    if P0:
        if not P1S: check_poll('s34')
        while len(pt) < P0: pld(16)
    if SG >= 0: vm.wait(dma.tok[152])
    lg.all()
    k('s_barrier'); dma.bar = 99
    dma.upto(154)
    redr((4, 5))
    epi((4, 5))
    mark(k, 1, 'D')
    if not P0 and not P1S: check_poll('s34')
    while len(pt) < int(E('FD_PRE', 8)): pld(16)
    k('s_mul_i32 s33, s23, 20480\ns_mul_i32 s34, s18, 160\ns_add_u32 s33, s33, s34')
    k('v_mul_u32_u24 v9, 1280, v7\nv_lshl_add_u32 v10, v8, 3, v9')
    k('v_and_b32 v3, 1, v8\nv_lshl_add_u32 v9, v3, 5, v9\nv_lshrrev_b32 v3, 1, v8\nv_lshl_add_u32 v9, v3, 4, v9')
    mark(k, 2, 'D')
    ft = {}
    def rd(g): return [f'ds_read_b128 {a(20*(g % 3)+4*j,4)}, {waddr(5*g+j)}' for j in range(5)]
    for g in range(2):
        for r in rd(g): ft[g] = lg.issue(r)
    GP = int(E('FD_GP', 10)); B1 = int(E('FD_B1', 5)); B2 = int(E('FD_B2', 13))
    assert B1 <= 7 and B2 <= 14
    def pcheck(g0, g1):
        Lr = k.lab('p2r'); Lo = k.lab('p2o')
        while pld(g1): pass
        vm.wait(pt[g1-1])
        k('s_mov_b32 s37, 0')
        k(f'{Lr}:')
        regs = [PFR[g]+q for g in range(g0, g1) for q in range(4)]
        k(f'v_max3_u32 v2, v{regs[0]}, v{regs[1]}, v{regs[2]}\nv_max3_u32 v3, v{regs[3]}, v{regs[4]}, v{regs[5]}')
        for q in range(6, len(regs), 2): k(f'v_max3_u32 v{2 + (q//2) % 2}, v{2 + (q//2) % 2}, v{regs[q]}, v{regs[q+1]}')
        k('v_max_u32 v2, v2, v3\nv_cmp_eq_u32 vcc, -1, v2')
        k(f's_cbranch_vccz {Lo}')
        k(f's_add_u32 s37, s37, 1\ns_cmp_gt_u32 s37, {SPIN//8}\ns_cbranch_scc1 {Lo}')
        for g in range(g0, g1):
            if g % 4 == 0: k(f's_add_u32 s36, s24, {g*1024}')
            k(f'buffer_load_dwordx4 {v(PFR[g],4)}, v5, s[8:11], s36 offen offset:{(g % 4)*1024} sc1')
        k('s_waitcnt vmcnt(0)')
        k(f's_branch {Lr}')
        k(f'{Lo}:')
    CK = [int(x) for x in E('FD_CK', '0,4,8,12,16,20,24' if P1S else '16,20,24').split(',')]
    for g in range(24):
        if g == B1:
            vm.wait(dma.tok[154]); k('s_barrier')
            mark(k, 15); mark(k, 3, 'D')
        if g == B2:
            while dma.q: dma.one()
            vm.wait(dma.tok[157]); k('s_barrier')
        if g == 16: mark(k, 6, 'D')
        if g in CK: pcheck(g, CK[CK.index(g)+1])
        if g == 16: mark(k, 7, 'D')
        vm.wait(pt[g])
        lg.wait(ft[g])
        if g in (0, 8): mark(k, 4+g//8, 'D')
        rr = rd(g+2) if g+2 < 24 else []
        for j in range(5):
            if j in (0, 3) and len(pt) >= 16: dma.pre()
            k(f'{MF} {v(ACC+4*j,4)}, {a(20*(g % 3)+4*j,4)}, {v(PFR[g],4)}, {"0" if g == 0 else v(ACC+4*j,4)}')
            if j in (0, 3):
                if dma.pend is not None: dma.fire()
                else: pld(16 if g < GP else 24)
            if j == 1 and g >= GP: pld(24)
            if rr: ft[g+2] = lg.issue(rr.pop(0))
    TT = 36
    mark(k, 8, 'D')
    OST = E('F_OST', '')
    for j in range(5):
        d = ACC + 4*j; P = ACC + 8*(j//2) + 2*(j % 2)
        for hp in range(2):
            k(f'v_lshlrev_b32 v{TT+2*hp}, 16, v{RES+2*j+hp}\nv_and_b32 v{TT+2*hp+1}, 0xffff0000, v{RES+2*j+hp}')
            k(f'v_pk_add_f32 {v(d+2*hp,2)}, {v(d+2*hp,2)}, {v(TT+2*hp,2)}')
        k(f'v_cvt_pk_bf16_f32 v{P}, v{d}, v{d+1}\nv_cvt_pk_bf16_f32 v{P+1}, v{d+2}, v{d+3}')
        if j % 2:
            k(f'v_permlane16_swap_b32 v{P-2}, v{P}\nv_permlane16_swap_b32 v{P-1}, v{P+1}')
            k(f'buffer_store_dwordx4 {v(P-2,4)}, v9, s[40:43], s33 offen offset:{32*(j-1)} {OST}')
        elif j == 4:
            k(f'buffer_store_dwordx2 {v(P,2)}, v10, s[40:43], s33 offen offset:128 {OST}')

def helper0(k, vm):
    lg = Cnt(k, 'lgkmcnt', 15)
    k('v_lshrrev_b32 v2, 2, v1\nv_and_b32 v3, 3, v1\nv_mul_u32_u24 v2, 160, v2\nv_lshl_add_u32 v2, v3, 3, v2\ns_lshl_b32 s27, s16, 5\nv_add_u32 v57, s27, v2')
    tk = []
    for p in range(5):
        lg.issue(f'ds_read_b64_tr_b16 {v(12+4*p,2)}, v57 offset:{p*5120}')
        tk.append(lg.issue(f'ds_read_b64_tr_b16 {v(14+4*p,2)}, v57 offset:{p*5120+2560}'))
    for r in range(4): k(f'v_mov_b32 v{48+r}, 0x3f803f80')
    k('s_and_b32 s45, s44, 3\ns_and_b32 s46, s44, -4\ns_add_u32 s46, s46, s16')
    k(f's_mul_i32 s47, s46, 20\ns_mul_i32 s50, s45, 5\ns_add_u32 s47, s47, s50\ns_lshl_b32 s47, s47, 10\ns_add_u32 s47, s47, {WS_W1:#x}\ns_add_u32 s50, s47, 4096')
    for p in range(5):
        lg.wait(tk[p])
        k(f'{MF} v[44:47], {v(12+4*p,4)}, v[48:51], {"0" if p == 0 else "v[44:47]"}')
        vm.issue(f'buffer_store_dwordx4 {v(12+4*p,4)}, v5, s[8:11], ' + (f's47 offen offset:{p*1024} sc1' if p < 4 else 's50 offen sc1'))
    k(f's_mul_i32 s47, s45, 6144\ns_lshl_b32 s50, s46, 6\ns_add_u32 s47, s47, s50\ns_add_u32 s47, s47, {WS_CS:#x}')
    k('v_lshlrev_b32 v2, 4, v8')
    k('s_mov_b32 exec_lo, 0x00010001\ns_mov_b32 exec_hi, 0x00010001')
    tS = vm.issue('buffer_store_dwordx4 v[44:47], v2, s[8:11], s47 offen sc1')
    k('s_mov_b64 exec, -1')
    for p in range(3):
        vm.issue(f'global_load_dwordx4 {v(164+4*p,4)}, v191, s[48:49]')
        if p < 2: k(f'v_add_u32 v191, {32*1280}, v191')
    k(f's_lshl_b32 s47, s44, 7\ns_add_u32 s47, s47, {F0B:#x}')
    mark(k, 12, 'H')
    signal(k, vm, 's47', tS)

def helper1(k):
    for p in range(3): k(f'ds_write_b128 v56, {v(164+4*p,4)} offset:{p*5120}')
    k('s_lshr_b32 s47, s44, 3\ns_lshl_b32 s47, s47, 2\ns_add_u32 s47, s47, s16\ns_mul_i32 s48, s47, 52\ns_lshr_b32 s48, s48, 8\ns_mul_i32 s49, s48, 5\ns_sub_u32 s49, s47, s49')
    k(f's_and_b32 s47, s44, 7\ns_mul_i32 s50, s47, 5120\ns_mul_i32 s48, s48, 120\ns_add_u32 s47, s48, s49\ns_lshl_b32 s47, s47, 10\ns_add_u32 s47, s47, {WS_WO:#x}\ns_add_u32 s47, s47, s50\ns_add_u32 s51, s47, {16*5120}\ns_add_u32 s47, s47, s50')
    k('s_waitcnt lgkmcnt(0)\ns_barrier')
    for p in range(3):
        k(f'ds_read_b64_tr_b16 {v(12+4*p,2)}, v57 offset:{p*5120}\nds_read_b64_tr_b16 {v(14+4*p,2)}, v57 offset:{p*5120+2560}')
    k('s_waitcnt lgkmcnt(0)\ns_barrier')
    L = k.lab('nwo')
    k(f's_cmp_ge_u32 s44, 80\ns_cbranch_scc1 {L}')
    for p in range(3):
        k(f'buffer_store_dwordx4 {v(12+4*p,4)}, v5, s[8:11], s{47 if p < 2 else 51} offen sc1')
        if p == 0: k('s_add_u32 s47, s47, 5120')
    k(f'{L}:')

def gen_ks():
    k = Kern(NAME, 256, 256, 163840)
    k.short = 'ks'
    Lend = 'Lks_end'
    k(f's_cmp_ge_u32 s2, 256\ns_cbranch_scc1 {Lend}')
    stamp_begin(k)
    k('s_load_dwordx16 s[44:59], s[0:1], 0')
    k('s_load_dwordx2 s[6:7], s[0:1], 112')
    k('s_load_dwordx4 s[28:31], s[0:1], 96')
    k('s_load_dwordx8 s[20:27], s[0:1], 64')
    k('s_memrealtime s[4:5]')
    k('s_getpc_b64 s[18:19]')
    k('Lks_pc:')
    k(f's_sub_u32 s18, s18, Lks_pc-{NAME}\ns_subb_u32 s19, s19, 0')
    k('s_lshr_b32 s17, s2, 3\ns_lshl_b32 s17, s17, 11')
    k(f'v_lshrrev_b32 v2, 4, v0\nv_lshlrev_b32 v2, 7, v2\nv_add_u32 v2, s17, v2\nv_min_u32 v2, Lcode_end-{NAME}-4, v2')
    k('global_load_dword v239, v2, s[18:19]')
    k('v_lshrrev_b32 v5, 6, v0')
    k('v_readfirstlane_b32 s16, v5')
    k('v_and_b32 v1, 63, v0\nv_lshlrev_b32 v5, 4, v1\nv_and_b32 v7, 15, v1\nv_lshrrev_b32 v8, 4, v1')
    k('v_lshrrev_b32 v2, 5, v0\nv_and_b32 v3, 31, v0\nv_lshlrev_b32 v3, 3, v3')
    k('v_mul_u32_u24 v50, 1280, v2\ns_mul_i32 s3, s2, 10240\nv_add3_u32 v50, v50, v3, s3')
    k(f'v_mul_u32_u24 v51, 1344, v2\nv_add_u32 v51, v51, v3\nv_add_u32 v51, {LNB}, v51')
    ln1_addr(k)
    k('s_lshl_b32 s3, s2, 2\ns_add_u32 s3, s3, s16')
    k('s_mul_i32 s17, s3, 384\nv_lshl_add_u32 v2, v1, 1, s17\ns_lshl_b32 s17, s3, 1\nv_mov_b32 v3, s17')
    for r in list(range(PR, PR+13)) + [AUX, AP0, AST, 190, 191, 132, 133, 134, 135]: k(f'v_mov_b32 v{r}, 0')
    k('s_lshl_b32 s34, s3, 1\ns_and_b32 s34, s34, -4')
    k('s_waitcnt lgkmcnt(0)')
    L = k.lab('nnw')
    k(f's_cmp_lg_u32 s3, 0\ns_cbranch_scc1 {L}')
    k('s_or_b32 s4, s4, 1\nv_mov_b32 v4, 0\nv_mov_b32 v6, s4\ns_mov_b64 exec, 1')
    k('global_store_dword v4, v6, s[30:31] sc1')
    k('s_mov_b64 exec, -1')
    k(f'{L}:')
    for q in range(5): k(f'global_load_dwordx2 {v(12+2*q,2)}, v50, s[44:45] offset:{q*256}')
    mark(k, 0)
    k('s_cmp_ge_u32 s2, 160\ns_cbranch_scc1 Lks_h0')
    def common_setup():
        srd(k, 8, 6, WS_SIZE); srd(k, 12, 22, 2048*4096); srd(k, 40, 28, 2048*1280)
        k('s_mov_b64 s[32:33], s[30:31]')
        k('s_mov_b64 s[38:39], s[24:25]')
        cb = MAPB
        k(f's_and_b32 s17, s2, 7\ns_lshr_b32 s17, s17, {3-cb}\ns_lshl_b32 s17, s17, {5-cb}\ns_lshr_b32 s18, s2, {3+cb}\ns_add_u32 s17, s17, s18')
        k(f's_and_b32 s18, s2, {(1 << (3-cb))-1}\ns_lshl_b32 s18, s18, {cb}\ns_lshr_b32 s19, s2, 3\ns_and_b32 s19, s19, {(1 << cb)-1}\ns_add_u32 s18, s18, s19')
        k('s_lshr_b32 s19, s16, 1\ns_and_b32 s20, s16, 1')
        k('s_lshl_b32 s25, s16, 1\ns_add_u32 s26, s16, 2\ns_cmp_lt_u32 s16, 2')
        k('s_cselect_b32 s22, s25, s26\ns_add_u32 s22, s22, 48')
        k('s_add_u32 s26, s25, 49\ns_sub_u32 s27, s25, 2\ns_cmp_lt_u32 s16, 2\ns_cselect_b32 s23, s26, s27')
        k('s_sub_u32 s27, s25, 1\ns_cmp_lt_u32 s16, 2\ns_cselect_b32 s24, s16, s27')
        k('s_mul_i32 s25, s18, 6')
        for r in (22, 23, 24): k(f's_add_u32 s{r}, s{r}, s25\ns_lshl_b32 s{r+35}, s{r}, 6\ns_add_u32 s{r+35}, s{r+35}, {WS_CS:#x}\ns_mul_i32 s{r}, s{r}, 20480\ns_add_u32 s{r}, s{r}, {WS_W1:#x}')
        k(f's_lshl_b32 s29, s17, 12\ns_add_u32 s29, s29, {WS_ST:#x}')
        k('s_lshl_b32 s27, s18, 9\ns_add_u32 s27, s27, s29\ns_lshl_b32 s26, s16, 7\ns_add_u32 s27, s27, s26')
        k('v_lshlrev_b32 v2, 3, v7\nv_mov_b32 v10, -1.0\nv_mov_b32 v11, -1.0')
        k('buffer_store_dwordx2 v[10:11], v2, s[8:11], s27 offen sc1')
    k('global_load_short_d16_hi v68, v3, s[54:55]')
    for g in range(3):
        for i in range(4): k(f'global_load_short_d16_hi v{PR+4*g+i}, v2, s[{46+2*i}:{47+2*i}] offset:{128*g}')
    k('s_load_dword s35, s[56:57], s34')
    PFS = int(E('C_PFS', 0))
    k('s_mov_b64 s[4:5], s[20:21]\ns_mov_b64 s[36:37], s[26:27]')
    PFW = int(E('C_PFW', 0))
    def pfw_addr():
        k('v_min_u32 v2, 23, v1\nv_lshlrev_b32 v2, 7, v2\ns_mul_i32 s27, s3, 3072\nv_add_u32 v2, s27, v2')
        k('v_min_u32 v3, 11, v1\nv_lshlrev_b32 v3, 7, v3\ns_mul_i32 s27, s3, 1536\nv_add_u32 v3, s27, v3')
    if PFW == 2:
        pfw_addr(); k('global_load_dword v190, v2, s[4:5]\nglobal_load_dword v191, v3, s[36:37]')
    common_setup()
    stg_setup(k, 132)
    A0 = int(E('C_A0', 0))
    r = Rec(); conv_early(r)
    if E('C_LATE', '1') == '0': conv_late(r)
    if E('C_BL', '1') == '0': conv_bands(r)
    dq = []
    if A0:
        for q in range(4):
            for j in range(4):
                dq.append(f's_add_u32 s31, s28, {(q//2)*256 + (q % 2)*65536}\ns_add_u32 m0, s26, {q*4096 + j*1024}\nbuffer_load_dwordx4 v{132+j}, s[12:15], s31 offen lds')
    for n, x in enumerate(r.L):
        if n % int(E('C_A0R', 4)) == 0 and n >= int(E('C_A0S', 0)) and dq: k(dq.pop(0))
        k(x)
    for x in dq: k(x)
    if PFW == 1: pfw_addr()
    k(f's_waitcnt vmcnt({14 + 2*(PFW == 2) + 16*A0})')
    if PFW == 1: k('global_load_dword v190, v2, s[4:5]\nglobal_load_dword v191, v3, s[36:37]')
    k('s_branch Lks_ln')
    k('Lks_h0:')
    k('s_mov_b64 s[46:47], s[20:21]\ns_mov_b64 s[48:49], s[26:27]\ns_sub_u32 s44, s2, 160')
    common_setup()
    f0b_addr(k)
    k('v_lshrrev_b32 v2, 3, v0\nv_and_b32 v3, 7, v0\nv_lshlrev_b32 v3, 4, v3')
    k(f's_and_b32 s45, s44, 3\ns_mul_i32 s45, s45, {160*3072}\ns_lshr_b32 s27, s44, 2\ns_lshl_b32 s27, s27, 7\ns_add_u32 s45, s45, s27')
    k('v_mul_u32_u24 v4, 3072, v2\nv_add3_u32 v190, v4, v3, s45')
    k(f's_min_u32 s27, s44, 79\ns_and_b32 s45, s27, 7\ns_mul_i32 s45, s45, {96*1280}\ns_lshr_b32 s27, s27, 3\ns_lshl_b32 s27, s27, 7\ns_add_u32 s45, s45, s27')
    k('v_mul_u32_u24 v4, 1280, v2\nv_add3_u32 v191, v4, v3, s45')
    k('v_mul_u32_u24 v56, 160, v2\nv_add_u32 v56, v56, v3')
    k('s_waitcnt vmcnt(1)')
    k('Lks_ln:')
    mark(k, 1)
    ln1(k)
    k('s_cmp_ge_u32 s2, 160\ns_cbranch_scc1 Lks_h1')
    k('s_and_b32 s50, s3, 1\ns_xor_b32 s50, s50, 1\ns_lshl_b32 s50, s50, 4\ns_lshl_b32 s51, s35, s50\ns_lshr_b32 s51, s51, 16')
    k(f's_waitcnt vmcnt({7 + 2*bool(PFW) + 16*A0})')
    if PFS:
        k('v_lshrrev_b32 v2, 2, v1\nv_lshlrev_b32 v2, 11, v2\nv_and_b32 v3, 3, v1\nv_lshl_add_u32 v2, v3, 7, v2')
        for j in range(PFS):
            k(f's_add_u32 s45, s3, {640*j}\ns_min_u32 s45, s45, 1023')
            k('s_lshr_b32 s27, s45, 8\ns_lshl_b32 s27, s27, 9\ns_and_b32 s45, s45, 255\ns_lshl_b32 s45, s45, 15\ns_add_u32 s45, s45, s27')
            k(f'buffer_load_dword v{186+j}, v2, s[12:15], s45 offen')
    def sig0(nsl):
        k(f's_waitcnt vmcnt({PFS + nsl})')
        get_nonce(k)
        signal(k, Cnt(k, 'vmcnt', 63), 's30')
        mark(k, 2)
    kgen(k, sig0)
    phaseA(k)
    k('s_branch Lks_B')
    k('Lks_h1:')
    k('s_waitcnt vmcnt(5)')
    get_nonce(k)
    vm = Cnt(k, 'vmcnt', 63)
    for p in range(5):
        vm.issue(f'global_load_dwordx4 {v(144+4*p,4)}, v190, s[46:47]')
        if p < 4: k(f'v_add_u32 v190, {32*3072}, v190')
    mark(k, 7, 'H')
    k('s_waitcnt vmcnt(5)')
    mark(k, 8, 'H')
    signal(k, vm, 's30', 0)
    mark(k, 2); mark(k, 9, 'H')
    k('s_waitcnt vmcnt(0)')
    mark(k, 10, 'H')
    for p in range(5): k(f'ds_write_b128 v56, {v(144+4*p,4)} offset:{p*5120}')
    k('s_waitcnt lgkmcnt(0)\ns_barrier')
    k('s_sub_u32 s44, s2, 160')
    mark(k, 11, 'H')
    helper0(k, Cnt(k, 'vmcnt', 63))
    mark(k, 13, 'H')
    mark(k, 3)
    PFH = E('F_PFH', '2,0')
    def touch(js):
        for j in js:
            k(f's_lshl_b32 s45, s44, 2\ns_add_u32 s45, s45, s16\ns_add_u32 s45, s45, {384*j + int(E("F_PFB", 256))}\ns_min_u32 s45, s45, 1023')
            if LIN: k('s_lshl_b32 s45, s45, 13')
            else: k('s_lshr_b32 s46, s45, 8\ns_lshl_b32 s46, s46, 9\ns_and_b32 s45, s45, 255\ns_lshl_b32 s45, s45, 15\ns_add_u32 s45, s45, s46')
            k(f'buffer_load_dword v{100+j}, v99, s[12:15], s45 offen {E("F_PFF", "")}')
    n1, n2 = [int(x) for x in PFH.split(',')]
    LIN = int(E('F_LIN', 0))
    if LIN: k('v_lshlrev_b32 v99, 7, v1')
    else: k('v_lshrrev_b32 v2, 2, v1\nv_lshlrev_b32 v2, 11, v2\nv_and_b32 v3, 3, v1\nv_lshl_add_u32 v99, v3, 7, v2')
    touch(range(n1))
    vm = Cnt(k, 'vmcnt', 63); dma = Dma(k, vm); w1_items(dma, [0, 1])
    k(f's_mov_b32 s47, {F0B:#x}')
    poll(k, vm, [AB0, AB0+1], 's47')
    mark(k, 4)
    helper1(k)
    while dma.q: dma.one()
    touch(range(n1, n1+n2))
    stg_setup(k, 11)
    stg_items(dma, 0); stg_items(dma, 1)
    while dma.q: dma.one()
    k('s_waitcnt vmcnt(28)')
    k('Lks_B:')
    mark(k, 6)
    phaseB_setup(k)
    k(f's_lshl_b32 s36, s20, 8\ns_lshl_b32 s35, s16, 9\ns_add_u32 s35, s35, {PART}')
    k('v_lshlrev_b32 v9, 3, v1\nv_xor_b32 v25, s36, v9\nv_add_u32 v27, s35, v25')
    k('v_and_b32 v2, 3, v7\nv_bfe_u32 v3, v7, 2, 1\nv_lshl_add_u32 v2, v3, 3, v2\nv_bfe_u32 v3, v7, 3, 1\nv_lshl_add_u32 v2, v3, 2, v2')
    k('v_and_b32 v3, 1, v8\nv_lshl_add_u32 v2, v3, 4, v2\nv_lshlrev_b32 v2, 5, v2\nv_lshrrev_b32 v3, 1, v8\nv_lshl_add_u32 v26, v3, 4, v2')
    vm = Cnt(k, 'vmcnt', 63); dma = Dma(k, vm)
    k(f's_lshl_b32 s36, s17, 2\ns_add_u32 s36, s36, s16\ns_mul_i32 s36, s36, 24576\ns_lshl_b32 s35, s18, 10\ns_add_u32 s36, s36, s35\ns_add_u32 s36, s36, {WS_P+16384:#x}')
    for r in range(4): k(f'v_mov_b32 v{G+r}, -1')
    vm.issue(f'buffer_store_dwordx4 {v(G,4)}, v5, s[8:11], s36 offen sc1')
    if P1S:
        k('s_add_u32 s36, s36, s35\ns_sub_u32 s36, s36, 16384')
        for q in range(2): vm.issue(f'buffer_store_dwordx4 {v(G,4)}, v5, s[8:11], s36 offen offset:{q*1024} sc1')
    k('v_lshlrev_b32 v2, 4, v8')
    for p in range(1, 4): k(f'v_add_u32 v{HF+p}, {6144*p}, v2')
    for T_ in range(3):
        vm.issue(f'buffer_load_dwordx4 {v(CS+4*T_,4)}, v2, s[8:11], s{57+T_} offen sc1')
        for p in range(3): vm.issue(f'buffer_load_dwordx4 {v(AC[0]+12*T_+4*p,4)}, v{HF+1+p}, s[8:11], s{57+T_} offen sc1')
    w1_items(dma, [2], 0, range(T2E))
    while dma.q: dma.one()
    k('v_min_u32 v2, 39, v1\nv_lshrrev_b32 v3, 2, v2\nv_and_b32 v2, 3, v2\nv_lshl_add_u32 v2, v3, 4, v2\nv_lshlrev_b32 v2, 7, v2')
    k(f's_lshl_b32 s30, s16, 9\ns_add_u32 s30, s30, {F1:#x}')
    poll(k, vm, 2, 's30')
    mark(k, 7)
    k('s_cmp_ge_u32 s16, 2\ns_cbranch_scc1 Lks_Bhi')
    phaseB(k, False)
    k('s_branch Lks_C')
    k('Lks_Bhi:')
    phaseB(k, True)
    k('Lks_C:')
    phaseCD(k)
    mark(k, 9, 'D')
    stamp_end(k, 2)
    k(f'{Lend}:')
    k('s_endpgm')
    return k
```

```python
from common import *
GC = 0.7978845608028654
K1C = -2*GC*LOG2E
K2C = K1C*0.044715
def a(n, c=1): return 'a%d' % n if c == 1 else 'a[%d:%d]' % (n, n+c-1)
MF = 'v_mfma_f32_16x16x32_bf16'
E = os.environ.get
SPIN = 0x20000
F1, F2, F3, F0, F0B, F3A = [WS_FL + 0x8000*i for i in range(6)]
NAME = 'sequential_preLN__ssm_conv_s4d__mixer_gmlp__prompt_kernel'

def signal(k, vm, soff_expr, tok=None):
    k.nsig = getattr(k, 'nsig', 0) + 1
    if str(k.nsig) not in E('X_NODRAIN', '').split(','): vm.wait(vm.n if tok is None else tok)
    else: print('skip drain at signal', k.nsig, soff_expr)
    k('s_barrier')
    L = k.lab('sig')
    k(f's_cmp_lg_u32 s16, 0\ns_cbranch_scc1 {L}')
    k('v_mov_b32 v2, 0\nv_mov_b32 v3, s6')
    k('s_mov_b64 exec, 1')
    k(f'buffer_store_dword v3, v2, s[8:11], {soff_expr} offen sc1')
    k('s_mov_b64 exec, -1')
    k(f'{L}:')

def poll(k, vm, vaddrs, sreg, data=(3, 4)):
    if isinstance(vaddrs, int): vaddrs = [vaddrs]
    L = k.lab('poll'); Lo = k.lab('pok')
    k('s_mov_b32 s37, 0')
    k(f'{L}:')
    for q, va in enumerate(vaddrs): k(f'buffer_load_dword v{data[q]}, v{va}, s[8:11], {sreg} offen sc1')
    k(f's_add_u32 s37, s37, 1\ns_cmp_gt_u32 s37, {SPIN}')
    k(f's_cbranch_scc1 {Lo}')
    k('s_waitcnt vmcnt(0)')
    for q in range(len(vaddrs)):
        k(f'v_cmp_ne_u32 vcc, s6, v{data[q]}')
        k(f's_cbranch_vccnz {L}')
    k(f'{Lo}:')
    k('s_waitcnt vmcnt(0)')
    vm.done = vm.n

def w1_items(dma, tiles, stage=0, blocks=range(5)):
    for T in tiles:
        for ks4 in blocks:
            for q in range(4):
                ks = 4*ks4 + q
                dma.add([f's_add_u32 s27, s{22+T}, {ks4*4096}'] if q == 0 else [], f'buffer_load_dwordx4 {a(80*T+4*ks,4)}, v5, s[8:11], s27 offen offset:{q*1024} sc1', stage)

KGS = 288*128; UXB = KGS + 4*4608
BND = 156; KPT = 152
AF = 244; AG = 248; AXD = 249; AST = 250; XD = 240
AK0, AK1, AQ, AUX, AP0, PD0, AB0 = 251, 252, 253, 183, 184, 185, 254
PR = 56; IDX = 132; KW = 140; KR = 144; KCW = 145

def conv_bands(k):
    k('v_lshlrev_b32 v6, 3, v8')
    bands = [(-5, -3, -16), (-10, -6, -16), (-13, -11, -16), (-18, -14, -24), (-11, -5, -16), (-20, -12, -24), (12-16, 13-16, -16)]
    for bi, (lo, hi, e0) in enumerate(bands + [(0, 0, 0)]):
        dst = BND + 4*bi if bi < 6 else KPT if bi == 6 else XD
        msk = ((1 << (hi-lo+1)) - 1) << (lo - e0)
        if bi == 7: msk = 0x10001
        k(f'v_mov_b32 v9, {msk:#x}\nv_lshlrev_b32 v9, v7, v9\nv_lshrrev_b32 v9, v6, v9')
        k('v_and_b32 v10, 0xaa, v9\nv_and_b32 v9, 0x55, v9\nv_lshl_or_b32 v9, v10, 15, v9')
        for q in range(4):
            if q: k(f'v_lshrrev_b32 v10, {2*q}, v9')
            k(f'v_and_b32 v{dst+q}, 0x10001, v{10 if q else 9}')
            if bi < 6: k(f'v_mul_u32_u24 v{dst+q}, 0x3f80, v{dst+q}')

def f0b_addr(k):
    k(f'v_lshlrev_b32 v{AB0}, 7, v1\nv_and_b32 v2, 31, v1\nv_lshlrev_b32 v2, 7, v2\nv_add_u32 v{AB0+1}, 8192, v2')

def conv_late(k):
    def uaddr(dst, gc, use_h):
        k(f'v_lshl_add_u32 v9, v7, 1, {use_h}\nv_add_u32 v9, {gc+32}, v9')
        k('v_bfe_u32 v10, v9, 1, 3\nv_xor_b32 v10, s16, v10\nv_lshlrev_b32 v10, 4, v10')
        k(f'v_lshl_add_u32 v{dst}, v9, 7, v10')
    for j in range(4): uaddr(AF+j, -2-4*(j+4), 'v8')
    uaddr(AG, -3, 'v8')
    k('v_and_b32 v11, 1, v8')
    uaddr(AXD, 0, 'v11')
    k(f'v_lshlrev_b32 v{AST}, 5, v7\nv_lshl_add_u32 v{AST}, v11, 9, v{AST}')
    k('v_lshrrev_b32 v11, 1, v8')
    k(f'v_lshl_add_u32 v{AST}, v11, 4, v{AST}\nv_xor_b32 v11, 1, v11\nv_lshlrev_b32 v11, 6, v11\nv_xor_b32 v{AXD}, v11, v{AXD}')
    k(f's_lshl_b32 s52, s3, 12\ns_add_u32 s52, s52, {WS_HT:#x}')
    k('v_lshlrev_b32 v9, 3, v8\nv_sub_u32 v9, v9, v7\nv_add_u32 v9, 15, v9\nv_lshlrev_b32 v9, 1, v9')
    k(f'v_and_b32 v10, 1, v7\nv_xor_b32 v10, 1, v10\nv_mul_u32_u24 v10, {4*KPO-2}, v10')
    k(f'v_add3_u32 v{AK0}, v9, v10, s46\nv_add_u32 v{AK1}, 1024, v{AK0}')
    k('v_lshlrev_b32 v9, 2, v8\nv_sub_u32 v9, v9, v7\nv_add_u32 v9, 15, v9\nv_lshlrev_b32 v9, 2, v9')
    k(f's_add_u32 s53, s46, 2240\nv_add_u32 v{AQ}, s53, v9')
def conv_early(k):
    k('v_lshrrev_b32 v3, 3, v1\nv_and_b32 v4, 7, v1')
    k(f'v_lshl_add_u32 v2, v3, 5, v4\nv_lshlrev_b32 v{AP0}, 7, v2')
    k('v_lshrrev_b32 v6, 1, v3\nv_xor_b32 v4, v4, v6\ns_lshl_b32 s44, s20, 2\nv_xor_b32 v4, s44, v4')
    k(f'v_mul_u32_u24 v3, 20480, v3\nv_lshl_add_u32 v{AUX}, v4, 4, v3')
    f0b_addr(k)
    k(f's_mul_i32 s46, s16, 3072\ns_add_u32 s46, s46, {UXB}')
    k(f's_lshl_b32 s47, s2, 7\ns_mul_i32 s48, s16, {8*20480}\ns_add_u32 s47, s47, s48')
    k('s_lshl_b32 s49, s16, 10\ns_add_u32 s49, s49, 4096')
    k(f's_lshl_b32 s48, s16, 10\ns_add_u32 s48, s48, {F0:#x}')
    k('v_lshlrev_b32 v6, 4, v0')
    for r in range(72, 76): k(f'v_mov_b32 v{r}, 0')
    k('ds_write_b128 v6, v[72:75]')
    k('v_add_u32 v2, s46, v5')
    for q in range(3): k(f'ds_write_b128 v2, v[72:75] offset:{1024*q}')
    k(f's_mul_i32 s55, s16, 4608\ns_add_u32 s55, s55, {KGS}')
    k(f'v_mul_u32_u24 v2, 288, v7\nv_lshl_add_u32 v2, v8, 4, v2\nv_add_u32 v{KR}, s55, v2')
    k('v_lshrrev_b32 v9, 1, v8\nv_and_b32 v10, 1, v8\nv_lshlrev_b32 v3, 4, v7')
    k('v_lshl_add_u32 v2, v9, 8, v3\nv_lshl_add_u32 v2, v10, 3, v2')
    k(f's_add_u32 s44, s46, 1080\nv_sub_u32 v{KCW}, s44, v2')
    k(f'v_lshl_add_u32 v2, v10, 8, v3\ns_add_u32 s44, s46, {2*(536-258)-4}\nv_sub_u32 v{KCW+1}, s44, v2')
    k('v_lshrrev_b32 v2, 1, v7\nv_lshl_add_u32 v2, v10, 4, v2\nv_lshlrev_b32 v2, 2, v2\nv_and_b32 v3, 1, v7\nv_lshlrev_b32 v3, 8, v3\nv_sub_u32 v2, v3, v2')
    k(f's_add_u32 s44, s46, {2240+4*39}\nv_add_u32 v{KCW+2}, s44, v2')
    k(f'v_and_b32 v2, 7, v7\nv_lshlrev_b32 v2, 5, v2\nv_lshl_add_u32 v2, v8, 3, v2\ns_add_u32 s44, s46, {2752+4*62}\nv_sub_u32 v{KCW+3}, s44, v2')
    k(f'v_mov_b32 v{KCW+4}, s46')

LNB = 4096
class Rec:
    def __init__(s): s.L = []
    def __call__(s, t): s.L += [x for x in t.split('\n') if x]
def zipk(k, recs):
    for xs in zip(*[r.L for r in recs]):
        for x in xs: k(x)

def ln1_addr(k):
    k('v_lshrrev_b32 v2, 5, v1\nv_bfe_u32 v3, v1, 4, 1\nv_bfe_u32 v4, v1, 2, 2\nv_and_b32 v6, 3, v1')
    k('v_lshl_add_u32 v52, v2, 3, v4\nv_mul_u32_u24 v52, 1344, v52\nv_lshl_add_u32 v52, v3, 5, v52\nv_lshl_add_u32 v52, v6, 3, v52')
    k(f's_mul_i32 s17, s16, 320\ns_add_u32 s17, s17, {LNB}\nv_add_u32 v52, s17, v52')
    k('v_lshlrev_b32 v53, 9, v3\nv_lshl_add_u32 v53, v4, 7, v53\nv_lshl_add_u32 v53, v2, 6, v53\nv_lshl_add_u32 v53, v6, 4, v53')
    k('s_mul_i32 s17, s16, 5120\nv_add_u32 v53, s17, v53\nv_add_u32 v55, 4096, v53')

def ln1(k):
    X = 12; Fv = 22; S = 42
    for q in range(5): k(f'ds_write_b64 v51, {v(X+2*q,2)} offset:{8*1344+q*256}')
    for i in range(10): k(f'v_lshlrev_b32 v{Fv+2*i}, 16, v{X+i}\nv_and_b32 v{Fv+1+2*i}, 0xffff0000, v{X+i}')
    k(f'v_pk_add_f32 {v(S,2)}, {v(Fv,2)}, {v(Fv+2,2)}\nv_pk_mul_f32 {v(S+2,2)}, {v(Fv,2)}, {v(Fv,2)}')
    for i in range(1, 10):
        if i > 1: k(f'v_pk_add_f32 {v(S,2)}, {v(S,2)}, {v(Fv+2*i,2)}')
        k(f'v_pk_fma_f32 {v(S+2,2)}, {v(Fv+2*i,2)}, {v(Fv+2*i,2)}, {v(S+2,2)}')
    k(f'v_add_f32 v{S}, v{S}, v{S+1}\nv_add_f32 v{S+2}, v{S+2}, v{S+3}')
    k(f'v_mov_b32 v47, {fl(1/640)}')
    for sh in (8, 4, 2, 1):
        for q in (S, S+2): k(f'v_add_f32_dpp v{q}, v{q}, v{q} row_ror:{sh} row_mask:0xf bank_mask:0xf')
    k(f'v_mov_b32 v{S+1}, v{S}\nv_mov_b32 v{S+3}, v{S+2}\nv_permlane16_swap_b32 v{S}, v{S+1}\nv_permlane16_swap_b32 v{S+2}, v{S+3}')
    k(f'v_add_f32 v{S}, v{S}, v{S+1}\nv_add_f32 v{S+2}, v{S+2}, v{S+3}')
    k(f'v_mul_f32 v{S}, v47, v{S}\nv_mul_f32 v{S+1}, v{S}, v{S}\nv_fma_f32 v{S+2}, v{S+2}, v47, -v{S+1}\nv_max_f32 v{S+2}, 0, v{S+2}')
    r = Rec(); ln_finish(r, S, S+2, S+4)
    fin = r.L[2:]
    for x in r.L[:2]: k(x)
    for i in range(10):
        q = Fv+2*i
        k(f'v_pk_add_f32 {v(q,2)}, {v(q,2)}, {v(S,2)} op_sel_hi:[1,0] neg_lo:[0,1] neg_hi:[0,1]')
        if fin: k(fin.pop(0))
        k(f'v_cvt_pk_bf16_f32 v{q+1}, v{q}, v{q+1}\nv_lshlrev_b32 v{q}, 16, v{q+1}\nv_and_b32 v{q+1}, 0xffff0000, v{q+1}')
    assert not fin
    k('v_mov_b32 v2, 0\nglobal_load_dword v54, v2, s[32:33] sc1')
    for i in range(10):
        q = Fv+2*i
        k(f'v_pk_mul_f32 {v(q,2)}, {v(q,2)}, {v(S+2,2)} op_sel_hi:[1,0]')
        k(f'v_cvt_pk_bf16_f32 v{X+i}, v{q}, v{q+1}')
    for q in range(5): k(f'ds_write_b64 v51, {v(X+2*q,2)} offset:{q*256}')
    k('s_mul_i32 s30, s2, 20480')
    k('s_waitcnt lgkmcnt(0)\ns_barrier')
    mark(k, 0, 'H')
    O = 24
    for b in range(5):
        k(f'ds_read_b64_tr_b16 {v(O+4*b,2)}, v52 offset:{b*64}\nds_read_b64_tr_b16 {v(O+2+4*b,2)}, v52 offset:{b*64+4*1344}')
    for b in range(5):
        k(f's_waitcnt lgkmcnt({8-2*b})')
        k(f'buffer_store_dwordx4 {v(O+4*b,4)}, ' + (f'v53, s[8:11], s30 offen offset:{b*1024} sc1' if b < 4 else 'v55, s[8:11], s30 offen sc1'))
    k(f's_lshl_b32 s30, s2, 7\ns_add_u32 s30, s30, {F0:#x}')
    mark(k, 1, 'H')

def get_nonce(k):
    L = k.lab('nn'); Lo = k.lab('nok')
    k('s_mov_b32 s37, 0')
    k(f'{L}:')
    k('v_readfirstlane_b32 s6, v54')
    k(f's_add_u32 s37, s37, 1\ns_cmp_gt_u32 s37, {SPIN}\ns_cbranch_scc1 {Lo}')
    k(f's_cmp_lg_u32 s6, 0\ns_cbranch_scc1 {Lo}')
    k('v_mov_b32 v2, 0')
    k('global_load_dword v54, v2, s[32:33] sc1')
    k('s_waitcnt vmcnt(0)')
    k(f's_branch {L}')
    k(f'{Lo}:')

def ux_issue(k):
    for i in range(8):
        k(f's_add_u32 m0, s49, {i*4096}\ns_add_u32 s27, s47, {i*32*20480}')
        k(f'buffer_load_dwordx4 v{AUX}, s[8:11], s27 offen sc1 lds')
    k('s_mov_b32 s45, 1')
    mark(k, 8, 'K')

def kgen(k, sigfn):
    lg = Cnt(k, 'lgkmcnt', 15)
    DT = 68
    W, G8, GG, Z, C0, LO, HI, ACC, PK, H2 = 20, 22, 24, 32, 70, 88, 104, 120, 36, 192
    def check(pd=PD0):
        if E('KG_NOCHK'): return
        Ls = k.lab('uxs'); Lr = k.lab('uxr')
        k(f's_cmp_lg_u32 s45, 0\ns_cbranch_scc1 {Ls}')
        k('s_waitcnt vmcnt(0)')
        k(f'v_cmp_ne_u32 vcc, s6, v{pd}')
        k(f's_cbranch_vccnz {Lr}')
        ux_issue(k)
        k('s_mov_b32 m0, s55')
        k(f's_branch {Ls}')
        k(f'{Lr}:')
        k(f'buffer_load_dword v{pd}, v{AP0}, s[8:11], s48 offen sc1')
        k(f'{Ls}:')
    k(f'v_mov_b32 v{PD0}, 0\ns_mov_b32 s45, 0\ns_mov_b32 s7, 0\ns_mov_b32 m0, s55')
    k(f'v_mul_f32 v{DT}, {fl(LOG2E)}, v{DT}\nv_exp_f32 v{DT}, v{DT}')
    round_bf16_f32(k, DT, DT)
    k(f'v_add_f32 v{DT+1}, v{DT}, v{DT}')
    mark(k, 0, 'K'); mark(k, 0, 'J')
    def setup(it):
        r = Rec(); P = PR + 4*it
        r(f'v_mul_f32 v12, {fl(LOG2E)}, v{P}\nv_mul_f32 v13, v{P+1}, v{DT}\nv_exp_f32 v12, v12')
        r(f'v_mul_f32 v13, {fl(INV2PI)}, v13\nv_mul_f32 v{C0}, v{P+2}, v{DT+1}\nv_mul_f32 v{C0+1}, v{P+3}, -v{DT+1}')
        round_bf16_f32(r, 12, 12)
        r(f'v_mul_f32 v12, v12, v{DT}\nv_mul_f32 v15, {fl(8.)}, v13\nv_mul_f32 v17, {fl(128.)}, v13\nv_mul_f32 v12, {fl(-LOG2E)}, v12')
        r('v_fract_f32 v15, v15\nv_fract_f32 v13, v13\nv_fract_f32 v17, v17')
        r(f'v_mul_f32 v14, {fl(8.)}, v12\nv_mul_f32 v16, {fl(128.)}, v12')
        for dst, m_ in ((G8, 14), (W, 12), (GG, 16)):
            r(f'v_exp_f32 v{m_}, v{m_}\nv_cos_f32 v{dst}, v{m_+1}\nv_sin_f32 v{dst+1}, v{m_+1}')
        return r.L
    tmp = [26, 28, 30]; ti = [0]
    def cmul(d, a_, b):
        t = tmp[ti[0] % 3]; ti[0] += 1
        k(f'v_pk_mul_f32 {v(t,2)}, {v(a_,2)}, {v(b,2)} op_sel:[0,0] op_sel_hi:[1,0]')
        k(f'v_pk_fma_f32 {v(d,2)}, {v(a_,2)}, {v(b,2)}, {v(t,2)} op_sel:[1,1,0] op_sel_hi:[0,1,1] neg_lo:[1,0,0]')
    WB = int(E('KG_WB', 4))
    wr = [0]
    SL = int(E('KG_SLOT', 0)); sn = [0]
    def slot():
        if not SL or sn[0] >= 8: return
        j = sn[0]; sn[0] += 1
        L = k.lab('sl')
        k(f's_cbranch_vccnz {L}')
        k(f's_add_u32 m0, s54, {j*1024}')
        if j == 4: k('s_add_u32 s56, s56, 65536')
        k(f'buffer_load_dwordx4 v{132+j%4}, s[12:15], s56 offen lds')
        k('s_mov_b32 m0, s55')
        k(f'{L}:')
    def wflush(n):
        while wr[0] < n:
            lg.issue(f'ds_write_addtid_b32 v{PK+wr[0]} offset:{wr[0]*288}'); wr[0] += 1
    def put(row, z):
        if z is None: k(f'v_mov_b32 v{PK+row}, 0x3f80')
        else: k(f'v_cvt_pk_bf16_f32 v{PK+row}, v{z}, v{z+1}')
        if (row+1) % WB == 0: wflush(row+1)
        if row in (3, 11) or (row == 6 and sn[0] == 7): slot()
    def flush(n, base):
        wflush(n); wr[0] = 0
        for ks in range(4): tk = lg.issue(f'ds_read_b128 {v(base+4*ks,4)}, v{KR} offset:{ks*64}')
        return tk
    def mm(it, t, H, swap):
        out = []
        for ks in range(4):
            A, B = H+4*ks, LO+4*ks
            if swap: A, B = B, A
            out.append(f'{MF} {v(ACC+4*t,4)}, {v(A,4)}, {v(B,4)}, {"0" if it == 0 and ks == 0 else v(ACC+4*t,4)}')
        return out
    plan = dict(x.split(':') for x in E('KG_PLAN', '02:sAB,10:CD,12:p,22:c').split(','))
    outl = []
    INL = int(E('KG_INL', 1))
    def event(act, nsl):
        if 's' in act: mark(k, 10, 'K'); sigfn(nsl); mark(k, 11, 'K')
        if 'c' in act and 'r' in act: check()
        if 'r' in act: k('s_mov_b32 s7, s45')
        for q, ch in enumerate('ABCD'):
            if ch in act:
                k(f's_add_u32 s27, s28, {(q//2)*256 + (q % 2)*65536}')
                for j in range(4):
                    k(f's_add_u32 m0, s26, {q*4096 + j*1024}')
                    k(f'buffer_load_dwordx4 v{132+j}, s[12:15], s27 offen lds')
                k('s_mov_b32 m0, s55')
        if 'p' in act: mark(k, 2, 'K'); k(f'buffer_load_dword v{PD0}, v{AP0}, s[8:11], s48 offen sc1'); mark(k, 3, 'K')
        if 'c' in act and 'r' not in act: mark(k, 12, 'K'); k('s_waitcnt vmcnt(0)'); mark(k, 13, 'K'); check(); mark(k, 14, 'K')

    def pt(q):
        for it in range(3):
            act = plan.get(f'{it}{q}')
            if act:
                Lx = k.lab('kx'); Lb = k.lab('kb')
                nsl = (8*it + sn[0]) if SL else 0
                if INL:
                    k(f's_cmp_eq_u32 s44, {it}\ns_cbranch_scc0 {Lb}')
                    event(act, nsl)
                    k(f'{Lb}:')
                else:
                    k(f's_cmp_eq_u32 s44, {it}\ns_cbranch_scc1 {Lx}')
                    k(f'{Lb}:')
                    outl.append((Lx, Lb, act, nsl))
    for r in range(12): k(f'v_mov_b32 v{ACC+r}, 0')
    k('s_mov_b32 s44, 0\ns_mov_b64 vcc, 0\ns_mov_b32 s54, s26\ns_mov_b32 s56, s28')
    for x in setup(0): k(x)
    Lp = k.lab('kg')
    k(f'{Lp}:')
    for dst, m_, neg in ((G8, 14, False), (W, 12, True), (GG, 16, True)):
        k(f'v_pk_mul_f32 {v(dst,2)}, {v(dst,2)}, {v(m_,2)} op_sel_hi:[1,0]' + (' neg_hi:[0,1]' if neg else ''))
    put(0, None); put(1, G8)
    cmul(Z, G8, G8); put(2, Z)
    for j in range(3, 16): cmul(Z, Z, G8); put(j, Z)
    flush(16, LO)
    pt(0)
    put(0, C0)
    for c in range(1, 8): cmul(C0+2*c, C0+2*c-2, W); put(c, C0+2*c)
    cmul(C0+16, C0+14, W)
    for c in range(8): cmul(C0+2*c, C0+2*c, GG); put(8+c, C0+2*c)
    flush(16, HI)
    pt(1)
    cmul(C0+16, C0+16, GG); cmul(C0, C0, GG)
    for i in (2, 3):
        for c in (2, 4, 6, 8): cmul(C0+2*c, C0+2*c, GG); put(4*(i-2)+c//2-1, C0+2*c)
    for i in range(4, 8):
        for c in (4, 8): cmul(C0+2*c, C0+2*c, GG); put(8+2*(i-4)+c//4-1, C0+2*c)
    t1 = flush(16, H2)
    pt(2)
    k(f'v_cvt_pk_bf16_f32 v{PK+8}, v{C0}, v{C0+1}')
    for i in range(8, 16): cmul(C0+16, C0+16, GG); put(i-8, C0+16)
    t2 = flush(9, H2+16)
    pt(3)
    fillr = setup(1)
    fillr[6:6] = [f'v_mov_b32 v{PR+4+q}, v{PR+8+q}' for q in range(4)]
    assert sn[0] == 8 or not SL
    k('s_add_u32 s54, s26, 8192\ns_add_u32 s56, s28, 256\ns_cmp_eq_u32 s44, 1\ns_cselect_b64 vcc, -1, 0')
    k('s_add_u32 s44, s44, 1\ns_cmp_lt_u32 s44, 3')
    lg.wait(t1)
    for n, m_ in enumerate(mm(1, 0, HI, False) + mm(1, 1, H2, False) + mm(1, 2, H2+16, True)):
        if n == 8: lg.wait(t2)
        k(m_)
        for _ in range(2):
            if fillr: k(fillr.pop(0))
    for x in fillr: k(x)
    k(f's_cbranch_scc1 {Lp}')
    Lj = k.lab('kj')
    if outl: k(f's_branch {Lj}')
    for Lx, Lb, act, nsl in outl:
        k(f'{Lx}:')
        event(act, nsl)
        k(f's_branch {Lb}')
    k(f'{Lj}:')
    mark(k, 1, 'K'); mark(k, 13, 'J')
    A0, A1, A2 = ACC, ACC+4, ACC+8
    O = 4*KPO
    cv = [(A0+3, A0+2), (A0+1, A0), (A0+2, A0+1),
          (A1+3, A1+3), (A1+3, A1+2), (A1+1, A1+1), (A1+1, A1), (A1+2, A1+1),
          (A1, A1+1), (A1+2, A1+3),
          (A2+2, A2+3), (A2, A2+1), (A2, A2)]
    for q, (x, y) in enumerate(cv): k(f'v_cvt_pk_bf16_f32 v{12+q}, v{x}, v{y}')
    k(f'ds_write_b64 v{KCW}, v[12:13]')
    k(f'ds_write_b16 v{KCW}, v12 offset:{O-2}\nds_write_b32 v{KCW}, v14 offset:{O}\nds_write_b16_d16_hi v{KCW}, v13 offset:{O+4}')
    k(f'v_add_u32 v25, {O}, v{KCW+1}')
    k('s_mov_b32 exec_hi, 0')
    k(f'ds_write_b16 v{KCW+1}, v15 offset:2')
    k(f'ds_write2_b32 v{KCW+1}, v15, v16 offset0:1 offset1:2\nds_write2_b32 v{KCW+1}, v17, v18 offset0:3 offset1:4')
    k('ds_write2_b32 v25, v15, v15 offset0:0 offset1:1\nds_write2_b32 v25, v19, v17 offset0:2 offset1:3\nds_write_b16_d16_hi v25, v18 offset:16')
    k('s_mov_b32 exec_lo, 0x100')
    k(f'ds_write_b32 v{KCW+4}, v24 offset:572\nds_write_b16 v{KCW+4}, v24 offset:{O+570}\nds_write_b16 v{KCW+4}, v24 offset:{O+572}')
    k('s_mov_b32 exec_lo, 0\ns_mov_b32 exec_hi, -1')
    k(f'ds_write2_b32 v{KCW+2}, v20, v21 offset0:8 offset1:0')
    k('s_mov_b32 exec_lo, 0x00ff00ff\ns_mov_b32 exec_hi, 0x00ff00ff')
    k(f'ds_write_b64 v{KCW+3}, v[22:23]')
    k('s_mov_b64 exec, -1')
    mark(k, 4, 'K')
    check()
    mark(k, 5, 'K')

def phaseA(k):
    vm = Cnt(k, 'vmcnt', 63); lg = Cnt(k, 'lgkmcnt', 15)
    dma = Dma(k, vm); w1_items(dma, [0, 1])
    AC_ = int(E('FA_A', 0)); dmA = Dma(k, vm); AR = [2, 6, 9, 10]
    if AC_:
        for q in range(4):
            for j in range(4):
                dmA.add(([f's_add_u32 s31, s28, {(q//2)*256 + (q % 2)*65536}'] if j == 0 else []) + [f's_add_u32 m0, s26, {q*4096 + j*1024}'], f'buffer_load_dwordx4 v{AR[j]}, s[12:15], s31 offen lds', 0)
    ACC = 12; KN = 44; QA = 112; QB = 124; Q8 = 136; SS = 180; VV = 204
    FB = 216; NB = 6
    prog = []
    started = set()
    def Kn(kb): return ('K', 'n', kb)
    kreg = {}
    for kb in range(17): kreg[Kn(kb)] = (KN+4*kb, AK1 if kb == 0 else AK0, 0 if kb == 0 else (16-kb)*16)
    for D in (2, 3, 4): kreg[('K', 'a', D)] = (QA+4*(D-2), AQ, (4-D)*16); kreg[('K', 'b', D)] = (QB+4*(D-2), AQ, 64+(4-D)*16)
    for D in (4, 5, 6, 7): kreg[('K', '8', D)] = (Q8+4*(D-4), AQ, 128+(7-D)*16)
    def acc(t, A, B):
        prog.append(('m', ACC+4*t, A, B, t not in started)); started.add(t)
    XF = int(E('FA_XF', 0))
    for rt in range(XF): acc(rt, XD, ('F', rt, 'X'))
    for rt in range(8):
        F0 = ('F', rt, 0)
        if rt <= 5:
            for b in (0, 1, 2): prog.append(('m', SS+4*b, F0, BND+4*b, True))
            if rt <= 3: prog.append(('m', SS+16, F0, BND+16, True))
            prog.append(('m', SS+12, ('F', rt, 'G'), BND+12, True))
            if rt <= 3: prog.append(('m', SS+20, ('F', rt, 'G'), BND+20, True))
        if rt >= XF: acc(rt, XD, ('F', rt, 'X'))
        acc(rt, Kn(0), F0)
        if rt+1 <= 7: acc(rt+1, Kn(8), F0)
        if rt+2 <= 7: acc(rt+2, Kn(16), F0)
        if rt+4 <= 7: acc(rt+4, KPT, F0)
        if rt <= 5: prog.append(('cvt', rt))
        for j in range(1, 8):
            acc(rt, Kn(j), ('F', rt, j))
            if rt+1 <= 7: acc(rt+1, Kn(j+8), ('F', rt, j))
        prog.append(('epi', rt))
        if rt <= 5:
            prog.append(('needcvt',))
            for D in (2, 3, 4):
                if rt+D <= 7: acc(rt+D, VV, ('K', 'a', D)); acc(rt+D, VV+4, ('K', 'b', D))
            if rt <= 3:
                for D in (4, 5, 6, 7):
                    if rt+D <= 7: acc(rt+D, VV+8, ('K', '8', D))
    order = []; last_use = {}
    for pi_, p in enumerate(prog):
        if p[0] == 'm':
            for o in (p[2], p[3]):
                if isinstance(o, tuple):
                    if o not in last_use: order.append(o)
                    last_use[o] = pi_
    forder = [o for o in order if o[0] == 'F']
    fbuf = {o: FB + 4*(n % NB) for n, o in enumerate(forder)}
    fidx = {o: n for n, o in enumerate(forder)}
    tok = {}
    rq = []
    for o in order:
        if o[0] == 'K':
            r, ar, off = kreg[o]
            rq.append((o, f'ds_read2_b32 {v(r,2)}, v{ar} offset0:{off} offset1:{off+1}', False))
            rq.append((o, f'ds_read2_b32 {v(r+2,2)}, v{ar} offset0:{off+2} offset1:{off+3}', True))
        else:
            _, rt, j = o
            if j == 'G': ar, off = AG, rt*4096
            elif j == 'X': ar, off = AXD, rt*4096
            else: ar, off = AF + (j % 4), rt*4096 + (2048 if j < 4 else 0)
            rq.append((o, f'ds_read_b128 {v(fbuf[o],4)}, v{ar} offset:{off}', True))
    cur = [0]
    def can_read():
        if not rq: return False
        o = rq[0][0]
        if lg.n - lg.done >= 13: return False
        if o[0] == 'F' and fidx[o] >= NB:
            return last_use[forder[fidx[o]-NB]] < cur[0]
        return True
    def do_read():
        o, t, l = rq.pop(0); tk = lg.issue(t)
        if l: tok[o] = tk
    if E('C_LATE', '1') == '1': conv_late(k)
    k('v_mov_b32 v9, s53')
    tp = lg.issue(f'ds_read_u16 v11, v9 offset:{256+16*4+2}')
    early = [x for x in rq if x[0][0] == 'K'][:int(E('FA_EK', 54))]
    r = Rec()
    if E('C_BL', '1') == '1': conv_bands(r)
    r('v_mov_b32 v2, 0x3f80\nv_mov_b32 v3, s51\nv_cmp_gt_u32 vcc, 2, v8\nv_cndmask_b32 v2, v3, v2, vcc')
    for q in range(4): r(f'v_mul_u32_u24 v{XD+q}, v2, v{XD+q}')
    bl = r.L
    for n, x in enumerate(early):
        rq.remove(x); tk = lg.issue(x[1])
        if x[2]: tok[x[0]] = tk
        if n % 6 == 5:
            for _ in range(16):
                if bl: k(bl.pop(0))
    for x in bl: k(x)
    kq = [x for x in rq if x[0][0] == 'K']; fq = [x for x in rq if x[0][0] != 'K']
    KP = int(E('FA_KP', 2)); rq[:] = [fq.pop(0) for _ in range(NB-1)]
    while kq or fq:
        if fq: rq.append(fq.pop(0))
        for _ in range(KP):
            if kq: rq.append(kq.pop(0))
    lg.wait(tp)
    for q in range(4): k(f'v_mul_u32_u24 v{KPT+q}, v11, v{KPT+q}')
    if AC_:
        for j in range(4): k(f'v_add_u32 v3, {4*j}, v8\nv_xor_b32 v4, v3, v7\nv_lshlrev_b32 v3, 12, v3\nv_lshl_add_u32 v{AR[j]}, v4, 4, v3')
    mark(k, 3); mark(k, 6, 'K')
    Ls = k.lab('uxd')
    k(f's_cmp_lg_u32 s45, 0\ns_cbranch_scc1 {Ls}')
    poll(k, vm, AP0, 's48')
    ux_issue(k)
    k(f'{Ls}:')
    k(f's_mov_b32 s44, {F0B:#x}')
    Lw = k.lab('uxw')
    k(f's_waitcnt vmcnt(16)\ns_cmp_lg_u32 s7, 0\ns_cbranch_scc1 {Lw}')
    k('s_waitcnt vmcnt(0)')
    k(f'{Lw}:')
    lg.all()
    k('s_barrier')
    mark(k, 4); mark(k, 7, 'K')
    tB = []
    def f0b_issue():
        vm.issue(f'buffer_load_dword v3, v{AB0}, s[8:11], s44 offen sc1'); tB.append(vm.issue(f'buffer_load_dword v4, v{AB0+1}, s[8:11], s44 offen sc1'))
    def f0b_check():
        Lo = k.lab('f0b'); Lq = k.lab('f0q')
        vm.wait(tB[0])
        k(f'v_cmp_ne_u32 vcc, s6, v3\ns_cbranch_vccnz {Lq}\nv_cmp_ne_u32 vcc, s6, v4\ns_cbranch_vccz {Lo}')
        k(f'{Lq}:')
        poll(k, Cnt(k, 'vmcnt', 63), [AB0, AB0+1], 's44')
        k(f'{Lo}:')
        mark(k, 9, 'K')
        CT = int(E('C_TOUCH', 0))
        if CT:
            k(f's_add_u32 s45, s3, {CT}\ns_min_u32 s45, s45, 1023')
            k('s_lshr_b32 s46, s45, 8\ns_lshl_b32 s46, s46, 9\ns_and_b32 s45, s45, 255\ns_lshl_b32 s45, s45, 15\ns_add_u32 s45, s45, s46')
            k('v_lshrrev_b32 v2, 2, v1\nv_lshlrev_b32 v2, 11, v2\nv_and_b32 v3, 3, v1\nv_lshl_add_u32 v2, v3, 7, v2')
            vm.issue('buffer_load_dword v4, v2, s[12:15], s45 offen')
    hi = []; lo = []
    def epilogue(t):
        A = ACC + 4*t; ops = [None]*5
        def Em(txt): ops.append(lambda: k(txt))
        P = ACC + 4*(t & ~1) + 2*(t & 1)
        Em(f'v_cvt_pk_bf16_f32 v{P}, v{A}, v{A+1}'); Em(f'v_cvt_pk_bf16_f32 v{P+1}, v{A+2}, v{A+3}')
        if t & 1:
            Q = ACC + 4*(t-1)
            ops.append(None)
            Em(f'v_permlane16_swap_b32 v{Q}, v{Q+2}'); Em(f'v_permlane16_swap_b32 v{Q+1}, v{Q+3}')
            ops.append(lambda: vm.issue(f'buffer_store_dwordx4 {v(Q,4)}, v{AST}, s[8:11], s52 offen offset:{(t-1)*512} sc1'))
        return ops
    while can_read() and lg.n - lg.done < 12: do_read()
    nm = 0; wacc = [0.0]; WR = float(E('FA_WR', 5)); WLAST = int(E('FA_WLAST', 195)); WFIRST = int(E('FA_WFIRST', 60))
    for pi_, p in enumerate(prog):
        cur[0] = pi_
        if p[0] == 'cvt':
            rt = p[1]
            hi.extend([None]*2)
            for q in range(3 if rt <= 3 else 2):
                for r in range(4):
                    hi.append(lambda q=q, r=r: k(f'v_cvt_pk_bf16_f32 v{VV+4*q+r}, v{SS+8*q+r}, v{SS+8*q+4+r}'))
            continue
        if p[0] == 'needcvt':
            while hi:
                f = hi.pop(0)
                if f: f()
            continue
        if p[0] == 'epi':
            lo.extend(epilogue(p[1])); continue
        _, d, A, B, zero = p
        n0 = len(k.L)
        ops = []
        for o in (A, B):
            if isinstance(o, tuple):
                if o not in tok:
                    mine = [x for x in rq if x[0] == o]
                    for x in mine: rq.remove(x)
                    rq[0:0] = mine
                    if o[0] == 'F' and fidx[o] >= NB: assert last_use[forder[fidx[o]-NB]] < cur[0]
                    while o not in tok: do_read()
                tw = tok[o]
                if tw > lg.done and o[0] == 'F' and fidx[o]+1 < len(forder):
                    t2 = tok.get(forder[fidx[o]+1])
                    if t2 is not None and lg.n - t2 >= int(E('FA_MW', 2)): tw = max(tw, t2)
                lg.wait(tw)
                ops.append(fbuf[o] if o[0] == 'F' else kreg[o][0])
            else: ops.append(o)
        nm += 1
        if nm == max(WFIRST - int(E('FA_PL', 40)), 1): f0b_issue()
        if nm == WFIRST: f0b_check()
        wacc[0] += 1.0/WR
        if wacc[0] >= 1.0:
            wacc[0] -= 1.0
            if dmA.q and (AC_ == 1 or not dma.q) and nm <= WLAST: dmA.pre()
            elif WFIRST <= nm <= WLAST: dma.pre()
        used = len(k.L) - n0
        k(f'{MF} {v(d,4)}, {v(ops[0],4)}, {v(ops[1],4)}, {"0" if zero else v(d,4)}')
        cur[0] = pi_ + 1
        n1 = len(k.L)
        dma.fire(); dmA.fire()
        while len(k.L) - n1 + used < 2:
            if can_read(): do_read()
            elif hi:
                f = hi.pop(0)
                if f: f()
                else: used += 1
            elif lo:
                f = lo.pop(0)
                if f: f()
                else: used += 1
            else: break
    for f in lo:
        if f: f()
    mark(k, 5)
    tH = vm.n
    while dmA.q: dmA.one()
    k(f's_lshl_b32 s44, s2, 7\ns_add_u32 s44, s44, {F1:#x}')
    signal(k, vm, 's44', tH)
    while dma.q: dma.one()

def ln_sigma(k, mean, var, t):
    k(f'v_cvt_pk_bf16_f32 v{t}, v{mean}, v{var}')
    k(f'v_lshlrev_b32 v{mean}, 16, v{t}\nv_and_b32 v{var}, 0xffff0000, v{t}')
    k(f'v_add_f32 v{var}, {fl(1e-5)}, v{var}')
    round_bf16_f32(k, var, var)
    k(f'v_sqrt_f32 v{var}, v{var}')
    round_bf16_f32(k, var, var)

MAPB = {'A': 3, 'B': 2, 'C': 1, 'N': 0}[E('F_MAP', 'B')]
ALATE = int(E('FB_ALATE', 1)); T2E = int(E('FB_T2E', 0))
STG = 81920; Z1L = 147456; STAT = 159744; PART = STAT + 1024
CS = 28; RES = 40; MS = 52; HF = 68; AC = [116, 132, 148]; ONE = 164; SA = 168; G = 176; T = HF; WV = 192
WA = {2: 0, 3: 32, 4: 80, 5: 160, 6: 112, 7: 192}
def wreg(c, o): return v(WV+32*c+o, 4) if c < 2 else a(WA[c]+o, 4)

def stg_setup(k, R):
    for j in range(4):
        k(f'v_add_u32 v2, {4*j}, v8\nv_xor_b32 v3, v2, v7\nv_lshlrev_b32 v2, 12, v2\nv_lshl_add_u32 v{R+j}, v3, 4, v2')
    k(f's_lshl_b32 s26, s16, 14\ns_add_u32 s26, s26, {STG}')
    k('s_lshl_b32 s28, s17, 18\ns_lshl_b32 s27, s20, 17\ns_add_u32 s28, s28, s27\ns_lshl_b32 s27, s19, 11\ns_add_u32 s28, s28, s27')

def phaseB_setup(k):
    for r in range(4): k(f'v_mov_b32 v{ONE+r}, 0x3f803f80')
    k('v_lshrrev_b32 v2, 3, v1\nv_and_b32 v3, 7, v1\nv_and_b32 v4, 6, v2\nv_xor_b32 v3, v3, v4')
    k('v_lshlrev_b32 v10, 12, v2\nv_lshl_add_u32 v10, v3, 4, v10')
    stg_setup(k, 11)
    k('v_bfe_u32 v2, v1, 2, 2\nv_and_b32 v3, 3, v1\nv_lshl_add_u32 v4, v8, 2, v2')
    k('v_lshrrev_b32 v6, 1, v3\nv_and_b32 v3, 1, v3\nv_and_b32 v9, 6, v4\nv_xor_b32 v6, v6, v9')
    k('v_lshlrev_b32 v6, 4, v6\nv_lshl_add_u32 v6, v4, 7, v6\nv_lshl_add_u32 v6, v3, 3, v6')
    k('s_lshl_b32 s36, s20, 6')
    k('v_xor_b32 v16, s36, v6')
    for sg in range(1, 4): k(f'v_xor_b32 v{16+sg}, {32*sg}, v16')
    for sg in range(4): k(f'v_add_u32 v{20+sg}, 40960, v{16+sg}')
    k('s_lshl_b32 s36, s16, 5\ns_mul_i32 s35, s18, 10240')
    k('v_xor_b32 v24, s36, v6\nv_add_u32 v24, s35, v24')
    k('s_lshl_b32 s36, s19, 12')
    k('v_xor_b32 v2, v8, v7\nv_lshlrev_b32 v2, 4, v2\nv_lshl_add_u32 v2, v7, 8, v2\nv_add_u32 v2, s36, v2')
    for ks in range(4):
        k(f'v_xor_b32 v3, {64*ks}, v2\nv_add_u32 v{SA+2*ks}, s26, v3\nv_xor_b32 v3, {64*ks+4096}, v2\nv_add_u32 v{SA+2*ks+1}, s26, v3')
    k(f's_lshl_b32 s21, s17, 7\ns_lshl_b32 s36, s16, 16\ns_add_u32 s21, s21, s36\ns_add_u32 s21, s21, {WS_HT:#x}')
    k('s_lshl_b32 s25, s16, 11')

def stg_items(dma, c):
    for j in range(8):
        pre = [f's_add_u32 m0, s26, {(c % 2)*8192 + j*1024}']
        if j == 0: pre += [f's_add_u32 s55, s28, {c*256}']
        if j == 4: pre += ['s_add_u32 s55, s55, 65536']
        dma.add(pre, f'buffer_load_dwordx4 v{11+j%4}, s[12:15], s55 offen lds', 100+c)
def stg_read(dma, lg, c, wait=True):
    if wait: dma.upto(100+c); dma.vm.wait(dma.tok[100+c])
    for ks in range(4):
        for tau in range(2):
            lg.issue(f'ds_read_b128 {wreg(c, 8*ks+4*tau)}, v{SA+2*ks+tau} offset:{(c % 2)*8192}')

def phaseB(k, hiw):
    vm = Cnt(k, 'vmcnt', 63); lg = Cnt(k, 'lgkmcnt', 15)
    dma = Dma(k, vm)
    grp = [int(x) for x in E('FB_GRP', '0,1,1,2,2,2,3,3,3,3').split(',')]
    for s_ in range(10):
        for j in range(2):
            dma.add([f's_add_u32 m0, s25, {s_*8192 + j*1024}', f's_add_u32 s27, s21, {(s_*64 + j*8)*4096}'], 'buffer_load_dwordx4 v10, s[8:11], s27 offen sc1 lds', grp[s_])
    mark(k, 0, 'B')
    dma.upto(int(E('FB_PRO', 2)))
    mark(k, 1, 'B')
    stg_read(dma, lg, 0, False); stg_read(dma, lg, 1, False)
    for T_ in range(3):
        for p in range(3):
            for hp in range(2):
                k(f'v_pk_add_f32 {v(CS+4*T_+2*hp,2)}, {v(CS+4*T_+2*hp,2)}, {v(AC[0]+12*T_+4*p+2*hp,2)}')
    lg.all()
    stg_items(dma, 2); stg_items(dma, 3)
    if T2E < 5: w1_items(dma, [2], 103.5, range(T2E, 5))
    def reads(g):
        off = g*4096; ar = 16
        if off >= 40960: off -= 40960; ar = 20
        b = HF + 16*(g % 3); out = []
        for sg in range(4):
            out += [f'ds_read_b64_tr_b16 {v(b+4*sg,2)}, v{ar+sg} offset:{off}', f'ds_read_b64_tr_b16 {v(b+4*sg+2,2)}, v{ar+sg} offset:{off+2048}']
        return out
    def mk(tiles, stats):
        def f(g):
            b = HF + 16*(g % 3); out = []
            for sg in range(4):
                if stats and sg < 2:
                    d = AC[2] + 8*sg
                    out.append(f'{MF} {v(d,4)}, {v(ONE,4)}, {v(b+4*sg,4)}, {"0" if g == 0 else v(d,4)}')
                    out.append(f'{MF} {v(d+4,4)}, {v(b+4*sg,4)}, {v(b+4*sg,4)}, {"0" if g == 0 else v(d+4,4)}')
            for sg in range(4):
                for T_ in tiles:
                    d = AC[T_] + 4*sg
                    out.append(f'{MF} {v(d,4)}, {a(80*T_+4*g,4)}, {v(b+4*sg,4)}, {"0" if g == 0 else v(d,4)}')
            return out
        return f
    mark(k, 2, 'B')
    dma.sync(0)
    mark(k, 3, 'B')
    def btouch():
        if hiw and int(E('B_TOUCH', 0)):
            L = k.lab('nt')
            k(f's_cmp_lg_u32 s16, 3\ns_cbranch_scc1 {L}')
            k('v_lshrrev_b32 v2, 2, v1\nv_lshlrev_b32 v2, 11, v2\nv_and_b32 v3, 3, v1\nv_lshl_add_u32 v2, v3, 7, v2')
            k('s_lshl_b32 s36, s2, 15\ns_add_u32 s36, s36, 1536')
            k('buffer_load_dword v15, v2, s[12:15], s36 offen')
            k(f'{L}:')
    resr = [f'ds_read_b64_tr_b16 {v(RES+2*j,2)}, v24 offset:{j*2048}' for j in range(5)]
    gemm_loop(k, lg, dma, 0, 20, reads, mk([0] if hiw else [0, 1], hiw), lambda g: grp[g//2], 1000, lambda g: float(E('FB_RATE0', 2)) if g < int(E('FB_G0', 4)) else float(E('FB_RATE', 4)), tail_reads=resr, hooks={int(E('FB_G0', 4)): btouch})
    mark(k, 8); mark(k, 4, 'B')
    if not hiw:
        stg_read(dma, lg, 2); stg_read(dma, lg, 3); lg.all()
        stg_items(dma, 4); stg_items(dma, 5)
    z2t = [0] if hiw else [0, 1]
    k(f's_lshl_b32 s36, s20, 9')
    k(f'v_lshlrev_b32 v3, 4, v7\nv_add_u32 v3, s36, v3\nv_xor_b32 v4, 512, v3\nv_add_u32 v3, {STAT}, v3\nv_add_u32 v4, {STAT}, v4')
    if hiw:
        k('v_and_b32 v2, 3, v1')
        k('v_cmp_eq_u32 vcc, 1, v2\nv_cmp_eq_u32 s[30:31], 2, v2\nv_cmp_eq_u32 s[32:33], 3, v2')
        k(f'v_mov_b32 v6, {fl(1/640)}')
        A_, B_ = [], []
        rec = []
        for sg in range(2):
            r = Rec(); S = AC[2] + 8*sg; Gm = S + 4
            r(f'v_cndmask_b32 v{Gm}, v{Gm}, v{Gm+1}, vcc\nv_cndmask_b32 v{Gm}, v{Gm}, v{Gm+2}, s[30:31]\nv_cndmask_b32 v{Gm}, v{Gm}, v{Gm+3}, s[32:33]')
            r(f'v_mul_f32 v{S}, v6, v{S}\nv_mul_f32 v{S+1}, v{S}, v{S}')
            r(f'v_fma_f32 v{S+1}, v{Gm}, v6, -v{S+1}\nv_max_f32 v{S+1}, 0, v{S+1}')
            ln_sigma(r, S, S+1, S+2)
            r(f'v_rcp_f32 v{Gm}, v{S+1}')
            r(f'v_mul_f32 v{S+2}, {fl(K1C)}, v{Gm}\nv_mul_f32 v{S+3}, v{Gm}, v{Gm}\nv_mul_f32 v{S+3}, v{S+3}, v{Gm}\nv_mul_f32 v{S+3}, {fl(K2C)}, v{S+3}')
            rec.append(r.L)
        for x, y in zip(*rec): k(x); k(y)
        k('s_mov_b32 exec_lo, 0x00f0000f\ns_mov_b32 exec_hi, 0xf0000f00')
        for sg in range(2): lg.issue(f'ds_write_b128 v3, {v(AC[2]+8*sg,4)} offset:{256*sg}')
        k('s_mov_b64 exec, -1')
    else:
        for _ in range(int(E('FB_X01', 8))): dma.one()
    lg.all()
    k('s_barrier')
    tks = [lg.issue(f'ds_read_b128 {v(MS+4*sg,4)}, v{3 + sg//2} offset:{256*(sg % 2)}') for sg in range(4)]
    if hiw:
        stg_read(dma, lg, 2); stg_read(dma, lg, 3); lg.all()
        stg_items(dma, 4); stg_items(dma, 5)
    mark(k, 5, 'B')
    def gelu(T_, ER=0, tks=None):
        prs = [(sg, hp) for sg in range(4) for hp in range(2)]
        for q in range(0, 8, 2):
            st = [[], []]
            if tks: lg.wait(tks[q//2])
            for u_ in range(2):
                sg, hp = prs[q+u_]
                z = AC[T_] + 4*sg + 2*hp; c = CS + 4*T_ + 2*hp; t = T + 2*u_
                ms = v(MS+4*sg, 2); kk = v(MS+4*sg+2, 2)
                st[u_] = [
                  f'v_pk_fma_f32 {v(z,2)}, {v(c,2)}, {ms}, {v(z,2)} op_sel_hi:[1,0,1] neg_lo:[0,1,0] neg_hi:[0,1,0]',
                  f'v_pk_mul_f32 {v(t,2)}, {v(z,2)}, {v(z,2)}',
                  f'v_pk_fma_f32 {v(t,2)}, {v(t,2)}, {kk}, {kk} op_sel:[0,1,0] op_sel_hi:[1,1,0]',
                  f'v_pk_mul_f32 {v(t,2)}, {v(t,2)}, {v(z,2)}',
                  f'v_exp_f32 v{t}, v{t}', f'v_exp_f32 v{t+1}, v{t+1}',
                  f'v_pk_fma_f32 {v(t,2)}, {v(t,2)}, {ms}, {ms} op_sel:[0,1,1] op_sel_hi:[1,1,1]',
                  f'v_rcp_f32 v{t}, v{t}', f'v_rcp_f32 v{t+1}, v{t+1}',
                  f'v_pk_mul_f32 {v(z,2)}, {v(z,2)}, {v(t,2)}']
            for n_, (x, y) in enumerate(zip(*st)):
                if ER and n_ % ER == 0: dma.pre()
                k(x); dma.fire(); k(y)
    for T_ in z2t: gelu(T_, 2 if hiw else int(E('FB_ER', 10)), tks)
    mark(k, 6, 'B')
    for sg in range(4):
        s1 = G + 2*sg; s2 = G + 8 + 2*sg; first = True
        for T_ in z2t:
            z = AC[T_] + 4*sg
            if first:
                k(f'v_pk_add_f32 {v(s1,2)}, {v(z,2)}, {v(z+2,2)}\nv_pk_mul_f32 {v(s2,2)}, {v(z,2)}, {v(z,2)}')
            else:
                k(f'v_pk_add_f32 {v(s1,2)}, {v(s1,2)}, {v(z,2)}\nv_pk_add_f32 {v(s1,2)}, {v(s1,2)}, {v(z+2,2)}')
                k(f'v_pk_fma_f32 {v(s2,2)}, {v(z,2)}, {v(z,2)}, {v(s2,2)}')
            k(f'v_pk_fma_f32 {v(s2,2)}, {v(z+2,2)}, {v(z+2,2)}, {v(s2,2)}')
            first = False
    for q in range(8): k(f'v_add_f32 v{G+2*q}, v{G+2*q}, v{G+2*q+1}')
    for b in (G, G+8): k(f'v_permlane32_swap_b32 v{b}, v{b+4}\nv_permlane32_swap_b32 v{b+2}, v{b+6}')
    for b in (G, G+8): k(f'v_add_f32 v{b}, v{b}, v{b+4}\nv_add_f32 v{b+2}, v{b+2}, v{b+6}')
    for b in (G, G+8): k(f'v_permlane16_swap_b32 v{b}, v{b+2}')
    k(f'v_add_f32 v{T}, v{G}, v{G+2}\nv_add_f32 v{T+1}, v{G+8}, v{G+10}')
    lg.issue(f'ds_write_b64 v27, {v(T,2)}')
    def barX():
        k('s_barrier')
        mark(k, 9); mark(k, 7, 'B')
    lg.all()
    if not hiw:
        barX()
        L = k.lab('npub')
        k(f's_cmp_lg_u32 s16, 0\ns_cbranch_scc1 {L}')
        k(f'v_lshlrev_b32 v9, 3, v1\nv_add_u32 v2, {PART}, v9')
        for w in range(4): k(f'ds_read_b64 {v(G+2*w,2)}, v2 offset:{512*w}')
        k('s_lshl_b32 s36, s18, 9\ns_add_u32 s36, s36, s29')
        k('s_waitcnt lgkmcnt(0)')
        k(f'v_pk_add_f32 {v(G,2)}, {v(G,2)}, {v(G+2,2)}\nv_pk_add_f32 {v(G+4,2)}, {v(G+4,2)}, {v(G+6,2)}\nv_pk_add_f32 {v(G,2)}, {v(G,2)}, {v(G+4,2)}')
        k(f'buffer_store_dwordx2 {v(G,2)}, v9, s[8:11], s36 offen sc1')
        k(f'{L}:')
    while dma.q: dma.one()
    if T2E < 5: vm.wait(dma.tok[103.5])
    def readB():
        stg_read(dma, lg, 4); stg_read(dma, lg, 5)
    def startC():
        lg.all()
        stg_items(dma, 6); stg_items(dma, 7)
    tk = {}
    def statloads():
        for q in range(8):
            vm.issue(f'buffer_load_dwordx2 {v(G+2*q,2)}, v25, s[8:11], s29 offen offset:{q*512} sc1')
        tk['s'] = vm.n
    def z1out(T_, jexpr_sreg):
        k(f's_mul_i32 s36, s20, 6144\ns_add_u32 s36, s36, {jexpr_sreg}\ns_mul_i32 s35, s20, 12288\ns_sub_u32 s35, s36, s35')
        k('v_add_u32 v2, s36, v5\nv_add_u32 v3, s35, v5')
        for sg in range(4):
            z = AC[T_] + 4*sg
            k(f'v_cvt_pk_bf16_f32 v{z}, v{z}, v{z+1}\nv_cvt_pk_bf16_f32 v{z+1}, v{z+2}, v{z+3}')
            lg.issue(f'ds_write_b64 v{2 + sg//2}, {v(z,2)} offset:{3072*sg}')
    def normalize():
        if hiw: k('s_add_u32 s30, s16, 2')
        else: k('s_lshl_b32 s30, s16, 1')
        k(f's_mul_i32 s31, s18, 6\ns_add_u32 s30, s30, s31\ns_mul_i32 s30, s30, {ZS}\ns_lshl_b32 s31, s17, 11\ns_add_u32 s30, s30, s31\ns_add_u32 s30, s30, {WS_Z2:#x}')
        k('s_lshl_b32 s31, s20, 10\ns_add_u32 s32, s30, s31\ns_xor_b32 s31, s31, 1024\ns_add_u32 s33, s30, s31')
        mark(k, 10); mark(k, 9 if hiw else 8, 'B')
        vm.wait(tk['s'])
        Lp = k.lab('spoll'); Lok = k.lab('sok')
        k('s_mov_b32 s37, 0')
        k(f'{Lp}:')
        k(f'v_min_f32 v2, v{G+1}, v{G+3}')
        for q in range(2, 8, 2): k(f'v_min3_f32 v2, v2, v{G+2*q+1}, v{G+2*q+3}')
        k('v_cmp_gt_f32 vcc, 0, v2')
        k(f's_cbranch_vccz {Lok}')
        k(f's_add_u32 s37, s37, 1\ns_cmp_gt_u32 s37, {SPIN}')
        k(f's_cbranch_scc1 {Lok}')
        n0 = vm.n; statloads(); vm.n = n0
        k('s_waitcnt vmcnt(0)')
        k(f's_branch {Lp}')
        k(f'{Lok}:')
        mark(k, 11); mark(k, 11 if hiw else 10, 'B')
        for st in (8, 4, 2):
            for q in range(0, st, 2): k(f'v_pk_add_f32 {v(G+q,2)}, {v(G+q,2)}, {v(G+q+st,2)}')
        k(f'v_mov_b32 v4, {fl(1/768)}')
        k(f'v_mul_f32 v{G}, v4, v{G}\nv_mul_f32 v{G+2}, v{G}, v{G}\nv_fma_f32 v{G+1}, v{G+1}, v4, -v{G+2}\nv_max_f32 v{G+1}, 0, v{G+1}')
        ln_finish(k, G, G+1, G+2)
        k(f'v_mul_f32 v{G}, v{G}, -v{G+1}')
        N = G + 8
        for e in range(2): k(f'v_mov_b32 v{N+e}, v{G+e}\nv_mov_b32 v{N+4+e}, v{G+e}')
        for e in range(2): k(f'v_permlane32_swap_b32 v{N+e}, v{N+4+e}')
        for e in range(2): k(f'v_mov_b32 v{N+2+e}, v{N+e}\nv_mov_b32 v{N+6+e}, v{N+4+e}')
        for e in range(2): k(f'v_permlane16_swap_b32 v{N+e}, v{N+2+e}\nv_permlane16_swap_b32 v{N+4+e}, v{N+6+e}')
        for T_ in z2t:
            for sp in range(2):
                P = AC[T_] + 8*sp
                for u_ in range(2):
                    sg = 2*sp + u_; z = AC[T_] + 4*sg; ms = v(N+2*sg, 2)
                    for hp in range(2):
                        k(f'v_pk_fma_f32 {v(z+2*hp,2)}, {v(z+2*hp,2)}, {ms}, {ms} op_sel:[0,1,0] op_sel_hi:[1,1,0]')
                    k(f'v_cvt_pk_bf16_f32 v{P+2*u_}, v{z}, v{z+1}\nv_cvt_pk_bf16_f32 v{P+2*u_+1}, v{z+2}, v{z+3}')
                k(f'v_permlane16_swap_b32 v{P}, v{P+2}\nv_permlane16_swap_b32 v{P+1}, v{P+3}')
                if T_ == 1: k(f's_add_u32 s{32+sp}, s{32+sp}, {ZS}')
                vm.issue(f'buffer_store_dwordx4 {v(P,4)}, v26, s[8:11], s{32+sp} offen sc1')
        k(f's_lshl_b32 s30, s18, 5\ns_add_u32 s31, s30, s17\ns_lshl_b32 s31, s31, 7\ns_add_u32 s31, s31, {F2:#x}')
        tk['z'] = vm.n
        mark(k, 13 if hiw else 12, 'B')
    def sig():
        signal(k, vm, 's31', tk['z'])
        mark(k, 12); mark(k, 14, 'B')
    R2 = float(E('FB_RATE2', 2))
    def mkhooks(pairs):
        d = {}
        for g, f in pairs: d.setdefault(g, []).append(f)
        return {g: (lambda fs=fs: [f() for f in fs]) for g, fs in d.items()}
    phaseC_bases(k)
    if not hiw:
        h = [int(x) for x in E('FB_H01', '13,6,14,11,18').split(',')]
        assert h[0] >= 8 and h[2] >= h[0]
        hk = mkhooks(zip(h, [readB, statloads, startC, normalize, sig]))
        gemm_loop(k, lg, dma, 0, 20, reads, mk([2], False), lambda g: -1, 1000, R2, hooks=hk)
        if 20 in hk: hk[20]()
        gelu(2, 2)
        if 21 in hk: hk[21]()
        k(f's_lshl_b32 s34, s20, 3\ns_add_u32 s34, s34, {Z1L}')
        z1out(2, 's34')
        while dma.q: dma.one()
        k(f'v_and_b32 v2, 31, v1\nv_lshlrev_b32 v2, 7, v2\ns_lshl_b32 s30, s30, 7\ns_add_u32 s30, s30, {F2:#x}')
        poll(k, vm, 2, 's30')
        k('s_barrier')
        mark(k, 13)
        for s_ in range(NPRO):
            for hk_ in range(2):
                for jf in range(2):
                    k(f's_add_u32 s27, s21, {hk_*32768 + jf*ZS + s_*2048}\ns_add_u32 m0, s56, {s_*16384 + hk_*8192 + jf*2048}')
                    for hf in range(2): k(f'buffer_load_dwordx4 v5, s[8:11], s27 offen offset:{hf*1024} sc1 lds')
            if s_ == 0: stg_read(dma, lg, 6, False); stg_read(dma, lg, 7, False)
    else:
        h = [int(x) for x in E('FB_H23', '3,11,7,12,10,14').split(',')]
        assert h[1] >= 8 and h[3] >= h[1]
        hk = mkhooks(zip(h, [barX, readB, statloads, startC, normalize, sig]))
        gemm_loop(k, lg, dma, 0, 20, reads, mk([1, 2], False), lambda g: -1, 1000, 2*R2, hooks=hk)
        lg.all()
        YP = int(E('FB_YP', 1))
        if YP == 0: k('s_barrier')
        gelu(1, 2)
        while dma.q: dma.one()
        if YP == 1: k('s_barrier')
        k(f's_lshl_b32 s34, s20, 10\ns_add_u32 s34, s34, {Z1L+1024}')
        z1out(1, 's34')
        gelu(2)
        k('s_add_u32 s34, s34, 8')
        z1out(2, 's34')
        stg_read(dma, lg, 6); stg_read(dma, lg, 7)
        mark(k, 15, 'B')
    lg.all()

NPRO = int(E('FC_NPRO', 4)); P1S = int(E('FD_P1S', 0))
def phaseC_bases(k):
    k(f's_mul_i32 s21, s18, 6\ns_add_u32 s21, s21, s20\ns_mul_i32 s21, s21, {ZS}\ns_lshl_b32 s36, s19, 15\ns_add_u32 s21, s21, s36\ns_add_u32 s21, s21, {WS_Z2:#x}')
    k(f's_add_u32 s54, s21, {4*ZS}\ns_mul_i32 s36, s20, {ZS}\ns_add_u32 s21, s21, s36\ns_lshl_b32 s56, s16, 12')

WOB = [((17+c) % 7)*16384 for c in range(7)] + [114688]
def waddr(q):
    o = WOB[q//16] + (q % 16)*1024
    return f'v5 offset:{o}' if o < 61440 else f'v6 offset:{o-61440}'

def flag_store(k, soff):
    L = k.lab('sig')
    k(f's_cmp_lg_u32 s16, 0\ns_cbranch_scc1 {L}')
    k('v_mov_b32 v2, 0\nv_mov_b32 v3, s6\ns_mov_b64 exec, 1')
    k(f'buffer_store_dword v3, v2, s[8:11], {soff} offen sc1')
    k('s_mov_b64 exec, -1')
    k(f'{L}:')

def phaseCD(k):
    vm = Cnt(k, 'vmcnt', 63); lg = Cnt(k, 'lgkmcnt', 15)
    dma = Dma(k, vm)
    NS = 7; RED = 122880
    k(f's_mul_i32 s22, s18, 122880\ns_add_u32 s22, s22, {WS_WO:#x}\ns_lshr_b32 s25, s56, 1\ns_add_u32 s26, s22, s25\ns_add_u32 s22, s22, s56')
    mark(k, 0, 'C')
    GS = [int(x) for x in E('FC_GS', '0,1,2,4,6,8,10,12,14,16,17,18,19,20,21,22,23').split(',')]
    grp = lambda st: max(i for i, f in enumerate(GS) if f <= st)
    def freeat(X):
        c = [i for i, f in enumerate(GS) if f >= X+2]
        return c[0] if c else 99
    for s_ in range(NPRO): vm.n += 8; dma.tok[grp(s_)] = vm.n
    for s_ in range(NPRO, 24):
        sl = s_ % NS; af = freeat(s_ - NS) if s_ >= NS else 0
        assert af < grp(s_)
        for q in range(4):
            if s_ < 16:
                jf, hf = q//2, q % 2
                pre = [f's_add_u32 s27, s21, {jf*ZS + (s_ % int(E("X_ZM", 99)))*2048}', f's_add_u32 m0, s56, {sl*16384 + jf*2048}'] if hf == 0 else []
                off = hf*1024
            else:
                pre = [f's_add_u32 s27, s54, {(s_-16)*4096}' if not E('X_ZM') else f's_add_u32 s27, s21, {(s_ % 2)*4096}', f's_add_u32 m0, s56, {sl*16384}'] if q == 0 else []
                off = q*1024
            dma.add(pre, f'buffer_load_dwordx4 v5, s[8:11], s27 offen offset:{off} sc1 lds', grp(s_), af)
    for c in range(7):
        for q in range(4):
            pre = [f's_add_u32 s27, s22, {c*16384}', f's_add_u32 m0, s56, {WOB[c]}'] if q == 0 else []
            dma.add(pre, f'buffer_load_dwordx4 v5, s[8:11], s27 offen offset:{q*1024} sc1 lds', 150+c, freeat(17+c))
    for q in range(2):
        pre = [f's_add_u32 s27, s26, {7*16384}', f's_add_u32 m0, s25, {WOB[7]}'] if q == 0 else []
        dma.add(pre, f'buffer_load_dwordx4 v5, s[8:11], s27 offen offset:{q*1024} sc1 lds', 157, 99)
    ZA = 16
    k('v_bfe_u32 v2, v1, 2, 2\nv_and_b32 v3, 1, v8\nv_lshl_add_u32 v2, v3, 2, v2\nv_lshrrev_b32 v3, 1, v8\nv_lshl_add_u32 v2, v3, 4, v2')
    k('v_and_b32 v3, 3, v1\nv_lshlrev_b32 v3, 3, v3\nv_lshl_add_u32 v2, v2, 5, v3')
    k('s_lshl_b32 s36, s19, 13')
    k(f'v_add_u32 v{ZA}, s36, v2\nv_add_u32 v{ZA+1}, 0x10000, v{ZA}')
    k('s_lshl_b32 s23, s20, 1\ns_add_u32 s23, s23, s19')
    k('s_lshl_b32 s36, s17, 2\ns_add_u32 s24, s36, s23')
    k('s_lshl_b32 s36, s24, 5')
    k('v_lshl_add_u32 v2, v7, 1, s36')
    BS = 20
    tB = vm.issue(f'global_load_ushort v{BS}, v2, s[38:39]')
    k(f's_mul_i32 s36, s16, 6144\ns_add_u32 s36, s36, {RED}\ns_xor_b32 s35, s16, 2\ns_mul_i32 s35, s35, 6144\ns_add_u32 s35, s35, {RED}')
    k('v_add_u32 v11, s36, v5\nv_add_u32 v12, s35, v5\nv_add_u32 v6, 61440, v5')
    k(f's_mul_i32 s36, s23, 3072\ns_add_u32 s36, s36, {Z1L}\nv_add_u32 v19, s36, v5')
    k(f's_mul_i32 s30, s24, 24576\ns_lshl_b32 s31, s18, 10\ns_add_u32 s30, s30, s31\ns_add_u32 s30, s30, {WS_P:#x}\ns_add_u32 s29, s30, 16384\ns_add_u32 s30, s30, s31')
    k(f's_lshl_b32 s28, s17, 10\ns_lshl_b32 s31, s18, 7\ns_add_u32 s31, s31, s28\ns_add_u32 s33, s31, {F3A:#x}\ns_add_u32 s31, s31, {F3:#x}')
    k(f's_add_u32 s34, s28, {F3A:#x}\ns_add_u32 s28, s28, {F3:#x}')
    k('v_and_b32 v13, 7, v1\nv_lshlrev_b32 v13, 7, v13')
    FR = 68
    def accr(ft, tau): return 116 + 16*tau + 4*ft if ft < 4 else 148 + 8*tau + 4*(ft-4)
    lg.all()
    mark(k, 1, 'C')
    dma.sync(0)
    mark(k, 2, 'C')
    def reads(g):
        s_, hf = g // 2, g % 2; sl = s_ % NS; b = FR + 16*(g % 3)
        ar = ZA + sl//4; off = (sl % 4)*16384
        out = []
        for q in range(4):
            o = off + (q*2048 + hf*1024 if g < 32 else (q % 2)*4096 + (2*hf + q//2)*1024)
            out += [f'ds_read_b64_tr_b16 {v(b+4*q,2)}, v{ar} offset:{o}', f'ds_read_b64_tr_b16 {v(b+4*q+2,2)}, v{ar} offset:{o+256}']
        return out
    def mfmas(g):
        b = FR + 16*(g % 3); out = []
        for q in range(4):
            ft, ks = (q, g) if g < 32 else (4 + q % 2, 2*(g-32) + q//2)
            if E('X_M32'):
                d = 116 + 16*(q//2) if g < 32 else 148
                z = (g == 0 and q % 2 == 0) or (g == 32 and q == 0)
                out.append(f'v_mfma_f32_32x32x16_bf16 {v(d,16)}, {v(b+4*q,4)}, {wreg(ks//4, 8*(ks % 4)+4*(q % 2))}, {"0" if z else v(d,16)}')
                continue
            for tau in range(2):
                d = accr(ft, tau)
                out.append(f'{MF} {v(d,4)}, {v(b+4*q,4)}, {wreg(ks//4, 8*(ks % 4)+4*tau)}, {"0" if ks == 0 else v(d,4)}')
        return out
    ZR = 24; TT = 36
    tk = {}
    def z1rd():
        for q in range(3): lg.issue(f'ds_read_b128 {v(ZR+4*q,4)}, v19 offset:{1024*q}')
        vm.wait(tB)
        k(f'v_lshlrev_b32 v{BS}, 16, v{BS}')
    def redw(fts):
        for ft in fts: lg.issue(f'ds_write_b128 v11, {v(accr(ft,1),4)} offset:{1024*ft}')
        lg.all()
    def redr(fts):
        for ft in fts: tk[ft] = lg.issue(f'ds_read_b128 {v(accr(ft,1),4)}, v12 offset:{1024*ft}')
    def epi(fts):
        for ft in fts:
            d = accr(ft, 0); z = ZR + 2*ft; P = accr(ft & ~1, 0) + 2*(ft % 2)
            lg.wait(tk[ft])
            for hp in range(2):
                k(f'v_pk_add_f32 {v(d+2*hp,2)}, {v(d+2*hp,2)}, {v(accr(ft,1)+2*hp,2)}')
                k(f'v_lshlrev_b32 v{TT+2*hp}, 16, v{z+hp}\nv_and_b32 v{TT+2*hp+1}, 0xffff0000, v{z+hp}')
                k(f'v_pk_add_f32 {v(d+2*hp,2)}, {v(d+2*hp,2)}, {v(BS,2)} op_sel_hi:[1,0]')
                k(f'v_pk_mul_f32 {v(d+2*hp,2)}, {v(d+2*hp,2)}, {v(TT+2*hp,2)}')
            k(f'v_cvt_pk_bf16_f32 v{P}, v{d}, v{d+1}\nv_cvt_pk_bf16_f32 v{P+1}, v{d+2}, v{d+3}')
            if ft % 2:
                tk['p'] = vm.issue(f'buffer_store_dwordx4 {v(P-2,4)}, v5, s[8:11], ' + (f's30 offen offset:{(ft//2)*1024} sc1' if ft < 4 else 's29 offen sc1'))
    def issue_poll(sreg): tk['f'] = vm.issue(f'buffer_load_dword v14, v13, s[8:11], {sreg} offen sc1')
    def check_poll(sreg):
        Lo = k.lab('fok')
        vm.wait(tk['f'])
        k(f'v_cmp_ne_u32 vcc, s6, v14\ns_cbranch_vccz {Lo}')
        poll(k, Cnt(k, 'vmcnt', 63), 13, sreg)
        k(f'{Lo}:')
    k(f's_lshl_b32 s23, s17, 2\ns_add_u32 s23, s23, s16\ns_mul_i32 s32, s23, 24576\ns_add_u32 s32, s32, {WS_P:#x}')
    PFR = list(range(116, 148, 4)) + list(range(164, 180, 4)) + list(range(68, 116, 4)); ACC = 232
    pt = []
    def pld(lim):
        g = len(pt)
        if g >= lim: return False
        if g % 4 == 0 and g: k('s_add_u32 s32, s32, 4096')
        pt.append(vm.issue(f'buffer_load_dwordx4 {v(PFR[g],4)}, v5, s[8:11], s32 offen offset:{(g % 4)*1024} sc1'))
        return True
    k('s_mov_b32 s24, s32')
    h = [int(x) for x in E('FC_H', '32,33,34,38,46').split(',')]
    assert h[0] >= 32 and h[0] % 2 == 0 and h[3] % 2 == 0 and (h[0]+2)//2 in GS and (h[3]+2)//2 in GS
    hooks = {30: z1rd, h[0]: lambda: redw(range(4)), h[1]: lambda: redr(range(4)), h[2]: lambda: epi(range(4)),
             h[3]: lambda: vm.wait(tk['p']), h[3]+1: lambda: flag_store(k, 's33'), h[4]: lambda: issue_poll('s34')}
    if P1S:
        for q in (h[3], h[3]+1, h[4]): del hooks[q]
        for g in range(int(E('FD_G1', 44)), 48): hooks[g] = lambda: [pld(12) for _ in range(int(E('FD_N1', 2)))]
    for i in range(1, 4): hooks[8*i] = (lambda i=i: mark(k, 2+i, 'C'))
    dma.novm = int(E('X_NOVM', 0)); dma.nobar = int(E('X_NOBAR', 0)); dma.nodma = int(E('X_NODMA', 0))
    gemm_loop(k, lg, dma, 0, 48, reads, mfmas, lambda g: grp(g//2), 1000, float(E('FC_RATE', 3)), hooks=hooks)
    while dma.ready(): dma.one()
    mark(k, 14); mark(k, 11, 'C'); mark(k, 0, 'D')
    SG = int(E('FD_SG', 0))
    P0 = int(E('FD_P0', 6))
    for ft in (4, 5): lg.issue(f'ds_write_b128 v11, {v(accr(ft,1),4)} offset:{1024*ft}')
    if P0:
        if not P1S: check_poll('s34')
        while len(pt) < P0: pld(16)
    if SG >= 0: vm.wait(dma.tok[152])
    lg.all()
    k('s_barrier'); dma.bar = 99
    dma.upto(154)
    redr((4, 5))
    epi((4, 5))
    mark(k, 1, 'D')
    if not P0 and not P1S: check_poll('s34')
    while len(pt) < int(E('FD_PRE', 8)): pld(16)
    k('s_mul_i32 s33, s23, 20480\ns_mul_i32 s34, s18, 160\ns_add_u32 s33, s33, s34')
    k('v_mul_u32_u24 v9, 1280, v7\nv_lshl_add_u32 v10, v8, 3, v9')
    k('v_and_b32 v3, 1, v8\nv_lshl_add_u32 v9, v3, 5, v9\nv_lshrrev_b32 v3, 1, v8\nv_lshl_add_u32 v9, v3, 4, v9')
    mark(k, 2, 'D')
    ft = {}
    def rd(g): return [f'ds_read_b128 {a(20*(g % 3)+4*j,4)}, {waddr(5*g+j)}' for j in range(5)]
    for g in range(2):
        for r in rd(g): ft[g] = lg.issue(r)
    GP = int(E('FD_GP', 10)); B1 = int(E('FD_B1', 5)); B2 = int(E('FD_B2', 13))
    assert B1 <= 7 and B2 <= 14
    def pcheck(g0, g1):
        Lr = k.lab('p2r'); Lo = k.lab('p2o')
        while pld(g1): pass
        vm.wait(pt[g1-1])
        k('s_mov_b32 s37, 0')
        k(f'{Lr}:')
        regs = [PFR[g]+q for g in range(g0, g1) for q in range(4)]
        k(f'v_max3_u32 v2, v{regs[0]}, v{regs[1]}, v{regs[2]}\nv_max3_u32 v3, v{regs[3]}, v{regs[4]}, v{regs[5]}')
        for q in range(6, len(regs), 2): k(f'v_max3_u32 v{2 + (q//2) % 2}, v{2 + (q//2) % 2}, v{regs[q]}, v{regs[q+1]}')
        k('v_max_u32 v2, v2, v3\nv_cmp_eq_u32 vcc, -1, v2')
        k(f's_cbranch_vccz {Lo}')
        k(f's_add_u32 s37, s37, 1\ns_cmp_gt_u32 s37, {SPIN//8}\ns_cbranch_scc1 {Lo}')
        for g in range(g0, g1):
            if g % 4 == 0: k(f's_add_u32 s36, s24, {g*1024}')
            k(f'buffer_load_dwordx4 {v(PFR[g],4)}, v5, s[8:11], s36 offen offset:{(g % 4)*1024} sc1')
        k('s_waitcnt vmcnt(0)')
        k(f's_branch {Lr}')
        k(f'{Lo}:')
    CK = [int(x) for x in E('FD_CK', '0,4,8,12,16,20,24' if P1S else '16,20,24').split(',')]
    for g in range(24):
        if g == B1:
            vm.wait(dma.tok[154]); k('s_barrier')
            mark(k, 15); mark(k, 3, 'D')
        if g == B2:
            while dma.q: dma.one()
            vm.wait(dma.tok[157]); k('s_barrier')
        if g == 16: mark(k, 6, 'D')
        if g in CK: pcheck(g, CK[CK.index(g)+1])
        if g == 16: mark(k, 7, 'D')
        vm.wait(pt[g])
        lg.wait(ft[g])
        if g in (0, 8): mark(k, 4+g//8, 'D')
        rr = rd(g+2) if g+2 < 24 else []
        for j in range(5):
            if j in (0, 3) and len(pt) >= 16: dma.pre()
            k(f'{MF} {v(ACC+4*j,4)}, {a(20*(g % 3)+4*j,4)}, {v(PFR[g],4)}, {"0" if g == 0 else v(ACC+4*j,4)}')
            if j in (0, 3):
                if dma.pend is not None: dma.fire()
                else: pld(16 if g < GP else 24)
            if j == 1 and g >= GP: pld(24)
            if rr: ft[g+2] = lg.issue(rr.pop(0))
    TT = 36
    mark(k, 8, 'D')
    OST = E('F_OST', '')
    for j in range(5):
        d = ACC + 4*j; P = ACC + 8*(j//2) + 2*(j % 2)
        for hp in range(2):
            k(f'v_lshlrev_b32 v{TT+2*hp}, 16, v{RES+2*j+hp}\nv_and_b32 v{TT+2*hp+1}, 0xffff0000, v{RES+2*j+hp}')
            k(f'v_pk_add_f32 {v(d+2*hp,2)}, {v(d+2*hp,2)}, {v(TT+2*hp,2)}')
        k(f'v_cvt_pk_bf16_f32 v{P}, v{d}, v{d+1}\nv_cvt_pk_bf16_f32 v{P+1}, v{d+2}, v{d+3}')
        if j % 2:
            k(f'v_permlane16_swap_b32 v{P-2}, v{P}\nv_permlane16_swap_b32 v{P-1}, v{P+1}')
            k(f'buffer_store_dwordx4 {v(P-2,4)}, v9, s[40:43], s33 offen offset:{32*(j-1)} {OST}')
        elif j == 4:
            k(f'buffer_store_dwordx2 {v(P,2)}, v10, s[40:43], s33 offen offset:128 {OST}')

def helper0(k, vm):
    lg = Cnt(k, 'lgkmcnt', 15)
    k('v_lshrrev_b32 v2, 2, v1\nv_and_b32 v3, 3, v1\nv_mul_u32_u24 v2, 160, v2\nv_lshl_add_u32 v2, v3, 3, v2\ns_lshl_b32 s27, s16, 5\nv_add_u32 v57, s27, v2')
    tk = []
    for p in range(5):
        lg.issue(f'ds_read_b64_tr_b16 {v(12+4*p,2)}, v57 offset:{p*5120}')
        tk.append(lg.issue(f'ds_read_b64_tr_b16 {v(14+4*p,2)}, v57 offset:{p*5120+2560}'))
    for r in range(4): k(f'v_mov_b32 v{48+r}, 0x3f803f80')
    k('s_and_b32 s45, s44, 3\ns_and_b32 s46, s44, -4\ns_add_u32 s46, s46, s16')
    k(f's_mul_i32 s47, s46, 20\ns_mul_i32 s50, s45, 5\ns_add_u32 s47, s47, s50\ns_lshl_b32 s47, s47, 10\ns_add_u32 s47, s47, {WS_W1:#x}\ns_add_u32 s50, s47, 4096')
    for p in range(5):
        lg.wait(tk[p])
        k(f'{MF} v[44:47], {v(12+4*p,4)}, v[48:51], {"0" if p == 0 else "v[44:47]"}')
        vm.issue(f'buffer_store_dwordx4 {v(12+4*p,4)}, v5, s[8:11], ' + (f's47 offen offset:{p*1024} sc1' if p < 4 else 's50 offen sc1'))
    k(f's_mul_i32 s47, s45, 6144\ns_lshl_b32 s50, s46, 6\ns_add_u32 s47, s47, s50\ns_add_u32 s47, s47, {WS_CS:#x}')
    k('v_lshlrev_b32 v2, 4, v8')
    k('s_mov_b32 exec_lo, 0x00010001\ns_mov_b32 exec_hi, 0x00010001')
    tS = vm.issue('buffer_store_dwordx4 v[44:47], v2, s[8:11], s47 offen sc1')
    k('s_mov_b64 exec, -1')
    for p in range(3):
        vm.issue(f'global_load_dwordx4 {v(164+4*p,4)}, v191, s[48:49]')
        if p < 2: k(f'v_add_u32 v191, {32*1280}, v191')
    k(f's_lshl_b32 s47, s44, 7\ns_add_u32 s47, s47, {F0B:#x}')
    mark(k, 12, 'H')
    signal(k, vm, 's47', tS)

def helper1(k):
    for p in range(3): k(f'ds_write_b128 v56, {v(164+4*p,4)} offset:{p*5120}')
    k('s_lshr_b32 s47, s44, 3\ns_lshl_b32 s47, s47, 2\ns_add_u32 s47, s47, s16\ns_mul_i32 s48, s47, 52\ns_lshr_b32 s48, s48, 8\ns_mul_i32 s49, s48, 5\ns_sub_u32 s49, s47, s49')
    k(f's_and_b32 s47, s44, 7\ns_mul_i32 s50, s47, 5120\ns_mul_i32 s48, s48, 120\ns_add_u32 s47, s48, s49\ns_lshl_b32 s47, s47, 10\ns_add_u32 s47, s47, {WS_WO:#x}\ns_add_u32 s47, s47, s50\ns_add_u32 s51, s47, {16*5120}\ns_add_u32 s47, s47, s50')
    k('s_waitcnt lgkmcnt(0)\ns_barrier')
    for p in range(3):
        k(f'ds_read_b64_tr_b16 {v(12+4*p,2)}, v57 offset:{p*5120}\nds_read_b64_tr_b16 {v(14+4*p,2)}, v57 offset:{p*5120+2560}')
    k('s_waitcnt lgkmcnt(0)\ns_barrier')
    L = k.lab('nwo')
    k(f's_cmp_ge_u32 s44, 80\ns_cbranch_scc1 {L}')
    for p in range(3):
        k(f'buffer_store_dwordx4 {v(12+4*p,4)}, v5, s[8:11], s{47 if p < 2 else 51} offen sc1')
        if p == 0: k('s_add_u32 s47, s47, 5120')
    k(f'{L}:')

def gen_ks():
    k = Kern(NAME, 256, 256, 163840)
    k.short = 'ks'
    Lend = 'Lks_end'
    k(f's_cmp_ge_u32 s2, 256\ns_cbranch_scc1 {Lend}')
    stamp_begin(k)
    k('s_load_dwordx16 s[44:59], s[0:1], 0')
    k('s_load_dwordx2 s[6:7], s[0:1], 112')
    k('s_load_dwordx4 s[28:31], s[0:1], 96')
    k('s_load_dwordx8 s[20:27], s[0:1], 64')
    k('s_memrealtime s[4:5]')
    k('s_getpc_b64 s[18:19]')
    k('Lks_pc:')
    k(f's_sub_u32 s18, s18, Lks_pc-{NAME}\ns_subb_u32 s19, s19, 0')
    k('s_lshr_b32 s17, s2, 3\ns_lshl_b32 s17, s17, 11')
    k(f'v_lshrrev_b32 v2, 4, v0\nv_lshlrev_b32 v2, 7, v2\nv_add_u32 v2, s17, v2\nv_min_u32 v2, Lcode_end-{NAME}-4, v2')
    k('global_load_dword v239, v2, s[18:19]')
    k('v_lshrrev_b32 v5, 6, v0')
    k('v_readfirstlane_b32 s16, v5')
    k('v_and_b32 v1, 63, v0\nv_lshlrev_b32 v5, 4, v1\nv_and_b32 v7, 15, v1\nv_lshrrev_b32 v8, 4, v1')
    k('v_lshrrev_b32 v2, 5, v0\nv_and_b32 v3, 31, v0\nv_lshlrev_b32 v3, 3, v3')
    k('v_mul_u32_u24 v50, 1280, v2\ns_mul_i32 s3, s2, 10240\nv_add3_u32 v50, v50, v3, s3')
    k(f'v_mul_u32_u24 v51, 1344, v2\nv_add_u32 v51, v51, v3\nv_add_u32 v51, {LNB}, v51')
    ln1_addr(k)
    k('s_lshl_b32 s3, s2, 2\ns_add_u32 s3, s3, s16')
    k('s_mul_i32 s17, s3, 384\nv_lshl_add_u32 v2, v1, 1, s17\ns_lshl_b32 s17, s3, 1\nv_mov_b32 v3, s17')
    for r in list(range(PR, PR+13)) + [AUX, AP0, AST, 190, 191, 132, 133, 134, 135]: k(f'v_mov_b32 v{r}, 0')
    k('s_lshl_b32 s34, s3, 1\ns_and_b32 s34, s34, -4')
    k('s_waitcnt lgkmcnt(0)')
    L = k.lab('nnw')
    k(f's_cmp_lg_u32 s3, 0\ns_cbranch_scc1 {L}')
    k('s_or_b32 s4, s4, 1\nv_mov_b32 v4, 0\nv_mov_b32 v6, s4\ns_mov_b64 exec, 1')
    k('global_store_dword v4, v6, s[30:31] sc1')
    k('s_mov_b64 exec, -1')
    k(f'{L}:')
    for q in range(5): k(f'global_load_dwordx2 {v(12+2*q,2)}, v50, s[44:45] offset:{q*256}')
    mark(k, 0)
    k('s_cmp_ge_u32 s2, 160\ns_cbranch_scc1 Lks_h0')
    def common_setup():
        srd(k, 8, 6, WS_SIZE); srd(k, 12, 22, 2048*4096); srd(k, 40, 28, 2048*1280)
        k('s_mov_b64 s[32:33], s[30:31]')
        k('s_mov_b64 s[38:39], s[24:25]')
        cb = MAPB
        k(f's_and_b32 s17, s2, 7\ns_lshr_b32 s17, s17, {3-cb}\ns_lshl_b32 s17, s17, {5-cb}\ns_lshr_b32 s18, s2, {3+cb}\ns_add_u32 s17, s17, s18')
        k(f's_and_b32 s18, s2, {(1 << (3-cb))-1}\ns_lshl_b32 s18, s18, {cb}\ns_lshr_b32 s19, s2, 3\ns_and_b32 s19, s19, {(1 << cb)-1}\ns_add_u32 s18, s18, s19')
        k('s_lshr_b32 s19, s16, 1\ns_and_b32 s20, s16, 1')
        k('s_lshl_b32 s25, s16, 1\ns_add_u32 s26, s16, 2\ns_cmp_lt_u32 s16, 2')
        k('s_cselect_b32 s22, s25, s26\ns_add_u32 s22, s22, 48')
        k('s_add_u32 s26, s25, 49\ns_sub_u32 s27, s25, 2\ns_cmp_lt_u32 s16, 2\ns_cselect_b32 s23, s26, s27')
        k('s_sub_u32 s27, s25, 1\ns_cmp_lt_u32 s16, 2\ns_cselect_b32 s24, s16, s27')
        k('s_mul_i32 s25, s18, 6')
        for r in (22, 23, 24): k(f's_add_u32 s{r}, s{r}, s25\ns_lshl_b32 s{r+35}, s{r}, 6\ns_add_u32 s{r+35}, s{r+35}, {WS_CS:#x}\ns_mul_i32 s{r}, s{r}, 20480\ns_add_u32 s{r}, s{r}, {WS_W1:#x}')
        k(f's_lshl_b32 s29, s17, 12\ns_add_u32 s29, s29, {WS_ST:#x}')
        k('s_lshl_b32 s27, s18, 9\ns_add_u32 s27, s27, s29\ns_lshl_b32 s26, s16, 7\ns_add_u32 s27, s27, s26')
        k('v_lshlrev_b32 v2, 3, v7\nv_mov_b32 v10, -1.0\nv_mov_b32 v11, -1.0')
        k('buffer_store_dwordx2 v[10:11], v2, s[8:11], s27 offen sc1')
    k('global_load_short_d16_hi v68, v3, s[54:55]')
    for g in range(3):
        for i in range(4): k(f'global_load_short_d16_hi v{PR+4*g+i}, v2, s[{46+2*i}:{47+2*i}] offset:{128*g}')
    k('s_load_dword s35, s[56:57], s34')
    PFS = int(E('C_PFS', 0))
    k('s_mov_b64 s[4:5], s[20:21]\ns_mov_b64 s[36:37], s[26:27]')
    PFW = int(E('C_PFW', 0))
    def pfw_addr():
        k('v_min_u32 v2, 23, v1\nv_lshlrev_b32 v2, 7, v2\ns_mul_i32 s27, s3, 3072\nv_add_u32 v2, s27, v2')
        k('v_min_u32 v3, 11, v1\nv_lshlrev_b32 v3, 7, v3\ns_mul_i32 s27, s3, 1536\nv_add_u32 v3, s27, v3')
    if PFW == 2:
        pfw_addr(); k('global_load_dword v190, v2, s[4:5]\nglobal_load_dword v191, v3, s[36:37]')
    common_setup()
    stg_setup(k, 132)
    A0 = int(E('C_A0', 0))
    r = Rec(); conv_early(r)
    if E('C_LATE', '1') == '0': conv_late(r)
    if E('C_BL', '1') == '0': conv_bands(r)
    dq = []
    if A0:
        for q in range(4):
            for j in range(4):
                dq.append(f's_add_u32 s31, s28, {(q//2)*256 + (q % 2)*65536}\ns_add_u32 m0, s26, {q*4096 + j*1024}\nbuffer_load_dwordx4 v{132+j}, s[12:15], s31 offen lds')
    for n, x in enumerate(r.L):
        if n % int(E('C_A0R', 4)) == 0 and n >= int(E('C_A0S', 0)) and dq: k(dq.pop(0))
        k(x)
    for x in dq: k(x)
    if PFW == 1: pfw_addr()
    k(f's_waitcnt vmcnt({14 + 2*(PFW == 2) + 16*A0})')
    if PFW == 1: k('global_load_dword v190, v2, s[4:5]\nglobal_load_dword v191, v3, s[36:37]')
    k('s_branch Lks_ln')
    k('Lks_h0:')
    k('s_mov_b64 s[46:47], s[20:21]\ns_mov_b64 s[48:49], s[26:27]\ns_sub_u32 s44, s2, 160')
    common_setup()
    f0b_addr(k)
    k('v_lshrrev_b32 v2, 3, v0\nv_and_b32 v3, 7, v0\nv_lshlrev_b32 v3, 4, v3')
    k(f's_and_b32 s45, s44, 3\ns_mul_i32 s45, s45, {160*3072}\ns_lshr_b32 s27, s44, 2\ns_lshl_b32 s27, s27, 7\ns_add_u32 s45, s45, s27')
    k('v_mul_u32_u24 v4, 3072, v2\nv_add3_u32 v190, v4, v3, s45')
    k(f's_min_u32 s27, s44, 79\ns_and_b32 s45, s27, 7\ns_mul_i32 s45, s45, {96*1280}\ns_lshr_b32 s27, s27, 3\ns_lshl_b32 s27, s27, 7\ns_add_u32 s45, s45, s27')
    k('v_mul_u32_u24 v4, 1280, v2\nv_add3_u32 v191, v4, v3, s45')
    k('v_mul_u32_u24 v56, 160, v2\nv_add_u32 v56, v56, v3')
    k('s_waitcnt vmcnt(1)')
    k('Lks_ln:')
    mark(k, 1)
    ln1(k)
    k('s_cmp_ge_u32 s2, 160\ns_cbranch_scc1 Lks_h1')
    k('s_and_b32 s50, s3, 1\ns_xor_b32 s50, s50, 1\ns_lshl_b32 s50, s50, 4\ns_lshl_b32 s51, s35, s50\ns_lshr_b32 s51, s51, 16')
    k(f's_waitcnt vmcnt({7 + 2*bool(PFW) + 16*A0})')
    if PFS:
        k('v_lshrrev_b32 v2, 2, v1\nv_lshlrev_b32 v2, 11, v2\nv_and_b32 v3, 3, v1\nv_lshl_add_u32 v2, v3, 7, v2')
        for j in range(PFS):
            k(f's_add_u32 s45, s3, {640*j}\ns_min_u32 s45, s45, 1023')
            k('s_lshr_b32 s27, s45, 8\ns_lshl_b32 s27, s27, 9\ns_and_b32 s45, s45, 255\ns_lshl_b32 s45, s45, 15\ns_add_u32 s45, s45, s27')
            k(f'buffer_load_dword v{186+j}, v2, s[12:15], s45 offen')
    def sig0(nsl):
        k(f's_waitcnt vmcnt({PFS + nsl})')
        get_nonce(k)
        signal(k, Cnt(k, 'vmcnt', 63), 's30')
        mark(k, 2)
    kgen(k, sig0)
    phaseA(k)
    k('s_branch Lks_B')
    k('Lks_h1:')
    k('s_waitcnt vmcnt(5)')
    get_nonce(k)
    vm = Cnt(k, 'vmcnt', 63)
    for p in range(5):
        vm.issue(f'global_load_dwordx4 {v(144+4*p,4)}, v190, s[46:47]')
        if p < 4: k(f'v_add_u32 v190, {32*3072}, v190')
    mark(k, 7, 'H')
    k('s_waitcnt vmcnt(5)')
    mark(k, 8, 'H')
    signal(k, vm, 's30', 0)
    mark(k, 2); mark(k, 9, 'H')
    k('s_waitcnt vmcnt(0)')
    mark(k, 10, 'H')
    for p in range(5): k(f'ds_write_b128 v56, {v(144+4*p,4)} offset:{p*5120}')
    k('s_waitcnt lgkmcnt(0)\ns_barrier')
    k('s_sub_u32 s44, s2, 160')
    mark(k, 11, 'H')
    helper0(k, Cnt(k, 'vmcnt', 63))
    mark(k, 13, 'H')
    mark(k, 3)
    PFH = E('F_PFH', '2,0')
    def touch(js):
        for j in js:
            k(f's_lshl_b32 s45, s44, 2\ns_add_u32 s45, s45, s16\ns_add_u32 s45, s45, {384*j + int(E("F_PFB", 256))}\ns_min_u32 s45, s45, 1023')
            if LIN: k('s_lshl_b32 s45, s45, 13')
            else: k('s_lshr_b32 s46, s45, 8\ns_lshl_b32 s46, s46, 9\ns_and_b32 s45, s45, 255\ns_lshl_b32 s45, s45, 15\ns_add_u32 s45, s45, s46')
            k(f'buffer_load_dword v{100+j}, v99, s[12:15], s45 offen {E("F_PFF", "")}')
    n1, n2 = [int(x) for x in PFH.split(',')]
    LIN = int(E('F_LIN', 0))
    if LIN: k('v_lshlrev_b32 v99, 7, v1')
    else: k('v_lshrrev_b32 v2, 2, v1\nv_lshlrev_b32 v2, 11, v2\nv_and_b32 v3, 3, v1\nv_lshl_add_u32 v99, v3, 7, v2')
    HO = E('H_ORD', 'TA')
    vm = Cnt(k, 'vmcnt', 63); dma = Dma(k, vm)
    def roundA():
        stg_setup(k, 60)
        for q in range(4):
            k(f's_add_u32 s31, s28, {(q//2)*256 + (q % 2)*65536}')
            for j in range(4): k(f's_add_u32 m0, s26, {q*4096 + j*1024}\nbuffer_load_dwordx4 v{60+j}, s[12:15], s31 offen lds')
    for ch in HO:
        if ch == 'A': roundA()
        if ch == 'T': touch(range(n1))
    w1_items(dma, [0, 1])
    k(f's_mov_b32 s47, {F0B:#x}')
    poll(k, vm, [AB0, AB0+1], 's47')
    mark(k, 4)
    H1 = int(E('H_H1', 40))
    for _ in range(H1): dma.one()
    helper1(k)
    while dma.q: dma.one()
    touch(range(n1, n1+n2))
    if 'A' not in HO: roundA()
    k('s_waitcnt vmcnt(28)')
    k('Lks_B:')
    mark(k, 6)
    phaseB_setup(k)
    k(f's_lshl_b32 s36, s20, 8\ns_lshl_b32 s35, s16, 9\ns_add_u32 s35, s35, {PART}')
    k('v_lshlrev_b32 v9, 3, v1\nv_xor_b32 v25, s36, v9\nv_add_u32 v27, s35, v25')
    k('v_and_b32 v2, 3, v7\nv_bfe_u32 v3, v7, 2, 1\nv_lshl_add_u32 v2, v3, 3, v2\nv_bfe_u32 v3, v7, 3, 1\nv_lshl_add_u32 v2, v3, 2, v2')
    k('v_and_b32 v3, 1, v8\nv_lshl_add_u32 v2, v3, 4, v2\nv_lshlrev_b32 v2, 5, v2\nv_lshrrev_b32 v3, 1, v8\nv_lshl_add_u32 v26, v3, 4, v2')
    vm = Cnt(k, 'vmcnt', 63); dma = Dma(k, vm)
    k(f's_lshl_b32 s36, s17, 2\ns_add_u32 s36, s36, s16\ns_mul_i32 s36, s36, 24576\ns_lshl_b32 s35, s18, 10\ns_add_u32 s36, s36, s35\ns_add_u32 s36, s36, {WS_P+16384:#x}')
    for r in range(4): k(f'v_mov_b32 v{G+r}, -1')
    vm.issue(f'buffer_store_dwordx4 {v(G,4)}, v5, s[8:11], s36 offen sc1')
    if P1S:
        k('s_add_u32 s36, s36, s35\ns_sub_u32 s36, s36, 16384')
        for q in range(2): vm.issue(f'buffer_store_dwordx4 {v(G,4)}, v5, s[8:11], s36 offen offset:{q*1024} sc1')
    k('v_lshlrev_b32 v2, 4, v8')
    for p in range(1, 4): k(f'v_add_u32 v{HF+p}, {6144*p}, v2')
    for T_ in range(3):
        vm.issue(f'buffer_load_dwordx4 {v(CS+4*T_,4)}, v2, s[8:11], s{57+T_} offen sc1')
        for p in range(3): vm.issue(f'buffer_load_dwordx4 {v(AC[0]+12*T_+4*p,4)}, v{HF+1+p}, s[8:11], s{57+T_} offen sc1')
    w1_items(dma, [2], 0, range(T2E))
    while dma.q: dma.one()
    k('v_min_u32 v2, 39, v1\nv_lshrrev_b32 v3, 2, v2\nv_and_b32 v2, 3, v2\nv_lshl_add_u32 v2, v3, 4, v2\nv_lshlrev_b32 v2, 7, v2')
    k(f's_lshl_b32 s30, s16, 9\ns_add_u32 s30, s30, {F1:#x}')
    poll(k, vm, 2, 's30')
    mark(k, 7)
    k('s_cmp_ge_u32 s16, 2\ns_cbranch_scc1 Lks_Bhi')
    phaseB(k, False)
    k('s_branch Lks_C')
    k('Lks_Bhi:')
    phaseB(k, True)
    k('Lks_C:')
    phaseCD(k)
    mark(k, 9, 'D')
    stamp_end(k, 2)
    k(f'{Lend}:')
    k('s_endpgm')
    return k
```

```python
from common import *
GC = 0.7978845608028654
K1C = -2*GC*LOG2E
K2C = K1C*0.044715
def a(n, c=1): return 'a%d' % n if c == 1 else 'a[%d:%d]' % (n, n+c-1)
MF = 'v_mfma_f32_16x16x32_bf16'
E = os.environ.get
SPIN = 0x20000
F1, F2, F3, F0, F0B, F3A = [WS_FL + 0x8000*i for i in range(6)]
NAME = 'sequential_preLN__ssm_conv_s4d__mixer_gmlp__prompt_kernel'

def signal(k, vm, soff_expr, tok=None):
    k.nsig = getattr(k, 'nsig', 0) + 1
    if str(k.nsig) not in E('X_NODRAIN', '').split(','): vm.wait(vm.n if tok is None else tok)
    else: print('skip drain at signal', k.nsig, soff_expr)
    k('s_barrier')
    L = k.lab('sig')
    k(f's_cmp_lg_u32 s16, 0\ns_cbranch_scc1 {L}')
    k('v_mov_b32 v2, 0\nv_mov_b32 v3, s6')
    k('s_mov_b64 exec, 1')
    k(f'buffer_store_dword v3, v2, s[8:11], {soff_expr} offen sc1')
    k('s_mov_b64 exec, -1')
    k(f'{L}:')

def poll(k, vm, vaddrs, sreg, data=(3, 4)):
    if isinstance(vaddrs, int): vaddrs = [vaddrs]
    L = k.lab('poll'); Lo = k.lab('pok')
    k('s_mov_b32 s37, 0')
    k(f'{L}:')
    for q, va in enumerate(vaddrs): k(f'buffer_load_dword v{data[q]}, v{va}, s[8:11], {sreg} offen sc1')
    k(f's_add_u32 s37, s37, 1\ns_cmp_gt_u32 s37, {SPIN}')
    k(f's_cbranch_scc1 {Lo}')
    k('s_waitcnt vmcnt(0)')
    for q in range(len(vaddrs)):
        k(f'v_cmp_ne_u32 vcc, s6, v{data[q]}')
        k(f's_cbranch_vccnz {L}')
    k(f'{Lo}:')
    k('s_waitcnt vmcnt(0)')
    vm.done = vm.n

def w1_items(dma, tiles, stage=0, blocks=range(5)):
    for T in tiles:
        for ks4 in blocks:
            for q in range(4):
                ks = 4*ks4 + q
                dma.add([f's_add_u32 s27, s{22+T}, {ks4*4096}'] if q == 0 else [], f'buffer_load_dwordx4 {a(80*T+4*ks,4)}, v5, s[8:11], s27 offen offset:{q*1024} sc1', stage)

KGS = 288*128; UXB = KGS + 4*4608
BND = 156; KPT = 152
AF = 244; AG = 248; AXD = 249; AST = 250; XD = 240
AK0, AK1, AQ, AUX, AP0, PD0, AB0 = 251, 252, 253, 183, 184, 185, 254
PR = 56; IDX = 132; KW = 140; KR = 144; KCW = 145

def conv_bands(k):
    k('v_lshlrev_b32 v6, 3, v8')
    bands = [(-5, -3, -16), (-10, -6, -16), (-13, -11, -16), (-18, -14, -24), (-11, -5, -16), (-20, -12, -24), (12-16, 13-16, -16)]
    for bi, (lo, hi, e0) in enumerate(bands + [(0, 0, 0)]):
        dst = BND + 4*bi if bi < 6 else KPT if bi == 6 else XD
        msk = ((1 << (hi-lo+1)) - 1) << (lo - e0)
        if bi == 7: msk = 0x10001
        k(f'v_mov_b32 v9, {msk:#x}\nv_lshlrev_b32 v9, v7, v9\nv_lshrrev_b32 v9, v6, v9')
        k('v_and_b32 v10, 0xaa, v9\nv_and_b32 v9, 0x55, v9\nv_lshl_or_b32 v9, v10, 15, v9')
        for q in range(4):
            if q: k(f'v_lshrrev_b32 v10, {2*q}, v9')
            k(f'v_and_b32 v{dst+q}, 0x10001, v{10 if q else 9}')
            if bi < 6: k(f'v_mul_u32_u24 v{dst+q}, 0x3f80, v{dst+q}')

def f0b_addr(k):
    k(f'v_lshlrev_b32 v{AB0}, 7, v1\nv_and_b32 v2, 31, v1\nv_lshlrev_b32 v2, 7, v2\nv_add_u32 v{AB0+1}, 8192, v2')

def conv_late(k):
    def uaddr(dst, gc, use_h):
        k(f'v_lshl_add_u32 v9, v7, 1, {use_h}\nv_add_u32 v9, {gc+32}, v9')
        k('v_bfe_u32 v10, v9, 1, 3\nv_xor_b32 v10, s16, v10\nv_lshlrev_b32 v10, 4, v10')
        k(f'v_lshl_add_u32 v{dst}, v9, 7, v10')
    for j in range(4): uaddr(AF+j, -2-4*(j+4), 'v8')
    uaddr(AG, -3, 'v8')
    k('v_and_b32 v11, 1, v8')
    uaddr(AXD, 0, 'v11')
    k(f'v_lshlrev_b32 v{AST}, 5, v7\nv_lshl_add_u32 v{AST}, v11, 9, v{AST}')
    k('v_lshrrev_b32 v11, 1, v8')
    k(f'v_lshl_add_u32 v{AST}, v11, 4, v{AST}\nv_xor_b32 v11, 1, v11\nv_lshlrev_b32 v11, 6, v11\nv_xor_b32 v{AXD}, v11, v{AXD}')
    k(f's_lshl_b32 s52, s3, 12\ns_add_u32 s52, s52, {WS_HT:#x}')
    k('v_lshlrev_b32 v9, 3, v8\nv_sub_u32 v9, v9, v7\nv_add_u32 v9, 15, v9\nv_lshlrev_b32 v9, 1, v9')
    k(f'v_and_b32 v10, 1, v7\nv_xor_b32 v10, 1, v10\nv_mul_u32_u24 v10, {4*KPO-2}, v10')
    k(f'v_add3_u32 v{AK0}, v9, v10, s46\nv_add_u32 v{AK1}, 1024, v{AK0}')
    k('v_lshlrev_b32 v9, 2, v8\nv_sub_u32 v9, v9, v7\nv_add_u32 v9, 15, v9\nv_lshlrev_b32 v9, 2, v9')
    k(f's_add_u32 s53, s46, 2240\nv_add_u32 v{AQ}, s53, v9')
def conv_early(k):
    k('v_lshrrev_b32 v3, 3, v1\nv_and_b32 v4, 7, v1')
    k(f'v_lshl_add_u32 v2, v3, 5, v4\nv_lshlrev_b32 v{AP0}, 7, v2')
    k('v_lshrrev_b32 v6, 1, v3\nv_xor_b32 v4, v4, v6\ns_lshl_b32 s44, s20, 2\nv_xor_b32 v4, s44, v4')
    k(f'v_mul_u32_u24 v3, 20480, v3\nv_lshl_add_u32 v{AUX}, v4, 4, v3')
    f0b_addr(k)
    k(f's_mul_i32 s46, s16, 3072\ns_add_u32 s46, s46, {UXB}')
    k(f's_lshl_b32 s47, s2, 7\ns_mul_i32 s48, s16, {8*20480}\ns_add_u32 s47, s47, s48')
    k('s_lshl_b32 s49, s16, 10\ns_add_u32 s49, s49, 4096')
    k(f's_lshl_b32 s48, s16, 10\ns_add_u32 s48, s48, {F0:#x}')
    k('v_lshlrev_b32 v6, 4, v0')
    for r in range(72, 76): k(f'v_mov_b32 v{r}, 0')
    k('ds_write_b128 v6, v[72:75]')
    k('v_add_u32 v2, s46, v5')
    for q in range(3): k(f'ds_write_b128 v2, v[72:75] offset:{1024*q}')
    k(f's_mul_i32 s55, s16, 4608\ns_add_u32 s55, s55, {KGS}')
    k(f'v_mul_u32_u24 v2, 288, v7\nv_lshl_add_u32 v2, v8, 4, v2\nv_add_u32 v{KR}, s55, v2')
    k('v_lshrrev_b32 v9, 1, v8\nv_and_b32 v10, 1, v8\nv_lshlrev_b32 v3, 4, v7')
    k('v_lshl_add_u32 v2, v9, 8, v3\nv_lshl_add_u32 v2, v10, 3, v2')
    k(f's_add_u32 s44, s46, 1080\nv_sub_u32 v{KCW}, s44, v2')
    k(f'v_lshl_add_u32 v2, v10, 8, v3\ns_add_u32 s44, s46, {2*(536-258)-4}\nv_sub_u32 v{KCW+1}, s44, v2')
    k('v_lshrrev_b32 v2, 1, v7\nv_lshl_add_u32 v2, v10, 4, v2\nv_lshlrev_b32 v2, 2, v2\nv_and_b32 v3, 1, v7\nv_lshlrev_b32 v3, 8, v3\nv_sub_u32 v2, v3, v2')
    k(f's_add_u32 s44, s46, {2240+4*39}\nv_add_u32 v{KCW+2}, s44, v2')
    k(f'v_and_b32 v2, 7, v7\nv_lshlrev_b32 v2, 5, v2\nv_lshl_add_u32 v2, v8, 3, v2\ns_add_u32 s44, s46, {2752+4*62}\nv_sub_u32 v{KCW+3}, s44, v2')
    k(f'v_mov_b32 v{KCW+4}, s46')

LNB = 4096
class Rec:
    def __init__(s): s.L = []
    def __call__(s, t): s.L += [x for x in t.split('\n') if x]
def zipk(k, recs):
    for xs in zip(*[r.L for r in recs]):
        for x in xs: k(x)

def ln1_addr(k):
    k('v_lshrrev_b32 v2, 5, v1\nv_bfe_u32 v3, v1, 4, 1\nv_bfe_u32 v4, v1, 2, 2\nv_and_b32 v6, 3, v1')
    k('v_lshl_add_u32 v52, v2, 3, v4\nv_mul_u32_u24 v52, 1344, v52\nv_lshl_add_u32 v52, v3, 5, v52\nv_lshl_add_u32 v52, v6, 3, v52')
    k(f's_mul_i32 s17, s16, 320\ns_add_u32 s17, s17, {LNB}\nv_add_u32 v52, s17, v52')
    k('v_lshlrev_b32 v53, 9, v3\nv_lshl_add_u32 v53, v4, 7, v53\nv_lshl_add_u32 v53, v2, 6, v53\nv_lshl_add_u32 v53, v6, 4, v53')
    k('s_mul_i32 s17, s16, 5120\nv_add_u32 v53, s17, v53\nv_add_u32 v55, 4096, v53')

def ln1(k):
    X = 12; Fv = 22; S = 42
    for q in range(5): k(f'ds_write_b64 v51, {v(X+2*q,2)} offset:{8*1344+q*256}')
    for i in range(10): k(f'v_lshlrev_b32 v{Fv+2*i}, 16, v{X+i}\nv_and_b32 v{Fv+1+2*i}, 0xffff0000, v{X+i}')
    k(f'v_pk_add_f32 {v(S,2)}, {v(Fv,2)}, {v(Fv+2,2)}\nv_pk_mul_f32 {v(S+2,2)}, {v(Fv,2)}, {v(Fv,2)}')
    for i in range(1, 10):
        if i > 1: k(f'v_pk_add_f32 {v(S,2)}, {v(S,2)}, {v(Fv+2*i,2)}')
        k(f'v_pk_fma_f32 {v(S+2,2)}, {v(Fv+2*i,2)}, {v(Fv+2*i,2)}, {v(S+2,2)}')
    k(f'v_add_f32 v{S}, v{S}, v{S+1}\nv_add_f32 v{S+2}, v{S+2}, v{S+3}')
    k(f'v_mov_b32 v47, {fl(1/640)}')
    for sh in (8, 4, 2, 1):
        for q in (S, S+2): k(f'v_add_f32_dpp v{q}, v{q}, v{q} row_ror:{sh} row_mask:0xf bank_mask:0xf')
    k(f'v_mov_b32 v{S+1}, v{S}\nv_mov_b32 v{S+3}, v{S+2}\nv_permlane16_swap_b32 v{S}, v{S+1}\nv_permlane16_swap_b32 v{S+2}, v{S+3}')
    k(f'v_add_f32 v{S}, v{S}, v{S+1}\nv_add_f32 v{S+2}, v{S+2}, v{S+3}')
    k(f'v_mul_f32 v{S}, v47, v{S}\nv_mul_f32 v{S+1}, v{S}, v{S}\nv_fma_f32 v{S+2}, v{S+2}, v47, -v{S+1}\nv_max_f32 v{S+2}, 0, v{S+2}')
    r = Rec(); ln_finish(r, S, S+2, S+4)
    fin = r.L[2:]
    for x in r.L[:2]: k(x)
    for i in range(10):
        q = Fv+2*i
        k(f'v_pk_add_f32 {v(q,2)}, {v(q,2)}, {v(S,2)} op_sel_hi:[1,0] neg_lo:[0,1] neg_hi:[0,1]')
        if fin: k(fin.pop(0))
        k(f'v_cvt_pk_bf16_f32 v{q+1}, v{q}, v{q+1}\nv_lshlrev_b32 v{q}, 16, v{q+1}\nv_and_b32 v{q+1}, 0xffff0000, v{q+1}')
    assert not fin
    k('v_mov_b32 v2, 0\nglobal_load_dword v54, v2, s[32:33] sc1')
    for i in range(10):
        q = Fv+2*i
        k(f'v_pk_mul_f32 {v(q,2)}, {v(q,2)}, {v(S+2,2)} op_sel_hi:[1,0]')
        k(f'v_cvt_pk_bf16_f32 v{X+i}, v{q}, v{q+1}')
    for q in range(5): k(f'ds_write_b64 v51, {v(X+2*q,2)} offset:{q*256}')
    k('s_mul_i32 s30, s2, 20480')
    k('s_waitcnt lgkmcnt(0)\ns_barrier')
    mark(k, 0, 'H')
    O = 24
    for b in range(5):
        k(f'ds_read_b64_tr_b16 {v(O+4*b,2)}, v52 offset:{b*64}\nds_read_b64_tr_b16 {v(O+2+4*b,2)}, v52 offset:{b*64+4*1344}')
    for b in range(5):
        k(f's_waitcnt lgkmcnt({8-2*b})')
        k(f'buffer_store_dwordx4 {v(O+4*b,4)}, ' + (f'v53, s[8:11], s30 offen offset:{b*1024} sc1' if b < 4 else 'v55, s[8:11], s30 offen sc1'))
    k(f's_lshl_b32 s30, s2, 7\ns_add_u32 s30, s30, {F0:#x}')
    mark(k, 1, 'H')

def get_nonce(k):
    L = k.lab('nn'); Lo = k.lab('nok')
    k('s_mov_b32 s37, 0')
    k(f'{L}:')
    k('v_readfirstlane_b32 s6, v54')
    k(f's_add_u32 s37, s37, 1\ns_cmp_gt_u32 s37, {SPIN}\ns_cbranch_scc1 {Lo}')
    k(f's_cmp_lg_u32 s6, 0\ns_cbranch_scc1 {Lo}')
    k('v_mov_b32 v2, 0')
    k('global_load_dword v54, v2, s[32:33] sc1')
    k('s_waitcnt vmcnt(0)')
    k(f's_branch {L}')
    k(f'{Lo}:')

def ux_issue(k):
    for i in range(8):
        k(f's_add_u32 m0, s49, {i*4096}\ns_add_u32 s27, s47, {i*32*20480}')
        k(f'buffer_load_dwordx4 v{AUX}, s[8:11], s27 offen sc1 lds')
    k('s_mov_b32 s45, 1')
    mark(k, 8, 'K')

def kgen(k, sigfn):
    lg = Cnt(k, 'lgkmcnt', 15)
    DT = 68
    W, G8, GG, Z, C0, LO, HI, ACC, PK, H2 = 20, 22, 24, 32, 70, 88, 104, 120, 36, 192
    def check(pd=PD0):
        if E('KG_NOCHK'): return
        Ls = k.lab('uxs'); Lr = k.lab('uxr')
        k(f's_cmp_lg_u32 s45, 0\ns_cbranch_scc1 {Ls}')
        k('s_waitcnt vmcnt(0)')
        k(f'v_cmp_ne_u32 vcc, s6, v{pd}')
        k(f's_cbranch_vccnz {Lr}')
        ux_issue(k)
        k('s_mov_b32 m0, s55')
        k(f's_branch {Ls}')
        k(f'{Lr}:')
        k(f'buffer_load_dword v{pd}, v{AP0}, s[8:11], s48 offen sc1')
        k(f'{Ls}:')
    k(f'v_mov_b32 v{PD0}, 0\ns_mov_b32 s45, 0\ns_mov_b32 s7, 0\ns_mov_b32 m0, s55')
    k(f'v_mul_f32 v{DT}, {fl(LOG2E)}, v{DT}\nv_exp_f32 v{DT}, v{DT}')
    round_bf16_f32(k, DT, DT)
    k(f'v_add_f32 v{DT+1}, v{DT}, v{DT}')
    mark(k, 0, 'K'); mark(k, 0, 'J')
    def setup(it):
        r = Rec(); P = PR + 4*it
        r(f'v_mul_f32 v12, {fl(LOG2E)}, v{P}\nv_mul_f32 v13, v{P+1}, v{DT}\nv_exp_f32 v12, v12')
        r(f'v_mul_f32 v13, {fl(INV2PI)}, v13\nv_mul_f32 v{C0}, v{P+2}, v{DT+1}\nv_mul_f32 v{C0+1}, v{P+3}, -v{DT+1}')
        round_bf16_f32(r, 12, 12)
        r(f'v_mul_f32 v12, v12, v{DT}\nv_mul_f32 v15, {fl(8.)}, v13\nv_mul_f32 v17, {fl(128.)}, v13\nv_mul_f32 v12, {fl(-LOG2E)}, v12')
        r('v_fract_f32 v15, v15\nv_fract_f32 v13, v13\nv_fract_f32 v17, v17')
        r(f'v_mul_f32 v14, {fl(8.)}, v12\nv_mul_f32 v16, {fl(128.)}, v12')
        for dst, m_ in ((G8, 14), (W, 12), (GG, 16)):
            r(f'v_exp_f32 v{m_}, v{m_}\nv_cos_f32 v{dst}, v{m_+1}\nv_sin_f32 v{dst+1}, v{m_+1}')
        return r.L
    tmp = [26, 28, 30]; ti = [0]
    def cmul(d, a_, b):
        t = tmp[ti[0] % 3]; ti[0] += 1
        k(f'v_pk_mul_f32 {v(t,2)}, {v(a_,2)}, {v(b,2)} op_sel:[0,0] op_sel_hi:[1,0]')
        k(f'v_pk_fma_f32 {v(d,2)}, {v(a_,2)}, {v(b,2)}, {v(t,2)} op_sel:[1,1,0] op_sel_hi:[0,1,1] neg_lo:[1,0,0]')
    WB = int(E('KG_WB', 4))
    wr = [0]
    SL = int(E('KG_SLOT', 0)); sn = [0]
    def slot():
        if not SL or sn[0] >= 8: return
        j = sn[0]; sn[0] += 1
        L = k.lab('sl')
        k(f's_cbranch_vccnz {L}')
        k(f's_add_u32 m0, s54, {j*1024}')
        if j == 4: k('s_add_u32 s56, s56, 65536')
        k(f'buffer_load_dwordx4 v{132+j%4}, s[12:15], s56 offen lds')
        k('s_mov_b32 m0, s55')
        k(f'{L}:')
    def wflush(n):
        while wr[0] < n:
            lg.issue(f'ds_write_addtid_b32 v{PK+wr[0]} offset:{wr[0]*288}'); wr[0] += 1
    def put(row, z):
        if z is None: k(f'v_mov_b32 v{PK+row}, 0x3f80')
        else: k(f'v_cvt_pk_bf16_f32 v{PK+row}, v{z}, v{z+1}')
        if (row+1) % WB == 0: wflush(row+1)
        if row in (3, 11) or (row == 6 and sn[0] == 7): slot()
    def flush(n, base):
        wflush(n); wr[0] = 0
        for ks in range(4): tk = lg.issue(f'ds_read_b128 {v(base+4*ks,4)}, v{KR} offset:{ks*64}')
        return tk
    def mm(it, t, H, swap):
        out = []
        for ks in range(4):
            A, B = H+4*ks, LO+4*ks
            if swap: A, B = B, A
            out.append(f'{MF} {v(ACC+4*t,4)}, {v(A,4)}, {v(B,4)}, {"0" if it == 0 and ks == 0 else v(ACC+4*t,4)}')
        return out
    plan = dict(x.split(':') for x in E('KG_PLAN', '02:sAB,10:CD,12:p,22:c').split(','))
    outl = []
    INL = int(E('KG_INL', 1))
    def event(act, nsl):
        if 's' in act: mark(k, 10, 'K'); sigfn(nsl); mark(k, 11, 'K')
        if 'c' in act and 'r' in act: check()
        if 'r' in act: k('s_mov_b32 s7, s45')
        for q, ch in enumerate('ABCD'):
            if ch in act:
                k(f's_add_u32 s27, s28, {(q//2)*256 + (q % 2)*65536}')
                for j in range(4):
                    k(f's_add_u32 m0, s26, {q*4096 + j*1024}')
                    k(f'buffer_load_dwordx4 v{132+j}, s[12:15], s27 offen lds')
                k('s_mov_b32 m0, s55')
        if 'p' in act: mark(k, 2, 'K'); k(f'buffer_load_dword v{PD0}, v{AP0}, s[8:11], s48 offen sc1'); mark(k, 3, 'K')
        if 'c' in act and 'r' not in act: mark(k, 12, 'K'); k('s_waitcnt vmcnt(0)'); mark(k, 13, 'K'); check(); mark(k, 14, 'K')

    def pt(q):
        for it in range(3):
            act = plan.get(f'{it}{q}')
            if act:
                Lx = k.lab('kx'); Lb = k.lab('kb')
                nsl = (8*it + sn[0]) if SL else 0
                if INL:
                    k(f's_cmp_eq_u32 s44, {it}\ns_cbranch_scc0 {Lb}')
                    event(act, nsl)
                    k(f'{Lb}:')
                else:
                    k(f's_cmp_eq_u32 s44, {it}\ns_cbranch_scc1 {Lx}')
                    k(f'{Lb}:')
                    outl.append((Lx, Lb, act, nsl))
    for r in range(12): k(f'v_mov_b32 v{ACC+r}, 0')
    k('s_mov_b32 s44, 0\ns_mov_b64 vcc, 0\ns_mov_b32 s54, s26\ns_mov_b32 s56, s28')
    for x in setup(0): k(x)
    Lp = k.lab('kg')
    k(f'{Lp}:')
    for dst, m_, neg in ((G8, 14, False), (W, 12, True), (GG, 16, True)):
        k(f'v_pk_mul_f32 {v(dst,2)}, {v(dst,2)}, {v(m_,2)} op_sel_hi:[1,0]' + (' neg_hi:[0,1]' if neg else ''))
    put(0, None); put(1, G8)
    cmul(Z, G8, G8); put(2, Z)
    for j in range(3, 16): cmul(Z, Z, G8); put(j, Z)
    flush(16, LO)
    pt(0)
    put(0, C0)
    for c in range(1, 8): cmul(C0+2*c, C0+2*c-2, W); put(c, C0+2*c)
    cmul(C0+16, C0+14, W)
    for c in range(8): cmul(C0+2*c, C0+2*c, GG); put(8+c, C0+2*c)
    flush(16, HI)
    pt(1)
    cmul(C0+16, C0+16, GG); cmul(C0, C0, GG)
    for i in (2, 3):
        for c in (2, 4, 6, 8): cmul(C0+2*c, C0+2*c, GG); put(4*(i-2)+c//2-1, C0+2*c)
    for i in range(4, 8):
        for c in (4, 8): cmul(C0+2*c, C0+2*c, GG); put(8+2*(i-4)+c//4-1, C0+2*c)
    t1 = flush(16, H2)
    pt(2)
    k(f'v_cvt_pk_bf16_f32 v{PK+8}, v{C0}, v{C0+1}')
    for i in range(8, 16): cmul(C0+16, C0+16, GG); put(i-8, C0+16)
    t2 = flush(9, H2+16)
    pt(3)
    fillr = setup(1)
    fillr[6:6] = [f'v_mov_b32 v{PR+4+q}, v{PR+8+q}' for q in range(4)]
    assert sn[0] == 8 or not SL
    k('s_add_u32 s54, s26, 8192\ns_add_u32 s56, s28, 256\ns_cmp_eq_u32 s44, 1\ns_cselect_b64 vcc, -1, 0')
    k('s_add_u32 s44, s44, 1\ns_cmp_lt_u32 s44, 3')
    lg.wait(t1)
    for n, m_ in enumerate(mm(1, 0, HI, False) + mm(1, 1, H2, False) + mm(1, 2, H2+16, True)):
        if n == 8: lg.wait(t2)
        k(m_)
        for _ in range(2):
            if fillr: k(fillr.pop(0))
    for x in fillr: k(x)
    k(f's_cbranch_scc1 {Lp}')
    Lj = k.lab('kj')
    if outl: k(f's_branch {Lj}')
    for Lx, Lb, act, nsl in outl:
        k(f'{Lx}:')
        event(act, nsl)
        k(f's_branch {Lb}')
    k(f'{Lj}:')
    mark(k, 1, 'K'); mark(k, 13, 'J')
    A0, A1, A2 = ACC, ACC+4, ACC+8
    O = 4*KPO
    cv = [(A0+3, A0+2), (A0+1, A0), (A0+2, A0+1),
          (A1+3, A1+3), (A1+3, A1+2), (A1+1, A1+1), (A1+1, A1), (A1+2, A1+1),
          (A1, A1+1), (A1+2, A1+3),
          (A2+2, A2+3), (A2, A2+1), (A2, A2)]
    for q, (x, y) in enumerate(cv): k(f'v_cvt_pk_bf16_f32 v{12+q}, v{x}, v{y}')
    k(f'ds_write_b64 v{KCW}, v[12:13]')
    k(f'ds_write_b16 v{KCW}, v12 offset:{O-2}\nds_write_b32 v{KCW}, v14 offset:{O}\nds_write_b16_d16_hi v{KCW}, v13 offset:{O+4}')
    k(f'v_add_u32 v25, {O}, v{KCW+1}')
    k('s_mov_b32 exec_hi, 0')
    k(f'ds_write_b16 v{KCW+1}, v15 offset:2')
    k(f'ds_write2_b32 v{KCW+1}, v15, v16 offset0:1 offset1:2\nds_write2_b32 v{KCW+1}, v17, v18 offset0:3 offset1:4')
    k('ds_write2_b32 v25, v15, v15 offset0:0 offset1:1\nds_write2_b32 v25, v19, v17 offset0:2 offset1:3\nds_write_b16_d16_hi v25, v18 offset:16')
    k('s_mov_b32 exec_lo, 0x100')
    k(f'ds_write_b32 v{KCW+4}, v24 offset:572\nds_write_b16 v{KCW+4}, v24 offset:{O+570}\nds_write_b16 v{KCW+4}, v24 offset:{O+572}')
    k('s_mov_b32 exec_lo, 0\ns_mov_b32 exec_hi, -1')
    k(f'ds_write2_b32 v{KCW+2}, v20, v21 offset0:8 offset1:0')
    k('s_mov_b32 exec_lo, 0x00ff00ff\ns_mov_b32 exec_hi, 0x00ff00ff')
    k(f'ds_write_b64 v{KCW+3}, v[22:23]')
    k('s_mov_b64 exec, -1')
    mark(k, 4, 'K')
    check()
    mark(k, 5, 'K')

def phaseA(k):
    vm = Cnt(k, 'vmcnt', 63); lg = Cnt(k, 'lgkmcnt', 15)
    dma = Dma(k, vm); w1_items(dma, [0, 1])
    AC_ = int(E('FA_A', 0)); dmA = Dma(k, vm); AR = [11, 6, 9, 10]
    if AC_:
        for q in range(4):
            for j in range(4):
                dmA.add(([f's_add_u32 s31, s28, {(q//2)*256 + (q % 2)*65536}'] if j == 0 else []) + [f's_add_u32 m0, s26, {q*4096 + j*1024}'], f'buffer_load_dwordx4 v{AR[j]}, s[12:15], s31 offen lds', 0)
    ACC = 12; KN = 44; QA = 112; QB = 124; Q8 = 136; SS = 180; VV = 204
    FB = 216; NB = 6
    prog = []
    started = set()
    def Kn(kb): return ('K', 'n', kb)
    kreg = {}
    for kb in range(17): kreg[Kn(kb)] = (KN+4*kb, AK1 if kb == 0 else AK0, 0 if kb == 0 else (16-kb)*16)
    for D in (2, 3, 4): kreg[('K', 'a', D)] = (QA+4*(D-2), AQ, (4-D)*16); kreg[('K', 'b', D)] = (QB+4*(D-2), AQ, 64+(4-D)*16)
    for D in (4, 5, 6, 7): kreg[('K', '8', D)] = (Q8+4*(D-4), AQ, 128+(7-D)*16)
    def acc(t, A, B):
        prog.append(('m', ACC+4*t, A, B, t not in started)); started.add(t)
    XF = int(E('FA_XF', 0))
    for rt in range(XF): acc(rt, XD, ('F', rt, 'X'))
    for rt in range(8):
        F0 = ('F', rt, 0)
        if rt <= 5:
            for b in (0, 1, 2): prog.append(('m', SS+4*b, F0, BND+4*b, True))
            if rt <= 3: prog.append(('m', SS+16, F0, BND+16, True))
            prog.append(('m', SS+12, ('F', rt, 'G'), BND+12, True))
            if rt <= 3: prog.append(('m', SS+20, ('F', rt, 'G'), BND+20, True))
        if rt >= XF: acc(rt, XD, ('F', rt, 'X'))
        acc(rt, Kn(0), F0)
        if rt+1 <= 7: acc(rt+1, Kn(8), F0)
        if rt+2 <= 7: acc(rt+2, Kn(16), F0)
        if rt+4 <= 7: acc(rt+4, KPT, F0)
        if rt <= 5: prog.append(('cvt', rt))
        for j in range(1, 8):
            acc(rt, Kn(j), ('F', rt, j))
            if rt+1 <= 7: acc(rt+1, Kn(j+8), ('F', rt, j))
        prog.append(('epi', rt))
        if rt <= 5:
            prog.append(('needcvt',))
            for D in (2, 3, 4):
                if rt+D <= 7: acc(rt+D, VV, ('K', 'a', D)); acc(rt+D, VV+4, ('K', 'b', D))
            if rt <= 3:
                for D in (4, 5, 6, 7):
                    if rt+D <= 7: acc(rt+D, VV+8, ('K', '8', D))
    order = []; last_use = {}
    for pi_, p in enumerate(prog):
        if p[0] == 'm':
            for o in (p[2], p[3]):
                if isinstance(o, tuple):
                    if o not in last_use: order.append(o)
                    last_use[o] = pi_
    forder = [o for o in order if o[0] == 'F']
    fbuf = {o: FB + 4*(n % NB) for n, o in enumerate(forder)}
    fidx = {o: n for n, o in enumerate(forder)}
    tok = {}
    rq = []
    for o in order:
        if o[0] == 'K':
            r, ar, off = kreg[o]
            rq.append((o, f'ds_read2_b32 {v(r,2)}, v{ar} offset0:{off} offset1:{off+1}', False))
            rq.append((o, f'ds_read2_b32 {v(r+2,2)}, v{ar} offset0:{off+2} offset1:{off+3}', True))
        else:
            _, rt, j = o
            if j == 'G': ar, off = AG, rt*4096
            elif j == 'X': ar, off = AXD, rt*4096
            else: ar, off = AF + (j % 4), rt*4096 + (2048 if j < 4 else 0)
            rq.append((o, f'ds_read_b128 {v(fbuf[o],4)}, v{ar} offset:{off}', True))
    cur = [0]
    def can_read():
        if not rq: return False
        o = rq[0][0]
        if lg.n - lg.done >= 13: return False
        if o[0] == 'F' and fidx[o] >= NB:
            return last_use[forder[fidx[o]-NB]] < cur[0]
        return True
    def do_read():
        o, t, l = rq.pop(0); tk = lg.issue(t)
        if l: tok[o] = tk
    if E('C_LATE', '1') == '1': conv_late(k)
    k('v_mov_b32 v9, s53')
    tp = lg.issue(f'ds_read_u16 v11, v9 offset:{256+16*4+2}')
    early = [x for x in rq if x[0][0] == 'K'][:int(E('FA_EK', 54))]
    r = Rec()
    if E('C_BL', '1') == '1': conv_bands(r)
    r('v_mov_b32 v2, 0x3f80\nv_mov_b32 v3, s51\nv_cmp_gt_u32 vcc, 2, v8\nv_cndmask_b32 v2, v3, v2, vcc')
    for q in range(4): r(f'v_mul_u32_u24 v{XD+q}, v2, v{XD+q}')
    bl = r.L
    for n, x in enumerate(early):
        rq.remove(x); tk = lg.issue(x[1])
        if x[2]: tok[x[0]] = tk
        if n % 6 == 5:
            for _ in range(16):
                if bl: k(bl.pop(0))
    for x in bl: k(x)
    kq = [x for x in rq if x[0][0] == 'K']; fq = [x for x in rq if x[0][0] != 'K']
    KP = int(E('FA_KP', 2)); rq[:] = [fq.pop(0) for _ in range(NB-1)]
    while kq or fq:
        if fq: rq.append(fq.pop(0))
        for _ in range(KP):
            if kq: rq.append(kq.pop(0))
    lg.wait(tp)
    for q in range(4): k(f'v_mul_u32_u24 v{KPT+q}, v11, v{KPT+q}')
    if AC_:
        for j in range(4): k(f'v_add_u32 v3, {4*j}, v8\nv_xor_b32 v4, v3, v7\nv_lshlrev_b32 v3, 12, v3\nv_lshl_add_u32 v{AR[j]}, v4, 4, v3')
    mark(k, 3); mark(k, 6, 'K')
    Ls = k.lab('uxd')
    k(f's_cmp_lg_u32 s45, 0\ns_cbranch_scc1 {Ls}')
    poll(k, vm, AP0, 's48')
    ux_issue(k)
    k(f'{Ls}:')
    k(f's_mov_b32 s44, {F0B:#x}')
    Lw = k.lab('uxw')
    k(f's_waitcnt vmcnt(16)\ns_cmp_lg_u32 s7, 0\ns_cbranch_scc1 {Lw}')
    k('s_waitcnt vmcnt(0)')
    k(f'{Lw}:')
    lg.all()
    k('s_barrier')
    mark(k, 4); mark(k, 7, 'K')
    tB = []
    def f0b_issue():
        vm.issue(f'buffer_load_dword v3, v{AB0}, s[8:11], s44 offen sc1'); tB.append(vm.issue(f'buffer_load_dword v4, v{AB0+1}, s[8:11], s44 offen sc1'))
    def f0b_check():
        Lo = k.lab('f0b'); Lq = k.lab('f0q')
        vm.wait(tB[0])
        k(f'v_cmp_ne_u32 vcc, s6, v3\ns_cbranch_vccnz {Lq}\nv_cmp_ne_u32 vcc, s6, v4\ns_cbranch_vccz {Lo}')
        k(f'{Lq}:')
        poll(k, Cnt(k, 'vmcnt', 63), [AB0, AB0+1], 's44')
        k(f'{Lo}:')
        mark(k, 9, 'K')
        CT = int(E('C_TOUCH', 0))
        if CT:
            k(f's_add_u32 s45, s3, {CT}\ns_min_u32 s45, s45, 1023')
            k('s_lshr_b32 s46, s45, 8\ns_lshl_b32 s46, s46, 9\ns_and_b32 s45, s45, 255\ns_lshl_b32 s45, s45, 15\ns_add_u32 s45, s45, s46')
            k('v_lshrrev_b32 v2, 2, v1\nv_lshlrev_b32 v2, 11, v2\nv_and_b32 v3, 3, v1\nv_lshl_add_u32 v2, v3, 7, v2')
            vm.issue('buffer_load_dword v4, v2, s[12:15], s45 offen')
    hi = []; lo = []
    def epilogue(t):
        A = ACC + 4*t; ops = [None]*5
        def Em(txt): ops.append(lambda: k(txt))
        P = ACC + 4*(t & ~1) + 2*(t & 1)
        Em(f'v_cvt_pk_bf16_f32 v{P}, v{A}, v{A+1}'); Em(f'v_cvt_pk_bf16_f32 v{P+1}, v{A+2}, v{A+3}')
        if t & 1:
            Q = ACC + 4*(t-1)
            ops.append(None)
            Em(f'v_permlane16_swap_b32 v{Q}, v{Q+2}'); Em(f'v_permlane16_swap_b32 v{Q+1}, v{Q+3}')
            ops.append(lambda: vm.issue(f'buffer_store_dwordx4 {v(Q,4)}, v{AST}, s[8:11], s52 offen offset:{(t-1)*512} sc1'))
        return ops
    while can_read() and lg.n - lg.done < 12: do_read()
    nm = 0; wacc = [0.0]; WR = float(E('FA_WR', 5)); WLAST = int(E('FA_WLAST', 195)); WFIRST = int(E('FA_WFIRST', 60))
    for pi_, p in enumerate(prog):
        cur[0] = pi_
        if p[0] == 'cvt':
            rt = p[1]
            hi.extend([None]*2)
            for q in range(3 if rt <= 3 else 2):
                for r in range(4):
                    hi.append(lambda q=q, r=r: k(f'v_cvt_pk_bf16_f32 v{VV+4*q+r}, v{SS+8*q+r}, v{SS+8*q+4+r}'))
            continue
        if p[0] == 'needcvt':
            while hi:
                f = hi.pop(0)
                if f: f()
            continue
        if p[0] == 'epi':
            lo.extend(epilogue(p[1])); continue
        _, d, A, B, zero = p
        n0 = len(k.L)
        ops = []
        for o in (A, B):
            if isinstance(o, tuple):
                if o not in tok:
                    mine = [x for x in rq if x[0] == o]
                    for x in mine: rq.remove(x)
                    rq[0:0] = mine
                    if o[0] == 'F' and fidx[o] >= NB: assert last_use[forder[fidx[o]-NB]] < cur[0]
                    while o not in tok: do_read()
                tw = tok[o]
                if tw > lg.done and o[0] == 'F' and fidx[o]+1 < len(forder):
                    t2 = tok.get(forder[fidx[o]+1])
                    if t2 is not None and lg.n - t2 >= int(E('FA_MW', 2)): tw = max(tw, t2)
                lg.wait(tw)
                ops.append(fbuf[o] if o[0] == 'F' else kreg[o][0])
            else: ops.append(o)
        nm += 1
        if nm == max(WFIRST - int(E('FA_PL', 40)), 1): f0b_issue()
        if nm == WFIRST: f0b_check()
        wacc[0] += 1.0/WR
        if wacc[0] >= 1.0:
            wacc[0] -= 1.0
            if dmA.q and AC_ < 3 and (AC_ == 1 or not dma.q) and nm <= WLAST: dmA.pre()
            elif WFIRST <= nm <= WLAST: dma.pre()
        used = len(k.L) - n0
        k(f'{MF} {v(d,4)}, {v(ops[0],4)}, {v(ops[1],4)}, {"0" if zero else v(d,4)}')
        cur[0] = pi_ + 1
        n1 = len(k.L)
        dma.fire(); dmA.fire()
        while len(k.L) - n1 + used < 2:
            if can_read(): do_read()
            elif hi:
                f = hi.pop(0)
                if f: f()
                else: used += 1
            elif lo:
                f = lo.pop(0)
                if f: f()
                else: used += 1
            else: break
    for f in lo:
        if f: f()
    mark(k, 5)
    tH = vm.n
    k(f's_lshl_b32 s44, s2, 7\ns_add_u32 s44, s44, {F1:#x}')
    for _ in range(int(E('FA_PS', 0))): dma.one()
    signal(k, vm, 's44', tH)
    while dma.q: dma.one()
    while dmA.q: dmA.one()

def ln_sigma(k, mean, var, t):
    k(f'v_cvt_pk_bf16_f32 v{t}, v{mean}, v{var}')
    k(f'v_lshlrev_b32 v{mean}, 16, v{t}\nv_and_b32 v{var}, 0xffff0000, v{t}')
    k(f'v_add_f32 v{var}, {fl(1e-5)}, v{var}')
    round_bf16_f32(k, var, var)
    k(f'v_sqrt_f32 v{var}, v{var}')
    round_bf16_f32(k, var, var)

MAPB = {'A': 3, 'B': 2, 'C': 1, 'N': 0}[E('F_MAP', 'B')]
ALATE = int(E('FB_ALATE', 1)); T2E = int(E('FB_T2E', 0))
STG = 81920; Z1L = 147456; STAT = 159744; PART = STAT + 1024
CS = 28; RES = 40; MS = 52; HF = 68; AC = [116, 132, 148]; ONE = 164; SA = 168; G = 176; T = HF; WV = 192
WA = {2: 0, 3: 32, 4: 80, 5: 160, 6: 112, 7: 192}
def wreg(c, o): return v(WV+32*c+o, 4) if c < 2 else a(WA[c]+o, 4)

def stg_setup(k, R):
    for j in range(4):
        k(f'v_add_u32 v2, {4*j}, v8\nv_xor_b32 v3, v2, v7\nv_lshlrev_b32 v2, 12, v2\nv_lshl_add_u32 v{R+j}, v3, 4, v2')
    k(f's_lshl_b32 s26, s16, 14\ns_add_u32 s26, s26, {STG}')
    k('s_lshl_b32 s28, s17, 18\ns_lshl_b32 s27, s20, 17\ns_add_u32 s28, s28, s27\ns_lshl_b32 s27, s19, 11\ns_add_u32 s28, s28, s27')

def phaseB_setup(k):
    for r in range(4): k(f'v_mov_b32 v{ONE+r}, 0x3f803f80')
    k('v_lshrrev_b32 v2, 3, v1\nv_and_b32 v3, 7, v1\nv_and_b32 v4, 6, v2\nv_xor_b32 v3, v3, v4')
    k('v_lshlrev_b32 v10, 12, v2\nv_lshl_add_u32 v10, v3, 4, v10')
    stg_setup(k, 11)
    k('v_bfe_u32 v2, v1, 2, 2\nv_and_b32 v3, 3, v1\nv_lshl_add_u32 v4, v8, 2, v2')
    k('v_lshrrev_b32 v6, 1, v3\nv_and_b32 v3, 1, v3\nv_and_b32 v9, 6, v4\nv_xor_b32 v6, v6, v9')
    k('v_lshlrev_b32 v6, 4, v6\nv_lshl_add_u32 v6, v4, 7, v6\nv_lshl_add_u32 v6, v3, 3, v6')
    k('s_lshl_b32 s36, s20, 6')
    k('v_xor_b32 v16, s36, v6')
    for sg in range(1, 4): k(f'v_xor_b32 v{16+sg}, {32*sg}, v16')
    for sg in range(4): k(f'v_add_u32 v{20+sg}, 40960, v{16+sg}')
    k('s_lshl_b32 s36, s16, 5\ns_mul_i32 s35, s18, 10240')
    k('v_xor_b32 v24, s36, v6\nv_add_u32 v24, s35, v24')
    k('s_lshl_b32 s36, s19, 12')
    k('v_xor_b32 v2, v8, v7\nv_lshlrev_b32 v2, 4, v2\nv_lshl_add_u32 v2, v7, 8, v2\nv_add_u32 v2, s36, v2')
    for ks in range(4):
        k(f'v_xor_b32 v3, {64*ks}, v2\nv_add_u32 v{SA+2*ks}, s26, v3\nv_xor_b32 v3, {64*ks+4096}, v2\nv_add_u32 v{SA+2*ks+1}, s26, v3')
    k(f's_lshl_b32 s21, s17, 7\ns_lshl_b32 s36, s16, 16\ns_add_u32 s21, s21, s36\ns_add_u32 s21, s21, {WS_HT:#x}')
    k('s_lshl_b32 s25, s16, 11')

def stg_items(dma, c):
    for j in range(8):
        pre = [f's_add_u32 m0, s26, {(c % 2)*8192 + j*1024}']
        if j == 0: pre += [f's_add_u32 s55, s28, {c*256}']
        if j == 4: pre += ['s_add_u32 s55, s55, 65536']
        dma.add(pre, f'buffer_load_dwordx4 v{11+j%4}, s[12:15], s55 offen lds', 100+c)
def stg_read(dma, lg, c, wait=True):
    if wait: dma.upto(100+c); dma.vm.wait(dma.tok[100+c])
    for ks in range(4):
        for tau in range(2):
            lg.issue(f'ds_read_b128 {wreg(c, 8*ks+4*tau)}, v{SA+2*ks+tau} offset:{(c % 2)*8192}')

def phaseB(k, hiw):
    vm = Cnt(k, 'vmcnt', 63); lg = Cnt(k, 'lgkmcnt', 15)
    dma = Dma(k, vm)
    grp = [int(x) for x in E('FB_GRP', '0,1,1,2,2,2,3,3,3,3').split(',')]
    for s_ in range(10):
        for j in range(2):
            dma.add([f's_add_u32 m0, s25, {s_*8192 + j*1024}', f's_add_u32 s27, s21, {(s_*64 + j*8)*4096}'], 'buffer_load_dwordx4 v10, s[8:11], s27 offen sc1 lds', grp[s_])
    mark(k, 0, 'B')
    dma.upto(int(E('FB_PRO', 2)))
    mark(k, 1, 'B')
    stg_read(dma, lg, 0, False); stg_read(dma, lg, 1, False)
    for T_ in range(3):
        for p in range(3):
            for hp in range(2):
                k(f'v_pk_add_f32 {v(CS+4*T_+2*hp,2)}, {v(CS+4*T_+2*hp,2)}, {v(AC[0]+12*T_+4*p+2*hp,2)}')
    lg.all()
    stg_items(dma, 2); stg_items(dma, 3)
    if T2E < 5: w1_items(dma, [2], 103.5, range(T2E, 5))
    def reads(g):
        off = g*4096; ar = 16
        if off >= 40960: off -= 40960; ar = 20
        b = HF + 16*(g % 3); out = []
        for sg in range(4):
            out += [f'ds_read_b64_tr_b16 {v(b+4*sg,2)}, v{ar+sg} offset:{off}', f'ds_read_b64_tr_b16 {v(b+4*sg+2,2)}, v{ar+sg} offset:{off+2048}']
        return out
    def mk(tiles, stats):
        def f(g):
            b = HF + 16*(g % 3); out = []
            for sg in range(4):
                if stats and sg < 2:
                    d = AC[2] + 8*sg
                    out.append(f'{MF} {v(d,4)}, {v(ONE,4)}, {v(b+4*sg,4)}, {"0" if g == 0 else v(d,4)}')
                    out.append(f'{MF} {v(d+4,4)}, {v(b+4*sg,4)}, {v(b+4*sg,4)}, {"0" if g == 0 else v(d+4,4)}')
            for sg in range(4):
                for T_ in tiles:
                    d = AC[T_] + 4*sg
                    out.append(f'{MF} {v(d,4)}, {a(80*T_+4*g,4)}, {v(b+4*sg,4)}, {"0" if g == 0 else v(d,4)}')
            return out
        return f
    mark(k, 2, 'B')
    dma.sync(0)
    mark(k, 3, 'B')
    resr = [f'ds_read_b64_tr_b16 {v(RES+2*j,2)}, v24 offset:{j*2048}' for j in range(5)]
    z2t = [0] if hiw else [0, 1]
    k(f's_lshl_b32 s36, s20, 9')
    k(f'v_lshlrev_b32 v3, 4, v7\nv_add_u32 v3, s36, v3\nv_xor_b32 v4, 512, v3\nv_add_u32 v50, {STAT}, v3\nv_add_u32 v51, {STAT}, v4')
    tks = []
    def ln2():
        k('v_and_b32 v2, 3, v1')
        k('v_cmp_eq_u32 vcc, 1, v2\nv_cmp_eq_u32 s[30:31], 2, v2\nv_cmp_eq_u32 s[32:33], 3, v2')
        k(f'v_mov_b32 v6, {fl(1/640)}')
        rec = []
        for sg in range(2):
            r = Rec(); S = AC[2] + 8*sg; Gm = S + 4
            r(f'v_cndmask_b32 v{Gm}, v{Gm}, v{Gm+1}, vcc\nv_cndmask_b32 v{Gm}, v{Gm}, v{Gm+2}, s[30:31]\nv_cndmask_b32 v{Gm}, v{Gm}, v{Gm+3}, s[32:33]')
            r(f'v_mul_f32 v{S}, v6, v{S}\nv_mul_f32 v{S+1}, v{S}, v{S}')
            r(f'v_fma_f32 v{S+1}, v{Gm}, v6, -v{S+1}\nv_max_f32 v{S+1}, 0, v{S+1}')
            ln_sigma(r, S, S+1, S+2)
            r(f'v_rcp_f32 v{Gm}, v{S+1}')
            r(f'v_mul_f32 v{S+2}, {fl(K1C)}, v{Gm}\nv_mul_f32 v{S+3}, v{Gm}, v{Gm}\nv_mul_f32 v{S+3}, v{S+3}, v{Gm}\nv_mul_f32 v{S+3}, {fl(K2C)}, v{S+3}')
            rec.append(r.L)
        for x, y in zip(*rec): k(x); k(y)
        k('s_mov_b32 exec_lo, 0x00f0000f\ns_mov_b32 exec_hi, 0xf0000f00')
        for sg in range(2): tks.append(lg.issue(f'ds_write_b128 v50, {v(AC[2]+8*sg,4)} offset:{256*sg}'))
        k('s_mov_b64 exec, -1')
    def statbar():
        if tks: lg.wait(tks[-1])
        k('s_barrier')
        tks[:] = [lg.issue(f'ds_read_b128 {v(MS+4*sg,4)}, v{50 + sg//2} offset:{256*(sg % 2)}') for sg in range(4)]
    rate = lambda g: float(E('FB_RATE0', 2)) if g < int(E('FB_G0', 4)) else float(E('FB_RATE', 4))
    hS = [int(x) for x in E('FB_HS', '19,16,18,14,17').split(',')]
    if not hiw:
        assert hS[3] >= 8 and hS[4] >= 16
        hk = {hS[0]: statbar, hS[3]: lambda: stg_read(dma, lg, 2), hS[4]: lambda: stg_read(dma, lg, 3)}
        gemm_loop(k, lg, dma, 0, 20, reads, mk([0, 1], False), lambda g: grp[g//2], 1000, rate, tail_reads=resr, hooks=hk)
        for g in (20, 21):
            if g in hk: hk[g]()
        mark(k, 8); mark(k, 4, 'B')
        lg.all()
        stg_items(dma, 4); stg_items(dma, 5)
    else:
        def rd1(kk, sg, dst):
            off = kk*4096; ar = 16
            if off >= 40960: off -= 40960; ar = 20
            return [f'ds_read_b64_tr_b16 {v(dst,2)}, v{ar+sg} offset:{off}', f'ds_read_b64_tr_b16 {v(dst+2,2)}, v{ar+sg} offset:{off+2048}']
        def reads2(g):
            b = HF + 16*(g % 3)
            if 12 <= g < 16: return sum([rd1(12 + 2*(g-12) + q//2, q % 2, b+4*q) for q in range(4)], [])
            kk = g if g < 12 else g - 4
            return sum([rd1(kk, q, b+4*q) for q in range(4)], [])
        def mf2(g):
            b = HF + 16*(g % 3); out = []
            if g < 12: return mk([0], True)(g)
            for q in range(4):
                if g < 16:
                    d = AC[2] + 8*(q % 2)
                    out += [f'{MF} {v(d,4)}, {v(ONE,4)}, {v(b+4*q,4)}, {v(d,4)}', f'{MF} {v(d+4,4)}, {v(b+4*q,4)}, {v(b+4*q,4)}, {v(d+4,4)}']
                else:
                    d = AC[0] + 4*q
                    out.append(f'{MF} {v(d,4)}, {a(4*(g-4),4)}, {v(b+4*q,4)}, {v(d,4)}')
            return out
        assert grp[6] == grp[9] and hS[1] >= 16 and hS[2] > hS[1]
        gemm_loop(k, lg, dma, 0, 24, reads2, mf2, lambda g: grp[min(g, 19)//2], 1000, rate, tail_reads=resr, hooks={hS[1]: ln2, hS[2]: statbar})
        mark(k, 4, 'B')
        stg_read(dma, lg, 2); stg_read(dma, lg, 3); lg.all()
        stg_items(dma, 4); stg_items(dma, 5)
    mark(k, 5, 'B')
    def gelu(T_, ER=0, tks=None):
        prs = [(sg, hp) for sg in range(4) for hp in range(2)]
        for q in range(0, 8, 2):
            st = [[], []]
            if tks: lg.wait(tks[q//2])
            for u_ in range(2):
                sg, hp = prs[q+u_]
                z = AC[T_] + 4*sg + 2*hp; c = CS + 4*T_ + 2*hp; t = T + 2*u_
                ms = v(MS+4*sg, 2); kk = v(MS+4*sg+2, 2)
                st[u_] = [
                  f'v_pk_fma_f32 {v(z,2)}, {v(c,2)}, {ms}, {v(z,2)} op_sel_hi:[1,0,1] neg_lo:[0,1,0] neg_hi:[0,1,0]',
                  f'v_pk_mul_f32 {v(t,2)}, {v(z,2)}, {v(z,2)}',
                  f'v_pk_fma_f32 {v(t,2)}, {v(t,2)}, {kk}, {kk} op_sel:[0,1,0] op_sel_hi:[1,1,0]',
                  f'v_pk_mul_f32 {v(t,2)}, {v(t,2)}, {v(z,2)}',
                  f'v_exp_f32 v{t}, v{t}', f'v_exp_f32 v{t+1}, v{t+1}',
                  f'v_pk_fma_f32 {v(t,2)}, {v(t,2)}, {ms}, {ms} op_sel:[0,1,1] op_sel_hi:[1,1,1]',
                  f'v_rcp_f32 v{t}, v{t}', f'v_rcp_f32 v{t+1}, v{t+1}',
                  f'v_pk_mul_f32 {v(z,2)}, {v(z,2)}, {v(t,2)}']
            for n_, (x, y) in enumerate(zip(*st)):
                if ER and n_ % ER == 0: dma.pre()
                k(x); dma.fire(); k(y)
    for T_ in z2t: gelu(T_, 2 if hiw else int(E('FB_ER', 10)), tks)
    mark(k, 6, 'B')
    for sg in range(4):
        s1 = G + 2*sg; s2 = G + 8 + 2*sg; first = True
        for T_ in z2t:
            z = AC[T_] + 4*sg
            if first:
                k(f'v_pk_add_f32 {v(s1,2)}, {v(z,2)}, {v(z+2,2)}\nv_pk_mul_f32 {v(s2,2)}, {v(z,2)}, {v(z,2)}')
            else:
                k(f'v_pk_add_f32 {v(s1,2)}, {v(s1,2)}, {v(z,2)}\nv_pk_add_f32 {v(s1,2)}, {v(s1,2)}, {v(z+2,2)}')
                k(f'v_pk_fma_f32 {v(s2,2)}, {v(z,2)}, {v(z,2)}, {v(s2,2)}')
            k(f'v_pk_fma_f32 {v(s2,2)}, {v(z+2,2)}, {v(z+2,2)}, {v(s2,2)}')
            first = False
    for q in range(8): k(f'v_add_f32 v{G+2*q}, v{G+2*q}, v{G+2*q+1}')
    for b in (G, G+8): k(f'v_permlane32_swap_b32 v{b}, v{b+4}\nv_permlane32_swap_b32 v{b+2}, v{b+6}')
    for b in (G, G+8): k(f'v_add_f32 v{b}, v{b}, v{b+4}\nv_add_f32 v{b+2}, v{b+2}, v{b+6}')
    for b in (G, G+8): k(f'v_permlane16_swap_b32 v{b}, v{b+2}')
    k(f'v_add_f32 v{T}, v{G}, v{G+2}\nv_add_f32 v{T+1}, v{G+8}, v{G+10}')
    lg.issue(f'ds_write_b64 v27, {v(T,2)}')
    def barX():
        k('s_barrier')
        mark(k, 9); mark(k, 7, 'B')
    lg.all()
    if not hiw:
        barX()
        L = k.lab('npub')
        k(f's_cmp_lg_u32 s16, 0\ns_cbranch_scc1 {L}')
        k(f'v_lshlrev_b32 v9, 3, v1\nv_add_u32 v2, {PART}, v9')
        for w in range(4): k(f'ds_read_b64 {v(G+2*w,2)}, v2 offset:{512*w}')
        k('s_lshl_b32 s36, s18, 9\ns_add_u32 s36, s36, s29')
        k('s_waitcnt lgkmcnt(0)')
        k(f'v_pk_add_f32 {v(G,2)}, {v(G,2)}, {v(G+2,2)}\nv_pk_add_f32 {v(G+4,2)}, {v(G+4,2)}, {v(G+6,2)}\nv_pk_add_f32 {v(G,2)}, {v(G,2)}, {v(G+4,2)}')
        k(f'buffer_store_dwordx2 {v(G,2)}, v9, s[8:11], s36 offen sc1')
        k(f'{L}:')
    while dma.q: dma.one()
    if T2E < 5: vm.wait(dma.tok[103.5])
    def readB():
        stg_read(dma, lg, 4); stg_read(dma, lg, 5)
    def startC():
        lg.all()
        stg_items(dma, 6); stg_items(dma, 7)
    tk = {}
    def statloads():
        for q in range(8):
            vm.issue(f'buffer_load_dwordx2 {v(G+2*q,2)}, v25, s[8:11], s29 offen offset:{q*512} sc1')
        tk['s'] = vm.n
    def z1out(T_, jexpr_sreg):
        k(f's_mul_i32 s36, s20, 6144\ns_add_u32 s36, s36, {jexpr_sreg}\ns_mul_i32 s35, s20, 12288\ns_sub_u32 s35, s36, s35')
        k('v_add_u32 v2, s36, v5\nv_add_u32 v3, s35, v5')
        for sg in range(4):
            z = AC[T_] + 4*sg
            k(f'v_cvt_pk_bf16_f32 v{z}, v{z}, v{z+1}\nv_cvt_pk_bf16_f32 v{z+1}, v{z+2}, v{z+3}')
            lg.issue(f'ds_write_b64 v{2 + sg//2}, {v(z,2)} offset:{3072*sg}')
    def normalize():
        if hiw: k('s_add_u32 s30, s16, 2')
        else: k('s_lshl_b32 s30, s16, 1')
        k(f's_mul_i32 s31, s18, 6\ns_add_u32 s30, s30, s31\ns_mul_i32 s30, s30, {ZS}\ns_lshl_b32 s31, s17, 11\ns_add_u32 s30, s30, s31\ns_add_u32 s30, s30, {WS_Z2:#x}')
        k('s_lshl_b32 s31, s20, 10\ns_add_u32 s32, s30, s31\ns_xor_b32 s31, s31, 1024\ns_add_u32 s33, s30, s31')
        mark(k, 10); mark(k, 9 if hiw else 8, 'B')
        vm.wait(tk['s'])
        Lp = k.lab('spoll'); Lok = k.lab('sok')
        k('s_mov_b32 s37, 0')
        k(f'{Lp}:')
        k(f'v_min_f32 v2, v{G+1}, v{G+3}')
        for q in range(2, 8, 2): k(f'v_min3_f32 v2, v2, v{G+2*q+1}, v{G+2*q+3}')
        k('v_cmp_gt_f32 vcc, 0, v2')
        k(f's_cbranch_vccz {Lok}')
        k(f's_add_u32 s37, s37, 1\ns_cmp_gt_u32 s37, {SPIN}')
        k(f's_cbranch_scc1 {Lok}')
        n0 = vm.n; statloads(); vm.n = n0
        k('s_waitcnt vmcnt(0)')
        k(f's_branch {Lp}')
        k(f'{Lok}:')
        mark(k, 11); mark(k, 11 if hiw else 10, 'B')
        for st in (8, 4, 2):
            for q in range(0, st, 2): k(f'v_pk_add_f32 {v(G+q,2)}, {v(G+q,2)}, {v(G+q+st,2)}')
        k(f'v_mov_b32 v4, {fl(1/768)}')
        k(f'v_mul_f32 v{G}, v4, v{G}\nv_mul_f32 v{G+2}, v{G}, v{G}\nv_fma_f32 v{G+1}, v{G+1}, v4, -v{G+2}\nv_max_f32 v{G+1}, 0, v{G+1}')
        ln_finish(k, G, G+1, G+2)
        k(f'v_mul_f32 v{G}, v{G}, -v{G+1}')
        N = G + 8
        for e in range(2): k(f'v_mov_b32 v{N+e}, v{G+e}\nv_mov_b32 v{N+4+e}, v{G+e}')
        for e in range(2): k(f'v_permlane32_swap_b32 v{N+e}, v{N+4+e}')
        for e in range(2): k(f'v_mov_b32 v{N+2+e}, v{N+e}\nv_mov_b32 v{N+6+e}, v{N+4+e}')
        for e in range(2): k(f'v_permlane16_swap_b32 v{N+e}, v{N+2+e}\nv_permlane16_swap_b32 v{N+4+e}, v{N+6+e}')
        for T_ in z2t:
            for sp in range(2):
                P = AC[T_] + 8*sp
                for u_ in range(2):
                    sg = 2*sp + u_; z = AC[T_] + 4*sg; ms = v(N+2*sg, 2)
                    for hp in range(2):
                        k(f'v_pk_fma_f32 {v(z+2*hp,2)}, {v(z+2*hp,2)}, {ms}, {ms} op_sel:[0,1,0] op_sel_hi:[1,1,0]')
                    k(f'v_cvt_pk_bf16_f32 v{P+2*u_}, v{z}, v{z+1}\nv_cvt_pk_bf16_f32 v{P+2*u_+1}, v{z+2}, v{z+3}')
                k(f'v_permlane16_swap_b32 v{P}, v{P+2}\nv_permlane16_swap_b32 v{P+1}, v{P+3}')
                if T_ == 1: k(f's_add_u32 s{32+sp}, s{32+sp}, {ZS}')
                vm.issue(f'buffer_store_dwordx4 {v(P,4)}, v26, s[8:11], s{32+sp} offen sc1')
        k(f's_lshl_b32 s30, s18, 5\ns_add_u32 s31, s30, s17\ns_lshl_b32 s31, s31, 7\ns_add_u32 s31, s31, {F2:#x}')
        tk['z'] = vm.n
        mark(k, 13 if hiw else 12, 'B')
    def sig():
        signal(k, vm, 's31', tk['z'])
        mark(k, 12); mark(k, 14, 'B')
    R2 = float(E('FB_RATE2', 2))
    def mkhooks(pairs):
        d = {}
        for g, f in pairs: d.setdefault(g, []).append(f)
        return {g: (lambda fs=fs: [f() for f in fs]) for g, fs in d.items()}
    phaseC_bases(k)
    HO_ = int(E('FB_HO', 0))
    if not hiw:
        h = [int(x) for x in E('FB_H01', '13,6,14,11,18').split(',')]
        assert h[0] >= 8 and h[2] >= h[0] and h[4] >= 6
        hk = mkhooks(zip(h, [readB, statloads, startC, normalize, sig]))
        gemm_loop(k, lg, dma, 0, 20, reads, mk([2], False), lambda g: -1, 1000, R2, hooks=hk)
        if 20 in hk: hk[20]()
        gelu(2, 2)
        if 21 in hk: hk[21]()
        k(f's_lshl_b32 s34, s20, 3\ns_add_u32 s34, s34, {Z1L}')
        z1out(2, 's34')
        while dma.q: dma.one()
        k(f'v_and_b32 v2, 31, v1\nv_lshlrev_b32 v2, 7, v2\ns_lshl_b32 s30, s30, 7\ns_add_u32 s30, s30, {F2:#x}')
        poll(k, vm, 2, 's30')
        k('s_barrier')
        mark(k, 13)
        if HO_:
            k('v_add_u32 v2, s56, v5')
            for sg in range(4): lg.issue(f'ds_read_b128 {v(AC[2]+4*sg,4)}, v2 offset:{1024*sg}')
            lg.issue(f'ds_read_b128 {v(CS+8,4)}, v2 offset:8192')
            lg.all()
        for s_ in range(NPRO):
            for hk_ in range(2):
                for jf in range(2):
                    for hf in range(2):
                        pre = [f's_add_u32 s27, s21, {hk_*32768 + jf*ZS + s_*2048}', f's_add_u32 m0, s56, {s_*16384 + hk_*8192 + jf*2048}'] if hf == 0 else []
                        dma.add(pre, f'buffer_load_dwordx4 v5, s[8:11], s27 offen offset:{hf*1024} sc1 lds', 200)
        for _ in range(int(E('FB_Z0', 8))): dma.one()
        stg_read(dma, lg, 6, False); stg_read(dma, lg, 7, False)
        if HO_:
            gelu(2, int(E('FB_ZE', 2)))
            k(f's_lshl_b32 s34, s20, 10\ns_add_u32 s34, s34, {Z1L+1024+8}')
            z1out(2, 's34')
        while dma.q: dma.one()
    else:
        h = [int(x) for x in E('FB_H23', '1,11,6,12,9,13').split(',')]
        assert h[1] >= 8 and h[3] >= h[1] and h[5] >= 6
        hk = mkhooks(zip(h, [barX, readB, statloads, startC, normalize, sig]))
        gemm_loop(k, lg, dma, 0, 20, reads, mk([1, 2], False), lambda g: -1, 1000, 2*R2, hooks=hk)
        if HO_:
            k('s_lshl_b32 s36, s20, 12\nv_add_u32 v2, s36, v5')
            for sg in range(4): lg.issue(f'ds_write_b128 v2, {v(AC[2]+4*sg,4)} offset:{1024*sg}')
            lg.issue(f'ds_write_b128 v2, {v(CS+8,4)} offset:8192')
        lg.all()
        YP = int(E('FB_YP', 1))
        if YP == 0: k('s_barrier')
        gelu(1, 2)
        while dma.q: dma.one()
        if YP == 1: k('s_barrier')
        k(f's_lshl_b32 s34, s20, 10\ns_add_u32 s34, s34, {Z1L+1024}')
        z1out(1, 's34')
        if not HO_:
            gelu(2)
            k('s_add_u32 s34, s34, 8')
            z1out(2, 's34')
        stg_read(dma, lg, 6); stg_read(dma, lg, 7)
        mark(k, 15, 'B')
    lg.all()

NPRO = int(E('FC_NPRO', 4)); P1S = int(E('FD_P1S', 0))
def phaseC_bases(k):
    k(f's_mul_i32 s21, s18, 6\ns_add_u32 s21, s21, s20\ns_mul_i32 s21, s21, {ZS}\ns_lshl_b32 s36, s19, 15\ns_add_u32 s21, s21, s36\ns_add_u32 s21, s21, {WS_Z2:#x}')
    k(f's_add_u32 s54, s21, {4*ZS}\ns_mul_i32 s36, s20, {ZS}\ns_add_u32 s21, s21, s36\ns_lshl_b32 s56, s16, 12')

WOB = [((17+c) % 7)*16384 for c in range(7)] + [114688]
def waddr(q):
    o = WOB[q//16] + (q % 16)*1024
    return f'v5 offset:{o}' if o < 61440 else f'v6 offset:{o-61440}'

def flag_store(k, soff):
    L = k.lab('sig')
    k(f's_cmp_lg_u32 s16, 0\ns_cbranch_scc1 {L}')
    k('v_mov_b32 v2, 0\nv_mov_b32 v3, s6\ns_mov_b64 exec, 1')
    k(f'buffer_store_dword v3, v2, s[8:11], {soff} offen sc1')
    k('s_mov_b64 exec, -1')
    k(f'{L}:')

def phaseCD(k):
    vm = Cnt(k, 'vmcnt', 63); lg = Cnt(k, 'lgkmcnt', 15)
    dma = Dma(k, vm)
    NS = 7; RED = 122880
    k(f's_mul_i32 s22, s18, 122880\ns_add_u32 s22, s22, {WS_WO:#x}\ns_lshr_b32 s25, s56, 1\ns_add_u32 s26, s22, s25\ns_add_u32 s22, s22, s56')
    mark(k, 0, 'C')
    GS = [int(x) for x in E('FC_GS', '0,1,2,4,6,8,10,12,14,16,17,18,19,20,21,22,23').split(',')]
    grp = lambda st: max(i for i, f in enumerate(GS) if f <= st)
    def freeat(X):
        c = [i for i, f in enumerate(GS) if f >= X+2]
        return c[0] if c else 99
    for s_ in range(NPRO): vm.n += 8; dma.tok[grp(s_)] = vm.n
    for s_ in range(NPRO, 24):
        sl = s_ % NS; af = freeat(s_ - NS) if s_ >= NS else 0
        assert af < grp(s_)
        for q in range(4):
            if s_ < 16:
                jf, hf = q//2, q % 2
                pre = [f's_add_u32 s27, s21, {jf*ZS + (s_ % int(E("X_ZM", 99)))*2048}', f's_add_u32 m0, s56, {sl*16384 + jf*2048}'] if hf == 0 else []
                off = hf*1024
            else:
                pre = [f's_add_u32 s27, s54, {(s_-16)*4096}' if not E('X_ZM') else f's_add_u32 s27, s21, {(s_ % 2)*4096}', f's_add_u32 m0, s56, {sl*16384}'] if q == 0 else []
                off = q*1024
            dma.add(pre, f'buffer_load_dwordx4 v5, s[8:11], s27 offen offset:{off} sc1 lds', grp(s_), af)
    for c in range(7):
        for q in range(4):
            pre = [f's_add_u32 s27, s22, {c*16384}', f's_add_u32 m0, s56, {WOB[c]}'] if q == 0 else []
            dma.add(pre, f'buffer_load_dwordx4 v5, s[8:11], s27 offen offset:{q*1024} sc1 lds', 150+c, freeat(17+c))
    for q in range(2):
        pre = [f's_add_u32 s27, s26, {7*16384}', f's_add_u32 m0, s25, {WOB[7]}'] if q == 0 else []
        dma.add(pre, f'buffer_load_dwordx4 v5, s[8:11], s27 offen offset:{q*1024} sc1 lds', 157, 99)
    ZA = 16
    k('v_bfe_u32 v2, v1, 2, 2\nv_and_b32 v3, 1, v8\nv_lshl_add_u32 v2, v3, 2, v2\nv_lshrrev_b32 v3, 1, v8\nv_lshl_add_u32 v2, v3, 4, v2')
    k('v_and_b32 v3, 3, v1\nv_lshlrev_b32 v3, 3, v3\nv_lshl_add_u32 v2, v2, 5, v3')
    k('s_lshl_b32 s36, s19, 13')
    k(f'v_add_u32 v{ZA}, s36, v2\nv_add_u32 v{ZA+1}, 0x10000, v{ZA}')
    k('s_lshl_b32 s23, s20, 1\ns_add_u32 s23, s23, s19')
    k('s_lshl_b32 s36, s17, 2\ns_add_u32 s24, s36, s23')
    k('s_lshl_b32 s36, s24, 5')
    k('v_lshl_add_u32 v2, v7, 1, s36')
    BS = 20
    tB = vm.issue(f'global_load_ushort v{BS}, v2, s[38:39]')
    k(f's_mul_i32 s36, s16, 6144\ns_add_u32 s36, s36, {RED}\ns_xor_b32 s35, s16, 2\ns_mul_i32 s35, s35, 6144\ns_add_u32 s35, s35, {RED}')
    k('v_add_u32 v11, s36, v5\nv_add_u32 v12, s35, v5\nv_add_u32 v6, 61440, v5')
    k(f's_mul_i32 s36, s23, 3072\ns_add_u32 s36, s36, {Z1L}\nv_add_u32 v19, s36, v5')
    k(f's_mul_i32 s30, s24, 24576\ns_lshl_b32 s31, s18, 10\ns_add_u32 s30, s30, s31\ns_add_u32 s30, s30, {WS_P:#x}\ns_add_u32 s29, s30, 16384\ns_add_u32 s30, s30, s31')
    k(f's_lshl_b32 s28, s17, 10\ns_lshl_b32 s31, s18, 7\ns_add_u32 s31, s31, s28\ns_add_u32 s33, s31, {F3A:#x}\ns_add_u32 s31, s31, {F3:#x}')
    k(f's_add_u32 s34, s28, {F3A:#x}\ns_add_u32 s28, s28, {F3:#x}')
    k('v_and_b32 v13, 7, v1\nv_lshlrev_b32 v13, 7, v13')
    FR = 68
    def accr(ft, tau): return 116 + 16*tau + 4*ft if ft < 4 else 148 + 8*tau + 4*(ft-4)
    lg.all()
    mark(k, 1, 'C')
    dma.sync(0)
    mark(k, 2, 'C')
    def reads(g):
        s_, hf = g // 2, g % 2; sl = s_ % NS; b = FR + 16*(g % 3)
        ar = ZA + sl//4; off = (sl % 4)*16384
        out = []
        for q in range(4):
            o = off + (q*2048 + hf*1024 if g < 32 else (q % 2)*4096 + (2*hf + q//2)*1024)
            out += [f'ds_read_b64_tr_b16 {v(b+4*q,2)}, v{ar} offset:{o}', f'ds_read_b64_tr_b16 {v(b+4*q+2,2)}, v{ar} offset:{o+256}']
        return out
    def mfmas(g):
        b = FR + 16*(g % 3); out = []
        for q in range(4):
            ft, ks = (q, g) if g < 32 else (4 + q % 2, 2*(g-32) + q//2)
            if E('X_M32'):
                d = 116 + 16*(q//2) if g < 32 else 148
                z = (g == 0 and q % 2 == 0) or (g == 32 and q == 0)
                out.append(f'v_mfma_f32_32x32x16_bf16 {v(d,16)}, {v(b+4*q,4)}, {wreg(ks//4, 8*(ks % 4)+4*(q % 2))}, {"0" if z else v(d,16)}')
                continue
            for tau in range(2):
                d = accr(ft, tau)
                out.append(f'{MF} {v(d,4)}, {v(b+4*q,4)}, {wreg(ks//4, 8*(ks % 4)+4*tau)}, {"0" if ks == 0 else v(d,4)}')
        return out
    ZR = 24; TT = 36
    tk = {}
    def z1rd():
        for q in range(3): lg.issue(f'ds_read_b128 {v(ZR+4*q,4)}, v19 offset:{1024*q}')
        vm.wait(tB)
        k(f'v_lshlrev_b32 v{BS}, 16, v{BS}')
    def redw(fts):
        for ft in fts: lg.issue(f'ds_write_b128 v11, {v(accr(ft,1),4)} offset:{1024*ft}')
        lg.all()
    def redr(fts):
        for ft in fts: tk[ft] = lg.issue(f'ds_read_b128 {v(accr(ft,1),4)}, v12 offset:{1024*ft}')
    def epi(fts):
        for ft in fts:
            d = accr(ft, 0); z = ZR + 2*ft; P = accr(ft & ~1, 0) + 2*(ft % 2)
            lg.wait(tk[ft])
            for hp in range(2):
                k(f'v_pk_add_f32 {v(d+2*hp,2)}, {v(d+2*hp,2)}, {v(accr(ft,1)+2*hp,2)}')
                k(f'v_lshlrev_b32 v{TT+2*hp}, 16, v{z+hp}\nv_and_b32 v{TT+2*hp+1}, 0xffff0000, v{z+hp}')
                k(f'v_pk_add_f32 {v(d+2*hp,2)}, {v(d+2*hp,2)}, {v(BS,2)} op_sel_hi:[1,0]')
                k(f'v_pk_mul_f32 {v(d+2*hp,2)}, {v(d+2*hp,2)}, {v(TT+2*hp,2)}')
            k(f'v_cvt_pk_bf16_f32 v{P}, v{d}, v{d+1}\nv_cvt_pk_bf16_f32 v{P+1}, v{d+2}, v{d+3}')
            if ft % 2:
                tk['p'] = vm.issue(f'buffer_store_dwordx4 {v(P-2,4)}, v5, s[8:11], ' + (f's30 offen offset:{(ft//2)*1024} sc1' if ft < 4 else 's29 offen sc1'))
    def issue_poll(sreg): tk['f'] = vm.issue(f'buffer_load_dword v14, v13, s[8:11], {sreg} offen sc1')
    def check_poll(sreg):
        Lo = k.lab('fok')
        vm.wait(tk['f'])
        k(f'v_cmp_ne_u32 vcc, s6, v14\ns_cbranch_vccz {Lo}')
        poll(k, Cnt(k, 'vmcnt', 63), 13, sreg)
        k(f'{Lo}:')
    k(f's_lshl_b32 s23, s17, 2\ns_add_u32 s23, s23, s16\ns_mul_i32 s32, s23, 24576\ns_add_u32 s32, s32, {WS_P:#x}')
    PFR = list(range(116, 148, 4)) + list(range(164, 180, 4)) + list(range(68, 116, 4)); ACC = 232
    pt = []
    def pld(lim):
        g = len(pt)
        if g >= lim: return False
        if g % 4 == 0 and g: k('s_add_u32 s32, s32, 4096')
        pt.append(vm.issue(f'buffer_load_dwordx4 {v(PFR[g],4)}, v5, s[8:11], s32 offen offset:{(g % 4)*1024} sc1'))
        return True
    k('s_mov_b32 s24, s32')
    h = [int(x) for x in E('FC_H', '32,33,34,38,46').split(',')]
    assert h[0] >= 32 and h[0] % 2 == 0 and h[3] % 2 == 0 and (h[0]+2)//2 in GS and (h[3]+2)//2 in GS
    hooks = {30: z1rd, h[0]: lambda: redw(range(4)), h[1]: lambda: redr(range(4)), h[2]: lambda: epi(range(4)),
             h[3]: lambda: vm.wait(tk['p']), h[3]+1: lambda: flag_store(k, 's33'), h[4]: lambda: issue_poll('s34')}
    if P1S:
        for q in (h[3], h[3]+1, h[4]): del hooks[q]
        for g in range(int(E('FD_G1', 44)), 48): hooks[g] = lambda: [pld(12) for _ in range(int(E('FD_N1', 2)))]
    for i in range(1, 4): hooks[8*i] = (lambda i=i: mark(k, 2+i, 'C'))
    dma.novm = int(E('X_NOVM', 0)); dma.nobar = int(E('X_NOBAR', 0)); dma.nodma = int(E('X_NODMA', 0))
    gemm_loop(k, lg, dma, 0, 48, reads, mfmas, lambda g: grp(g//2), 1000, float(E('FC_RATE', 3)), hooks=hooks)
    while dma.ready(): dma.one()
    mark(k, 14); mark(k, 11, 'C'); mark(k, 0, 'D')
    SG = int(E('FD_SG', 0))
    P0 = int(E('FD_P0', 6))
    for ft in (4, 5): lg.issue(f'ds_write_b128 v11, {v(accr(ft,1),4)} offset:{1024*ft}')
    if P0:
        if not P1S: check_poll('s34')
        while len(pt) < P0: pld(16)
    if SG >= 0: vm.wait(dma.tok[152])
    lg.all()
    k('s_barrier'); dma.bar = 99
    dma.upto(154)
    redr((4, 5))
    epi((4, 5))
    mark(k, 1, 'D')
    if not P0 and not P1S: check_poll('s34')
    while len(pt) < int(E('FD_PRE', 8)): pld(16)
    k('s_mul_i32 s33, s23, 20480\ns_mul_i32 s34, s18, 160\ns_add_u32 s33, s33, s34')
    k('v_mul_u32_u24 v9, 1280, v7\nv_lshl_add_u32 v10, v8, 3, v9')
    k('v_and_b32 v3, 1, v8\nv_lshl_add_u32 v9, v3, 5, v9\nv_lshrrev_b32 v3, 1, v8\nv_lshl_add_u32 v9, v3, 4, v9')
    for q in range(10): k(f'v_lshlrev_b32 v{ACC+2*q}, 16, v{RES+q}\nv_and_b32 v{ACC+2*q+1}, 0xffff0000, v{RES+q}')
    mark(k, 2, 'D')
    ft = {}
    def rd(g): return [f'ds_read_b128 {a(20*(g % 3)+4*j,4)}, {waddr(5*g+j)}' for j in range(5)]
    for g in range(2):
        for r in rd(g): ft[g] = lg.issue(r)
    GP = int(E('FD_GP', 10)); B1 = int(E('FD_B1', 5)); B2 = int(E('FD_B2', 13))
    assert B1 <= 7 and B2 <= 14
    def pcheck(g0, g1):
        Lr = k.lab('p2r'); Lo = k.lab('p2o')
        while pld(g1): pass
        vm.wait(pt[g1-1])
        k('s_mov_b32 s37, 0')
        k(f'{Lr}:')
        regs = [PFR[g]+q for g in range(g0, g1) for q in range(4)]
        k(f'v_max3_u32 v2, v{regs[0]}, v{regs[1]}, v{regs[2]}\nv_max3_u32 v3, v{regs[3]}, v{regs[4]}, v{regs[5]}')
        for q in range(6, len(regs), 2): k(f'v_max3_u32 v{2 + (q//2) % 2}, v{2 + (q//2) % 2}, v{regs[q]}, v{regs[q+1]}')
        k('v_max_u32 v2, v2, v3\nv_cmp_eq_u32 vcc, -1, v2')
        k(f's_cbranch_vccz {Lo}')
        k(f's_add_u32 s37, s37, 1\ns_cmp_gt_u32 s37, {SPIN//8}\ns_cbranch_scc1 {Lo}')
        for g in range(g0, g1):
            if g % 4 == 0: k(f's_add_u32 s36, s24, {g*1024}')
            k(f'buffer_load_dwordx4 {v(PFR[g],4)}, v5, s[8:11], s36 offen offset:{(g % 4)*1024} sc1')
        k('s_waitcnt vmcnt(0)')
        k(f's_branch {Lr}')
        k(f'{Lo}:')
    CK = [int(x) for x in E('FD_CK', '0,4,8,12,16,20,24' if P1S else '16,20,24').split(',')]
    NT = int(E('FD_NT', 2))
    for g in range(24-NT):
        if g == B1:
            vm.wait(dma.tok[154]); k('s_barrier')
            mark(k, 15); mark(k, 3, 'D')
        if g == B2:
            while dma.q: dma.one()
            vm.wait(dma.tok[157]); k('s_barrier')
        if g == 16: mark(k, 6, 'D')
        if g in CK: pcheck(g, CK[CK.index(g)+1])
        if g == 16: mark(k, 7, 'D')
        vm.wait(pt[g])
        lg.wait(ft[g])
        if g in (0, 8): mark(k, 4+g//8, 'D')
        rr = rd(g+2) if g+2 < 24 else []
        for j in range(5):
            if j in (0, 3) and len(pt) >= 16: dma.pre()
            k(f'{MF} {v(ACC+4*j,4)}, {a(20*(g % 3)+4*j,4)}, {v(PFR[g],4)}, {v(ACC+4*j,4)}')
            if j in (0, 3):
                if dma.pend is not None: dma.fire()
                else: pld(16 if g < GP else 24)
            if j == 1 and g >= GP: pld(24)
            if rr: ft[g+2] = lg.issue(rr.pop(0))
    assert NT <= 3 and not [c for c in CK if 24-NT <= c < 24]
    if NT == 3:
        for r in rd(23): ft[23] = lg.issue(r)
    OST = E('F_OST', '')
    def fin(j):
        d = ACC + 4*j; P = ACC + 8*(j//2) + 2*(j % 2); r = Rec()
        r(f'v_cvt_pk_bf16_f32 v{P}, v{d}, v{d+1}\nv_cvt_pk_bf16_f32 v{P+1}, v{d+2}, v{d+3}')
        if j % 2:
            r(f'v_permlane16_swap_b32 v{P-2}, v{P}\nv_permlane16_swap_b32 v{P-1}, v{P+1}')
            r(f'buffer_store_dwordx4 {v(P-2,4)}, v9, s[40:43], s33 offen offset:{32*(j-1)} {OST}')
        elif j == 4:
            r(f'buffer_store_dwordx2 {v(P,2)}, v10, s[40:43], s33 offen offset:128 {OST}')
        return r.L
    pend = []
    for j in range(5):
        for g in range(24-NT, 24):
            lg.wait(ft[g])
            k(f'{MF} {v(ACC+4*j,4)}, {a(20*(g % 3)+4*j,4)}, {v(PFR[g],4)}, {v(ACC+4*j,4)}')
            for _ in range(2):
                if pend: k(pend.pop(0))
        if j >= 1 and NT: pend += fin(j-1)
    mark(k, 8, 'D')
    for x in pend: k(x)
    for j in range(4 if NT else 0, 5):
        for x in fin(j): k(x)

def helper0(k, vm):
    lg = Cnt(k, 'lgkmcnt', 15)
    k('v_lshrrev_b32 v2, 2, v1\nv_and_b32 v3, 3, v1\nv_mul_u32_u24 v2, 160, v2\nv_lshl_add_u32 v2, v3, 3, v2\ns_lshl_b32 s27, s16, 5\nv_add_u32 v57, s27, v2')
    tk = []
    for p in range(5):
        lg.issue(f'ds_read_b64_tr_b16 {v(12+4*p,2)}, v57 offset:{p*5120}')
        tk.append(lg.issue(f'ds_read_b64_tr_b16 {v(14+4*p,2)}, v57 offset:{p*5120+2560}'))
    for r in range(4): k(f'v_mov_b32 v{48+r}, 0x3f803f80')
    k('s_and_b32 s45, s44, 3\ns_and_b32 s46, s44, -4\ns_add_u32 s46, s46, s16')
    k(f's_mul_i32 s47, s46, 20\ns_mul_i32 s50, s45, 5\ns_add_u32 s47, s47, s50\ns_lshl_b32 s47, s47, 10\ns_add_u32 s47, s47, {WS_W1:#x}\ns_add_u32 s50, s47, 4096')
    for p in range(5):
        lg.wait(tk[p])
        k(f'{MF} v[44:47], {v(12+4*p,4)}, v[48:51], {"0" if p == 0 else "v[44:47]"}')
        vm.issue(f'buffer_store_dwordx4 {v(12+4*p,4)}, v5, s[8:11], ' + (f's47 offen offset:{p*1024} sc1' if p < 4 else 's50 offen sc1'))
    k(f's_mul_i32 s47, s45, 6144\ns_lshl_b32 s50, s46, 6\ns_add_u32 s47, s47, s50\ns_add_u32 s47, s47, {WS_CS:#x}')
    k('v_lshlrev_b32 v2, 4, v8')
    k('s_mov_b32 exec_lo, 0x00010001\ns_mov_b32 exec_hi, 0x00010001')
    tS = vm.issue('buffer_store_dwordx4 v[44:47], v2, s[8:11], s47 offen sc1')
    k('s_mov_b64 exec, -1')
    for p in range(3):
        vm.issue(f'global_load_dwordx4 {v(164+4*p,4)}, v191, s[48:49]')
        if p < 2: k(f'v_add_u32 v191, {32*1280}, v191')
    k(f's_lshl_b32 s47, s44, 7\ns_add_u32 s47, s47, {F0B:#x}')
    mark(k, 12, 'H')
    signal(k, vm, 's47', tS)

def helper1(k):
    for p in range(3): k(f'ds_write_b128 v56, {v(164+4*p,4)} offset:{p*5120}')
    k('s_lshr_b32 s47, s44, 3\ns_lshl_b32 s47, s47, 2\ns_add_u32 s47, s47, s16\ns_mul_i32 s48, s47, 52\ns_lshr_b32 s48, s48, 8\ns_mul_i32 s49, s48, 5\ns_sub_u32 s49, s47, s49')
    k(f's_and_b32 s47, s44, 7\ns_mul_i32 s50, s47, 5120\ns_mul_i32 s48, s48, 120\ns_add_u32 s47, s48, s49\ns_lshl_b32 s47, s47, 10\ns_add_u32 s47, s47, {WS_WO:#x}\ns_add_u32 s47, s47, s50\ns_add_u32 s51, s47, {16*5120}\ns_add_u32 s47, s47, s50')
    k('s_waitcnt lgkmcnt(0)\ns_barrier')
    for p in range(3):
        k(f'ds_read_b64_tr_b16 {v(12+4*p,2)}, v57 offset:{p*5120}\nds_read_b64_tr_b16 {v(14+4*p,2)}, v57 offset:{p*5120+2560}')
    k('s_waitcnt lgkmcnt(0)\ns_barrier')
    L = k.lab('nwo')
    k(f's_cmp_ge_u32 s44, 80\ns_cbranch_scc1 {L}')
    for p in range(3):
        k(f'buffer_store_dwordx4 {v(12+4*p,4)}, v5, s[8:11], s{47 if p < 2 else 51} offen sc1')
        if p == 0: k('s_add_u32 s47, s47, 5120')
    k(f'{L}:')

def gen_ks():
    k = Kern(NAME, 256, 256, 163840)
    k.short = 'ks'
    Lend = 'Lks_end'
    k(f's_cmp_ge_u32 s2, 256\ns_cbranch_scc1 {Lend}')
    stamp_begin(k)
    k('s_load_dwordx16 s[44:59], s[0:1], 0')
    k('s_load_dwordx2 s[6:7], s[0:1], 112')
    k('s_load_dwordx4 s[28:31], s[0:1], 96')
    k('s_load_dwordx8 s[20:27], s[0:1], 64')
    k('s_memrealtime s[4:5]')
    k('s_getpc_b64 s[18:19]')
    k('Lks_pc:')
    k(f's_sub_u32 s18, s18, Lks_pc-{NAME}\ns_subb_u32 s19, s19, 0')
    k('s_lshr_b32 s17, s2, 3\ns_lshl_b32 s17, s17, 11')
    k(f'v_lshrrev_b32 v2, 4, v0\nv_lshlrev_b32 v2, 7, v2\nv_add_u32 v2, s17, v2\nv_min_u32 v2, Lcode_end-{NAME}-4, v2')
    k('global_load_dword v239, v2, s[18:19]')
    k('v_lshrrev_b32 v5, 6, v0')
    k('v_readfirstlane_b32 s16, v5')
    k('v_and_b32 v1, 63, v0\nv_lshlrev_b32 v5, 4, v1\nv_and_b32 v7, 15, v1\nv_lshrrev_b32 v8, 4, v1')
    k('v_lshrrev_b32 v2, 5, v0\nv_and_b32 v3, 31, v0\nv_lshlrev_b32 v3, 3, v3')
    k('v_mul_u32_u24 v50, 1280, v2\ns_mul_i32 s3, s2, 10240\nv_add3_u32 v50, v50, v3, s3')
    k(f'v_mul_u32_u24 v51, 1344, v2\nv_add_u32 v51, v51, v3\nv_add_u32 v51, {LNB}, v51')
    ln1_addr(k)
    k('s_lshl_b32 s3, s2, 2\ns_add_u32 s3, s3, s16')
    k('s_mul_i32 s17, s3, 384\nv_lshl_add_u32 v2, v1, 1, s17\ns_lshl_b32 s17, s3, 1\nv_mov_b32 v3, s17')
    for r in list(range(PR, PR+13)) + [AUX, AP0, AST, 190, 191, 132, 133, 134, 135]: k(f'v_mov_b32 v{r}, 0')
    k('s_lshl_b32 s34, s3, 1\ns_and_b32 s34, s34, -4')
    k('s_waitcnt lgkmcnt(0)')
    L = k.lab('nnw')
    k(f's_cmp_lg_u32 s3, 0\ns_cbranch_scc1 {L}')
    k('s_or_b32 s4, s4, 1\nv_mov_b32 v4, 0\nv_mov_b32 v6, s4\ns_mov_b64 exec, 1')
    k('global_store_dword v4, v6, s[30:31] sc1')
    k('s_mov_b64 exec, -1')
    k(f'{L}:')
    for q in range(5): k(f'global_load_dwordx2 {v(12+2*q,2)}, v50, s[44:45] offset:{q*256}')
    mark(k, 0)
    k('s_cmp_ge_u32 s2, 160\ns_cbranch_scc1 Lks_h0')
    def common_setup():
        srd(k, 8, 6, WS_SIZE); srd(k, 12, 22, 2048*4096); srd(k, 40, 28, 2048*1280)
        k('s_mov_b64 s[32:33], s[30:31]')
        k('s_mov_b64 s[38:39], s[24:25]')
        cb = MAPB
        k(f's_and_b32 s17, s2, 7\ns_lshr_b32 s17, s17, {3-cb}\ns_lshl_b32 s17, s17, {5-cb}\ns_lshr_b32 s18, s2, {3+cb}\ns_add_u32 s17, s17, s18')
        k(f's_and_b32 s18, s2, {(1 << (3-cb))-1}\ns_lshl_b32 s18, s18, {cb}\ns_lshr_b32 s19, s2, 3\ns_and_b32 s19, s19, {(1 << cb)-1}\ns_add_u32 s18, s18, s19')
        k('s_lshr_b32 s19, s16, 1\ns_and_b32 s20, s16, 1')
        k('s_lshl_b32 s25, s16, 1\ns_add_u32 s26, s16, 2\ns_cmp_lt_u32 s16, 2')
        k('s_cselect_b32 s22, s25, s26\ns_add_u32 s22, s22, 48')
        k('s_add_u32 s26, s25, 49\ns_sub_u32 s27, s25, 2\ns_cmp_lt_u32 s16, 2\ns_cselect_b32 s23, s26, s27')
        k('s_sub_u32 s27, s25, 1\ns_cmp_lt_u32 s16, 2\ns_cselect_b32 s24, s16, s27')
        k('s_mul_i32 s25, s18, 6')
        for r in (22, 23, 24): k(f's_add_u32 s{r}, s{r}, s25\ns_lshl_b32 s{r+35}, s{r}, 6\ns_add_u32 s{r+35}, s{r+35}, {WS_CS:#x}\ns_mul_i32 s{r}, s{r}, 20480\ns_add_u32 s{r}, s{r}, {WS_W1:#x}')
        k(f's_lshl_b32 s29, s17, 12\ns_add_u32 s29, s29, {WS_ST:#x}')
        k('s_lshl_b32 s27, s18, 9\ns_add_u32 s27, s27, s29\ns_lshl_b32 s26, s16, 7\ns_add_u32 s27, s27, s26')
        k('v_lshlrev_b32 v2, 3, v7\nv_mov_b32 v10, -1.0\nv_mov_b32 v11, -1.0')
        k('buffer_store_dwordx2 v[10:11], v2, s[8:11], s27 offen sc1')
    k('global_load_short_d16_hi v68, v3, s[54:55]')
    for g in range(3):
        for i in range(4): k(f'global_load_short_d16_hi v{PR+4*g+i}, v2, s[{46+2*i}:{47+2*i}] offset:{128*g}')
    k('s_load_dword s35, s[56:57], s34')
    PFS = int(E('C_PFS', 0))
    k('s_mov_b64 s[4:5], s[20:21]\ns_mov_b64 s[36:37], s[26:27]')
    PFW = int(E('C_PFW', 0))
    def pfw_addr():
        k('v_min_u32 v2, 23, v1\nv_lshlrev_b32 v2, 7, v2\ns_mul_i32 s27, s3, 3072\nv_add_u32 v2, s27, v2')
        k('v_min_u32 v3, 11, v1\nv_lshlrev_b32 v3, 7, v3\ns_mul_i32 s27, s3, 1536\nv_add_u32 v3, s27, v3')
    if PFW == 2:
        pfw_addr(); k('global_load_dword v190, v2, s[4:5]\nglobal_load_dword v191, v3, s[36:37]')
    common_setup()
    stg_setup(k, 132)
    A0 = int(E('C_A0', 0))
    r = Rec(); conv_early(r)
    if E('C_LATE', '1') == '0': conv_late(r)
    if E('C_BL', '1') == '0': conv_bands(r)
    dq = []
    if A0:
        for q in range(4):
            for j in range(4):
                dq.append(f's_add_u32 s31, s28, {(q//2)*256 + (q % 2)*65536}\ns_add_u32 m0, s26, {q*4096 + j*1024}\nbuffer_load_dwordx4 v{132+j}, s[12:15], s31 offen lds')
    for n, x in enumerate(r.L):
        if n % int(E('C_A0R', 4)) == 0 and n >= int(E('C_A0S', 0)) and dq: k(dq.pop(0))
        k(x)
    for x in dq: k(x)
    if PFW == 1: pfw_addr()
    k(f's_waitcnt vmcnt({14 + 2*(PFW == 2) + 16*A0})')
    if PFW == 1: k('global_load_dword v190, v2, s[4:5]\nglobal_load_dword v191, v3, s[36:37]')
    k('s_branch Lks_ln')
    k('Lks_h0:')
    k('s_mov_b64 s[46:47], s[20:21]\ns_mov_b64 s[48:49], s[26:27]\ns_sub_u32 s44, s2, 160')
    common_setup()
    f0b_addr(k)
    k('v_lshrrev_b32 v2, 3, v0\nv_and_b32 v3, 7, v0\nv_lshlrev_b32 v3, 4, v3')
    k(f's_and_b32 s45, s44, 3\ns_mul_i32 s45, s45, {160*3072}\ns_lshr_b32 s27, s44, 2\ns_lshl_b32 s27, s27, 7\ns_add_u32 s45, s45, s27')
    k('v_mul_u32_u24 v4, 3072, v2\nv_add3_u32 v190, v4, v3, s45')
    k(f's_min_u32 s27, s44, 79\ns_and_b32 s45, s27, 7\ns_mul_i32 s45, s45, {96*1280}\ns_lshr_b32 s27, s27, 3\ns_lshl_b32 s27, s27, 7\ns_add_u32 s45, s45, s27')
    k('v_mul_u32_u24 v4, 1280, v2\nv_add3_u32 v191, v4, v3, s45')
    k('v_mul_u32_u24 v56, 160, v2\nv_add_u32 v56, v56, v3')
    k('s_waitcnt vmcnt(1)')
    k('Lks_ln:')
    mark(k, 1)
    ln1(k)
    k('s_cmp_ge_u32 s2, 160\ns_cbranch_scc1 Lks_h1')
    k('s_and_b32 s50, s3, 1\ns_xor_b32 s50, s50, 1\ns_lshl_b32 s50, s50, 4\ns_lshl_b32 s51, s35, s50\ns_lshr_b32 s51, s51, 16')
    k(f's_waitcnt vmcnt({7 + 2*bool(PFW) + 16*A0})')
    if PFS:
        k('v_lshrrev_b32 v2, 2, v1\nv_lshlrev_b32 v2, 11, v2\nv_and_b32 v3, 3, v1\nv_lshl_add_u32 v2, v3, 7, v2')
        for j in range(PFS):
            k(f's_add_u32 s45, s3, {640*j}\ns_min_u32 s45, s45, 1023')
            k('s_lshr_b32 s27, s45, 8\ns_lshl_b32 s27, s27, 9\ns_and_b32 s45, s45, 255\ns_lshl_b32 s45, s45, 15\ns_add_u32 s45, s45, s27')
            k(f'buffer_load_dword v{186+j}, v2, s[12:15], s45 offen')
    def sig0(nsl):
        k(f's_waitcnt vmcnt({PFS + nsl})')
        get_nonce(k)
        signal(k, Cnt(k, 'vmcnt', 63), 's30')
        mark(k, 2)
    kgen(k, sig0)
    phaseA(k)
    k('s_branch Lks_B')
    k('Lks_h1:')
    k('s_waitcnt vmcnt(5)')
    get_nonce(k)
    vm = Cnt(k, 'vmcnt', 63)
    for p in range(5):
        vm.issue(f'global_load_dwordx4 {v(144+4*p,4)}, v190, s[46:47]')
        if p < 4: k(f'v_add_u32 v190, {32*3072}, v190')
    mark(k, 7, 'H')
    k('s_waitcnt vmcnt(5)')
    mark(k, 8, 'H')
    signal(k, vm, 's30', 0)
    mark(k, 2); mark(k, 9, 'H')
    k('s_waitcnt vmcnt(0)')
    mark(k, 10, 'H')
    for p in range(5): k(f'ds_write_b128 v56, {v(144+4*p,4)} offset:{p*5120}')
    k('s_waitcnt lgkmcnt(0)\ns_barrier')
    k('s_sub_u32 s44, s2, 160')
    mark(k, 11, 'H')
    helper0(k, Cnt(k, 'vmcnt', 63))
    mark(k, 13, 'H')
    mark(k, 3)
    PFH = E('F_PFH', '2,0')
    def touch(js):
        for j in js:
            k(f's_lshl_b32 s45, s44, 2\ns_add_u32 s45, s45, s16\ns_add_u32 s45, s45, {384*j + int(E("F_PFB", 256))}\ns_min_u32 s45, s45, 1023')
            if LIN: k('s_lshl_b32 s45, s45, 13')
            else: k('s_lshr_b32 s46, s45, 8\ns_lshl_b32 s46, s46, 9\ns_and_b32 s45, s45, 255\ns_lshl_b32 s45, s45, 15\ns_add_u32 s45, s45, s46')
            k(f'buffer_load_dword v{100+j}, v99, s[12:15], s45 offen {E("F_PFF", "")}')
    n1, n2 = [int(x) for x in PFH.split(',')]
    LIN = int(E('F_LIN', 0))
    if LIN: k('v_lshlrev_b32 v99, 7, v1')
    else: k('v_lshrrev_b32 v2, 2, v1\nv_lshlrev_b32 v2, 11, v2\nv_and_b32 v3, 3, v1\nv_lshl_add_u32 v99, v3, 7, v2')
    HO = E('H_ORD', 'T')
    vm = Cnt(k, 'vmcnt', 63); dma = Dma(k, vm)
    def roundA():
        stg_setup(k, 60)
        for q in range(4):
            k(f's_add_u32 s31, s28, {(q//2)*256 + (q % 2)*65536}')
            for j in range(4): k(f's_add_u32 m0, s26, {q*4096 + j*1024}\nbuffer_load_dwordx4 v{60+j}, s[12:15], s31 offen lds')
    for ch in HO:
        if ch == 'A': roundA()
        if ch == 'T': touch(range(n1))
    w1_items(dma, [0, 1])
    k(f's_mov_b32 s47, {F0B:#x}')
    poll(k, vm, [AB0, AB0+1], 's47')
    mark(k, 4)
    H1 = int(E('H_H1', 40))
    for _ in range(H1): dma.one()
    helper1(k)
    while dma.q: dma.one()
    touch(range(n1, n1+n2))
    if 'A' not in HO: roundA()
    k('s_waitcnt vmcnt(28)')
    k('Lks_B:')
    mark(k, 6)
    phaseB_setup(k)
    k(f's_lshl_b32 s36, s20, 8\ns_lshl_b32 s35, s16, 9\ns_add_u32 s35, s35, {PART}')
    k('v_lshlrev_b32 v9, 3, v1\nv_xor_b32 v25, s36, v9\nv_add_u32 v27, s35, v25')
    k('v_and_b32 v2, 3, v7\nv_bfe_u32 v3, v7, 2, 1\nv_lshl_add_u32 v2, v3, 3, v2\nv_bfe_u32 v3, v7, 3, 1\nv_lshl_add_u32 v2, v3, 2, v2')
    k('v_and_b32 v3, 1, v8\nv_lshl_add_u32 v2, v3, 4, v2\nv_lshlrev_b32 v2, 5, v2\nv_lshrrev_b32 v3, 1, v8\nv_lshl_add_u32 v26, v3, 4, v2')
    vm = Cnt(k, 'vmcnt', 63); dma = Dma(k, vm)
    k(f's_lshl_b32 s36, s17, 2\ns_add_u32 s36, s36, s16\ns_mul_i32 s36, s36, 24576\ns_lshl_b32 s35, s18, 10\ns_add_u32 s36, s36, s35\ns_add_u32 s36, s36, {WS_P+16384:#x}')
    for r in range(4): k(f'v_mov_b32 v{G+r}, -1')
    vm.issue(f'buffer_store_dwordx4 {v(G,4)}, v5, s[8:11], s36 offen sc1')
    if P1S:
        k('s_add_u32 s36, s36, s35\ns_sub_u32 s36, s36, 16384')
        for q in range(2): vm.issue(f'buffer_store_dwordx4 {v(G,4)}, v5, s[8:11], s36 offen offset:{q*1024} sc1')
    k('v_lshlrev_b32 v2, 4, v8')
    for p in range(1, 4): k(f'v_add_u32 v{HF+p}, {6144*p}, v2')
    for T_ in range(3):
        vm.issue(f'buffer_load_dwordx4 {v(CS+4*T_,4)}, v2, s[8:11], s{57+T_} offen sc1')
        for p in range(3): vm.issue(f'buffer_load_dwordx4 {v(AC[0]+12*T_+4*p,4)}, v{HF+1+p}, s[8:11], s{57+T_} offen sc1')
    w1_items(dma, [2], 0, range(T2E))
    while dma.q: dma.one()
    k('v_min_u32 v2, 39, v1\nv_lshrrev_b32 v3, 2, v2\nv_and_b32 v2, 3, v2\nv_lshl_add_u32 v2, v3, 4, v2\nv_lshlrev_b32 v2, 7, v2')
    k(f's_lshl_b32 s30, s16, 9\ns_add_u32 s30, s30, {F1:#x}')
    poll(k, vm, 2, 's30')
    mark(k, 7)
    k('s_cmp_ge_u32 s16, 2\ns_cbranch_scc1 Lks_Bhi')
    phaseB(k, False)
    k('s_branch Lks_C')
    k('Lks_Bhi:')
    phaseB(k, True)
    k('Lks_C:')
    phaseCD(k)
    mark(k, 9, 'D')
    stamp_end(k, 2)
    k(f'{Lend}:')
    k('s_endpgm')
    return k
```

```python
import sys, re
from asmlib import Ins
sys.setrecursionlimit(100000)
src = open(sys.argv[1]).read().split('\n')
i0 = [i for i, l in enumerate(src) if l.endswith('_kernel:')][0]
i1 = [i for i, l in enumerate(src) if l.startswith('Lcode_end')][0]
ins = [Ins(l) for l in src[i0+1:i1]]
lab = {x.label: i for i, x in enumerate(ins) if x.label}
seen = set(); errs = {}
stack = [(0, (), (), ())]
nst = 0
while stack:
    pc, vq, lq, sq = stack.pop()
    while True:
        x = ins[pc]
        if x.cls == 'label':
            key = (pc, vq, lq, sq)
            if key in seen: break
            seen.add(key); nst += 1
            if nst > 200000: print('too many states'); sys.exit(1)
        if x.cls in ('label', 'dir'): pc += 1; continue
        touched = x.r | x.w
        for q, nm in ((vq, 'vm'), (lq, 'lgkm'), (sq, 'smem')):
            for d in q:
                if d and (d & touched):
                    if (nm == 'vm' and x.cls == 'vmem' or nm == 'lgkm' and x.cls == 'ds') and not (d & x.r): continue
                    errs.setdefault((pc, nm), x.text)
        if x.op == 's_waitcnt':
            t = x.text
            m = re.search(r'vmcnt\((\d+)\)', t)
            if m: n = int(m.group(1)); vq = vq[len(vq)-n:] if n < len(vq) and n else (() if n == 0 else vq)
            m = re.search(r'lgkmcnt\((\d+)\)', t)
            if m:
                n = int(m.group(1))
                if n == 0: lq = (); sq = ()
                elif n < len(lq): lq = lq[len(lq)-n:]
        elif x.cls == 'vmem': vq = (vq + (frozenset(x.w),))[-64:]
        elif x.cls == 'ds': lq = lq + (frozenset(x.w),)
        elif x.cls == 'smem': sq = sq + (frozenset(x.w),)
        while vq and not vq[0]: vq = vq[1:]
        while lq and not lq[0]: lq = lq[1:]
        if x.op == 's_endpgm': break
        if x.op == 's_branch': pc = lab[x.ops[0]]; continue
        if x.op and x.op.startswith('s_cbranch'): stack.append((lab[x.ops[0]], vq, lq, sq))
        pc += 1
print('states', nst, 'problems', len(errs))
for (pc, nm), t in sorted(errs.items())[:40]: print(i0+2+pc, nm, t)
```
